```python
import torch

def _softmax(x, axis=-1):
    return torch.softmax(x, dim=axis)
def _gelu(x):
    return torch.nn.functional.gelu(x, approximate="tanh")
def _silu(x):
    return torch.nn.functional.silu(x)
def _sigmoid(x):
    return torch.sigmoid(x)
def _layernorm(x, axis=-1, eps=1e-5):
    m = x.mean(dim=axis, keepdim=True)
    v = x.var(dim=axis, keepdim=True, unbiased=False)
    return (x - m) / torch.sqrt(v + eps)
def _scatter_add(tgt, idx, src, axis=0):
    return tgt.clone().index_add_(axis, idx, src)
def _segment_sum(src, seg, n):
    out = torch.zeros((n,) + src.shape[1:], dtype=src.dtype)
    return out.index_add_(0, seg, src)
def _pad(x, pw):
    flat = tuple(v for pair in reversed(pw) for v in pair)
    return torch.nn.functional.pad(x, flat)

kernel_name = 'parallel_sum__softmax_full_mha__glu_gated_reglu__prompt'

def setup_inputs():

    _w = (lambda a: (lambda t: t.to(torch.bfloat16) if t.is_floating_point() else t)(torch.as_tensor(a)))
    def _A_setup():
        B, S, D = 1, 2048, 640
        return {
            "x": _w((lambda *s: torch.randn(*s, dtype=torch.bfloat16) * 0.05)(B, S, D)),
            "wqkv": _w((lambda *s: torch.randn(*s, dtype=torch.bfloat16) * 0.05)(D, 3 * D)),
            "wo": _w((lambda *s: torch.randn(*s, dtype=torch.bfloat16) * 0.05)(D, D)),
        }
    _A_in = _A_setup()

    def _B_setup():
        B, S, D, F = 1, 2048, 640, 1536
        return {
            "x": _w((lambda *s: torch.randn(*s, dtype=torch.bfloat16) * 0.05)(B, S, D)),
            "W_gate": _w((lambda *s: torch.randn(*s, dtype=torch.bfloat16) * 0.4)(D, F) * (2.0 / D) ** 0.5),
            "W_up": _w((lambda *s: torch.randn(*s, dtype=torch.bfloat16) * 0.4)(D, F) * (2.0 / D) ** 0.5),
            "W_down": _w((lambda *s: torch.randn(*s, dtype=torch.bfloat16) * 0.4)(F, D) * (1.0 / F) ** 0.5),
        }
    _B_in = _B_setup()

    return {
        "A_x": _A_in["x"],
        "A_wqkv": _A_in["wqkv"],
        "A_wo": _A_in["wo"],
        "B_x": _B_in["x"],
        "B_W_gate": _B_in["W_gate"],
        "B_W_up": _B_in["W_up"],
        "B_W_down": _B_in["W_down"],
    }

def reference(A_x, A_wqkv, A_wo, B_x, B_W_gate, B_W_up, B_W_down):
    def _A_ref(x, wqkv, wo):
        B, S, D = x.shape
        H = 32; Dh = D // H
        qkv = (lambda x, *d: x.permute(*d))((x @ wqkv).reshape(B, S, 3, H, Dh), 2, 0, 3, 1, 4)
        q, k, v = qkv[0], qkv[1], qkv[2]
        scale = Dh ** -0.5
        scores = torch.einsum("bhqd,bhkd->bhqk", q, k) * scale
        p = _softmax(scores, axis=-1)
        o = torch.einsum("bhqk,bhkd->bhqd", p, v)
        return (lambda x, *d: x.permute(*d))(o, 0, 2, 1, 3).reshape(B, S, D) @ wo

    def _B_ref(x, W_gate, W_up, W_down):
        gate = torch.einsum("bsd,df->bsf", x, W_gate)
        up = torch.einsum("bsd,df->bsf", x, W_up)
        gate = gate * (lambda x, dt: x.to(dt))(gate > 0, gate.dtype)
        h = gate * up
        return torch.einsum("bsf,fd->bsd", h, W_down)

    x = A_x
    xn = _layernorm(x, axis=-1)
    return x + _A_ref(xn, A_wqkv, A_wo) + _B_ref(xn, B_W_gate, B_W_up, B_W_down)
```

```python
class Asm:
    def __init__(self):
        self.lines = []
        self.uid = 0
    def __call__(self, s):
        for l in s.strip("\n").split("\n"):
            self.lines.append("  " + l.strip())
    def c(self, s):
        self.lines.append("  ; " + s)
    def label(self, l):
        self.lines.append(l + ":")
    def newlabel(self, p="L"):
        self.uid += 1
        return f"{p}_{self.uid}"
    def nop(self, n):
        while n > 0:
            k = min(n, 16)
            self(f"s_nop {k-1}")
            n -= k
    def text(self):
        return "\n".join(self.lines) + "\n"

def vr(b, n):
    return f"v[{b}:{b+n-1}]" if n > 1 else f"v{b}"
def sr(b, n):
    return f"s[{b}:{b+n-1}]" if n > 1 else f"s{b}"
def ar(b, n):
    return f"a[{b}:{b+n-1}]" if n > 1 else f"a{b}"

def kernel_header(name):
    return f""".globl {name}
.p2align 8
.type {name},@function
{name}:
"""
def kernel_desc(name, nvgpr, nsgpr=96, accum=None, total=None):
    acc = accum if accum is not None else (nvgpr + 3) // 4 * 4
    tot = total if total is not None else nvgpr
    return f""".p2align 6
.amdhsa_kernel {name}
  .amdhsa_next_free_vgpr {tot}
  .amdhsa_next_free_sgpr {nsgpr}
  .amdhsa_accum_offset {acc}
  .amdhsa_group_segment_fixed_size 0
  .amdhsa_kernarg_size 80
  .amdhsa_user_sgpr_count 2
  .amdhsa_user_sgpr_kernarg_segment_ptr 1
  .amdhsa_system_sgpr_workgroup_id_x 1
.end_amdhsa_kernel
"""

WS_Q  = 0x000000
WS_KV = 0x500000
WS_O  = 0xA00000
WS_H  = 0xE00000
CHUNK = 10240
WS_XN = 0x1500000
WS_END = 0x1800000
WS_STAMP = 0x1400000
import math
def f32bits(x):
    import struct
    return struct.unpack("<I", struct.pack("<f", x))[0]
QSCALE = math.log2(math.e) / math.sqrt(20.0)

class Stamps:
    def __init__(self, a, on, base=52):
        self.a = a; self.on = on; self.n = 0; self.base = base
    def __call__(self, wait=True):
        if not self.on: return
        b = self.base + 2 * self.n
        assert b + 1 < 100
        self.a(f"s_memtime s[{b}:{b+1}]")
        if wait: self.a("s_waitcnt lgkmcnt(0)")
        self.n += 1
    def reset(self, n): self.n = n
    def dump(self, srd, swave, stmp, n=None):
        if not self.on: return
        a = self.a
        n = n or self.n
        a("s_waitcnt vmcnt(0) lgkmcnt(0)")
        a(f"s_memtime s[{self.base+2*n}:{self.base+2*n+1}]")
        a(f"s_memrealtime s[100:101]")
        a("s_waitcnt lgkmcnt(0)")
        a("s_mov_b64 exec, 1")
        a(f"s_lshl_b32 s{stmp}, s2, 3")
        a(f"s_add_u32 s{stmp}, s{stmp}, s{swave}")
        a(f"s_lshl_b32 s{stmp}, s{stmp}, 7")
        a(f"s_add_u32 s{stmp}, s{stmp}, {WS_STAMP}")
        a("v_mov_b32 v1, 0")
        for i in range(n + 1):
            a(f"v_mov_b32 v2, s{self.base+2*i}")
            a(f"buffer_store_dword v2, v1, {srd}, s{stmp} offen offset:{4*i}")
        a(f"v_mov_b32 v2, s100")
        a(f"buffer_store_dword v2, v1, {srd}, s{stmp} offen offset:124")
```

```python
from asmlib import *

def gen_attn(name="attn_kernel", stamp=False):
    a = Asm()
    def ST(i):
        if stamp:
            a(f"s_memtime s[{40+4*i}:{41+4*i}]")
            a(f"s_memrealtime s[{42+4*i}:{43+4*i}]")
    QA, QB = 8, 12
    S = [16, 32]
    P = 48
    O = 56
    KA = [72, 76]
    KB = [80, 84]
    V = [[88, 92], [96, 100]]
    vKa, vKb, vV = 104, 105, 106
    T0, T1, T2, T3 = 107, 108, 109, 110
    vM = 111
    vOst = 112
    NV = 114
    sSRD = 8
    sW = 12
    sH, sQB = 13, 14
    sVM = 16
    sLO = 18
    sT = 20
    sLoop = 24

    a("s_cmp_ge_u32 s2, 256")
    a("s_cbranch_scc1 L_attn_end")
    a("s_load_dwordx2 s[4:5], s[0:1], 72")
    ST(0)
    a("v_lshrrev_b32 v1, 6, v0")
    a("v_and_b32 v2, 63, v0")
    a(f"v_readfirstlane_b32 s{sW}, v1")
    a(f"s_and_b32 s{sT}, s2, 7")
    a(f"s_lshl_b32 s{sT}, s{sT}, 2")
    a(f"s_lshr_b32 s{sT+1}, s2, 3")
    a(f"s_and_b32 s{sH}, s{sT+1}, 3")
    a(f"s_add_u32 s{sH}, s{sH}, s{sT}")
    a(f"s_lshr_b32 s{sQB}, s2, 5")
    a(f"s_mov_b32 s{sVM}, 0xfffff")
    a(f"s_mov_b32 s{sVM+1}, 0xfffff")
    a(f"s_mov_b32 s{sLO}, -1")
    a(f"s_mov_b32 s{sLO+1}, 0")
    a("v_and_b32 v3, 31, v2")
    a("v_lshrrev_b32 v4, 5, v2")
    a("s_waitcnt lgkmcnt(0)")
    a(f"s_mov_b32 s{sSRD}, s4")
    a(f"s_and_b32 s{sSRD+1}, s5, 0xffff")
    a(f"s_mov_b32 s{sSRD+2}, {WS_END}")
    a(f"s_mov_b32 s{sSRD+3}, 0x20000")
    a(f"s_lshl_b32 s{sT}, s{sQB}, 8")
    a(f"s_lshl_b32 s{sT+1}, s{sW}, 5")
    a(f"s_add_u32 s{sT}, s{sT}, s{sT+1}")
    a(f"v_add_u32 v5, s{sT}, v3")
    a(f"s_mul_i32 s{sT+1}, s{sH}, {16*CHUNK}")
    a(f"s_lshr_b32 s{sT+2}, s{sT}, 7")
    a(f"s_mul_i32 s{sT+2}, s{sT+2}, {CHUNK}")
    a(f"s_add_u32 s{sT+1}, s{sT+1}, s{sT+2}")
    a(f"v_and_b32 v6, 127, v5")
    a(f"v_lshlrev_b32 v7, 4, v6")
    a(f"v_lshl_add_u32 v7, v4, 11, v7")
    a(f"v_lshlrev_b32 v6, 3, v6")
    a(f"v_mov_b32 v{QB}, 0")
    a(f"v_mov_b32 v{QB+1}, 0")
    a(f"v_mov_b32 v{QB+2}, 0")
    a(f"v_mov_b32 v{QB+3}, 0")
    a(f"s_add_u32 s{sT+1}, s{sT+1}, {WS_Q + 4096}")
    a(f"s_sub_u32 s{sT+2}, s{sT+1}, 4096")
    a(f"buffer_load_dwordx4 {vr(QA,4)}, v7, s[{sSRD}:{sSRD+3}], s{sT+2} offen")
    a(f"s_mov_b64 exec, s[{sLO}:{sLO+1}]")
    a(f"buffer_load_dwordx2 {vr(QB,2)}, v6, s[{sSRD}:{sSRD+3}], s{sT+1} offen")
    a("s_mov_b64 exec, -1")
    a(f"v_lshlrev_b32 v1, 4, v2")
    a(f"s_mul_i32 s{sT+2}, s{sH}, {16*CHUNK}")
    a(f"s_add_u32 s{sT+2}, s{sT+2}, {WS_KV}")
    a(f"s_lshl_b32 s{sT+3}, s{sW}, 10")
    a(f"s_add_u32 s{sT+2}, s{sT+2}, s{sT+3}")
    sDG, sDL = 26, 27
    a(f"s_mov_b32 s{sDG}, s{sT+2}")
    a(f"s_mov_b32 s{sDL}, s{sT+3}")
    def dma():
        a(f"s_mov_b32 m0, s{sDL}")
        a(f"s_add_u32 s{sDL}, s{sDL}, 8192")
        a(f"buffer_load_dwordx4 v1, s[{sSRD}:{sSRD+3}], s{sDG} offen lds")
        a(f"s_add_u32 s{sDG}, s{sDG}, 8192")
    NPRE = 4
    for j in range(NPRE): dma()
    a(f"v_mul_u32_u24 v{vOst}, 1280, v5")
    a(f"v_lshl_add_u32 v{vOst}, v4, 3, v{vOst}")
    a("v_and_b32 v6, 0x13, v3")
    a("v_and_b32 v7, 4, v3")
    a("v_lshl_or_b32 v6, v7, 1, v6")
    a("v_and_b32 v7, 8, v3")
    a("v_lshrrev_b32 v7, 1, v7")
    a("v_or_b32 v6, v6, v7")
    a(f"v_lshlrev_b32 v{vKa}, 4, v6")
    a(f"v_lshl_add_u32 v{vKa}, v4, 11, v{vKa}")
    a(f"v_lshlrev_b32 v{vKb}, 3, v6")
    a(f"v_add_u32 v{vKb}, 4096, v{vKb}")
    a(f"v_mul_u32_u24 v{vV}, 320, v4")
    a(f"v_lshl_add_u32 v{vV}, v3, 4, v{vV}")
    a(f"v_add_u32 v{vV}, 5120, v{vV}")
    for r in range(16): a(f"v_mov_b32 v{O+r}, 0")
    a("v_cmp_eq_u32 vcc, 20, v3")
    a("v_mov_b32 v6, 0x3f803f80")
    a.nop(1)
    a("v_cndmask_b32 v7, 0, v6, vcc")
    for b in range(2):
        a(f"v_mov_b32 v{KB[b]+2}, 0x3f80")
        a(f"v_mov_b32 v{KB[b]+3}, 0")
        for j in range(2):
            for r in range(4): a(f"v_mov_b32 v{V[b][j]+r}, v7")
    for r in range(8): a(f"v_mov_b32 v{P+r}, 0")

    def koff(t):
        return (t // 4) * CHUNK + (t % 4) * 512
    def kboff(t):
        return (t // 4) * CHUNK + (t % 4) * 256
    def voff(t):
        return (t // 4) * CHUNK + (t % 4) * 1280
    def rdK(t, buf):
        a(f"ds_read_b128 {vr(KA[buf],4)}, v{vKa} offset:{koff(t)}")
        a(f"ds_read_b64 {vr(KB[buf],2)}, v{vKb} offset:{kboff(t)}")
    def rdV(t, buf):
        a(f"s_mov_b64 exec, s[{sVM}:{sVM+1}]")
        a(f"ds_read_b128 {vr(V[buf][0],4)}, v{vV} offset:{voff(t)}")
        a(f"ds_read_b128 {vr(V[buf][1],4)}, v{vV} offset:{voff(t)+640}")
        a("s_mov_b64 exec, -1")
    def mf(d, A, B, C):
        a(f"v_mfma_f32_32x32x16_bf16 {vr(d,16)}, {vr(A,4)}, {vr(B,4)}, {C}")

    a(f"s_waitcnt vmcnt({NPRE-2})")
    a("s_barrier")
    ST(1)
    a("s_waitcnt lgkmcnt(0)") if stamp else None
    rdK(0, 0); rdK(1, 1); rdV(0, 0)
    a("s_waitcnt lgkmcnt(4)")
    mf(S[0], KA[0], QA, "0")
    mf(S[0], KB[0], QB, vr(S[0], 16))
    a.nop(12)
    s = S[0]
    a(f"v_max3_f32 v{T0}, v{s}, v{s+1}, v{s+2}")
    a(f"v_max3_f32 v{T1}, v{s+3}, v{s+4}, v{s+5}")
    a(f"v_max3_f32 v{T2}, v{s+6}, v{s+7}, v{s+8}")
    a(f"v_max3_f32 v{T3}, v{s+9}, v{s+10}, v{s+11}")
    a(f"v_max3_f32 v{T0}, v{T0}, v{s+12}, v{s+13}")
    a(f"v_max3_f32 v{T1}, v{T1}, v{s+14}, v{s+15}")
    a(f"v_max3_f32 v{T0}, v{T0}, v{T1}, v{T2}")
    a(f"v_max_f32 v{T0}, v{T0}, v{T3}")
    a(f"v_mov_b32 v{T1}, v{T0}")
    a.nop(2)
    a(f"v_permlane32_swap_b32 v{T0}, v{T1}")
    a(f"v_max_f32 v{T0}, v{T0}, v{T1}")
    a(f"v_xor_b32 v{T0}, 0x80000000, v{T0}")
    a(f"v_lshrrev_b32 v{T0}, 16, v{T0}")
    a(f"v_cndmask_b32 v{QB+2}, 0, v{T0}, s[{sLO}:{sLO+1}]")
    a.nop(2)
    mf(S[0], KA[0], QA, "0")
    mf(S[0], KB[0], QB, vr(S[0], 16))
    a.nop(8)
    a.nop(4)

    def tile(t, tb):
        cur = t & 1; nxt = cur ^ 1
        s = S[cur]; sn = S[nxt]
        ex = lambda r: a(f"v_exp_f32 v{s+r}, v{s+r}")
        cv = lambda p: a(f"v_cvt_pk_bf16_f32 v{P+p}, v{s+2*p}, v{s+2*p+1}")
        a("s_waitcnt lgkmcnt(2)")
        mf(sn, KA[nxt], QA, "0")
        for r in range(0, 4): ex(r)
        mf(sn, KB[nxt], QB, vr(sn, 16))
        rdK(tb + 2, cur)
        for r in range(4, 8): ex(r)
        cv(0); cv(1)
        mf(O, V[nxt][1], P + 4, vr(O, 16))
        rdV(tb + 1, nxt)
        cv(2); cv(3)
        for r in range(8, 12): ex(r)
        a("s_waitcnt lgkmcnt(5)")
        mf(O, V[cur][0], P, vr(O, 16))
        for r in range(12, 16): ex(r)
        cv(4); cv(5); cv(6); cv(7)

    NA = 6
    nd = NPRE
    for t in range(4 * NA):
        if t % 4 == 2:
            c = (t + 2) // 4
            need = 20 if c == NA else -(-10 * (c + 1) // 8)
            assert need <= nd, (t, need, nd)
            a(f"s_waitcnt vmcnt({nd - need})")
            a("s_barrier")
        tile(t, t)
        if nd < 20: dma(); nd += 1
    for r in (vKa, vKb, vV): a(f"v_add_u32 v{r}, {NA*CHUNK}, v{r}")
    a(f"s_mov_b32 s{sLoop}, {(16-NA)//2}")
    ST(2)
    a("s_waitcnt lgkmcnt(0)") if stamp else None
    a(".p2align 3")
    a.label("L_attn_loop")
    for t in range(8): tile(t, t)
    for r in (vKa, vKb, vV): a(f"v_add_u32 v{r}, {2*CHUNK}, v{r}")
    a(f"s_sub_u32 s{sLoop}, s{sLoop}, 1")
    a(f"s_cmp_lg_u32 s{sLoop}, 0")
    a("s_cbranch_scc1 L_attn_loop")
    a.nop(1)
    mf(O, V[1][1], P + 4, vr(O, 16))
    a.nop(12)
    a(f"v_mov_b32 v{T0}, v{O+8}")
    a(f"v_mov_b32 v{T1}, v{O+8}")
    a(f"v_mov_b32 v{T2}, 0")
    a.nop(1)
    a(f"v_permlane32_swap_b32 v{T0}, v{T1}")
    for r in range(12): a(f"v_fma_f32 v{T2}, v{O+r}, 0, v{T2}")
    a(f"s_mov_b32 s{sT}, 0x71800000")
    a(f"v_add_f32 v{T2}, v{T2}, v{T1}")
    a(f"v_cmp_nlt_f32 vcc, v{T2}, s{sT}") if False else a(f"v_cmp_ngt_f32 vcc, s{sT}, v{T2}")
    a.nop(4)
    a("s_cmp_lg_u64 vcc, 0")
    a("s_cbranch_scc1 L_attn_slow")
    a.label("L_attn_fin")
    ST(3)
    a(f"v_rcp_f32 v{T1}, v{T1}")
    a.nop(1)
    for r in range(12): a(f"v_mul_f32 v{O+r}, v{O+r}, v{T1}")
    for p in range(6): a(f"v_cvt_pk_bf16_f32 v{P+p}, v{O+2*p}, v{O+2*p+1}")
    a(f"s_mul_i32 s{sT}, s{sH}, 40")
    a(f"s_add_u32 s{sT}, s{sT}, {WS_O}")
    a(f"buffer_store_dwordx2 {vr(P,2)}, v{vOst}, s[{sSRD}:{sSRD+3}], s{sT} offen")
    a(f"buffer_store_dwordx2 {vr(P+2,2)}, v{vOst}, s[{sSRD}:{sSRD+3}], s{sT} offen offset:16")
    a(f"s_mov_b64 exec, s[{sLO}:{sLO+1}]")
    a(f"buffer_store_dwordx2 {vr(P+4,2)}, v{vOst}, s[{sSRD}:{sSRD+3}], s{sT} offen offset:32")
    if stamp:
        a("s_waitcnt vmcnt(0)")
        ST(4)
        a("s_waitcnt lgkmcnt(0)")
        a("s_mov_b64 exec, 1")
        a(f"s_lshl_b32 s{sT}, s2, 3")
        a(f"s_add_u32 s{sT}, s{sT}, s{sW}")
        a(f"s_mul_i32 s{sT}, s{sT}, 64")
        a(f"s_add_u32 s{sT}, s{sT}, {WS_STAMP}")
        a("v_mov_b32 v1, 0")
        for i in range(5):
            a(f"v_mov_b32 v2, s{40+4*i}")
            a(f"v_mov_b32 v3, s{42+4*i}")
            a(f"buffer_store_dwordx2 v[2:3], v1, s[{sSRD}:{sSRD+3}], s{sT} offen offset:{8*i}")
    a.label("L_attn_end")
    a("s_endpgm")

    a.label("L_attn_slow")
    for r in (vKa, vKb, vV): a(f"v_subrev_u32 v{r}, {16*CHUNK}, v{r}")
    a(f"v_mov_b32 v{QB+2}, 0")
    a(f"v_mov_b32 v{vM}, 0xff800000")
    for r in range(16): a(f"v_mov_b32 v{O+r}, 0")
    a("s_waitcnt lgkmcnt(0)")
    a(f"s_mov_b32 s{sLoop}, 0")
    a.label("L_attn_slow_loop")
    rdK(0, 0); rdV(0, 0)
    a("s_waitcnt lgkmcnt(0)")
    s = S[0]
    mf(s, KA[0], QA, "0")
    mf(s, KB[0], QB, vr(s, 16))
    a.nop(12)
    a(f"v_max3_f32 v{T0}, v{s}, v{s+1}, v{s+2}")
    a(f"v_max3_f32 v{T1}, v{s+3}, v{s+4}, v{s+5}")
    a(f"v_max3_f32 v{T2}, v{s+6}, v{s+7}, v{s+8}")
    a(f"v_max3_f32 v{T3}, v{s+9}, v{s+10}, v{s+11}")
    a(f"v_max3_f32 v{T0}, v{T0}, v{s+12}, v{s+13}")
    a(f"v_max3_f32 v{T1}, v{T1}, v{s+14}, v{s+15}")
    a(f"v_max3_f32 v{T0}, v{T0}, v{T1}, v{T2}")
    a(f"v_max3_f32 v{T0}, v{T0}, v{T3}, v{vM}")
    a(f"v_mov_b32 v{T1}, v{T0}")
    a.nop(2)
    a(f"v_permlane32_swap_b32 v{T0}, v{T1}")
    a(f"v_max_f32 v{T0}, v{T0}, v{T1}")
    a(f"v_sub_f32 v{T1}, v{vM}, v{T0}")
    a(f"v_exp_f32 v{T1}, v{T1}")
    a(f"v_mov_b32 v{vM}, v{T0}")
    for r in range(16): a(f"v_sub_f32 v{s+r}, v{s+r}, v{T0}")
    for r in range(16): a(f"v_mul_f32 v{O+r}, v{O+r}, v{T1}")
    for r in range(16): a(f"v_exp_f32 v{s+r}, v{s+r}")
    a.nop(1)
    for p in range(8): a(f"v_cvt_pk_bf16_f32 v{P+p}, v{s+2*p}, v{s+2*p+1}")
    a.nop(2)
    mf(O, V[0][0], P, vr(O, 16))
    mf(O, V[0][1], P + 4, vr(O, 16))
    a(f"s_add_u32 s{sLoop}, s{sLoop}, 1")
    a(f"s_and_b32 s{sT}, s{sLoop}, 3")
    a(f"s_cmp_eq_u32 s{sT}, 0")
    a(f"s_movk_i32 s{sT}, 512")
    a(f"s_movk_i32 s{sT+1}, 256")
    a(f"s_movk_i32 s{sT+2}, 1280")
    a(f"s_cselect_b32 s{sT}, {CHUNK-3*512}, s{sT}")
    a(f"s_cselect_b32 s{sT+1}, {CHUNK-3*256}, s{sT+1}")
    a(f"s_cselect_b32 s{sT+2}, {CHUNK-3*1280}, s{sT+2}")
    a(f"v_add_u32 v{vKa}, s{sT}, v{vKa}")
    a(f"v_add_u32 v{vKb}, s{sT+1}, v{vKb}")
    a(f"v_add_u32 v{vV}, s{sT+2}, v{vV}")
    a.nop(8)
    a(f"s_cmp_lt_u32 s{sLoop}, 64")
    a("s_cbranch_scc1 L_attn_slow_loop")
    a.nop(4)
    a(f"v_mov_b32 v{T0}, v{O+8}")
    a(f"v_mov_b32 v{T1}, v{O+8}")
    a.nop(2)
    a(f"v_permlane32_swap_b32 v{T0}, v{T1}")
    a("s_branch L_attn_fin")
    return kernel_header(name) + a.text(), kernel_desc(name, NV, 64)

if __name__ == "__main__":
    import sys
    body, desc = gen_attn(stamp=len(sys.argv) > 1)
    s = "; @launch kernel=attn_kernel grid=(256,1,1) block=(512,1,1) lds=163840\n"
    s += '.amdgcn_target "amdgcn-amd-amdhsa--gfx950"\n.text\n' + body + '.section .rodata,"a"\n' + desc
    open("../attn_only.s", "w").write(s)
```

```python
from asmlib import *
GST = 40960
GNST = 3
LDS_GLU = GNST * GST

def gen_glu(name="glu_kernel", stamp=False):
    a = Asm()
    ST = Stamps(a, stamp)
    sWg, sWu, sWS = 8, 12, 16
    sW, sMT, sNT, sM, sKH = 20, 21, 22, 23, 34
    sT = 24
    sXo, sWo, sLdX, sLdW = 36, 37, 38, 39
    sWsel = 40
    WS_ = f"s[{sWS}:{sWS+3}]"; WSEL = f"s[{sWsel}:{sWsel+3}]"
    a("s_cmp_ge_u32 s2, 256")
    a("s_cbranch_scc1 L_glu_end")
    ST(False)
    a("s_load_dwordx4 s[4:7], s[0:1], 32")
    a(f"s_load_dwordx2 s[{sT}:{sT+1}], s[0:1], 72")
    a("v_lshrrev_b32 v1, 6, v0")
    a("v_and_b32 v2, 63, v0")
    a(f"v_readfirstlane_b32 s{sW}, v1")
    a(f"s_and_b32 s{sT+2}, s2, 7")
    a(f"s_lshr_b32 s{sT+3}, s2, 3")
    a(f"s_lshr_b32 s{sMT}, s{sT+2}, 1")
    a(f"s_lshl_b32 s{sMT}, s{sMT}, 2")
    a(f"s_and_b32 s{sT+4}, s{sT+3}, 3")
    a(f"s_add_u32 s{sMT}, s{sMT}, s{sT+4}")
    a(f"s_and_b32 s{sNT}, s{sT+2}, 1")
    a(f"s_lshl_b32 s{sNT}, s{sNT}, 3")
    a(f"s_lshr_b32 s{sT+4}, s{sT+3}, 2")
    a(f"s_add_u32 s{sNT}, s{sNT}, s{sT+4}")
    a(f"s_and_b32 s{sM}, s{sW}, 3")
    a(f"s_lshr_b32 s{sKH}, s{sW}, 2")
    a("v_and_b32 v3, 31, v2")
    a("v_lshrrev_b32 v4, 5, v2")
    a("s_waitcnt lgkmcnt(0)")
    a(f"s_mov_b32 s{sWS}, s{sT}\ns_and_b32 s{sWS+1}, s{sT+1}, 0xffff\ns_mov_b32 s{sWS+2}, {WS_END}\ns_mov_b32 s{sWS+3}, 0x20000")
    a(f"s_cmp_eq_u32 s{sKH}, 0")
    a(f"s_cselect_b32 s{sWsel}, s4, s6")
    a(f"s_cselect_b32 s{sWsel+1}, s5, s7")
    a(f"s_and_b32 s{sWsel+1}, s{sWsel+1}, 0xffff\ns_mov_b32 s{sWsel+2}, {640*3072}\ns_mov_b32 s{sWsel+3}, 0x20000")
    vXE, vXO = 5, 6
    vWd = [7, 8, 9]
    a("v_lshrrev_b32 v9, 4, v2")
    a("v_lshrrev_b32 v10, 3, v2")
    a("v_mul_u32_u24 v10, 1280, v10")
    a("v_and_b32 v11, 7, v2")
    a(f"v_xor_b32 v{vXE}, v11, v9")
    a(f"v_xor_b32 v{vXO}, 4, v{vXE}")
    a(f"v_lshl_add_u32 v{vXE}, v{vXE}, 4, v10")
    a(f"v_lshl_add_u32 v{vXO}, v{vXO}, 4, v10")
    for t in range(3):
        a(f"v_add_u32 v10, {64*t}, v2")
        a(f"v_mul_u32_u24 v11, 5462, v10")
        a(f"v_lshrrev_b32 v11, 16, v11")
        a(f"v_mul_u32_u24 v12, 12, v11")
        a(f"v_sub_u32 v12, v10, v12")
        a(f"v_mul_u32_u24 v11, 3072, v11")
        a(f"v_lshl_add_u32 v{vWd[t]}, v12, 4, v11")
    a(f"s_lshl_b32 s{sXo}, s{sMT}, 7")
    a(f"s_lshl_b32 s{sT}, s{sW}, 4")
    a(f"s_add_u32 s{sXo}, s{sXo}, s{sT}")
    a(f"s_mul_i32 s{sXo}, s{sXo}, 1280")
    a(f"s_add_u32 s{sXo}, s{sXo}, {WS_XN}")
    a(f"s_mul_i32 s{sWo}, s{sM}, {16*3072}")
    a(f"s_mul_i32 s{sT}, s{sNT}, 192")
    a(f"s_add_u32 s{sWo}, s{sWo}, s{sT}")
    a(f"s_lshl_b32 s{sLdX}, s{sW}, 11")
    a(f"s_mul_i32 s{sLdW}, s{sW}, 3072")
    a(f"s_add_u32 s{sLdW}, s{sLdW}, 16384")
    def issue(st):
        base = (st % GNST) * GST
        for j in range(2):
            a(f"s_add_u32 m0, s{sLdX}, {base + j*1024}")
            a(f"s_add_u32 s{sT}, s{sXo}, {j*8*1280 + st*128}")
            a(f"buffer_load_dwordx4 v{vXO if j & 1 else vXE}, {WS_}, s{sT} offen lds")
        for t in range(3):
            a(f"s_add_u32 m0, s{sLdW}, {base + t*1024}")
            a(f"s_add_u32 s{sT}, s{sWo}, {st*64*3072}")
            a(f"buffer_load_dwordx4 v{vWd[t]}, {WSEL}, s{sT} offen lds")
    issue(0); issue(1)
    XF = [12, 16]
    WF = [[20 + (b * 6 + n) * 4 for n in range(6)] for b in range(2)]
    vXA = [[68, 69], [70, 71]]
    vWA = [72, 73]
    ACC = 76
    NV = 172
    a("v_lshrrev_b32 v10, 1, v3")
    a("v_and_b32 v10, 7, v10")
    a(f"s_lshl_b32 s{sT}, s{sM}, 12")
    a(f"v_lshl_add_u32 v11, v3, 7, s{sT}")
    a(f"s_lshl_b32 s{sT}, s{sKH}, 2")
    for ks in range(2):
        a(f"v_or_b32 v12, {2*ks}, v4")
        a(f"v_or_b32 v12, s{sT}, v12")
        a(f"v_xor_b32 v12, v12, v10")
        a(f"v_lshl_add_u32 v{vXA[0][ks]}, v12, 4, v11")
        a(f"v_add_u32 v{vXA[1][ks]}, {2*GST}, v{vXA[0][ks]}")
    a("v_lshrrev_b32 v10, 2, v2")
    a("v_and_b32 v10, 3, v10")
    a("v_lshl_add_u32 v10, v4, 3, v10")
    a(f"s_lshl_b32 s{sT}, s{sKH}, 5")
    a(f"v_add_u32 v10, s{sT}, v10")
    a("v_mul_u32_u24 v10, 192, v10")
    a("v_lshrrev_b32 v11, 4, v2")
    a("v_and_b32 v11, 1, v11")
    a("v_lshl_add_u32 v10, v11, 5, v10")
    a("v_and_b32 v11, 3, v2")
    a("v_lshl_add_u32 v10, v11, 3, v10")
    a(f"v_add_u32 v{vWA[0]}, 16384, v10")
    a(f"v_add_u32 v{vWA[1]}, {16384+2*GST}, v10")
    for r in range(96): a(f"v_mov_b32 v{ACC+r}, 0")
    def rd(st, ks, buf):
        slot = st % GNST
        hi = 1 if slot == 2 else 0; b = 0 if slot == 2 else slot * GST
        L = [f"ds_read_b128 {vr(XF[buf],4)}, v{vXA[hi][ks]} offset:{b}"]
        for n in range(6):
            mat, ct = n & 1, n >> 1
            for h in range(2):
                L.append(f"ds_read_b64_tr_b16 {vr(WF[buf][n]+2*h,2)}, v{vWA[hi]} offset:{b + mat*12288 + (16*ks+4*h)*192 + ct*64}")
        return L
    a("s_waitcnt vmcnt(5)")
    a("s_barrier")
    ST()
    issue(2)
    for l in rd(0, 0, 0): a(l)
    issued = 2
    for st in range(10):
        for ks in range(2):
            buf = ks
            if ks == 0: nxt = rd(st, 1, 1)
            elif st < 9: nxt = rd(st + 1, 0, 0)
            else: nxt = []
            if ks == 1 and st < 9:
                a(f"s_waitcnt vmcnt({5 * (issued - (st + 1))}) lgkmcnt(0)")
                a("s_barrier")
                ST()
            else:
                a("s_waitcnt lgkmcnt(0)")
            for n in range(6):
                d = ACC + n * 16
                a(f"v_mfma_f32_32x32x16_bf16 {vr(d,16)}, {vr(WF[buf][n],4)}, {vr(XF[buf],4)}, {vr(d,16)}")
                for l in nxt[n * 4: n * 4 + 4] if n < 3 else nxt[12:13] if n == 3 else []: a(l)
                if ks == 1 and n == 4 and issued < 9 and st < 9:
                    issued += 1; issue(issued)
    ST()
    a("s_barrier")
    a.nop(8)
    a(f"s_mul_i32 s{sT}, s{sW}, 12288")
    a(f"v_lshl_add_u32 v10, v2, 4, s{sT}")
    a(f"s_xor_b32 s{sT}, s{sW}, 4")
    a(f"s_mul_i32 s{sT}, s{sT}, 12288")
    a(f"v_lshl_add_u32 v11, v2, 4, s{sT}")
    R = 12
    a(f"s_cmp_eq_u32 s{sKH}, 0")
    a("s_cbranch_scc0 L_glu_kh1")
    def fin(keep):
        send = 8 - keep
        for n in range(6):
            for q in range(2):
                a(f"ds_write_b128 v10, {vr(ACC+n*16+send+4*q,4)} offset:{(n*2+q)*1024}")
        a("s_waitcnt lgkmcnt(0)")
        a("s_barrier")
        for n in range(6):
            for q in range(2):
                a(f"ds_read_b128 {vr(R+(n*2+q)*4,4)}, v11 offset:{(n*2+q)*1024}")
        a(f"s_lshl_b32 s{sT}, s{sMT}, 2")
        a(f"s_add_u32 s{sT}, s{sT}, s{sM}")
        a(f"s_mul_i32 s{sT}, s{sT}, {32*3072}")
        a(f"s_mul_i32 s{sT+1}, s{sNT}, 192")
        a(f"s_add_u32 s{sT}, s{sT}, s{sT+1}")
        a(f"s_add_u32 s{sT}, s{sT}, {WS_H + keep*4}")
        a("v_mul_u32_u24 v60, 3072, v3")
        a("v_lshl_add_u32 v60, v4, 4, v60")
        a("s_waitcnt lgkmcnt(0)")
        for ct in range(3):
            g = ACC + (2 * ct) * 16 + keep; u = ACC + (2 * ct + 1) * 16 + keep
            rg = R + (2 * ct) * 8; ru = R + (2 * ct + 1) * 8
            for p in range(4):
                a(f"v_pk_add_f32 {vr(g+2*p,2)}, {vr(g+2*p,2)}, {vr(rg+2*p,2)}")
                a(f"v_pk_add_f32 {vr(u+2*p,2)}, {vr(u+2*p,2)}, {vr(ru+2*p,2)}")
                a(f"v_max_f32 v{g+2*p}, 0, v{g+2*p}")
                a(f"v_max_f32 v{g+2*p+1}, 0, v{g+2*p+1}")
                a(f"v_pk_mul_f32 {vr(g+2*p,2)}, {vr(g+2*p,2)}, {vr(u+2*p,2)}")
                a(f"v_cvt_pk_bf16_f32 v{ru+p}, v{g+2*p}, v{g+2*p+1}")
            a.nop(2)
            a(f"v_permlane32_swap_b32 v{ru}, v{ru+2}")
            a(f"v_permlane32_swap_b32 v{ru+1}, v{ru+3}")
            a(f"buffer_store_dwordx4 {vr(ru,4)}, v60, {WS_}, s{sT} offen offset:{ct*64}")
        ST.reset(12); ST(); ST.dump(WS_, sW, sT)
        a("s_endpgm")
    fin(0)
    a.label("L_glu_kh1")
    fin(8)
    a.label("L_glu_end")
    a("s_endpgm")
    return kernel_header(name) + a.text(), kernel_desc(name, NV, 102 if stamp else 48)
```

```python
from asmlib import *
DEPTH = 6
LDS_OUT = 4 * DEPTH * 5120

def gen_out(name="out_kernel", stamp=False, NJ=17):
    a = Asm()
    ST = Stamps(a, stamp)
    sX, sWo, sWd, sWS, sOut = 8, 12, 16, 20, 24
    sW, sMT, sNT = 28, 29, 30
    sT = 32
    sXb = 40
    sWb = 48; sLd = 49
    R_ = lambda b: f"s[{b}:{b+3}]"
    a("s_cmp_ge_u32 s2, 256")
    a("s_cbranch_scc1 L_out_end")
    ST(False)
    a("s_load_dwordx2 s[4:5], s[0:1], 0")
    a("s_load_dwordx2 s[6:7], s[0:1], 16")
    a(f"s_load_dwordx4 s[{sT}:{sT+3}], s[0:1], 48")
    a(f"s_load_dwordx2 s[{sT+4}:{sT+5}], s[0:1], 72")
    a("v_lshrrev_b32 v1, 6, v0")
    a("v_and_b32 v2, 63, v0")
    a(f"v_readfirstlane_b32 s{sW}, v1")
    a(f"s_and_b32 s{sMT}, s2, 7")
    a(f"s_lshl_b32 s{sMT}, s{sMT}, 2")
    a(f"s_lshr_b32 s3, s2, 3")
    a(f"s_and_b32 s{sNT}, s3, 3")
    a(f"s_add_u32 s{sMT}, s{sMT}, s{sNT}")
    a(f"s_lshr_b32 s{sNT}, s3, 2")
    a("v_and_b32 v3, 15, v2")
    a("v_lshrrev_b32 v4, 4, v2")
    a("s_waitcnt lgkmcnt(0)")
    def srd(b, lo, hi, n): a(f"s_mov_b32 s{b}, s{lo}\ns_and_b32 s{b+1}, s{hi}, 0xffff\ns_mov_b32 s{b+2}, {n}\ns_mov_b32 s{b+3}, 0x20000")
    srd(sX, 4, 5, 2048 * 1280); srd(sWo, 6, 7, 640 * 1280); srd(sWd, sT, sT + 1, 1536 * 1280)
    srd(sOut, sT + 2, sT + 3, 2048 * 1280); srd(sWS, sT + 4, sT + 5, WS_END)
    vXo, vXh, vOut, vWr = 5, 6, 7, 8
    vWd = [9, 10, 11, 12, 13]
    XR = 14
    WF = [[24 + (b * 5 + n) * 4 for n in range(5)] for b in range(2)]
    ACC = 64
    XF = [[144 + (d * 4 + m) * 4 for m in range(4)] for d in range(DEPTH)]
    NV = 144 + DEPTH * 16
    a(f"v_mul_u32_u24 v{vXo}, 1280, v3")
    a(f"v_lshl_add_u32 v{vOut}, v4, 3, v{vXo}")
    a(f"v_lshl_add_u32 v{vXo}, v4, 4, v{vXo}")
    a(f"v_mul_u32_u24 v{vXh}, 3072, v3")
    a(f"v_lshl_add_u32 v{vXh}, v4, 4, v{vXh}")
    for m in range(4):
        a(f"s_add_u32 s{sT}, s{sW}, {m}")
        a(f"s_and_b32 s{sT}, s{sT}, 3")
        a(f"s_lshl_b32 s{sT+1}, s{sMT}, 2")
        a(f"s_add_u32 s{sT}, s{sT}, s{sT+1}")
        a(f"s_lshl_b32 s{sT+1}, s{sW}, 6")
        a(f"s_mul_i32 s{sXb+m}, s{sT}, {16*1280}")
        if m == 0:
            a(f"s_mul_i32 s{sT+2}, s{sNT}, 160")
            a(f"s_add_u32 s{sT+2}, s{sT+2}, s{sXb}")
        a(f"s_add_u32 s{sXb+m}, s{sXb+m}, s{sT+1}")
        a(f"s_add_u32 s{sXb+m}, s{sXb+m}, {WS_O}")
        a(f"s_mul_i32 s{sXb+4+m}, s{sT}, {16*3072}")
        a(f"s_add_u32 s{sXb+4+m}, s{sXb+4+m}, s{sT+1}")
        a(f"s_add_u32 s{sXb+4+m}, s{sXb+4+m}, {WS_H}")
    sFin = 50
    a(f"s_mov_b32 s{sFin}, s{sT+2}")
    for n in range(5):
        a(f"buffer_load_dwordx2 {vr(XR+2*n,2)}, v{vOut}, {R_(sX)}, s{sFin} offen offset:{n*32}")
    for t in range(5):
        a(f"v_add_u32 v24, {64*t}, v2")
        a(f"v_mul_u32_u24 v25, 6554, v24")
        a(f"v_lshrrev_b32 v25, 16, v25")
        a(f"v_mul_u32_u24 v26, 10, v25")
        a(f"v_sub_u32 v26, v24, v26")
        a("v_and_b32 v24, 0x13, v25")
        a("v_and_b32 v27, 4, v25")
        a("v_lshl_or_b32 v24, v27, 1, v24")
        a("v_and_b32 v27, 8, v25")
        a("v_lshrrev_b32 v27, 1, v27")
        a("v_or_b32 v24, v24, v27")
        a(f"v_mul_u32_u24 v24, 1280, v24")
        a(f"v_lshl_add_u32 v{vWd[t]}, v26, 4, v24")
    a(f"s_mul_i32 s{sWb}, s{sW}, {32*1280}")
    a(f"s_mul_i32 s{sT}, s{sNT}, 160")
    a(f"s_add_u32 s{sWb}, s{sWb}, s{sT}")
    a(f"s_mul_i32 s{sLd}, s{sW}, {DEPTH*5120}")
    def issue(j):
        d = j % DEPTH
        for m in range(4):
            if j < 5:
                a(f"buffer_load_dwordx4 {vr(XF[d][m],4)}, v{vXo}, {R_(sWS)}, s{sXb+m} offen offset:{j*256}")
            else:
                a(f"buffer_load_dwordx4 {vr(XF[d][m],4)}, v{vXh}, {R_(sWS)}, s{sXb+4+m} offen offset:{(j-5)*256}")
        a(f"s_add_u32 s{sT}, s{sWb}, {(j if j < 5 else j - 5)*128*1280}")
        for t in range(5):
            a(f"s_add_u32 m0, s{sLd}, {d*5120 + t*1024}")
            a.nop(1) if t == 0 else None
            a(f"buffer_load_dwordx4 v{vWd[t]}, {R_(sWo if j < 5 else sWd)}, s{sT} offen lds")
    issued = -1
    for j in range(min(DEPTH, NJ)):
        issue(j); issued = j
    a("v_lshrrev_b32 v24, 1, v4")
    a("v_lshlrev_b32 v24, 4, v24")
    a("v_and_b32 v25, 1, v4")
    a("v_lshl_add_u32 v24, v25, 2, v24")
    a("v_lshrrev_b32 v25, 2, v2")
    a("v_and_b32 v25, 3, v25")
    a("v_add_u32 v24, v24, v25")
    a("v_mul_u32_u24 v24, 160, v24")
    a("v_and_b32 v25, 3, v2")
    a("v_lshl_add_u32 v24, v25, 3, v24")
    a(f"v_add_u32 v{vWr}, s{sLd}, v24")
    for r in range(80): a(f"v_mov_b32 v{ACC+r}, 0")
    def rd(j):
        d = j % DEPTH; b = j & 1
        return [f"ds_read_b64_tr_b16 {vr(WF[b][n]+2*h,2)}, v{vWr} offset:{d*5120 + h*1280 + n*32}" for n in range(5) for h in range(2)]
    a(f"s_waitcnt vmcnt({9*issued})")
    ST()
    for l in rd(0): a(l)
    for j in range(NJ):
        d = j % DEPTH; b = j & 1
        nxt = []
        if j + 1 < NJ:
            a(f"s_waitcnt vmcnt({9*(issued-(j+1))}) lgkmcnt(0)")
            nxt = rd(j + 1)
        else:
            a("s_waitcnt lgkmcnt(0)")
        i = 0
        for n in range(5):
            for m in range(4):
                acc = ACC + (m * 5 + n) * 4
                a(f"v_mfma_f32_16x16x32_bf16 {vr(acc,4)}, {vr(WF[b][n],4)}, {vr(XF[d][m],4)}, {vr(acc,4)}")
                if i < len(nxt): a(nxt[i])
                i += 1
        if j + DEPTH < NJ:
            issue(j + DEPTH); issued = j + DEPTH
    ST()
    a("s_barrier")
    a("v_lshlrev_b32 v24, 4, v2")
    for m in range(1, 4):
        a(f"s_add_u32 s{sT}, s{sW}, {m}")
        a(f"s_and_b32 s{sT}, s{sT}, 3")
        a(f"s_mul_i32 s{sT}, s{sT}, 15360")
        a(f"v_add_u32 v25, s{sT}, v24")
        for n in range(5):
            a(f"ds_write_b128 v25, {vr(ACC+(m*5+n)*4,4)} offset:{(m-1)*5120 + n*1024}")
    a(f"s_mul_i32 s{sT}, s{sW}, 15360")
    a(f"v_add_u32 v25, s{sT}, v24")
    a("s_waitcnt lgkmcnt(0)")
    a("s_barrier")
    RB = 144
    for q in range(15):
        a(f"ds_read_b128 {vr(RB+4*q,4)}, v25 offset:{q*1024}")
    for n in range(5):
        acc = ACC + n * 4
        for p in range(2):
            a(f"v_lshlrev_b32 v24, 16, v{XR+2*n+p}")
            a(f"v_and_b32 v25, 0xffff0000, v{XR+2*n+p}")
            a(f"v_pk_add_f32 {vr(acc+2*p,2)}, {vr(acc+2*p,2)}, v[24:25]")
    a("s_waitcnt lgkmcnt(0)")
    for n in range(5):
        acc = ACC + n * 4
        for p in range(2):
            for m in range(3):
                a(f"v_pk_add_f32 {vr(acc+2*p,2)}, {vr(acc+2*p,2)}, {vr(RB+(m*5+n)*4+2*p,2)}")
            a(f"v_cvt_pk_bf16_f32 v{acc+p}, v{acc+2*p}, v{acc+2*p+1}")
        a(f"buffer_store_dwordx2 {vr(acc,2)}, v{vOut}, {R_(sOut)}, s{sFin} offen offset:{n*32}")
    ST(); ST.dump(R_(sWS), sW, sT)
    a.label("L_out_end")
    a("s_endpgm")
    return kernel_header(name) + a.text(), kernel_desc(name, NV, 102 if stamp else 56)
```

```python
from asmlib import *
NST = 4
STG = 32768
STATS = 0
LDS_QKV = NST * STG

def ln_rowmath(a, SUM, SSQ, T0, sT):
    a(f"s_mov_b32 s{sT}, {f32bits(1.0/640):#x}")
    a(f"v_mul_f32 v{SUM}, s{sT}, v{SUM}")
    a(f"v_mul_f32 v{SSQ}, s{sT}, v{SSQ}")
    a(f"v_fma_f32 v{SSQ}, -v{SUM}, v{SUM}, v{SSQ}")
    a(f"v_max_f32 v{SSQ}, 0, v{SSQ}")
    a(f"v_cvt_pk_bf16_f32 v{T0}, v{SUM}, v{SSQ}")
    a(f"v_lshlrev_b32 v{SUM}, 16, v{T0}")
    a(f"v_and_b32 v{SSQ}, 0xffff0000, v{T0}")
    a(f"v_add_f32 v{SSQ}, {f32bits(1e-5):#x}, v{SSQ}")
    a(f"v_cvt_pk_bf16_f32 v{T0}, v{SSQ}, v{SSQ}")
    a(f"v_and_b32 v{SSQ}, 0xffff0000, v{T0}")
    a(f"v_sqrt_f32 v{SSQ}, v{SSQ}")
    a.nop(1)
    a(f"v_cvt_pk_bf16_f32 v{T0}, v{SSQ}, v{SSQ}")
    a(f"v_and_b32 v{SSQ}, 0xffff0000, v{T0}")
    a(f"v_rcp_f32 v{SSQ}, v{SSQ}")
    a(f"v_xor_b32 v{SUM}, 0x80000000, v{SUM}")

def gen_qkv(name="qkv_kernel", stamp=False, exp=""):
    a = Asm()
    ST = Stamps(a, stamp)
    sX, sWq, sWS = 8, 12, 16
    sW, sMT, sNT, sIDX = 20, 21, 22, 23
    sT = 24
    sLO = 32
    sXCD = 34
    sWM, sWN = 36, 37
    sA, sB, sC = 38, 39, 40
    sM = 44
    X_ = f"s[{sX}:{sX+3}]"; W_ = f"s[{sWq}:{sWq+3}]"; WS_ = f"s[{sWS}:{sWS+3}]"
    a("s_cmp_ge_u32 s2, 256")
    a("s_cbranch_scc1 L_qkv_end")
    ST(False)
    a("s_load_dwordx4 s[4:7], s[0:1], 0")
    a(f"s_load_dwordx2 s[{sT}:{sT+1}], s[0:1], 72")
    a("v_lshrrev_b32 v1, 6, v0")
    a("v_and_b32 v2, 63, v0")
    a(f"v_readfirstlane_b32 s{sW}, v1")
    a(f"s_and_b32 s{sXCD}, s2, 7")
    a(f"s_lshr_b32 s{sIDX}, s2, 3")
    a(f"s_lshr_b32 s{sMT}, s{sXCD}, 1")
    a(f"s_lshl_b32 s{sMT}, s{sMT}, 2")
    a(f"s_and_b32 s{sT+2}, s{sIDX}, 3")
    a(f"s_add_u32 s{sMT}, s{sMT}, s{sT+2}")
    a(f"s_and_b32 s{sNT}, s{sXCD}, 1")
    a(f"s_lshl_b32 s{sNT}, s{sNT}, 3")
    a(f"s_lshr_b32 s{sT+2}, s{sIDX}, 2")
    a(f"s_add_u32 s{sNT}, s{sNT}, s{sT+2}")
    a(f"s_mov_b32 s{sLO}, -1")
    a(f"s_mov_b32 s{sLO+1}, 0")
    a("v_and_b32 v3, 31, v2")
    a("v_lshrrev_b32 v4, 5, v2")
    a("s_waitcnt lgkmcnt(0)")
    a(f"s_mov_b32 s{sX}, s4\ns_and_b32 s{sX+1}, s5, 0xffff\ns_mov_b32 s{sX+2}, {2048*1280}\ns_mov_b32 s{sX+3}, 0x20000")
    a(f"s_mov_b32 s{sWq}, s6\ns_and_b32 s{sWq+1}, s7, 0xffff\ns_mov_b32 s{sWq+2}, {640*3840}\ns_mov_b32 s{sWq+3}, 0x20000")
    a(f"s_mov_b32 s{sWS}, s{sT}\ns_and_b32 s{sWS+1}, s{sT+1}, 0xffff\ns_mov_b32 s{sWS+2}, {WS_END}\ns_mov_b32 s{sWS+3}, 0x20000")
    a(f"s_cmp_eq_u32 s{sNT}, 15")
    a("s_cbranch_scc1 L_qkv_lnjob")
    a(f"s_cmp_ge_u32 s{sW}, 4")
    a("s_cbranch_scc1 L_qkv_loader")

    XF = [[8, 12], [16, 20]]
    WF = [[24, 28], [32, 36]]
    vXA = [[[40 + (hi * 2 + mi) * 4 + ks for ks in range(4)] for mi in range(2)] for hi in range(2)]
    vWA = [[56 + hi * 2 + ni for ni in range(2)] for hi in range(2)]
    SUM, SUM2, SSQ, SSQ2 = 60, 61, 62, 63
    ACC = 64
    T = list(range(128, 168))
    SEL = 168
    CSD = 172
    U = [176, 177, 178, 179]
    NV = 180
    a(f"s_and_b32 s{sWM}, s{sW}, 1")
    a(f"s_lshr_b32 s{sWN}, s{sW}, 1")
    a("v_lshrrev_b32 v5, 1, v3")
    a("v_and_b32 v5, 7, v5")
    for mi in range(2):
        a(f"s_xor_b32 s{sT}, s{sWN}, {mi}")
        a(f"s_lshl_b32 s{sT+1}, s{sWM}, 1")
        a(f"s_add_u32 s{sT}, s{sT}, s{sT+1}")
        a(f"s_lshl_b32 s{sT}, s{sT}, 12")
        a(f"v_lshl_add_u32 v6, v3, 7, s{sT}")
        for ks in range(4):
            a(f"v_or_b32 v7, {2*ks}, v4")
            a(f"v_xor_b32 v7, v7, v5")
            a(f"v_lshl_add_u32 v{vXA[0][mi][ks]}, v7, 4, v6")
            a(f"v_add_u32 v{vXA[1][mi][ks]}, 0x10000, v{vXA[0][mi][ks]}")
    a("v_lshrrev_b32 v5, 2, v2")
    a("v_and_b32 v5, 3, v5")
    a("v_lshl_add_u32 v6, v4, 3, v5")
    a("v_lshlrev_b32 v6, 8, v6")
    a("v_lshrrev_b32 v7, 4, v2")
    a("v_and_b32 v7, 1, v7")
    a("v_lshl_add_u32 v6, v7, 5, v6")
    a("v_and_b32 v5, 15, v2")
    a("v_cmp_eq_u32 vcc, v5, v7")
    a("v_mov_b32 v5, 0x3f803f80")
    a("v_and_b32 v7, 3, v2")
    for r in range(4): a(f"v_cndmask_b32 v{SEL+r}, 0, v5, vcc")
    a("v_lshl_add_u32 v6, v7, 3, v6")
    a("v_add_u32 v6, 16384, v6")
    a("v_lshrrev_b32 v5, 2, v2")
    a("v_and_b32 v5, 3, v5")
    for ni in range(2):
        a(f"s_xor_b32 s{sT}, s{sWM}, {ni}")
        a(f"s_lshl_b32 s{sT+1}, s{sWN}, 1")
        a(f"s_add_u32 s{sT}, s{sT}, s{sT+1}")
        a(f"v_xor_b32 v7, s{sT}, v5")
        a(f"v_lshl_add_u32 v{vWA[0][ni]}, v7, 6, v6")
        a(f"v_add_u32 v{vWA[1][ni]}, 0x10000, v{vWA[0][ni]}")
    for r in range(64): a(f"v_mov_b32 v{ACC+r}, 0")
    for r in (SUM, SUM2, SSQ, SSQ2, CSD, CSD + 1, CSD + 2, CSD + 3): a(f"v_mov_b32 v{r}, 0")

    def rd(st, ks, buf):
        base = (st % NST) * STG
        hi = base // 65536; b = base % 65536
        L = []
        for mi in range(2):
            L.append(f"ds_read_b128 {vr(XF[buf][mi],4)}, v{vXA[hi][mi][ks]} offset:{b}")
        for ni in range(2):
            for h in range(2):
                L.append(f"ds_read_b64_tr_b16 {vr(WF[buf][ni]+2*h,2)}, v{vWA[hi][ni]} offset:{b + ks*4096 + h*1024}")
        return L

    def mainloop(vtype):
        a("s_barrier")
        ST.reset(1); ST()
        for l in rd(0, 0, 0): a(l)
        for st in range(10):
            for ks in range(4):
                buf = (st * 4 + ks) & 1
                if ks < 3: nxt = rd(st, ks + 1, buf ^ 1)
                elif st < 9: nxt = rd(st + 1, 0, buf ^ 1)
                else: nxt = []
                a("s_waitcnt lgkmcnt(0)")
                if ks == 3 and st < 9:
                    a("s_barrier")
                    ST()
                x0 = XF[buf][0]; w0 = WF[buf][0]
                n = 0
                if "nocomp" in exp: continue
                for mi in range(2):
                    for ni in range(2):
                        d = ACC + (mi * 2 + ni) * 16
                        A, B = (XF[buf][mi], WF[buf][ni]) if vtype else (WF[buf][ni], XF[buf][mi])
                        a(f"v_mfma_f32_32x32x16_bf16 {vr(d,16)}, {vr(A,4)}, {vr(B,4)}, {vr(d,16)}")
                        for l in nxt[n * 3: n * 3 + 3]: a(l)
                        u0, u1 = U[2 * (n & 1)], U[2 * (n & 1) + 1]
                        if "nostat" in exp:
                            n += 1; continue
                        a(f"v_lshlrev_b32 v{u0}, 16, v{x0+n}")
                        a(f"v_and_b32 v{u1}, 0xffff0000, v{x0+n}")
                        a(f"v_add_f32 v{SUM}, v{SUM}, v{u0}")
                        a(f"v_add_f32 v{SUM2}, v{SUM2}, v{u1}")
                        a(f"v_fmac_f32 v{SSQ}, v{u0}, v{u0}")
                        a(f"v_fmac_f32 v{SSQ2}, v{u1}, v{u1}")
                        n += 1
                a(f"v_mfma_f32_16x16x32_bf16 {vr(CSD,4)}, {vr(SEL,4)}, {vr(w0,4)}, {vr(CSD,4)}")
        ST()
        a(f"v_add_f32 v{SUM}, v{SUM}, v{SUM2}")
        a(f"v_add_f32 v{SSQ}, v{SSQ}, v{SSQ2}")
        for R, t in ((SUM, T[0]), (SSQ, T[1])): a(f"v_mov_b32 v{t}, v{R}")
        a.nop(1)
        for R, t in ((SUM, T[0]), (SSQ, T[1])): a(f"v_permlane32_swap_b32 v{R}, v{t}")
        for R, t in ((SUM, T[0]), (SSQ, T[1])): a(f"v_add_f32 v{R}, v{R}, v{t}")
        ln_rowmath(a, SUM, SSQ, T[0], sT)
        a(f"s_lshl_b32 s{sT}, s{sWM}, 1\ns_add_u32 s{sT}, s{sT}, s{sWN}\ns_lshl_b32 s{sT}, s{sT}, 7\ns_add_u32 s{sT}, s{sT}, {STATS}")
        a(f"v_lshl_add_u32 v{T[0]}, v3, 2, s{sT}")
        a(f"s_lshl_b32 s{sT}, s{sWN}, 1\ns_add_u32 s{sT}, s{sT}, s{sWM}\ns_lshl_b32 s{sT}, s{sT}, 7\ns_add_u32 s{sT}, s{sT}, {STATS+1024}")
        a(f"v_lshl_add_u32 v{T[1]}, v3, 2, s{sT}")
        a(f"ds_write_b32 v{T[0]}, v{SUM}")
        a(f"ds_write_b32 v{T[0]}, v{SSQ} offset:512")
        a("s_mov_b64 exec, 0xffff")
        a(f"ds_write_b32 v{T[1]}, v{CSD}")
        a(f"ds_write_b32 v{T[1]}, v{CSD+1} offset:64")
        a("s_mov_b64 exec, -1")
        a("s_waitcnt lgkmcnt(0)")
        a("s_barrier")
        ST()

    def blk(dst, x, y, xo):
        a(f"s_xor_b32 s{dst}, s{y}, {xo}")
        a(f"s_lshl_b32 s{sT+7}, s{x}, 1")
        a(f"s_add_u32 s{dst}, s{dst}, s{sT+7}")

    a(f"s_cmp_ge_u32 s{sNT}, 10")
    a("s_cbranch_scc1 L_qkv_vtype")
    mainloop(False)
    NM = [T[0], T[2]]; RS = [T[4], T[6]]
    CSV = [[T[8] + (ni * 4 + g) * 4 for g in range(4)] for ni in range(2)]
    K16 = [8, 9]; K8 = [20, 21]
    for mi in range(2):
        blk(sA, sWM, sWN, mi)
        a(f"s_lshl_b32 s{sA}, s{sA}, 5")
        a(f"v_add_u32 v11, s{sA}, v3")
        a(f"v_lshlrev_b32 v10, 2, v11")
        a(f"ds_read_b32 v{NM[mi]}, v10 offset:{STATS}")
        a(f"ds_read_b32 v{RS[mi]}, v10 offset:{STATS+512}")
        a(f"v_lshlrev_b32 v{K16[mi]}, 4, v11")
        a(f"v_lshlrev_b32 v{K8[mi]}, 3, v11")
    FL = [12, 13]
    a(f"s_cmp_lt_u32 s{sNT}, 5")
    a(f"s_cselect_b32 s{sB}, {f32bits(QSCALE):#x}, 1.0")
    a(f"s_cselect_b32 s{sC}, 0, 5")
    a(f"s_mov_b32 s{sT+6}, {WS_KV}")
    a(f"s_cselect_b32 s{sT+6}, {WS_Q}, s{sT+6}")
    a(f"s_sub_u32 s{sC}, s{sNT}, s{sC}")
    a(f"s_lshl_b32 s{sC}, s{sC}, 7")
    for ni in range(2):
        blk(sA, sWN, sWM, ni)
        a(f"s_lshl_b32 s{sA}, s{sA}, 5")
        a(f"v_lshl_add_u32 v10, v4, 2, s{sA}")
        a(f"v_lshlrev_b32 v10, 2, v10")
        for g in range(4):
            a(f"ds_read_b128 {vr(CSV[ni][g],4)}, v10 offset:{STATS+1024+g*32}")
        a(f"s_add_u32 s{sA}, s{sA}, s{sC}")
        a(f"v_lshl_add_u32 v{FL[ni]}, v4, 3, s{sA}")
    a(f"s_mul_i32 s{sA}, s{sMT}, {CHUNK}")
    a(f"s_add_u32 s{sA}, s{sA}, s{sT+6}")
    a(f"s_add_u32 s{sC}, s{sA}, {16*CHUNK}")
    a(f"s_mov_b32 s{sT+6}, {16*CHUNK}")
    a("s_waitcnt lgkmcnt(0)")
    for mi in range(2): a(f"v_mul_f32 v{RS[mi]}, s{sB}, v{RS[mi]}")
    for ni in range(2):
        for gp in range(2):
            a(f"v_add_u32 v14, {16*gp}, v{FL[ni]}")
            a(f"v_mul_u32_u24 v15, 1639, v14")
            a(f"v_lshrrev_b32 v15, 16, v15")
            a(f"v_mul_u32_u24 v16, 40, v15")
            a(f"v_sub_u32 v16, v14, v16")
            a(f"v_lshrrev_b32 v16, 3, v16")
            a(f"v_cmp_lt_u32 vcc, 2, v16")
            a(f"v_cmp_eq_u32 s[{sM}:{sM+1}], 2, v16")
            a(f"v_lshlrev_b32 v15, 1, v15")
            a(f"v_addc_co_u32 v15, vcc, 0, v15, vcc") if False else None
            a(f"v_cndmask_b32 v14, 0, 1, vcc")
            a(f"v_add_u32 v15, v15, v14")
            a(f"v_mul_u32_u24 v14, 3, v14")
            a(f"v_sub_u32 v16, v16, v14")
            a(f"v_mul_lo_u32 v15, v15, s{sT+6}")
            a(f"v_lshl_add_u32 v15, v16, 11, v15")
            for mi in range(2):
                d = ACC + (mi * 2 + ni) * 16
                for g in (2 * gp, 2 * gp + 1):
                    for p in range(2):
                        r = d + 4 * g + 2 * p
                        a(f"v_pk_fma_f32 {vr(r,2)}, {vr(CSV[ni][g]+2*p,2)}, {vr(NM[mi],2)}, {vr(r,2)} op_sel_hi:[1,0,1]")
                        a(f"v_pk_mul_f32 {vr(r,2)}, {vr(r,2)}, {vr(RS[mi],2)} op_sel_hi:[1,0]")
                q = d + 8 * gp
                a(f"v_cvt_pk_bf16_f32 v{q}, v{q}, v{q+1}")
                a(f"v_cvt_pk_bf16_f32 v{q+1}, v{q+2}, v{q+3}")
                a(f"v_cvt_pk_bf16_f32 v{q+2}, v{q+4}, v{q+5}")
                a(f"v_cvt_pk_bf16_f32 v{q+3}, v{q+6}, v{q+7}")
                a(f"v_add_u32 v17, v15, v{K16[mi]}")
                a(f"v_add_u32 v18, v15, v{K8[mi]}")
                a(f"v_permlane32_swap_b32 v{q}, v{q+2}")
                a(f"v_permlane32_swap_b32 v{q+1}, v{q+3}")
                a(f"s_andn2_b64 exec, exec, s[{sM}:{sM+1}]")
                a(f"buffer_store_dwordx4 {vr(q,4)}, v17, {WS_}, s{sA} offen")
                a(f"s_mov_b64 exec, s[{sM}:{sM+1}]")
                lab = a.newlabel("L_qk_ns")
                a(f"s_cbranch_execz {lab}")
                a(f"buffer_store_dwordx2 {vr(q,2)}, v18, {WS_}, s{sA} offen")
                a(f"buffer_store_dwordx2 {vr(q+2,2)}, v18, {WS_}, s{sC} offen")
                a.label(lab)
                a("s_mov_b64 exec, -1")
    ST.reset(13); ST(); ST.dump(WS_, sW, sT)
    a("s_endpgm")

    a.label("L_qkv_vtype")
    mainloop(True)
    CSL = [T[0], T[2]]
    VB = [8, 9]
    a(f"s_sub_u32 s{sC}, s{sNT}, 10")
    a(f"s_lshl_b32 s{sC}, s{sC}, 7")
    a(f"s_mov_b32 s{sB}, {16*CHUNK}")
    for ni in range(2):
        blk(sA, sWN, sWM, ni)
        a(f"s_lshl_b32 s{sA}, s{sA}, 5")
        a(f"v_add_u32 v14, s{sA}, v3")
        a(f"v_lshlrev_b32 v10, 2, v14")
        a(f"ds_read_b32 v{CSL[ni]}, v10 offset:{STATS+1024}")
        a(f"v_add_u32 v14, s{sC}, v14")
        a(f"v_mul_u32_u24 v15, 3277, v14")
        a(f"v_lshrrev_b32 v15, 16, v15")
        a(f"v_mul_u32_u24 v16, 20, v15")
        a(f"v_sub_u32 v16, v14, v16")
        a(f"v_mul_lo_u32 v15, v15, s{sB}")
        a(f"v_lshl_add_u32 v15, v16, 4, v15")
        a(f"v_mul_u32_u24 v16, 320, v4")
        a(f"v_add_u32 v{VB[ni]}, v15, v16")
    for mi in range(2):
        NMV = [T[8] + g * 4 for g in range(4)]; RSV = [T[24] + g * 4 for g in range(4)]
        blk(sA, sWM, sWN, mi)
        a(f"s_lshl_b32 s{sT}, s{sA}, 7")
        a(f"v_lshl_add_u32 v10, v4, 4, s{sT}")
        for g in range(4):
            a(f"ds_read_b128 {vr(NMV[g],4)}, v10 offset:{STATS+g*32}")
            a(f"ds_read_b128 {vr(RSV[g],4)}, v10 offset:{STATS+512+g*32}")
        a(f"s_mul_i32 s{sA}, s{sA}, {4*320}")
        a(f"s_mul_i32 s{sT}, s{sMT}, {CHUNK}")
        a(f"s_add_u32 s{sA}, s{sA}, s{sT}")
        a(f"s_add_u32 s{sA}, s{sA}, {WS_KV+5120}")
        a("s_waitcnt lgkmcnt(0)")
        for ni in range(2):
            d = ACC + (mi * 2 + ni) * 16
            for gp in range(2):
                for g in (2 * gp, 2 * gp + 1):
                    for p in range(2):
                        r = d + 4 * g + 2 * p
                        a(f"v_pk_fma_f32 {vr(r,2)}, {vr(NMV[g]+2*p,2)}, {vr(CSL[ni],2)}, {vr(r,2)} op_sel_hi:[1,0,1]")
                        a(f"v_pk_mul_f32 {vr(r,2)}, {vr(r,2)}, {vr(RSV[g]+2*p,2)}")
                q = d + 8 * gp
                a(f"v_cvt_pk_bf16_f32 v{q}, v{q}, v{q+1}")
                a(f"v_cvt_pk_bf16_f32 v{q+1}, v{q+2}, v{q+3}")
                a(f"v_cvt_pk_bf16_f32 v{q+2}, v{q+4}, v{q+5}")
                a(f"v_cvt_pk_bf16_f32 v{q+3}, v{q+6}, v{q+7}")
                a.nop(2)
                a(f"v_permlane32_swap_b32 v{q}, v{q+2}")
                a(f"v_permlane32_swap_b32 v{q+1}, v{q+3}")
                a(f"buffer_store_dwordx4 {vr(q,4)}, v{VB[ni]}, {WS_}, s{sA} offen offset:{gp*640}")
    ST.reset(13); ST(); ST.dump(WS_, sW, sT)
    a("s_endpgm")

    a.label("L_qkv_loader")
    sLW = 36
    vXE, vXO, vWv = 5, 6, 7
    a(f"s_sub_u32 s{sLW}, s{sW}, 4")
    a("v_lshrrev_b32 v9, 4, v2")
    a("v_lshrrev_b32 v10, 3, v2")
    a("v_mul_u32_u24 v10, 1280, v10")
    a("v_and_b32 v11, 7, v2")
    a(f"v_xor_b32 v{vXE}, v11, v9")
    a(f"v_xor_b32 v{vXO}, 4, v{vXE}")
    a(f"v_lshl_add_u32 v{vXE}, v{vXE}, 4, v10")
    a(f"v_lshl_add_u32 v{vXO}, v{vXO}, 4, v10")
    a(f"v_mul_u32_u24 v{vWv}, 3840, v9")
    a("v_lshrrev_b32 v10, 2, v2")
    a("v_and_b32 v10, 3, v10")
    a("v_xor_b32 v10, v10, v9")
    a(f"v_lshl_add_u32 v{vWv}, v10, 6, v{vWv}")
    a("v_and_b32 v10, 3, v2")
    a(f"v_lshl_add_u32 v{vWv}, v10, 4, v{vWv}")
    sXo, sWo, sLd = 41, 42, 43
    a(f"s_lshl_b32 s{sXo}, s{sMT}, 7")
    a(f"s_lshl_b32 s{sT}, s{sLW}, 5")
    a(f"s_add_u32 s{sXo}, s{sXo}, s{sT}")
    a(f"s_mul_i32 s{sXo}, s{sXo}, 1280")
    a(f"s_mul_i32 s{sWo}, s{sLW}, {16*3840}")
    a(f"s_lshl_b32 s{sT}, s{sNT}, 8")
    a(f"s_add_u32 s{sWo}, s{sWo}, s{sT}")
    a(f"s_lshl_b32 s{sLd}, s{sLW}, 12")
    def issue(st):
        if "noload" in exp and st >= 2: return
        base = (st % NST) * STG
        for j in range(4):
            a(f"s_add_u32 m0, s{sLd}, {base + j*1024}")
            a(f"s_add_u32 s{sT}, s{sXo}, {j*8*1280 + st*128}")
            a(f"buffer_load_dwordx4 v{vXO if j & 1 else vXE}, {X_}, s{sT} offen lds")
            a(f"s_add_u32 m0, s{sLd}, {base + 16384 + j*1024}")
            a(f"s_add_u32 s{sT}, s{sWo}, {(st*64 + j*4)*3840}")
            a(f"buffer_load_dwordx4 v{vWv}, {W_}, s{sT} offen lds")
    issue(0); issue(1)
    a("s_waitcnt vmcnt(8)")
    a("s_barrier")
    issue(2)
    issued = 2
    for st in range(9):
        a(f"s_waitcnt vmcnt({8 * (issued - (st + 1))})")
        a("s_barrier")
        while issued < min(st + 4, 9):
            issued += 1; issue(issued)
    a("s_endpgm")

    a.label("L_qkv_lnjob")
    XD = 12
    JS, JQ, JT, vJ = 92, 94, 96, 8
    a(f"s_lshl_b32 s{sA}, s{sMT}, 7")
    a(f"s_lshl_b32 s{sT}, s{sW}, 4")
    a(f"s_add_u32 s{sA}, s{sA}, s{sT}")
    a(f"s_mul_i32 s{sA}, s{sA}, 1280")
    a("v_lshrrev_b32 v9, 4, v2")
    a(f"v_mul_u32_u24 v{vJ}, 1280, v9")
    a("v_and_b32 v10, 15, v2")
    a(f"v_lshl_add_u32 v{vJ}, v10, 4, v{vJ}")
    for ps in range(4):
        a(f"s_add_u32 s{sT}, s{sA}, {ps*4*1280}")
        for j in range(5):
            a(f"buffer_load_dwordx4 {vr(XD+20*ps+4*j,4)}, v{vJ}, {X_}, s{sT} offen offset:{256*j}")
    for ps in range(4):
        xd = XD + 20 * ps
        a(f"s_waitcnt vmcnt({15 - 5*ps + 5*ps})")
        a(f"v_mov_b32 v{JS}, 0\nv_mov_b32 v{JQ}, 0\nv_mov_b32 v{JT}, 0x3f803f80")
        for r in range(20):
            a(f"v_dot2c_f32_bf16 v{JS}, v{xd+r}, v{JT}")
            a(f"v_dot2c_f32_bf16 v{JQ}, v{xd+r}, v{xd+r}")
        a.nop(3)
        for sh in (8, 4, 2, 1):
            a(f"v_add_f32_dpp v{JS}, v{JS}, v{JS} row_ror:{sh} row_mask:0xf bank_mask:0xf")
            a(f"v_add_f32_dpp v{JQ}, v{JQ}, v{JQ} row_ror:{sh} row_mask:0xf bank_mask:0xf")
            a.nop(1)
        ln_rowmath(a, JS, JQ, JT, sT)
        a(f"s_add_u32 s{sB}, s{sA}, {WS_XN + ps*4*1280}")
        for j in range(5):
            for r in range(4):
                x = xd + 4 * j + r
                a(f"v_lshlrev_b32 v{JT}, 16, v{x}")
                a(f"v_and_b32 v{JT+1}, 0xffff0000, v{x}")
                a(f"v_pk_add_f32 {vr(JT,2)}, {vr(JT,2)}, {vr(JS,2)} op_sel_hi:[1,0]")
                a(f"v_pk_mul_f32 {vr(JT,2)}, {vr(JT,2)}, {vr(JQ,2)} op_sel_hi:[1,0]")
                a(f"v_cvt_pk_bf16_f32 v{x}, v{JT}, v{JT+1}")
            a(f"buffer_store_dwordx4 {vr(xd+4*j,4)}, v{vJ}, {WS_}, s{sB} offen offset:{256*j}")
    ST.reset(13); ST(); ST.dump(WS_, sW, sT)
    a.label("L_qkv_end")
    a("s_endpgm")
    return kernel_header(name) + a.text(), kernel_desc(name, NV, 102 if stamp else 48)

if __name__ == "__main__":
    import sys
    ex = sys.argv[2] if len(sys.argv) > 2 else ""
    body, desc = gen_qkv(stamp=len(sys.argv) > 1, exp=ex)
    s = f"; @launch kernel=qkv_kernel grid=(256,1,1) block=(512,1,1) lds={LDS_QKV}\n"
    s += '.amdgcn_target "amdgcn-amd-amdhsa--gfx950"\n.text\n' + body + '.section .rodata,"a"\n' + desc
    open(f"../qkv_only{ex}.s", "w").write(s)
```

```python
import sys
from asmlib import *
import k_qkv, k_glu, k_attn, k_out
stamp = len(sys.argv) > 2 and sys.argv[2] == "stamp"
hdr = open("parallel_sum__softmax_full_mha__glu_gated_reglu__prompt.s.ref").read().split("; Override launch")[0]
ks = [("qkv_kernel", k_qkv.gen_qkv(stamp=stamp), 512, k_qkv.LDS_QKV),
      ("glu_kernel", k_glu.gen_glu(stamp=stamp), 512, k_glu.LDS_GLU),
      ("attn_kernel", k_attn.gen_attn(stamp=stamp), 512, 163840),
      ("out_kernel", k_out.gen_out(stamp=stamp), 256, k_out.LDS_OUT)]
s = hdr
for n, _, b, l in ks: s += f"; @launch kernel={n} grid=(256,1,1) block=({b},1,1) lds={l}\n"
s += '.amdgcn_target "amdgcn-amd-amdhsa--gfx950"\n.text\n'
for n, (body, desc), b, l in ks: s += body
s += '.section .rodata,"a"\n'
for n, (body, desc), b, l in ks: s += desc
open(sys.argv[1], "w").write(s)
```

```python
class Asm:
    def __init__(self):
        self.lines = []
        self.uid = 0
    def __call__(self, s):
        for l in s.strip("\n").split("\n"):
            self.lines.append("  " + l.strip())
    def c(self, s):
        self.lines.append("  ; " + s)
    def label(self, l):
        self.lines.append(l + ":")
    def newlabel(self, p="L"):
        self.uid += 1
        return f"{p}_{self.uid}"
    def nop(self, n):
        while n > 0:
            k = min(n, 16)
            self(f"s_nop {k-1}")
            n -= k
    def text(self):
        return "\n".join(self.lines) + "\n"

def vr(b, n):
    return f"v[{b}:{b+n-1}]" if n > 1 else f"v{b}"
def sr(b, n):
    return f"s[{b}:{b+n-1}]" if n > 1 else f"s{b}"
def ar(b, n):
    return f"a[{b}:{b+n-1}]" if n > 1 else f"a{b}"

def kernel_header(name):
    return f""".globl {name}
.p2align 8
.type {name},@function
{name}:
"""
def kernel_desc(name, nvgpr, nsgpr=96, accum=None, total=None):
    acc = accum if accum is not None else (nvgpr + 3) // 4 * 4
    tot = total if total is not None else nvgpr
    return f""".p2align 6
.amdhsa_kernel {name}
  .amdhsa_next_free_vgpr {tot}
  .amdhsa_next_free_sgpr {nsgpr}
  .amdhsa_accum_offset {acc}
  .amdhsa_group_segment_fixed_size 0
  .amdhsa_kernarg_size 80
  .amdhsa_user_sgpr_count 2
  .amdhsa_user_sgpr_kernarg_segment_ptr 1
  .amdhsa_system_sgpr_workgroup_id_x 1
.end_amdhsa_kernel
"""

WS_Q  = 0x000000
WS_KV = 0x500000
WS_O  = 0xA00000
WS_H  = 0xE00000
CHUNK = 10240
WS_XN = 0x1500000
WS_END = 0x1800000
WS_STAMP = 0x1400000
import math
def f32bits(x):
    import struct
    return struct.unpack("<I", struct.pack("<f", x))[0]
QSCALE = math.log2(math.e) / math.sqrt(20.0)

class Stamps:
    def __init__(self, a, on, base=52, area=0):
        self.a = a; self.on = on; self.n = 0; self.base = base; self.area = area
    def __call__(self, wait=True):
        if not self.on: return
        if self.n == 0 and not wait: self.a("s_memrealtime s[98:99]")
        if self.on == "light" and self.n > 0:
            self.n += 1
            return
        b = self.base + 2 * self.n
        assert b + 1 < 98
        self.a(f"s_memtime s[{b}:{b+1}]")
        if wait: self.a("s_waitcnt lgkmcnt(0)")
        self.n += 1
    def reset(self, n): self.n = n
    def dump(self, srd, swave, stmp, n=None):
        if not self.on: return
        a = self.a
        n = n or self.n
        a("s_waitcnt vmcnt(0) lgkmcnt(0)")
        a(f"s_memtime s[{self.base+2*n}:{self.base+2*n+1}]")
        a(f"s_memrealtime s[100:101]")
        a("s_waitcnt lgkmcnt(0)")
        a("s_mov_b64 exec, 1")
        a(f"s_lshl_b32 s{stmp}, s2, 3")
        a(f"s_add_u32 s{stmp}, s{stmp}, s{swave}")
        a(f"s_lshl_b32 s{stmp}, s{stmp}, 7")
        a(f"s_add_u32 s{stmp}, s{stmp}, {WS_STAMP + self.area * 0x40000}")
        a("v_mov_b32 v1, 0")
        for i in range(n + 1):
            a(f"v_mov_b32 v2, s{self.base+2*i}")
            a(f"buffer_store_dword v2, v1, {srd}, s{stmp} offen offset:{4*i}")
        a(f"v_mov_b32 v2, s100")
        a(f"buffer_store_dword v2, v1, {srd}, s{stmp} offen offset:124")
        a(f"v_mov_b32 v2, s98")
        a(f"buffer_store_dword v2, v1, {srd}, s{stmp} offen offset:120")

WS_WP = 0x1800000
WS_END = 0x1B00000
WS_FL2 = 0x1B00000
WS_FL3 = 0x1B01000
WS_END = 0x1C00000

class Cnt:
    def __init__(self, a, name, maxv):
        self.a = a; self.name = name; self.maxv = maxv
        self.issued = 0; self.done = 0
    def op(self, n=1):
        self.issued += n
        return self.issued - 1
    def need_n(self, tag):
        if tag < self.done: return None
        n = self.issued - 1 - tag
        n = min(n, self.maxv)
        self.done = self.issued - n
        return n
    def need(self, tag):
        n = self.need_n(tag)
        if n is not None: self.a(f"s_waitcnt {self.name}({n})")
    def drain(self):
        self.done = self.issued

class Stamps2:
    def __init__(self, a, active, base=72):
        self.a = a; self.active = active; self.base = base
    def start(self):
        if not self.active: return
        for i in range(1, 13): self.a(f"s_mov_b32 s{self.base+2*i}, 0")
        self.a("s_memrealtime s[98:99]")
        self.a(f"s_memtime s[{self.base}:{self.base+1}]")
    def __call__(self, st, i):
        if not self.active or st != self.active: return
        assert 1 <= i <= 11
        b = self.base + 2 * i
        self.a(f"s_memtime s[{b}:{b+1}]")
        self.a("s_waitcnt lgkmcnt(0)")
    def dump(self, srd, swave, stmp):
        if not self.active: return
        a = self.a; n = 12
        a("s_waitcnt vmcnt(0) lgkmcnt(0)")
        a(f"s_memtime s[{self.base+2*n}:{self.base+2*n+1}]")
        a(f"s_memrealtime s[100:101]")
        a("s_waitcnt lgkmcnt(0)")
        a("s_mov_b64 exec, 1")
        a(f"s_lshl_b32 s{stmp}, s2, 3")
        a(f"s_add_u32 s{stmp}, s{stmp}, s{swave}")
        a(f"s_lshl_b32 s{stmp}, s{stmp}, 7")
        a(f"s_add_u32 s{stmp}, s{stmp}, {WS_STAMP}")
        a("v_mov_b32 v1, 0")
        for i in range(n + 1):
            a(f"v_mov_b32 v2, s{self.base+2*i}")
            a(f"buffer_store_dword v2, v1, {srd}, s{stmp} offen offset:{4*i}")
        a(f"v_mov_b32 v2, s100")
        a(f"buffer_store_dword v2, v1, {srd}, s{stmp} offen offset:124")
        a(f"v_mov_b32 v2, s98")
        a(f"buffer_store_dword v2, v1, {srd}, s{stmp} offen offset:120")
```

```python
from asmlib import *
NST = 4
STG = 32768
STATS = 0
LDS_QKV = NST * STG

def ln_rowmath(a, SUM, SSQ, T0, sT):
    a(f"s_mov_b32 s{sT}, {f32bits(1.0/640):#x}")
    a(f"v_mul_f32 v{SUM}, s{sT}, v{SUM}")
    a(f"v_mul_f32 v{SSQ}, s{sT}, v{SSQ}")
    a(f"v_fma_f32 v{SSQ}, -v{SUM}, v{SUM}, v{SSQ}")
    a(f"v_max_f32 v{SSQ}, 0, v{SSQ}")
    a(f"v_cvt_pk_bf16_f32 v{T0}, v{SUM}, v{SSQ}")
    a(f"v_lshlrev_b32 v{SUM}, 16, v{T0}")
    a(f"v_and_b32 v{SSQ}, 0xffff0000, v{T0}")
    a(f"v_add_f32 v{SSQ}, {f32bits(1e-5):#x}, v{SSQ}")
    a(f"v_cvt_pk_bf16_f32 v{T0}, v{SSQ}, v{SSQ}")
    a(f"v_and_b32 v{SSQ}, 0xffff0000, v{T0}")
    a(f"v_sqrt_f32 v{SSQ}, v{SSQ}")
    a.nop(1)
    a(f"v_cvt_pk_bf16_f32 v{T0}, v{SSQ}, v{SSQ}")
    a(f"v_and_b32 v{SSQ}, 0xffff0000, v{T0}")
    a(f"v_rcp_f32 v{SSQ}, v{SSQ}")
    a(f"v_xor_b32 v{SUM}, 0x80000000, v{SUM}")

def gen_qkv(name="qkv_kernel", stamp=False, exp=""):
    a = Asm()
    ST = Stamps(a, stamp, area=0)
    sX, sWq, sWS = 8, 12, 16
    sW, sMT, sNT, sIDX = 20, 21, 22, 23
    sT = 24
    sLO = 32
    sXCD = 34
    sWM, sWN = 36, 37
    sA, sB, sC = 38, 39, 40
    sM = 44
    sP = 48
    X_ = f"s[{sX}:{sX+3}]"; W_ = f"s[{sWq}:{sWq+3}]"; WS_ = f"s[{sWS}:{sWS+3}]"
    a("s_cmp_ge_u32 s2, 256")
    a("s_cbranch_scc1 L_qkv_end")
    ST(False)
    a("s_load_dwordx4 s[4:7], s[0:1], 0")
    a(f"s_load_dwordx2 s[{sT}:{sT+1}], s[0:1], 72")
    a(f"s_load_dwordx2 s[{sP}:{sP+1}], s[0:1], 16")
    a(f"s_load_dwordx2 s[{sP+2}:{sP+3}], s[0:1], 48")
    a("v_lshrrev_b32 v1, 6, v0")
    a("v_and_b32 v2, 63, v0")
    a(f"v_readfirstlane_b32 s{sW}, v1")
    a(f"s_and_b32 s{sXCD}, s2, 7")
    a(f"s_lshr_b32 s{sIDX}, s2, 3")
    a(f"s_lshr_b32 s{sMT}, s{sXCD}, 1")
    a(f"s_lshl_b32 s{sMT}, s{sMT}, 2")
    a(f"s_and_b32 s{sT+2}, s{sIDX}, 3")
    a(f"s_add_u32 s{sMT}, s{sMT}, s{sT+2}")
    a(f"s_and_b32 s{sNT}, s{sXCD}, 1")
    a(f"s_lshl_b32 s{sNT}, s{sNT}, 3")
    a(f"s_lshr_b32 s{sT+2}, s{sIDX}, 2")
    a(f"s_add_u32 s{sNT}, s{sNT}, s{sT+2}")
    a(f"s_mov_b32 s{sLO}, -1")
    a(f"s_mov_b32 s{sLO+1}, 0")
    a("v_and_b32 v3, 31, v2")
    a("v_lshrrev_b32 v4, 5, v2")
    a("s_waitcnt lgkmcnt(0)")
    a(f"s_mov_b32 s{sX}, s4\ns_and_b32 s{sX+1}, s5, 0xffff\ns_mov_b32 s{sX+2}, {2048*1280}\ns_mov_b32 s{sX+3}, 0x20000")
    a(f"s_mov_b32 s{sWq}, s6\ns_and_b32 s{sWq+1}, s7, 0xffff\ns_mov_b32 s{sWq+2}, {640*3840}\ns_mov_b32 s{sWq+3}, 0x20000")
    a(f"s_mov_b32 s{sWS}, s{sT}\ns_and_b32 s{sWS+1}, s{sT+1}, 0xffff\ns_mov_b32 s{sWS+2}, {WS_END}\ns_mov_b32 s{sWS+3}, 0x20000")
    a(f"s_cmp_eq_u32 s{sNT}, 15")
    a("s_cbranch_scc1 L_qkv_lnjob")
    a(f"s_cmp_ge_u32 s{sW}, 4")
    a("s_cbranch_scc1 L_qkv_loader")

    XF = [[8, 12], [16, 20]]
    WF = [[24, 28], [32, 36]]
    vXA = [[[40 + (hi * 2 + mi) * 4 + ks for ks in range(4)] for mi in range(2)] for hi in range(2)]
    vWA = [[56 + hi * 2 + ni for ni in range(2)] for hi in range(2)]
    SUM, SUM2, SSQ, SSQ2 = 60, 61, 62, 63
    ACC = 64
    T = list(range(128, 168))
    SEL = 168
    CSD = 172
    U = [176, 177, 178, 179]
    NV = 180
    if "nopf" not in exp:
        lab = a.newlabel("L_pf")
        a(f"s_cmp_ge_u32 s{sIDX}, 24")
        a(f"s_cbranch_scc1 {lab}")
        a(f"s_cmp_ge_u32 s{sIDX}, 8")
        a(f"s_cbranch_scc1 {lab}_w")
        a(f"s_lshr_b32 s{sT}, s{sXCD}, 1")
        a(f"s_lshl_b32 s{sT}, s{sT}, 3")
        a(f"s_add_u32 s{sT}, s{sT}, s{sIDX}")
        a(f"s_mul_i32 s{sT}, s{sT}, {64*1280}")
        a(f"s_lshl_b32 s{sT+1}, s{sW}, 7")
        a(f"s_add_u32 s{sT}, s{sT}, s{sT+1}")
        a("v_mul_u32_u24 v5, 1280, v2")
        a(f"buffer_load_dword v{T[0]}, v5, {X_}, s{sT} offen offset:{3*128}")
        a(f"buffer_load_dword v{T[0]}, v5, {X_}, s{sT} offen offset:{7*128}")
        a(f"s_branch {lab}")
        a.label(f"{lab}_w")
        a(f"s_sub_u32 s{sT}, s{sIDX}, 8")
        a(f"s_lshl_b32 s{sT}, s{sT}, 2")
        a(f"s_lshl_b32 s{sT+1}, s{sW}, 6")
        a(f"s_add_u32 s{sT}, s{sT}, s{sT+1}")
        a(f"s_mul_i32 s{sT}, s{sT}, 3840")
        a(f"s_and_b32 s{sT+1}, s{sXCD}, 1")
        a(f"s_lshl_b32 s{sT+1}, s{sT+1}, 11")
        a(f"s_add_u32 s{sT}, s{sT}, s{sT+1}")
        a(f"s_add_u32 s{sT}, s{sT}, {3*64*3840}")
        a(f"s_add_u32 s{sT+1}, s{sT}, {4*64*3840}")
        a("v_lshrrev_b32 v5, 4, v2")
        a("v_mul_u32_u24 v5, 3840, v5")
        a("v_and_b32 v6, 15, v2")
        a("v_lshl_add_u32 v5, v6, 7, v5")
        a(f"buffer_load_dword v{T[0]}, v5, {W_}, s{sT} offen")
        a(f"buffer_load_dword v{T[0]}, v5, {W_}, s{sT+1} offen")
        a.label(lab)
    lab = a.newlabel("L_pk")
    a(f"s_cmp_eq_u32 s{sW}, 3")
    a(f"s_cbranch_scc1 {lab}")
    a(f"s_mul_i32 s{sT}, s{sMT}, 15")
    a(f"s_add_u32 s{sT}, s{sT}, s{sNT}")
    a(f"s_mul_i32 s{sT}, s{sT}, 3")
    a(f"s_add_u32 s{sT}, s{sT}, s{sW}")
    a(f"s_cmp_ge_u32 s{sT}, 680")
    a(f"s_cbranch_scc1 {lab}")
    a(f"s_mul_i32 s{sT+1}, s{sT}, 6554")
    a(f"s_lshr_b32 s{sT+1}, s{sT+1}, 16")
    a(f"s_mul_i32 s{sT+2}, s{sT+1}, 10")
    a(f"s_sub_u32 s{sT+2}, s{sT}, s{sT+2}")
    a(f"s_cmp_lt_u32 s{sT+1}, 20")
    a(f"s_cselect_b32 s{sP}, s{sP}, s{sP+2}")
    a(f"s_cselect_b32 s{sP+1}, s{sP+1}, s{sP+3}")
    a(f"s_cselect_b32 s{sT+3}, 0, 20")
    a(f"s_mov_b32 s{sP+2}, {1536*1280}")
    a(f"s_cselect_b32 s{sP+2}, {640*1280}, s{sP+2}")
    a(f"s_cselect_b64 s[{sM}:{sM+1}], -1, 0")
    a(f"s_and_b32 s{sP+1}, s{sP+1}, 0xffff")
    a(f"s_mov_b32 s{sP+3}, 0x20000")
    a(f"s_sub_u32 s{sT+3}, s{sT+1}, s{sT+3}")
    a(f"s_lshl_b32 s{sT+3}, s{sT+3}, 5")
    a(f"s_lshl_b32 s{sT+4}, s{sT+2}, 7")
    a(f"s_lshl_b32 s{sT+5}, s{sW}, 12")
    a(f"s_add_u32 s{sT+5}, s{sT+5}, {3*STG}")
    a("v_lshrrev_b32 v5, 3, v2")
    a("v_and_b32 v6, 7, v2")
    for t in range(4):
        a(f"v_add_u32 v7, s{sT+3}, v5")
        if t: a(f"v_add_u32 v7, {8*t}, v7")
        a("v_mul_u32_u24 v8, 1639, v7")
        a("v_lshrrev_b32 v8, 16, v8")
        a("v_mul_u32_u24 v8, 40, v8")
        a("v_sub_u32 v8, v7, v8")
        a("v_cmp_le_u32 vcc, 24, v8")
        a(f"v_cmp_le_u32 s[{sT+6}:{sT+7}], 20, v8")
        a("v_mov_b32 v9, 16")
        a(f"v_cndmask_b32 v9, 0, v9, s[{sT+6}:{sT+7}]")
        a("v_cndmask_b32 v9, v9, -4, vcc")
        a(f"v_cndmask_b32 v9, 0, v9, s[{sM}:{sM+1}]")
        a("v_add_u32 v7, v7, v9")
        a("v_mul_u32_u24 v7, 1280, v7")
        a("v_lshl_add_u32 v7, v6, 4, v7")
        a(f"s_add_u32 m0, s{sT+5}, {t*1024}")
        a.nop(1)
        a(f"buffer_load_dwordx4 v7, s[{sP}:{sP+3}], s{sT+4} offen lds")
    a("v_lshrrev_b32 v5, 4, v2")
    a("v_lshrrev_b32 v6, 2, v2")
    a("v_and_b32 v6, 3, v6")
    a("v_lshl_add_u32 v5, v5, 3, v6")
    a("v_lshlrev_b32 v5, 7, v5")
    a("v_and_b32 v6, 3, v2")
    a("v_lshl_add_u32 v5, v6, 3, v5")
    a(f"v_add_u32 v5, s{sT+5}, v5")
    a(f"s_mul_i32 s{sT+1}, s{sT+1}, {40*1024}")
    a(f"s_lshl_b32 s{sT+2}, s{sT+2}, 12")
    a(f"s_add_u32 s{sT+1}, s{sT+1}, s{sT+2}")
    a(f"s_add_u32 s{sT+1}, s{sT+1}, {WS_WP}")
    a("v_lshlrev_b32 v6, 4, v2")
    a("s_waitcnt vmcnt(0)")
    for n in range(4):
        for h in range(2):
            a(f"ds_read_b64_tr_b16 {vr(T[4*n]+2*h,2)}, v5 offset:{h*512 + n*32}")
    for n in range(4):
        a(f"s_waitcnt lgkmcnt({6-2*n})")
        a(f"buffer_store_dwordx4 {vr(T[4*n],4)}, v6, {WS_}, s{sT+1} offen offset:{n*1024}")
    a.label(lab)
    a(f"s_and_b32 s{sWM}, s{sW}, 1")
    a(f"s_lshr_b32 s{sWN}, s{sW}, 1")
    a("v_lshrrev_b32 v5, 1, v3")
    a("v_and_b32 v5, 7, v5")
    for mi in range(2):
        a(f"s_xor_b32 s{sT}, s{sWN}, {mi}")
        a(f"s_lshl_b32 s{sT+1}, s{sWM}, 1")
        a(f"s_add_u32 s{sT}, s{sT}, s{sT+1}")
        a(f"s_lshl_b32 s{sT}, s{sT}, 12")
        a(f"v_lshl_add_u32 v6, v3, 7, s{sT}")
        for ks in range(4):
            a(f"v_or_b32 v7, {2*ks}, v4")
            a(f"v_xor_b32 v7, v7, v5")
            a(f"v_lshl_add_u32 v{vXA[0][mi][ks]}, v7, 4, v6")
            a(f"v_add_u32 v{vXA[1][mi][ks]}, 0x10000, v{vXA[0][mi][ks]}")
    a("v_lshrrev_b32 v5, 2, v2")
    a("v_and_b32 v5, 3, v5")
    a("v_lshl_add_u32 v6, v4, 3, v5")
    a("v_lshlrev_b32 v6, 8, v6")
    a("v_lshrrev_b32 v7, 4, v2")
    a("v_and_b32 v7, 1, v7")
    a("v_lshl_add_u32 v6, v7, 5, v6")
    a("v_and_b32 v5, 15, v2")
    a("v_cmp_eq_u32 vcc, v5, v7")
    a("v_mov_b32 v5, 0x3f803f80")
    a("v_and_b32 v7, 3, v2")
    for r in range(4): a(f"v_cndmask_b32 v{SEL+r}, 0, v5, vcc")
    a("v_lshl_add_u32 v6, v7, 3, v6")
    a("v_add_u32 v6, 16384, v6")
    a("v_lshrrev_b32 v5, 2, v2")
    a("v_and_b32 v5, 3, v5")
    for ni in range(2):
        a(f"s_xor_b32 s{sT}, s{sWM}, {ni}")
        a(f"s_lshl_b32 s{sT+1}, s{sWN}, 1")
        a(f"s_add_u32 s{sT}, s{sT}, s{sT+1}")
        a(f"v_xor_b32 v7, s{sT}, v5")
        a(f"v_lshl_add_u32 v{vWA[0][ni]}, v7, 6, v6")
        a(f"v_add_u32 v{vWA[1][ni]}, 0x10000, v{vWA[0][ni]}")
    for r in range(64): a(f"v_mov_b32 v{ACC+r}, 0")
    for r in (SUM, SUM2, SSQ, SSQ2, CSD, CSD + 1, CSD + 2, CSD + 3): a(f"v_mov_b32 v{r}, 0")

    def rd(st, ks, buf):
        base = (st % NST) * STG
        hi = base // 65536; b = base % 65536
        L = []
        for mi in range(2):
            L.append(f"ds_read_b128 {vr(XF[buf][mi],4)}, v{vXA[hi][mi][ks]} offset:{b}")
        for ni in range(2):
            for h in range(2):
                L.append(f"ds_read_b64_tr_b16 {vr(WF[buf][ni]+2*h,2)}, v{vWA[hi][ni]} offset:{b + ks*4096 + h*1024}")
        return L

    def mainloop(vtype):
        a("s_barrier")
        ST.reset(1); ST()
        for l in rd(0, 0, 0): a(l)
        for st in range(10):
            for ks in range(4):
                buf = (st * 4 + ks) & 1
                if ks < 3: nxt = rd(st, ks + 1, buf ^ 1)
                elif st < 9: nxt = rd(st + 1, 0, buf ^ 1)
                else: nxt = []
                a("s_waitcnt lgkmcnt(0)")
                if ks == 3 and st < 9:
                    a("s_barrier")
                    ST()
                x0 = XF[buf][0]; w0 = WF[buf][0]
                n = 0
                if "nocomp" in exp: continue
                for mi in range(2):
                    for ni in range(2):
                        d = ACC + (mi * 2 + ni) * 16
                        A, B = (XF[buf][mi], WF[buf][ni]) if vtype else (WF[buf][ni], XF[buf][mi])
                        a(f"v_mfma_f32_32x32x16_bf16 {vr(d,16)}, {vr(A,4)}, {vr(B,4)}, {vr(d,16)}")
                        for l in nxt[n * 3: n * 3 + 3]: a(l)
                        n += 1
                a(f"v_mfma_f32_16x16x32_bf16 {vr(CSD,4)}, {vr(SEL,4)}, {vr(w0,4)}, {vr(CSD,4)}")
        ST()
        a(f"s_lshl_b32 s{sT}, s{sWN}, 1\ns_add_u32 s{sT}, s{sT}, s{sWM}\ns_lshl_b32 s{sT}, s{sT}, 7\ns_add_u32 s{sT}, s{sT}, {STATS+1024}")
        a(f"v_lshl_add_u32 v{U[0]}, v3, 2, s{sT}")
        a.nop(4)
        a("s_mov_b64 exec, 0xffff")
        a(f"ds_write_b32 v{U[0]}, v{CSD}")
        a(f"ds_write_b32 v{U[0]}, v{CSD+1} offset:64")
        a("s_mov_b64 exec, -1")
        a("s_waitcnt vmcnt(0) lgkmcnt(0)")
        a("s_barrier")
        ST()

    def blk(dst, x, y, xo):
        a(f"s_xor_b32 s{dst}, s{y}, {xo}")
        a(f"s_lshl_b32 s{sT+7}, s{x}, 1")
        a(f"s_add_u32 s{dst}, s{dst}, s{sT+7}")

    a(f"s_cmp_ge_u32 s{sNT}, 10")
    a("s_cbranch_scc1 L_qkv_vtype")
    mainloop(False)
    NM = [T[0], T[2]]; RS = [T[4], T[6]]
    CSV = [[T[8] + (ni * 4 + g) * 4 for g in range(4)] for ni in range(2)]
    K16 = [8, 9]; K8 = [20, 21]
    for mi in range(2):
        blk(sA, sWM, sWN, mi)
        a(f"s_lshl_b32 s{sA}, s{sA}, 5")
        a(f"v_add_u32 v11, s{sA}, v3")
        a(f"v_lshlrev_b32 v10, 2, v11")
        a(f"ds_read_b32 v{NM[mi]}, v10 offset:{STATS}")
        a(f"ds_read_b32 v{RS[mi]}, v10 offset:{STATS+512}")
        a(f"v_lshlrev_b32 v{K16[mi]}, 4, v11")
        a(f"v_lshlrev_b32 v{K8[mi]}, 3, v11")
    FL = [12, 13]
    a(f"s_cmp_lt_u32 s{sNT}, 5")
    a(f"s_cselect_b32 s{sB}, {f32bits(QSCALE):#x}, 1.0")
    a(f"s_cselect_b32 s{sC}, 0, 5")
    a(f"s_mov_b32 s{sT+6}, {WS_KV}")
    a(f"s_cselect_b32 s{sT+6}, {WS_Q}, s{sT+6}")
    a(f"s_sub_u32 s{sC}, s{sNT}, s{sC}")
    a(f"s_lshl_b32 s{sC}, s{sC}, 7")
    for ni in range(2):
        blk(sA, sWN, sWM, ni)
        a(f"s_lshl_b32 s{sA}, s{sA}, 5")
        a(f"v_lshl_add_u32 v10, v4, 2, s{sA}")
        a(f"v_lshlrev_b32 v10, 2, v10")
        for g in range(4):
            a(f"ds_read_b128 {vr(CSV[ni][g],4)}, v10 offset:{STATS+1024+g*32}")
        a(f"s_add_u32 s{sA}, s{sA}, s{sC}")
        a(f"v_lshl_add_u32 v{FL[ni]}, v4, 3, s{sA}")
    a(f"s_mul_i32 s{sA}, s{sMT}, {CHUNK}")
    a(f"s_add_u32 s{sA}, s{sA}, s{sT+6}")
    a(f"s_add_u32 s{sC}, s{sA}, {16*CHUNK}")
    a(f"s_mov_b32 s{sT+6}, {16*CHUNK}")
    a("s_waitcnt lgkmcnt(0)")
    for mi in range(2): a(f"v_mul_f32 v{RS[mi]}, s{sB}, v{RS[mi]}")
    for ni in range(2):
        for gp in range(2):
            a(f"v_add_u32 v14, {16*gp}, v{FL[ni]}")
            a(f"v_mul_u32_u24 v15, 1639, v14")
            a(f"v_lshrrev_b32 v15, 16, v15")
            a(f"v_mul_u32_u24 v16, 40, v15")
            a(f"v_sub_u32 v16, v14, v16")
            a(f"v_lshrrev_b32 v16, 3, v16")
            a(f"v_cmp_lt_u32 vcc, 2, v16")
            a(f"v_cmp_eq_u32 s[{sM}:{sM+1}], 2, v16")
            a(f"v_lshlrev_b32 v15, 1, v15")
            a(f"v_addc_co_u32 v15, vcc, 0, v15, vcc") if False else None
            a(f"v_cndmask_b32 v14, 0, 1, vcc")
            a(f"v_add_u32 v15, v15, v14")
            a(f"v_mul_u32_u24 v14, 3, v14")
            a(f"v_sub_u32 v16, v16, v14")
            a(f"v_mul_lo_u32 v15, v15, s{sT+6}")
            a(f"v_lshl_add_u32 v15, v16, 11, v15")
            for mi in range(2):
                d = ACC + (mi * 2 + ni) * 16
                for g in (2 * gp, 2 * gp + 1):
                    for p in range(2):
                        r = d + 4 * g + 2 * p
                        a(f"v_pk_fma_f32 {vr(r,2)}, {vr(CSV[ni][g]+2*p,2)}, {vr(NM[mi],2)}, {vr(r,2)} op_sel_hi:[1,0,1]")
                        a(f"v_pk_mul_f32 {vr(r,2)}, {vr(r,2)}, {vr(RS[mi],2)} op_sel_hi:[1,0]")
                q = d + 8 * gp
                a(f"v_cvt_pk_bf16_f32 v{q}, v{q}, v{q+1}")
                a(f"v_cvt_pk_bf16_f32 v{q+1}, v{q+2}, v{q+3}")
                a(f"v_cvt_pk_bf16_f32 v{q+2}, v{q+4}, v{q+5}")
                a(f"v_cvt_pk_bf16_f32 v{q+3}, v{q+6}, v{q+7}")
                a(f"v_add_u32 v17, v15, v{K16[mi]}")
                a(f"v_add_u32 v18, v15, v{K8[mi]}")
                a(f"v_permlane32_swap_b32 v{q}, v{q+2}")
                a(f"v_permlane32_swap_b32 v{q+1}, v{q+3}")
                a(f"s_andn2_b64 exec, exec, s[{sM}:{sM+1}]")
                a(f"buffer_store_dwordx4 {vr(q,4)}, v17, {WS_}, s{sA} offen")
                a(f"s_mov_b64 exec, s[{sM}:{sM+1}]")
                lab = a.newlabel("L_qk_ns")
                a(f"s_cbranch_execz {lab}")
                a(f"buffer_store_dwordx2 {vr(q,2)}, v18, {WS_}, s{sA} offen")
                a(f"buffer_store_dwordx2 {vr(q+2,2)}, v18, {WS_}, s{sC} offen")
                a.label(lab)
                a("s_mov_b64 exec, -1")
    ST.reset(13); ST(); ST.dump(WS_, sW, sT)
    a("s_endpgm")

    a.label("L_qkv_vtype")
    mainloop(True)
    CSL = [T[0], T[2]]
    VB = [8, 9]
    a(f"s_sub_u32 s{sC}, s{sNT}, 10")
    a(f"s_lshl_b32 s{sC}, s{sC}, 7")
    a(f"s_mov_b32 s{sB}, {16*CHUNK}")
    for ni in range(2):
        blk(sA, sWN, sWM, ni)
        a(f"s_lshl_b32 s{sA}, s{sA}, 5")
        a(f"v_add_u32 v14, s{sA}, v3")
        a(f"v_lshlrev_b32 v10, 2, v14")
        a(f"ds_read_b32 v{CSL[ni]}, v10 offset:{STATS+1024}")
        a(f"v_add_u32 v14, s{sC}, v14")
        a(f"v_mul_u32_u24 v15, 3277, v14")
        a(f"v_lshrrev_b32 v15, 16, v15")
        a(f"v_mul_u32_u24 v16, 20, v15")
        a(f"v_sub_u32 v16, v14, v16")
        a(f"v_mul_lo_u32 v15, v15, s{sB}")
        a(f"v_lshl_add_u32 v15, v16, 4, v15")
        a(f"v_mul_u32_u24 v16, 320, v4")
        a(f"v_add_u32 v{VB[ni]}, v15, v16")
    for mi in range(2):
        NMV = [T[8] + g * 4 for g in range(4)]; RSV = [T[24] + g * 4 for g in range(4)]
        blk(sA, sWM, sWN, mi)
        a(f"s_lshl_b32 s{sT}, s{sA}, 7")
        a(f"v_lshl_add_u32 v10, v4, 4, s{sT}")
        for g in range(4):
            a(f"ds_read_b128 {vr(NMV[g],4)}, v10 offset:{STATS+g*32}")
            a(f"ds_read_b128 {vr(RSV[g],4)}, v10 offset:{STATS+512+g*32}")
        a(f"s_mul_i32 s{sA}, s{sA}, {4*320}")
        a(f"s_mul_i32 s{sT}, s{sMT}, {CHUNK}")
        a(f"s_add_u32 s{sA}, s{sA}, s{sT}")
        a(f"s_add_u32 s{sA}, s{sA}, {WS_KV+5120}")
        a("s_waitcnt lgkmcnt(0)")
        for ni in range(2):
            d = ACC + (mi * 2 + ni) * 16
            for gp in range(2):
                for g in (2 * gp, 2 * gp + 1):
                    for p in range(2):
                        r = d + 4 * g + 2 * p
                        a(f"v_pk_fma_f32 {vr(r,2)}, {vr(NMV[g]+2*p,2)}, {vr(CSL[ni],2)}, {vr(r,2)} op_sel_hi:[1,0,1]")
                        a(f"v_pk_mul_f32 {vr(r,2)}, {vr(r,2)}, {vr(RSV[g]+2*p,2)}")
                q = d + 8 * gp
                a(f"v_cvt_pk_bf16_f32 v{q}, v{q}, v{q+1}")
                a(f"v_cvt_pk_bf16_f32 v{q+1}, v{q+2}, v{q+3}")
                a(f"v_cvt_pk_bf16_f32 v{q+2}, v{q+4}, v{q+5}")
                a(f"v_cvt_pk_bf16_f32 v{q+3}, v{q+6}, v{q+7}")
                a.nop(2)
                a(f"v_permlane32_swap_b32 v{q}, v{q+2}")
                a(f"v_permlane32_swap_b32 v{q+1}, v{q+3}")
                a(f"buffer_store_dwordx4 {vr(q,4)}, v{VB[ni]}, {WS_}, s{sA} offen offset:{gp*640}")
    ST.reset(13); ST(); ST.dump(WS_, sW, sT)
    a("s_endpgm")

    a.label("L_qkv_loader")
    sLW = 36
    vXE, vXO, vWv = 5, 6, 7
    a(f"s_sub_u32 s{sLW}, s{sW}, 4")
    a("v_lshrrev_b32 v9, 4, v2")
    a("v_lshrrev_b32 v10, 3, v2")
    a("v_mul_u32_u24 v10, 1280, v10")
    a("v_and_b32 v11, 7, v2")
    a(f"v_xor_b32 v{vXE}, v11, v9")
    a(f"v_xor_b32 v{vXO}, 4, v{vXE}")
    a(f"v_lshl_add_u32 v{vXE}, v{vXE}, 4, v10")
    a(f"v_lshl_add_u32 v{vXO}, v{vXO}, 4, v10")
    a(f"v_mul_u32_u24 v{vWv}, 3840, v9")
    a("v_lshrrev_b32 v10, 2, v2")
    a("v_and_b32 v10, 3, v10")
    a("v_xor_b32 v10, v10, v9")
    a(f"v_lshl_add_u32 v{vWv}, v10, 6, v{vWv}")
    a("v_and_b32 v10, 3, v2")
    a(f"v_lshl_add_u32 v{vWv}, v10, 4, v{vWv}")
    sXo, sWo, sLd = 41, 42, 43
    a(f"s_lshl_b32 s{sXo}, s{sMT}, 7")
    a(f"s_lshl_b32 s{sT}, s{sLW}, 5")
    a(f"s_add_u32 s{sXo}, s{sXo}, s{sT}")
    a(f"s_mul_i32 s{sXo}, s{sXo}, 1280")
    a(f"s_mul_i32 s{sWo}, s{sLW}, {16*3840}")
    a(f"s_lshl_b32 s{sT}, s{sNT}, 8")
    a(f"s_add_u32 s{sWo}, s{sWo}, s{sT}")
    a(f"s_lshl_b32 s{sLd}, s{sLW}, 12")
    def issue(st):
        if "noload" in exp and st >= 2: return
        base = (st % NST) * STG
        for j in range(4):
            a(f"s_add_u32 m0, s{sLd}, {base + j*1024}")
            a(f"s_add_u32 s{sT}, s{sXo}, {j*8*1280 + st*128}")
            a(f"buffer_load_dwordx4 v{vXO if j & 1 else vXE}, {X_}, s{sT} offen lds")
            a(f"s_add_u32 m0, s{sLd}, {base + 16384 + j*1024}")
            a(f"s_add_u32 s{sT}, s{sWo}, {(st*64 + j*4)*3840}")
            a(f"buffer_load_dwordx4 v{vWv}, {W_}, s{sT} offen lds")
    issue(0); issue(1)
    SA = [[12 + hi * 4 + j for j in range(4)] for hi in range(2)]
    SD = 20
    LS = [36, 37, 38, 39]
    LU = [40, 41, 42, 43]
    a("v_lshrrev_b32 v9, 1, v3")
    a("v_and_b32 v9, 7, v9")
    a("v_lshlrev_b32 v10, 2, v4")
    a("v_xor_b32 v9, v9, v10")
    a(f"v_lshl_add_u32 v10, v3, 7, s{sLd}")
    for j in range(4):
        a(f"v_xor_b32 v11, {j}, v9")
        a(f"v_lshl_add_u32 v{SA[0][j]}, v11, 4, v10")
        a(f"v_add_u32 v{SA[1][j]}, 0x10000, v{SA[0][j]}")
    for r in LS: a(f"v_mov_b32 v{r}, 0")
    def stats(st):
        base = (st % NST) * STG
        hi = base // 65536; b = base % 65536
        for j in range(4): a(f"ds_read_b128 {vr(SD+4*j,4)}, v{SA[hi][j]} offset:{b}")
        return
    def stats2():
        for j in range(4):
            a(f"s_waitcnt lgkmcnt({3-j})")
            for r in range(4):
                x = SD + 4 * j + r; u0, u1 = LU[2 * (r & 1)], LU[2 * (r & 1) + 1]
                a(f"v_lshlrev_b32 v{u0}, 16, v{x}")
                a(f"v_and_b32 v{u1}, 0xffff0000, v{x}")
                a(f"v_add_f32 v{LS[0]}, v{LS[0]}, v{u0}")
                a(f"v_add_f32 v{LS[1]}, v{LS[1]}, v{u1}")
                a(f"v_fmac_f32 v{LS[2]}, v{u0}, v{u0}")
                a(f"v_fmac_f32 v{LS[3]}, v{u1}, v{u1}")
    a("s_waitcnt vmcnt(8)")
    a("s_barrier")
    issued = 1
    for st in range(10):
        stats(st)
        while issued < min(st + 3, 9) if st else issued < 2:
            issued += 1; issue(issued)
        stats2()
        if st < 9:
            a(f"s_waitcnt vmcnt({8 * (issued - (st + 1))})")
            a("s_barrier")
    a(f"v_add_f32 v{LS[0]}, v{LS[0]}, v{LS[1]}")
    a(f"v_add_f32 v{LS[2]}, v{LS[2]}, v{LS[3]}")
    a(f"v_mov_b32 v{LS[1]}, v{LS[0]}")
    a(f"v_mov_b32 v{LS[3]}, v{LS[2]}")
    a.nop(1)
    a(f"v_permlane32_swap_b32 v{LS[0]}, v{LS[1]}")
    a(f"v_permlane32_swap_b32 v{LS[2]}, v{LS[3]}")
    a(f"v_add_f32 v{LS[0]}, v{LS[0]}, v{LS[1]}")
    a(f"v_add_f32 v{LS[2]}, v{LS[2]}, v{LS[3]}")
    ln_rowmath(a, LS[0], LS[2], LU[0], sT)
    a(f"s_lshl_b32 s{sT}, s{sLW}, 7")
    a(f"v_lshl_add_u32 v10, v3, 2, s{sT}")
    a(f"ds_write_b32 v10, v{LS[0]} offset:{STATS}")
    a(f"ds_write_b32 v10, v{LS[2]} offset:{STATS+512}")
    a("s_waitcnt lgkmcnt(0)")
    a("s_barrier")
    a("s_endpgm")

    a.label("L_qkv_lnjob")
    XD = 12
    JS, JQ, JT, vJ = 92, 94, 96, 8
    a(f"s_lshl_b32 s{sA}, s{sMT}, 7")
    a(f"s_lshl_b32 s{sT}, s{sW}, 4")
    a(f"s_add_u32 s{sA}, s{sA}, s{sT}")
    a(f"s_mul_i32 s{sA}, s{sA}, 1280")
    a("v_lshrrev_b32 v9, 4, v2")
    a(f"v_mul_u32_u24 v{vJ}, 1280, v9")
    a("v_and_b32 v10, 15, v2")
    a(f"v_lshl_add_u32 v{vJ}, v10, 4, v{vJ}")
    for ps in range(4):
        a(f"s_add_u32 s{sT}, s{sA}, {ps*4*1280}")
        for j in range(5):
            a(f"buffer_load_dwordx4 {vr(XD+20*ps+4*j,4)}, v{vJ}, {X_}, s{sT} offen offset:{256*j}")
    for ps in range(4):
        xd = XD + 20 * ps
        a(f"s_waitcnt vmcnt({15 - 5*ps + 5*ps})")
        a(f"v_mov_b32 v{JS}, 0\nv_mov_b32 v{JQ}, 0\nv_mov_b32 v{JT}, 0x3f803f80")
        for r in range(20):
            a(f"v_dot2c_f32_bf16 v{JS}, v{xd+r}, v{JT}")
            a(f"v_dot2c_f32_bf16 v{JQ}, v{xd+r}, v{xd+r}")
        a.nop(3)
        for sh in (8, 4, 2, 1):
            a(f"v_add_f32_dpp v{JS}, v{JS}, v{JS} row_ror:{sh} row_mask:0xf bank_mask:0xf")
            a(f"v_add_f32_dpp v{JQ}, v{JQ}, v{JQ} row_ror:{sh} row_mask:0xf bank_mask:0xf")
            a.nop(1)
        ln_rowmath(a, JS, JQ, JT, sT)
        a(f"s_add_u32 s{sB}, s{sA}, {WS_XN + ps*4*1280}")
        for j in range(5):
            for r in range(4):
                x = xd + 4 * j + r
                a(f"v_lshlrev_b32 v{JT}, 16, v{x}")
                a(f"v_and_b32 v{JT+1}, 0xffff0000, v{x}")
                a(f"v_pk_add_f32 {vr(JT,2)}, {vr(JT,2)}, {vr(JS,2)} op_sel_hi:[1,0]")
                a(f"v_pk_mul_f32 {vr(JT,2)}, {vr(JT,2)}, {vr(JQ,2)} op_sel_hi:[1,0]")
                a(f"v_cvt_pk_bf16_f32 v{x}, v{JT}, v{JT+1}")
            a(f"buffer_store_dwordx4 {vr(xd+4*j,4)}, v{vJ}, {WS_}, s{sB} offen offset:{256*j}")
    ST.reset(13); ST(); ST.dump(WS_, sW, sT)
    a.label("L_qkv_end")
    a("s_endpgm")
    return kernel_header(name) + a.text(), kernel_desc(name, NV, 102 if stamp else 52)

if __name__ == "__main__":
    import sys
    ex = sys.argv[2] if len(sys.argv) > 2 else ""
    body, desc = gen_qkv(stamp=len(sys.argv) > 1, exp=ex)
    s = f"; @launch kernel=qkv_kernel grid=(256,1,1) block=(512,1,1) lds={LDS_QKV}\n"
    s += '.amdgcn_target "amdgcn-amd-amdhsa--gfx950"\n.text\n' + body + '.section .rodata,"a"\n' + desc
    open(f"../qkv_only{ex}.s", "w").write(s)
```

```python
from asmlib import *
from k_qkv import ln_rowmath
NAME = "parallel_sum__softmax_full_mha__glu_gated_reglu__prompt_kernel"
LDS_M1 = 163840
M32 = "v_mfma_f32_32x32x16_bf16"; M16 = "v_mfma_f32_16x16x32_bf16"

def gen(stamp=False, exp=""):
    a = Asm()
    ST = Stamps2(a, stamp)
    sX, sWq, sWS, sWg, sWu, sOut, sPk = 8, 12, 16, 20, 24, 28, 32
    sDbg = 36
    sW, sMT, sNT, sIDX, sXCD, sNG = 38, 39, 40, 41, 42, 43
    sLO, sVM, sM = 44, 46, 48
    sT = 50
    sA, sB, sC = 60, 61, 62
    sR = 64
    R_ = lambda b: f"s[{b}:{b+3}]"
    X_, WQ_, WS_, WG_, WU_, OUT_, PK_ = map(R_, (sX, sWq, sWS, sWg, sWu, sOut, sPk))
    SC = " sc1"
    SL = " sc1" if "sc1ld" in exp else ""
    a("s_cmp_ge_u32 s2, 256")
    a("s_cbranch_scc1 L_end")
    ST.start()
    a(f"s_load_dwordx4 s[4:7], s[0:1], 0")
    a(f"s_load_dwordx2 s[{sT}:{sT+1}], s[0:1], 16")
    a(f"s_load_dwordx4 s[{sT+2}:{sT+5}], s[0:1], 32")
    a(f"s_load_dwordx4 s[{sT+6}:{sT+9}], s[0:1], 48")
    a(f"s_load_dwordx4 s[{sA}:{sA+3}], s[0:1], 64")
    a("v_lshrrev_b32 v1, 6, v0")
    a("v_and_b32 v2, 63, v0")
    a(f"v_readfirstlane_b32 s{sW}, v1")
    a(f"s_and_b32 s{sXCD}, s2, 7")
    a(f"s_lshr_b32 s{sIDX}, s2, 3")
    a(f"s_lshr_b32 s{sMT}, s{sXCD}, 1")
    a(f"s_lshl_b32 s{sMT}, s{sMT}, 2")
    a(f"s_and_b32 s3, s{sIDX}, 3")
    a(f"s_add_u32 s{sMT}, s{sMT}, s3")
    a(f"s_and_b32 s{sNG}, s{sXCD}, 1")
    a(f"s_lshl_b32 s{sNG}, s{sNG}, 3")
    a(f"s_lshr_b32 s3, s{sIDX}, 2")
    a(f"s_add_u32 s{sNG}, s{sNG}, s3")
    a(f"s_min_u32 s{sNT}, s{sNG}, 14")
    a(f"s_mov_b32 s{sLO}, -1\ns_mov_b32 s{sLO+1}, 0\ns_mov_b32 s{sVM}, 0xfffff\ns_mov_b32 s{sVM+1}, 0xfffff")
    a("v_and_b32 v3, 31, v2")
    a("v_lshrrev_b32 v4, 5, v2")
    a(f"s_lshl_b32 s{sR}, s{sMT}, 4")
    a(f"s_add_u32 s{sR}, s{sR}, s{sNG}")
    a(f"s_mul_i32 s{sR}, s{sR}, 3")
    a(f"s_add_u32 s{sR}, s{sR}, s{sW}")
    a(f"s_mul_i32 s{sR+1}, s{sR}, 6554")
    a(f"s_lshr_b32 s{sR+1}, s{sR+1}, 16")
    a("s_waitcnt lgkmcnt(0)")
    def srd(b, lo, hi, n): a(f"s_mov_b32 s{b}, s{lo}\ns_and_b32 s{b+1}, s{hi}, 0xffff\ns_mov_b32 s{b+2}, {n}\ns_mov_b32 s{b+3}, 0x20000")
    srd(sX, 4, 5, 2048 * 1280); srd(sWq, 6, 7, 640 * 3840); srd(sWS, sA + 2, sA + 3, WS_END)
    srd(sWg, sT + 2, sT + 3, 640 * 3072); srd(sWu, sT + 4, sT + 5, 640 * 3072); srd(sOut, sT + 8, sT + 9, 2048 * 1280)
    a(f"s_mov_b64 s[{sDbg}:{sDbg+1}], s[{sA}:{sA+1}]")
    a(f"s_cmp_lt_u32 s{sR+1}, 20")
    a(f"s_cselect_b32 s{sPk}, s{sT}, s{sT+6}")
    a(f"s_cselect_b32 s{sPk+1}, s{sT+1}, s{sT+7}")
    a(f"s_mov_b32 s{sPk+2}, {1536*1280}")
    a(f"s_cselect_b32 s{sPk+2}, {640*1280}, s{sPk+2}")
    a(f"s_and_b32 s{sPk+1}, s{sPk+1}, 0xffff")
    a(f"s_mov_b32 s{sPk+3}, 0x20000")
    a(f"s_cmp_ge_u32 s{sW}, 4")
    a("s_cbranch_scc1 L_loader")

    NST, STG, STATS, PKS = 4, 32768, 0, 131072
    XF = [[8, 12], [16, 20]]; WF = [[24, 28], [32, 36]]
    vXA = [[[40 + (hi * 2 + mi) * 4 + ks for ks in range(4)] for mi in range(2)] for hi in range(2)]
    vWA = [[56 + hi * 2 + ni for ni in range(2)] for hi in range(2)]
    ACC = 64
    T = list(range(128, 168))
    SEL, CSD = 168, 172
    U = [176, 177, 178, 179]
    NM2, RS2 = 180, 182
    sWM, sWN = sR + 2, sR + 3
    a("s_branch L_early")
    a.label("L_early_done")
    a(f"s_and_b32 s{sWM}, s{sW}, 1")
    a(f"s_lshr_b32 s{sWN}, s{sW}, 1")
    a("v_lshrrev_b32 v5, 1, v3")
    a("v_and_b32 v5, 7, v5")
    for mi in range(2):
        a(f"s_xor_b32 s{sT}, s{sWN}, {mi}")
        a(f"s_lshl_b32 s{sT+1}, s{sWM}, 1")
        a(f"s_add_u32 s{sT}, s{sT}, s{sT+1}")
        a(f"s_lshl_b32 s{sT}, s{sT}, 12")
        a(f"v_lshl_add_u32 v6, v3, 7, s{sT}")
        for ks in range(4):
            a(f"v_or_b32 v7, {2*ks}, v4")
            a(f"v_xor_b32 v7, v7, v5")
            a(f"v_lshl_add_u32 v{vXA[0][mi][ks]}, v7, 4, v6")
            a(f"v_add_u32 v{vXA[1][mi][ks]}, 0x10000, v{vXA[0][mi][ks]}")
    a("v_lshrrev_b32 v5, 2, v2")
    a("v_and_b32 v5, 3, v5")
    a("v_lshl_add_u32 v6, v4, 3, v5")
    a("v_lshlrev_b32 v6, 8, v6")
    a("v_lshrrev_b32 v7, 4, v2")
    a("v_and_b32 v7, 1, v7")
    a("v_lshl_add_u32 v6, v7, 5, v6")
    a("v_and_b32 v5, 15, v2")
    a("v_cmp_eq_u32 vcc, v5, v7")
    a("v_mov_b32 v5, 0x3f803f80")
    a("v_and_b32 v7, 3, v2")
    for r in range(4): a(f"v_cndmask_b32 v{SEL+r}, 0, v5, vcc")
    a("v_lshl_add_u32 v6, v7, 3, v6")
    a("v_add_u32 v6, 16384, v6")
    a("v_lshrrev_b32 v5, 2, v2")
    a("v_and_b32 v5, 3, v5")
    for ni in range(2):
        a(f"s_xor_b32 s{sT}, s{sWM}, {ni}")
        a(f"s_lshl_b32 s{sT+1}, s{sWN}, 1")
        a(f"s_add_u32 s{sT}, s{sT}, s{sT+1}")
        a(f"v_xor_b32 v7, s{sT}, v5")
        a(f"v_lshl_add_u32 v{vWA[0][ni]}, v7, 6, v6")
        a(f"v_add_u32 v{vWA[1][ni]}, 0x10000, v{vWA[0][ni]}")
    for r in range(64): a(f"v_mov_b32 v{ACC+r}, 0")
    for r in range(4): a(f"v_mov_b32 v{CSD+r}, 0")

    def prefetch1():
        if "nopf" not in exp:
            lab = a.newlabel("L_pf")
            a(f"s_cmp_ge_u32 s{sIDX}, 24")
            a(f"s_cbranch_scc1 {lab}")
            a(f"s_cmp_ge_u32 s{sIDX}, 8")
            a(f"s_cbranch_scc1 {lab}_w")
            a(f"s_lshr_b32 s{sT}, s{sXCD}, 1")
            a(f"s_lshl_b32 s{sT}, s{sT}, 3")
            a(f"s_add_u32 s{sT}, s{sT}, s{sIDX}")
            a(f"s_mul_i32 s{sT}, s{sT}, {64*1280}")
            a(f"s_lshl_b32 s{sT+1}, s{sW}, 7")
            a(f"s_add_u32 s{sT}, s{sT}, s{sT+1}")
            a("v_mul_u32_u24 v5, 1280, v2")
            a(f"buffer_load_dword v{T[39]}, v5, {X_}, s{sT} offen offset:{3*128}")
            a(f"buffer_load_dword v{T[39]}, v5, {X_}, s{sT} offen offset:{7*128}")
            a(f"s_branch {lab}")
            a.label(f"{lab}_w")
            a(f"s_sub_u32 s{sT}, s{sIDX}, 8")
            a(f"s_lshl_b32 s{sT}, s{sT}, 2")
            a(f"s_lshl_b32 s{sT+1}, s{sW}, 6")
            a(f"s_add_u32 s{sT}, s{sT}, s{sT+1}")
            a(f"s_mul_i32 s{sT}, s{sT}, 3840")
            a(f"s_and_b32 s{sT+1}, s{sXCD}, 1")
            a(f"s_lshl_b32 s{sT+1}, s{sT+1}, 11")
            a(f"s_add_u32 s{sT}, s{sT}, s{sT+1}")
            a(f"s_add_u32 s{sT}, s{sT}, {3*64*3840}")
            a(f"s_add_u32 s{sT+1}, s{sT}, {4*64*3840}")
            a("v_lshrrev_b32 v5, 4, v2")
            a("v_mul_u32_u24 v5, 3840, v5")
            a("v_and_b32 v6, 15, v2")
            a("v_lshl_add_u32 v5, v6, 7, v5")
            a(f"buffer_load_dword v{T[39]}, v5, {WQ_}, s{sT} offen")
            a(f"buffer_load_dword v{T[39]}, v5, {WQ_}, s{sT+1} offen")
            a.label(lab)
    def pack_issue():
        a(f"s_mul_i32 s{sT+2}, s{sR+1}, 10")
        a(f"s_sub_u32 s{sT+2}, s{sR}, s{sT+2}")
        a(f"s_cmp_lt_u32 s{sR+1}, 20")
        a(f"s_cselect_b32 s{sT+3}, 0, 20")
        a(f"s_cselect_b64 s[{sM}:{sM+1}], -1, 0")
        a(f"s_sub_u32 s{sT+3}, s{sR+1}, s{sT+3}")
        a(f"s_lshl_b32 s{sT+3}, s{sT+3}, 5")
        a(f"s_lshl_b32 s{sT+4}, s{sT+2}, 7")
        a(f"s_lshl_b32 s{sT+5}, s{sW}, 12")
        a(f"s_add_u32 s{sT+5}, s{sT+5}, {PKS}")
        a("v_lshrrev_b32 v5, 3, v2")
        a("v_and_b32 v6, 7, v2")
        for t in range(4):
            a(f"v_add_u32 v7, s{sT+3}, v5")
            if t: a(f"v_add_u32 v7, {8*t}, v7")
            a(f"v_mul_u32_u24 v{U[0]}, 1639, v7")
            a(f"v_lshrrev_b32 v{U[0]}, 16, v{U[0]}")
            a(f"v_mul_u32_u24 v{U[0]}, 40, v{U[0]}")
            a(f"v_sub_u32 v{U[0]}, v7, v{U[0]}")
            a(f"v_cmp_le_u32 vcc, 24, v{U[0]}")
            a(f"v_cmp_le_u32 s[{sT+6}:{sT+7}], 20, v{U[0]}")
            a(f"v_mov_b32 v{U[1]}, 16")
            a(f"v_cndmask_b32 v{U[1]}, 0, v{U[1]}, s[{sT+6}:{sT+7}]")
            a(f"v_cndmask_b32 v{U[1]}, v{U[1]}, -4, vcc")
            a(f"v_cndmask_b32 v{U[1]}, 0, v{U[1]}, s[{sM}:{sM+1}]")
            a(f"v_add_u32 v7, v7, v{U[1]}")
            a("v_mul_u32_u24 v7, 1280, v7")
            a("v_lshl_add_u32 v7, v6, 4, v7")
            a(f"s_add_u32 m0, s{sT+5}, {t*1024}")
            a.nop(1)
            a(f"buffer_load_dwordx4 v7, {PK_}, s{sT+4} offen lds")
    def pack_finish():
        lab = a.newlabel("L_pk")
        a(f"s_cmp_eq_u32 s{sW}, 3")
        a(f"s_cbranch_scc1 {lab}")
        a(f"s_cmp_ge_u32 s{sR}, 680")
        a(f"s_cbranch_scc1 {lab}")
        a("v_lshrrev_b32 v5, 4, v2")
        a("v_lshrrev_b32 v6, 2, v2")
        a("v_and_b32 v6, 3, v6")
        a("v_lshl_add_u32 v5, v5, 3, v6")
        a("v_lshlrev_b32 v5, 7, v5")
        a("v_and_b32 v6, 3, v2")
        a("v_lshl_add_u32 v5, v6, 3, v5")
        a(f"s_lshl_b32 s{sT+5}, s{sW}, 12")
        a(f"s_add_u32 s{sT+5}, s{sT+5}, {PKS}")
        a(f"v_add_u32 v5, s{sT+5}, v5")
        a(f"s_lshl_b32 s{sT+1}, s{sR}, 12")
        a(f"s_add_u32 s{sT+1}, s{sT+1}, {WS_WP}")
        a("v_lshlrev_b32 v6, 4, v2")
        a("s_waitcnt vmcnt(0)")
        for n in range(4):
            for h in range(2):
                a(f"ds_read_b64_tr_b16 {vr(T[4*n]+2*h,2)}, v5 offset:{h*512 + n*32}")
        a("s_waitcnt lgkmcnt(0)")
        for n in range(4):
            a(f"buffer_store_dwordx4 {vr(T[4*n],4)}, v6, {WS_}, s{sT+1} offen offset:{n*1024}{SC}")
        a.label(lab)

    def gprefetch(part):
        if "nopf2" in exp: return
        lab = a.newlabel("L_gpf")
        a(f"s_cmp_ge_u32 s{sIDX}, 30")
        a(f"s_cbranch_scc1 {lab}")
        a(f"s_lshl_b32 s{sT}, s{sIDX}, 2")
        a(f"s_add_u32 s{sT}, s{sT}, s{sW}")
        a(f"s_lshl_b32 s{sT}, s{sT}, 6")
        a(f"v_add_u32 v5, s{sT}, v2")
        a(f"v_mul_u32_u24 v6, 5462, v5")
        a(f"v_lshrrev_b32 v6, 16, v6")
        a(f"v_mul_u32_u24 v7, 12, v6")
        a(f"v_sub_u32 v7, v5, v7")
        a(f"v_mul_u32_u24 v6, 3072, v6")
        a(f"v_lshl_add_u32 v6, v7, 7, v6")
        a(f"s_and_b32 s{sT}, s{sXCD}, 1")
        a(f"s_mul_i32 s{sT}, s{sT}, 1536")
        a(f"buffer_load_dword v{T[39]}, v6, {WU_ if part else WG_}, s{sT} offen")
        a.label(lab)

    def rd1(st, ks, buf):
        base = (st % NST) * STG
        hi = base // 65536; b = base % 65536
        L = [f"ds_read_b128 {vr(XF[buf][mi],4)}, v{vXA[hi][mi][ks]} offset:{b}" for mi in range(2)]
        for ni in range(2):
            for h in range(2):
                L.append(f"ds_read_b64_tr_b16 {vr(WF[buf][ni]+2*h,2)}, v{vWA[hi][ni]} offset:{b + ks*4096 + h*1024}")
        return L
    def p1_loop(vtype):
        a("s_barrier")
        ST("A", 1); ST("B", 1)
        for l in rd1(0, 0, 0): a(l)
        if 'pflate' in exp: prefetch1()
        for st in range(10):
            for ks in range(4):
                buf = (st * 4 + ks) & 1
                if ks < 3: nxt = rd1(st, ks + 1, buf ^ 1)
                elif st < 9: nxt = rd1(st + 1, 0, buf ^ 1)
                else: nxt = []
                a("s_waitcnt lgkmcnt(0)")
                if ks == 3 and st < 9:
                    a("s_barrier")
                    ST("B", st + 2)
                n = 0
                for mi in range(2):
                    for ni in range(2):
                        d = ACC + (mi * 2 + ni) * 16
                        A, B = (XF[buf][mi], WF[buf][ni]) if vtype else (WF[buf][ni], XF[buf][mi])
                        if st == 1 and ks == 0 and n == 3: pack_issue()
                        if st in (3, 4) and ks == 0 and n == 3: gprefetch(st - 3)
                        if st == 6 and ks == 0 and n == 3: pack_finish()
                        a(f"{M32} {vr(d,16)}, {vr(A,4)}, {vr(B,4)}, {vr(d,16)}")
                        for l in nxt[n * 3: n * 3 + 3]: a(l)
                        n += 1
                a(f"{M16} {vr(CSD,4)}, {vr(SEL,4)}, {vr(WF[buf][0],4)}, {vr(CSD,4)}")
        ST("A", 2); ST("B", 11)
        a(f"s_lshl_b32 s{sT}, s{sWN}, 1\ns_add_u32 s{sT}, s{sT}, s{sWM}\ns_lshl_b32 s{sT}, s{sT}, 7\ns_add_u32 s{sT}, s{sT}, {STATS+1024}")
        a(f"v_lshl_add_u32 v{U[0]}, v3, 2, s{sT}")
        a.nop(4)
        a("s_mov_b64 exec, 0xffff")
        a(f"ds_write_b32 v{U[0]}, v{CSD}")
        a(f"ds_write_b32 v{U[0]}, v{CSD+1} offset:64")
        a("s_mov_b64 exec, -1")
        a("s_waitcnt vmcnt(0) lgkmcnt(0)")
        a("s_barrier")
        a(f"s_lshl_b32 s{sT}, s{sW}, 7")
        a(f"v_lshl_add_u32 v{U[0]}, v3, 2, s{sT}")
        a(f"ds_read_b32 v{NM2}, v{U[0]} offset:{STATS}")
        a(f"ds_read_b32 v{RS2}, v{U[0]} offset:{STATS+512}")
        a(f"s_cmp_eq_u32 s{sNG}, 15")
        a("s_cbranch_scc1 L_p2")
    def blk(dst, x, y, xo):
        a(f"s_xor_b32 s{dst}, s{y}, {xo}")
        a(f"s_lshl_b32 s{sT+7}, s{x}, 1")
        a(f"s_add_u32 s{dst}, s{dst}, s{sT+7}")

    a(f"s_cmp_ge_u32 s{sNT}, 10")
    a("s_cbranch_scc1 L_p1_vtype")
    p1_loop(False)
    NM = [T[0], T[2]]; RS = [T[4], T[6]]
    CSV = [[T[8] + (ni * 4 + g) * 4 for g in range(4)] for ni in range(2)]
    K16 = [8, 9]; K8 = [20, 21]
    for mi in range(2):
        blk(sA, sWM, sWN, mi)
        a(f"s_lshl_b32 s{sA}, s{sA}, 5")
        a(f"v_add_u32 v11, s{sA}, v3")
        a(f"v_lshlrev_b32 v10, 2, v11")
        a(f"ds_read_b32 v{NM[mi]}, v10 offset:{STATS}")
        a(f"ds_read_b32 v{RS[mi]}, v10 offset:{STATS+512}")
        a(f"v_lshlrev_b32 v{K16[mi]}, 4, v11")
        a(f"v_lshlrev_b32 v{K8[mi]}, 3, v11")
    FL = [12, 13]
    a(f"s_cmp_lt_u32 s{sNT}, 5")
    a(f"s_cselect_b32 s{sB}, {f32bits(QSCALE):#x}, 1.0")
    a(f"s_cselect_b32 s{sC}, 0, 5")
    a(f"s_mov_b32 s{sT+6}, {WS_KV}")
    a(f"s_cselect_b32 s{sT+6}, {WS_Q}, s{sT+6}")
    a(f"s_sub_u32 s{sC}, s{sNT}, s{sC}")
    a(f"s_lshl_b32 s{sC}, s{sC}, 7")
    for ni in range(2):
        blk(sA, sWN, sWM, ni)
        a(f"s_lshl_b32 s{sA}, s{sA}, 5")
        a(f"v_lshl_add_u32 v10, v4, 2, s{sA}")
        a(f"v_lshlrev_b32 v10, 2, v10")
        for g in range(4):
            a(f"ds_read_b128 {vr(CSV[ni][g],4)}, v10 offset:{STATS+1024+g*32}")
        a(f"s_add_u32 s{sA}, s{sA}, s{sC}")
        a(f"v_lshl_add_u32 v{FL[ni]}, v4, 3, s{sA}")
    a(f"s_mul_i32 s{sA}, s{sMT}, {CHUNK}")
    a(f"s_add_u32 s{sA}, s{sA}, s{sT+6}")
    a(f"s_add_u32 s{sC}, s{sA}, {16*CHUNK}")
    a(f"s_mov_b32 s{sT+6}, {16*CHUNK}")
    a("s_waitcnt lgkmcnt(0)")
    for mi in range(2): a(f"v_mul_f32 v{RS[mi]}, s{sB}, v{RS[mi]}")
    for ni in range(2):
        for gp in range(2):
            a(f"v_add_u32 v14, {16*gp}, v{FL[ni]}")
            a(f"v_mul_u32_u24 v15, 1639, v14")
            a(f"v_lshrrev_b32 v15, 16, v15")
            a(f"v_mul_u32_u24 v16, 40, v15")
            a(f"v_sub_u32 v16, v14, v16")
            a(f"v_lshrrev_b32 v16, 3, v16")
            a(f"v_cmp_lt_u32 vcc, 2, v16")
            a(f"v_cmp_eq_u32 s[{sM}:{sM+1}], 2, v16")
            a(f"v_lshlrev_b32 v15, 1, v15")
            a(f"v_cndmask_b32 v14, 0, 1, vcc")
            a(f"v_add_u32 v15, v15, v14")
            a(f"v_mul_u32_u24 v14, 3, v14")
            a(f"v_sub_u32 v16, v16, v14")
            a(f"v_mul_lo_u32 v15, v15, s{sT+6}")
            a(f"v_lshl_add_u32 v15, v16, 11, v15")
            for mi in range(2):
                d = ACC + (mi * 2 + ni) * 16
                for g in (2 * gp, 2 * gp + 1):
                    for p in range(2):
                        r = d + 4 * g + 2 * p
                        a(f"v_pk_fma_f32 {vr(r,2)}, {vr(CSV[ni][g]+2*p,2)}, {vr(NM[mi],2)}, {vr(r,2)} op_sel_hi:[1,0,1]")
                        a(f"v_pk_mul_f32 {vr(r,2)}, {vr(r,2)}, {vr(RS[mi],2)} op_sel_hi:[1,0]")
                q = d + 8 * gp
                a(f"v_cvt_pk_bf16_f32 v{q}, v{q}, v{q+1}")
                a(f"v_cvt_pk_bf16_f32 v{q+1}, v{q+2}, v{q+3}")
                a(f"v_cvt_pk_bf16_f32 v{q+2}, v{q+4}, v{q+5}")
                a(f"v_cvt_pk_bf16_f32 v{q+3}, v{q+6}, v{q+7}")
                a(f"v_add_u32 v17, v15, v{K16[mi]}")
                a(f"v_add_u32 v18, v15, v{K8[mi]}")
                a(f"v_permlane32_swap_b32 v{q}, v{q+2}")
                a(f"v_permlane32_swap_b32 v{q+1}, v{q+3}")
                a(f"s_andn2_b64 exec, exec, s[{sM}:{sM+1}]")
                a(f"buffer_store_dwordx4 {vr(q,4)}, v17, {WS_}, s{sA} offen{SC}")
                a(f"s_mov_b64 exec, s[{sM}:{sM+1}]")
                lab = a.newlabel("L_qk_ns")
                a(f"s_cbranch_execz {lab}")
                a(f"buffer_store_dwordx2 {vr(q,2)}, v18, {WS_}, s{sA} offen{SC}")
                a(f"buffer_store_dwordx2 {vr(q+2,2)}, v18, {WS_}, s{sC} offen{SC}")
                a.label(lab)
                a("s_mov_b64 exec, -1")
    a("s_branch L_p2")
    a.label("L_p1_vtype")
    p1_loop(True)
    CSL = [T[0], T[2]]; VB = [8, 9]
    a(f"s_sub_u32 s{sC}, s{sNT}, 10")
    a(f"s_lshl_b32 s{sC}, s{sC}, 7")
    a(f"s_mov_b32 s{sB}, {16*CHUNK}")
    for ni in range(2):
        blk(sA, sWN, sWM, ni)
        a(f"s_lshl_b32 s{sA}, s{sA}, 5")
        a(f"v_add_u32 v14, s{sA}, v3")
        a(f"v_lshlrev_b32 v10, 2, v14")
        a(f"ds_read_b32 v{CSL[ni]}, v10 offset:{STATS+1024}")
        a(f"v_add_u32 v14, s{sC}, v14")
        a(f"v_mul_u32_u24 v15, 3277, v14")
        a(f"v_lshrrev_b32 v15, 16, v15")
        a(f"v_mul_u32_u24 v16, 20, v15")
        a(f"v_sub_u32 v16, v14, v16")
        a(f"v_mul_lo_u32 v15, v15, s{sB}")
        a(f"v_lshl_add_u32 v15, v16, 4, v15")
        a(f"v_mul_u32_u24 v16, 320, v4")
        a(f"v_add_u32 v{VB[ni]}, v15, v16")
    for mi in range(2):
        NMV = [T[8] + g * 4 for g in range(4)]; RSV = [T[24] + g * 4 for g in range(4)]
        blk(sA, sWM, sWN, mi)
        a(f"s_lshl_b32 s{sT}, s{sA}, 7")
        a(f"v_lshl_add_u32 v10, v4, 4, s{sT}")
        for g in range(4):
            a(f"ds_read_b128 {vr(NMV[g],4)}, v10 offset:{STATS+g*32}")
            a(f"ds_read_b128 {vr(RSV[g],4)}, v10 offset:{STATS+512+g*32}")
        a(f"s_mul_i32 s{sA}, s{sA}, {4*320}")
        a(f"s_mul_i32 s{sT}, s{sMT}, {CHUNK}")
        a(f"s_add_u32 s{sA}, s{sA}, s{sT}")
        a(f"s_add_u32 s{sA}, s{sA}, {WS_KV+5120}")
        a("s_waitcnt lgkmcnt(0)")
        for ni in range(2):
            d = ACC + (mi * 2 + ni) * 16
            for gp in range(2):
                for g in (2 * gp, 2 * gp + 1):
                    for p in range(2):
                        r = d + 4 * g + 2 * p
                        a(f"v_pk_fma_f32 {vr(r,2)}, {vr(NMV[g]+2*p,2)}, {vr(CSL[ni],2)}, {vr(r,2)} op_sel_hi:[1,0,1]")
                        a(f"v_pk_mul_f32 {vr(r,2)}, {vr(r,2)}, {vr(RSV[g]+2*p,2)}")
                q = d + 8 * gp
                a(f"v_cvt_pk_bf16_f32 v{q}, v{q}, v{q+1}")
                a(f"v_cvt_pk_bf16_f32 v{q+1}, v{q+2}, v{q+3}")
                a(f"v_cvt_pk_bf16_f32 v{q+2}, v{q+4}, v{q+5}")
                a(f"v_cvt_pk_bf16_f32 v{q+3}, v{q+6}, v{q+7}")
                a.nop(2)
                a(f"v_permlane32_swap_b32 v{q}, v{q+2}")
                a(f"v_permlane32_swap_b32 v{q+1}, v{q+3}")
                a(f"buffer_store_dwordx4 {vr(q,4)}, v{VB[ni]}, {WS_}, s{sA} offen offset:{gp*640}{SC}")

    a.label("L_p2")
    ST("A", 3)
    GSLOT = [122880, 81920, 40960, 0]
    CSA = 122880
    GX = [8, 12]
    GW = [[16 + (b * 6 + n) * 4 for n in range(6)] for b in range(2)]
    GACC = 64
    gXA = [[184 + sl * 4 + ks for ks in range(4)] for sl in range(4)]
    gWA = [[200 + sl * 3 + p for p in range(3)] for sl in range(4)]
    GCS = [160, 164]
    POLL = 212
    sCT = [sR + 4, sR + 5, sR + 6]
    a("v_lshrrev_b32 v5, 1, v3")
    a("v_and_b32 v5, 7, v5")
    a(f"s_lshl_b32 s{sT}, s{sW}, 12")
    a(f"v_lshl_add_u32 v6, v3, 7, s{sT}")
    for ks in range(4):
        a(f"v_or_b32 v7, {2*ks}, v4")
        a(f"v_xor_b32 v7, v7, v5")
        a(f"v_lshl_add_u32 v{gXA[3][ks]}, v7, 4, v6")
        for sl in range(3): a(f"v_add_u32 v{gXA[sl][ks]}, {GSLOT[sl]}, v{gXA[3][ks]}")
    a("v_lshrrev_b32 v5, 2, v2")
    a("v_and_b32 v5, 3, v5")
    a("v_lshl_add_u32 v5, v4, 3, v5")
    a("v_mul_u32_u24 v5, 192, v5")
    a("v_lshrrev_b32 v6, 4, v2")
    a("v_and_b32 v6, 1, v6")
    a("v_lshl_add_u32 v5, v6, 5, v5")
    a("v_and_b32 v6, 3, v2")
    a("v_lshl_add_u32 v5, v6, 3, v5")
    for p in range(3):
        a(f"s_add_u32 s{sCT[p]}, s{sW}, {p}")
        a(f"s_cmp_ge_u32 s{sCT[p]}, 3")
        a(f"s_cselect_b32 s{sT}, 3, 0")
        a(f"s_sub_u32 s{sCT[p]}, s{sCT[p]}, s{sT}")
        a(f"s_cmp_ge_u32 s{sCT[p]}, 3")
        a(f"s_cselect_b32 s{sT}, 3, 0")
        a(f"s_sub_u32 s{sCT[p]}, s{sCT[p]}, s{sT}")
        a(f"s_lshl_b32 s{sT}, s{sCT[p]}, 6")
        a(f"s_add_u32 s{sT}, s{sT}, 16384")
        a(f"v_add_u32 v{gWA[3][p]}, s{sT}, v5")
        for sl in range(3): a(f"v_add_u32 v{gWA[sl][p]}, {GSLOT[sl]}, v{gWA[3][p]}")
    a("s_waitcnt lgkmcnt(0)")
    a(f"v_mul_f32 v{RS2}, v{RS2}, v{RS2}")
    a("s_barrier")
    ST("A", 4); ST("C", 1)
    def rd2(st, ks, buf):
        sl = st % 4
        L = [f"ds_read_b128 {vr(GX[buf],4)}, v{gXA[sl][ks]}"]
        for n in range(6):
            mat, p = n & 1, n >> 1
            for h in range(2):
                L.append(f"ds_read_b64_tr_b16 {vr(GW[buf][n]+2*h,2)}, v{gWA[sl][p]} offset:{mat*12288 + (16*ks+4*h)*192}")
        return L
    for l in rd2(0, 0, 0): a(l)
    for r in range(96): a(f"v_mov_b32 v{GACC+r}, 0")
    for r in range(8): a(f"v_mov_b32 v{GCS[0]+r}, 0")
    a(f"v_mov_b32 v{POLL+1}, 0")
    for st in range(10):
        for ks in range(4):
            buf = (st * 4 + ks) & 1
            if ks < 3: nxt = rd2(st, ks + 1, buf ^ 1)
            elif st < 9: nxt = rd2(st + 1, 0, buf ^ 1)
            else: nxt = []
            if ks == 3 and st in (0, 6):
                a("s_waitcnt vmcnt(0) lgkmcnt(0)")
            else:
                a("s_waitcnt lgkmcnt(0)")
            if ks == 3 and st < 9:
                a("s_barrier")
                ST("C", st + 2)
            if st == 3 and ks == 0:
                lab = a.newlabel("L_f1p")
                a(f"s_cmp_lg_u32 s{sW}, 0")
                a(f"s_cbranch_scc1 {lab}")
                a(f"global_load_dword v{POLL}, v{POLL+1}, s[{sDbg}:{sDbg+1}] sc1")
                a.label(lab)
            if st == 4 and ks == 1:
                lab = a.newlabel("L_f1")
                a(f"s_cmp_lg_u32 s{sW}, 0")
                a(f"s_cbranch_scc1 {lab}_skip")
                a(f"s_mov_b32 s{sT+1}, 0")
                a.label(lab)
                a("s_waitcnt vmcnt(0)")
                a(f"v_readfirstlane_b32 s{sT}, v{POLL}")
                a(f"s_add_u32 s{sT+1}, s{sT+1}, 1")
                a(f"s_cmp_ge_u32 s{sT}, 256")
                a(f"s_cbranch_scc1 {lab}_ok")
                a(f"s_cmp_ge_u32 s{sT+1}, 0x20000")
                a(f"s_cbranch_scc1 {lab}_ok")
                a("s_sleep 4")
                a(f"global_load_dword v{POLL}, v{POLL+1}, s[{sDbg}:{sDbg+1}] sc1")
                a(f"s_branch {lab}")
                a.label(f"{lab}_ok")
                if "inv" in exp: a("buffer_inv sc1")
                a.label(f"{lab}_skip")
            for n in range(6):
                d = GACC + n * 16
                a(f"{M32} {vr(d,16)}, {vr(GW[buf][n],4)}, {vr(GX[buf],4)}, {vr(d,16)}")
                for l in (nxt[n * 4: n * 4 + 4] if n < 3 else nxt[12:13] if n == 3 else []): a(l)
                if n >= 4: a(f"{M16} {vr(GCS[n-4],4)}, {vr(SEL,4)}, {vr(GW[buf][n-4],4)}, {vr(GCS[n-4],4)}")
    ST("A", 5); ST("C", 11)
    a(f"s_lshl_b32 s{sT}, s{sCT[0]}, 7")
    a(f"s_add_u32 s{sT}, s{sT}, {CSA}")
    a(f"v_lshl_add_u32 v5, v3, 2, s{sT}")
    a.nop(4)
    a("s_mov_b64 exec, 0xffff")
    for mat in range(2):
        a(f"ds_write_b32 v5, v{GCS[mat]} offset:{mat*384}")
        a(f"ds_write_b32 v5, v{GCS[mat]+1} offset:{mat*384+64}")
    a("s_mov_b64 exec, -1")
    a("s_waitcnt lgkmcnt(0)")
    a("s_barrier")
    a(f"s_lshl_b32 s{sA}, s{sMT}, 2")
    a(f"s_add_u32 s{sA}, s{sA}, s{sW}")
    a(f"s_mul_i32 s{sA}, s{sA}, {2*49152}")
    a(f"s_mul_i32 s{sT}, s{sNG}, {12*256}")
    a(f"s_add_u32 s{sA}, s{sA}, s{sT}")
    a(f"s_add_u32 s{sA}, s{sA}, {WS_H}")
    a("v_lshrrev_b32 v6, 4, v3")
    a("v_mul_u32_u24 v6, 49152, v6")
    a("v_lshl_add_u32 v6, v4, 8, v6")
    a("v_and_b32 v7, 15, v3")
    a("v_lshl_add_u32 v6, v7, 4, v6")
    CB = [16, 184]
    for p in range(3):
        a(f"s_lshl_b32 s{sT}, s{sCT[p]}, 7")
        a(f"s_add_u32 s{sT}, s{sT}, {CSA}")
        a(f"v_lshl_add_u32 v5, v4, 4, s{sT}")
        for mat in range(2):
            for g in range(4):
                a(f"ds_read_b128 {vr(CB[p&1]+(mat*4+g)*4,4)}, v5 offset:{mat*384+g*32}") if p < 2 else None
    for p in range(3):
        cb = CB[p & 1]
        if p == 2:
            pass
        a(f"s_waitcnt lgkmcnt({8 if p == 0 else 8 if p == 1 else 0})")
        g = GACC + (2 * p) * 16; u = GACC + (2 * p + 1) * 16
        for q in range(8):
            a(f"v_pk_fma_f32 {vr(g+2*q,2)}, {vr(cb+2*q,2)}, {vr(NM2,2)}, {vr(g+2*q,2)} op_sel_hi:[1,0,1]")
            a(f"v_pk_fma_f32 {vr(u+2*q,2)}, {vr(cb+16+2*q,2)}, {vr(NM2,2)}, {vr(u+2*q,2)} op_sel_hi:[1,0,1]")
        if p == 0:
            a(f"s_lshl_b32 s{sT}, s{sCT[2]}, 7")
            a(f"s_add_u32 s{sT}, s{sT}, {CSA}")
            a(f"v_lshl_add_u32 v5, v4, 4, s{sT}")
            for mat in range(2):
                for gg in range(4):
                    a(f"ds_read_b128 {vr(16+(mat*4+gg)*4,4)}, v5 offset:{mat*384+gg*32}")
        a(f"s_lshl_b32 s{sT}, s{sCT[p]}, 10")
        a(f"s_add_u32 s{sT}, s{sT}, s{sA}")
        for gp in range(2):
            for q in range(4 * gp, 4 * gp + 4):
                a(f"v_max_f32 v{g+2*q}, 0, v{g+2*q}")
                a(f"v_max_f32 v{g+2*q+1}, 0, v{g+2*q+1}")
                a(f"v_pk_mul_f32 {vr(u+2*q,2)}, {vr(u+2*q,2)}, {vr(RS2,2)} op_sel_hi:[1,0]")
                a(f"v_pk_mul_f32 {vr(g+2*q,2)}, {vr(g+2*q,2)}, {vr(u+2*q,2)}")
                a(f"v_cvt_pk_bf16_f32 v{u+8*gp+(q&3)}, v{g+2*q}, v{g+2*q+1}")
            o = u + 8 * gp
            a.nop(2)
            a(f"v_permlane32_swap_b32 v{o}, v{o+2}")
            a(f"v_permlane32_swap_b32 v{o+1}, v{o+3}")
            a(f"buffer_store_dwordx4 {vr(o,4)}, v6, {WS_}, s{sT} offen offset:{gp*512}{SC}")
    a("s_branch L_p3")

    a.label("L_loader")
    sLW, sXo, sWo, sLd, sGo, sLdW = sR + 2, sR + 3, sR + 4, sR + 5, sR + 6, sR + 7
    vXE, vXO, vWv = 5, 6, 7
    vGd = [44, 45, 46]
    a(f"s_sub_u32 s{sLW}, s{sW}, 4")
    a("v_lshrrev_b32 v9, 4, v2")
    a("v_lshrrev_b32 v10, 3, v2")
    a("v_mul_u32_u24 v10, 1280, v10")
    a("v_and_b32 v11, 7, v2")
    a(f"v_xor_b32 v{vXE}, v11, v9")
    a(f"v_xor_b32 v{vXO}, 4, v{vXE}")
    a(f"v_lshl_add_u32 v{vXE}, v{vXE}, 4, v10")
    a(f"v_lshl_add_u32 v{vXO}, v{vXO}, 4, v10")
    a(f"v_mul_u32_u24 v{vWv}, 3840, v9")
    a("v_lshrrev_b32 v10, 2, v2")
    a("v_and_b32 v10, 3, v10")
    a("v_xor_b32 v10, v10, v9")
    a(f"v_lshl_add_u32 v{vWv}, v10, 6, v{vWv}")
    a("v_and_b32 v10, 3, v2")
    a(f"v_lshl_add_u32 v{vWv}, v10, 4, v{vWv}")
    a(f"s_lshl_b32 s{sXo}, s{sMT}, 7")
    a(f"s_lshl_b32 s{sT}, s{sLW}, 5")
    a(f"s_add_u32 s{sXo}, s{sXo}, s{sT}")
    a(f"s_mul_i32 s{sXo}, s{sXo}, 1280")
    a(f"s_mul_i32 s{sWo}, s{sLW}, {16*3840}")
    a(f"s_lshl_b32 s{sT}, s{sNT}, 8")
    a(f"s_add_u32 s{sWo}, s{sWo}, s{sT}")
    a(f"s_lshl_b32 s{sLd}, s{sLW}, 12")
    VM = Cnt(a, "vmcnt", 63)
    def issue1(st):
        base = (st % NST) * STG
        for j in range(4):
            a(f"s_add_u32 m0, s{sLd}, {base + j*1024}")
            a(f"s_add_u32 s{sT}, s{sXo}, {j*8*1280 + st*128}")
            a(f"buffer_load_dwordx4 v{vXO if j & 1 else vXE}, {X_}, s{sT} offen lds")
            a(f"s_add_u32 m0, s{sLd}, {base + 16384 + j*1024}")
            a(f"s_add_u32 s{sT}, s{sWo}, {(st*64 + j*4)*3840}")
            a(f"buffer_load_dwordx4 v{vWv}, {WQ_}, s{sT} offen lds")
        return VM.op(8)
    def issue2(st):
        base = GSLOT[st % 4]
        for j in range(4):
            a(f"s_add_u32 m0, s{sLd}, {base + j*1024}")
            a(f"s_add_u32 s{sT}, s{sXo}, {j*8*1280 + st*128}")
            a(f"buffer_load_dwordx4 v{vXO if j & 1 else vXE}, {X_}, s{sT} offen lds")
        a(f"s_add_u32 s{sT}, s{sGo}, {st*64*3072}")
        for mat in range(2):
            for t in range(3):
                a(f"s_add_u32 m0, s{sLdW}, {base + 16384 + mat*12288 + t*1024}")
                a.nop(1)
                a(f"buffer_load_dwordx4 v{vGd[t]}, {WU_ if mat else WG_}, s{sT} offen lds")
        return VM.op(10)
    tag1 = {}; tag2 = {}
    tag1[0] = issue1(0); tag1[1] = issue1(1)
    lab = a.newlabel("L_zf")
    a(f"s_cmp_lg_u32 s{sW}, 4")
    a(f"s_cbranch_scc1 {lab}")
    a(f"s_lshl_b32 s{sT}, s{sMT}, 4\ns_add_u32 s{sT}, s{sT}, s{sNG}\ns_lshl_b32 s{sT}, s{sT}, 2\ns_add_u32 s{sT}, s{sT}, {WS_FL2}")
    a(f"s_lshr_b32 s{sT+1}, s{sIDX}, 2\ns_lshl_b32 s{sT+1}, s{sT+1}, 5\ns_lshl_b32 s{sT+2}, s{sXCD}, 2\ns_add_u32 s{sT+1}, s{sT+1}, s{sT+2}")
    a(f"s_and_b32 s{sT+2}, s{sIDX}, 3\ns_add_u32 s{sT+1}, s{sT+1}, s{sT+2}\ns_lshl_b32 s{sT+1}, s{sT+1}, 2\ns_add_u32 s{sT+1}, s{sT+1}, {WS_FL3}")
    a("v_mov_b32 v9, 0")
    a("s_mov_b64 exec, 1")
    a(f"buffer_store_dword v9, v9, {WS_}, s{sT} offen{SC}")
    a(f"buffer_store_dword v9, v9, {WS_}, s{sT+1} offen{SC}")
    a("s_mov_b64 exec, -1")
    a.label(lab)
    SA = [[12 + hi * 4 + j for j in range(4)] for hi in range(2)]
    SD = 20; LS = [36, 37, 38, 39]; LU = [40, 41, 42, 43]
    a("v_lshrrev_b32 v9, 1, v3")
    a("v_and_b32 v9, 7, v9")
    a("v_lshlrev_b32 v10, 2, v4")
    a("v_xor_b32 v9, v9, v10")
    a(f"v_lshl_add_u32 v10, v3, 7, s{sLd}")
    for j in range(4):
        a(f"v_xor_b32 v11, {j}, v9")
        a(f"v_lshl_add_u32 v{SA[0][j]}, v11, 4, v10")
        a(f"v_add_u32 v{SA[1][j]}, 0x10000, v{SA[0][j]}")
    for r in LS: a(f"v_mov_b32 v{r}, 0")
    for t in range(3):
        a(f"v_add_u32 v10, {64*t}, v2")
        a(f"v_mul_u32_u24 v11, 5462, v10")
        a(f"v_lshrrev_b32 v11, 16, v11")
        a(f"v_mul_u32_u24 v9, 12, v11")
        a(f"v_sub_u32 v9, v10, v9")
        a(f"v_mul_u32_u24 v11, 3072, v11")
        a(f"v_lshl_add_u32 v{vGd[t]}, v9, 4, v11")
    a(f"s_mul_i32 s{sGo}, s{sLW}, {16*3072}")
    a(f"s_mul_i32 s{sT}, s{sNG}, 192")
    a(f"s_add_u32 s{sGo}, s{sGo}, s{sT}")
    a(f"s_mul_i32 s{sLdW}, s{sLW}, 3072")
    def stats_rd(st):
        base = (st % NST) * STG
        hi = base // 65536; b = base % 65536
        for j in range(4): a(f"ds_read_b128 {vr(SD+4*j,4)}, v{SA[hi][j]} offset:{b}")
    def stats_acc():
        for j in range(4):
            a(f"s_waitcnt lgkmcnt({3-j})")
            for r in range(4):
                x = SD + 4 * j + r; u0, u1 = LU[2 * (r & 1)], LU[2 * (r & 1) + 1]
                a(f"v_lshlrev_b32 v{u0}, 16, v{x}")
                a(f"v_and_b32 v{u1}, 0xffff0000, v{x}")
                a(f"v_add_f32 v{LS[0]}, v{LS[0]}, v{u0}")
                a(f"v_add_f32 v{LS[1]}, v{LS[1]}, v{u1}")
                a(f"v_fmac_f32 v{LS[2]}, v{u0}, v{u0}")
                a(f"v_fmac_f32 v{LS[3]}, v{u1}, v{u1}")
    VM.need(tag1[0])
    a("s_barrier")
    issued = 1
    for st in range(10):
        stats_rd(st)
        while issued < (min(st + 3, 9) if st else 2):
            issued += 1; tag1[issued] = issue1(issued)
        if st == 8:
            tag2[0] = issue2(0); tag2[1] = issue2(1)
        stats_acc()
        if st < 9:
            VM.need(tag1[st + 1])
            a("s_barrier")
    a(f"v_add_f32 v{LS[0]}, v{LS[0]}, v{LS[1]}")
    a(f"v_add_f32 v{LS[2]}, v{LS[2]}, v{LS[3]}")
    a(f"v_mov_b32 v{LS[1]}, v{LS[0]}")
    a(f"v_mov_b32 v{LS[3]}, v{LS[2]}")
    a.nop(1)
    a(f"v_permlane32_swap_b32 v{LS[0]}, v{LS[1]}")
    a(f"v_permlane32_swap_b32 v{LS[2]}, v{LS[3]}")
    a(f"v_add_f32 v{LS[0]}, v{LS[0]}, v{LS[1]}")
    a(f"v_add_f32 v{LS[2]}, v{LS[2]}, v{LS[3]}")
    ln_rowmath(a, LS[0], LS[2], LU[0], sT)
    a(f"s_lshl_b32 s{sT}, s{sLW}, 7")
    a(f"v_lshl_add_u32 v10, v3, 2, s{sT}")
    a(f"ds_write_b32 v10, v{LS[0]} offset:{STATS}")
    a(f"ds_write_b32 v10, v{LS[2]} offset:{STATS+512}")
    a("s_waitcnt lgkmcnt(0)")
    a("s_barrier")
    tag2[2] = issue2(2)
    sH, sQB, sKV = sA, sB, sC
    a(f"s_lshl_b32 s{sH}, s{sXCD}, 2")
    a(f"s_and_b32 s{sT}, s{sIDX}, 3")
    a(f"s_add_u32 s{sH}, s{sH}, s{sT}")
    a(f"s_lshr_b32 s{sQB}, s{sIDX}, 2")
    a(f"s_mul_i32 s{sKV}, s{sH}, {16*CHUNK}")
    a("v_lshlrev_b32 v8, 4, v2")
    def kv_dma(n0):
        for j in range(10):
            a(f"s_lshl_b32 s{sT}, s{sLW}, 10")
            a(f"s_add_u32 s{sT}, s{sT}, {(n0 + 4*j)*1024}")
            a(f"s_mov_b32 m0, s{sT}")
            a(f"s_add_u32 s{sT}, s{sT}, s{sKV}")
            a(f"s_add_u32 s{sT}, s{sT}, {WS_KV}")
            a(f"buffer_load_dwordx4 v8, {WS_}, s{sT} offen lds")
        VM.op(10)
    VM.need(tag2[0])
    a("s_barrier")
    tag2[3] = issue2(3)
    for st in range(9):
        VM.need(tag2[st + 1])
        a("s_barrier")
        if st == 0:
            lab = a.newlabel("L_f1add")
            a(f"s_cmp_lg_u32 s{sW}, 4")
            a(f"s_cbranch_scc1 {lab}")
            a("v_mov_b32 v9, 0")
            a("v_mov_b32 v10, 1")
            a("s_mov_b64 exec, 1")
            a(f"global_atomic_add v9, v10, s[{sDbg}:{sDbg+1}] sc1")
            a("s_mov_b64 exec, -1")
            a.label(lab)
        if st + 4 <= 9: tag2[st + 4] = issue2(st + 4)
        if st == 6: kv_dma(40)
        if st == 7: kv_dma(0)
        if st == 8:
            QOFF = 15 * CHUNK
            for j in range(3):
                a(f"s_add_u32 s{sT}, s{sLW}, {4*j}")
                a(f"s_min_u32 s{sT}, s{sT}, 9")
                a(f"s_lshl_b32 s{sT+1}, s{sT}, 10")
                a(f"s_add_u32 m0, s{sT+1}, {QOFF}")
                a(f"s_cmp_ge_u32 s{sT}, 5")
                a(f"s_cselect_b32 s{sT}, 5120, 0")
                a(f"s_add_u32 s{sT}, s{sT}, s{sT+1}")
                a(f"s_mul_i32 s{sT+1}, s{sQB}, {2*CHUNK}")
                a(f"s_add_u32 s{sT}, s{sT}, s{sT+1}")
                a(f"s_add_u32 s{sT}, s{sT}, s{sKV}")
                a(f"s_add_u32 s{sT}, s{sT}, {WS_Q}")
                a(f"buffer_load_dwordx4 v8, {WS_}, s{sT} offen lds")
            VM.op(3)
    a("s_barrier")
    a("s_waitcnt vmcnt(0)")

    a.label("L_p3")
    ST("A", 6)
    QA, QB = 8, 12
    S = [16, 32]; P = 48; O = 56
    KA = [72, 76]; KB = [80, 84]; V = [[88, 92], [96, 100]]
    AD = [[104 + 3 * z + y for y in range(3)] for z in range(3)]
    T0, T1, T2, T3 = 113, 114, 115, 116
    vM, vOst, vL = 117, 118, 120
    vFo = 121
    DACC = 124
    DF = [164 + 28 * k for k in range(3)]
    DPOLL = 248
    NV = 250
    sH, sQB, sKV = sA, sB, sC
    sDG, sDL, sDX, sDW, sFin, sLoop = sR, sR + 1, sR + 2, sR + 4, sR + 5, sR + 6
    a(f"s_lshl_b32 s{sH}, s{sXCD}, 2")
    a(f"s_and_b32 s{sT}, s{sIDX}, 3")
    a(f"s_add_u32 s{sH}, s{sH}, s{sT}")
    a(f"s_lshr_b32 s{sQB}, s{sIDX}, 2")
    a(f"s_mul_i32 s{sKV}, s{sH}, {16*CHUNK}")
    a(f"v_lshlrev_b32 v{vL}, 4, v2")
    a(f"s_lshl_b32 s{sDL}, s{sW}, 10")
    a(f"s_add_u32 s{sDL}, s{sDL}, {80*1024}")
    a(f"s_add_u32 s{sDG}, s{sDL}, s{sKV}")
    a(f"s_add_u32 s{sDG}, s{sDG}, {WS_KV}")
    a(f"s_lshl_b32 s{sT}, s{sQB}, 8")
    a(f"s_lshl_b32 s{sT+1}, s{sW}, 5")
    a(f"s_add_u32 s{sT}, s{sT}, s{sT+1}")
    a(f"v_add_u32 v5, s{sT}, v3")
    a(f"v_lshrrev_b32 v6, 4, v5")
    a(f"v_mul_u32_u24 v{vOst}, 20480, v6")
    a(f"v_and_b32 v6, 15, v5")
    a(f"v_lshl_add_u32 v{vOst}, v6, 4, v{vOst}")
    a(f"v_lshl_add_u32 v{vOst+1}, v4, 8, v{vOst}")
    a(f"s_lshr_b32 s{sT}, s{sW}, 2")
    a(f"s_mul_i32 s{sT}, s{sT}, 5120")
    a(f"s_add_u32 s{sT}, s{sT}, {15*CHUNK}")
    a(f"v_and_b32 v5, 127, v5")
    a(f"v_lshl_add_u32 v6, v5, 4, s{sT}")
    a(f"v_lshl_add_u32 v6, v4, 11, v6")
    a(f"v_lshl_add_u32 v7, v5, 3, s{sT}")
    a("v_and_b32 v5, 0x13, v3")
    a(f"v_and_b32 v{T0}, 4, v3")
    a(f"v_lshl_or_b32 v5, v{T0}, 1, v5")
    a(f"v_and_b32 v{T0}, 8, v3")
    a(f"v_lshrrev_b32 v{T0}, 1, v{T0}")
    a(f"v_or_b32 v5, v5, v{T0}")
    a(f"v_lshlrev_b32 v{AD[0][0]}, 4, v5")
    a(f"v_lshl_add_u32 v{AD[0][0]}, v4, 11, v{AD[0][0]}")
    a(f"v_lshlrev_b32 v{AD[0][1]}, 3, v5")
    a(f"v_add_u32 v{AD[0][1]}, 4096, v{AD[0][1]}")
    a(f"v_mul_u32_u24 v{AD[0][2]}, 320, v4")
    a(f"v_lshl_add_u32 v{AD[0][2]}, v3, 4, v{AD[0][2]}")
    a(f"v_add_u32 v{AD[0][2]}, 5120, v{AD[0][2]}")
    for z in (1, 2):
        for y in range(3): a(f"v_add_u32 v{AD[z][y]}, {6*z*CHUNK}, v{AD[0][y]}")
    for r in range(4): a(f"v_mov_b32 v{QB+r}, 0")
    for r in range(16): a(f"v_mov_b32 v{O+r}, 0")
    a("v_cmp_eq_u32 vcc, 20, v3")
    a(f"v_mov_b32 v{T0}, 0x3f803f80")
    a.nop(1)
    a(f"v_cndmask_b32 v{T1}, 0, v{T0}, vcc")
    for b in range(2):
        a(f"v_mov_b32 v{KB[b]+2}, 0x3f80")
        a(f"v_mov_b32 v{KB[b]+3}, 0")
        for j in range(2):
            for r in range(4): a(f"v_mov_b32 v{V[b][j]+r}, v{T1}")
    for r in range(8): a(f"v_mov_b32 v{P+r}, 0")
    for r in range(40): a(f"v_mov_b32 v{DACC+r}, 0")
    a(f"s_and_b32 s{sT}, s{sXCD}, 3")
    a(f"s_lshl_b32 s{sT+1}, s{sQB}, 2")
    a(f"s_add_u32 s{sT}, s{sT}, s{sT+1}")
    a(f"s_lshr_b32 s{sT+4}, s{sT}, 1")
    a(f"s_lshl_b32 s{sT}, s{sT}, 2")
    a(f"s_lshr_b32 s{sT+2}, s{sXCD}, 2")
    a(f"s_lshl_b32 s{sT+2}, s{sT+2}, 2")
    a(f"s_and_b32 s{sT+3}, s{sIDX}, 3")
    a(f"s_add_u32 s{sT+2}, s{sT+2}, s{sT+3}")
    a(f"s_mul_i32 s{sFin}, s{sT}, {16*1280}")
    a(f"s_mul_i32 s{sT+3}, s{sT+2}, 160")
    a(f"s_add_u32 s{sFin}, s{sFin}, s{sT+3}")
    a(f"s_and_b32 s{sT+3}, s{sW}, 1")
    a(f"s_lshl_b32 s{sT+3}, s{sT+3}, 1")
    a(f"s_add_u32 s{sT}, s{sT}, s{sT+3}")
    a(f"s_lshr_b32 s{sT+3}, s{sW}, 1")
    a(f"s_lshl_b32 s{sT+5}, s{sT+3}, 10")
    a(f"s_mul_i32 s{sDX}, s{sT}, 49152")
    a(f"s_add_u32 s{sDX}, s{sDX}, s{sT+5}")
    a(f"s_add_u32 s{sDX}, s{sDX}, {WS_H}")
    a(f"s_mul_i32 s{sDX+1}, s{sT}, 20480")
    a(f"s_add_u32 s{sDX+1}, s{sDX+1}, s{sT+5}")
    a(f"s_add_u32 s{sDX+1}, s{sDX+1}, {WS_O}")
    a(f"s_mul_i32 s{sDW}, s{sT+3}, {40*1024}")
    a(f"s_mul_i32 s{sT+5}, s{sT+2}, 5120")
    a(f"s_add_u32 s{sDW}, s{sDW}, s{sT+5}")
    a(f"s_add_u32 s{sDW}, s{sDW}, {WS_WP}")
    a(f"s_lshl_b32 s{sT+4}, s{sT+4}, 6")
    a(f"s_add_u32 s{sLoop+1}, s{sT+4}, {WS_FL2}")
    a("v_and_b32 v5, 15, v2")
    a(f"v_lshlrev_b32 v{vFo}, 2, v5")
    a("s_barrier")
    ST("A", 7); ST("D", 1)
    LG = Cnt(a, "lgkmcnt", 15); VM = Cnt(a, "vmcnt", 63)
    a(f"ds_read_b128 {vr(QA,4)}, v6"); LG.op()
    a(f"s_mov_b64 exec, s[{sLO}:{sLO+1}]")
    a(f"ds_read_b64 {vr(QB,2)}, v7 offset:4096"); tq = LG.op()
    a("s_mov_b64 exec, -1")
    def ad(t, y): return AD[(t // 4) // 6][y]
    def coff(t): return ((t // 4) % 6) * CHUNK
    tagK = {}; tagV0 = {}; tagV1 = {}
    def rdK(t):
        if t > 63: return
        b = t & 1
        a(f"ds_read_b128 {vr(KA[b],4)}, v{ad(t,0)} offset:{coff(t) + (t%4)*512}"); LG.op()
        a(f"ds_read_b64 {vr(KB[b],2)}, v{ad(t,1)} offset:{coff(t) + (t%4)*256}"); tagK[t] = LG.op()
    def rdV(t):
        if t > 63: return
        b = t & 1
        a(f"s_mov_b64 exec, s[{sVM}:{sVM+1}]")
        a(f"ds_read_b128 {vr(V[b][0],4)}, v{ad(t,2)} offset:{coff(t) + (t%4)*1280}"); tagV0[t] = LG.op()
        a(f"ds_read_b128 {vr(V[b][1],4)}, v{ad(t,2)} offset:{coff(t) + (t%4)*1280 + 640}"); tagV1[t] = LG.op()
        a("s_mov_b64 exec, -1")
    def mf(d, A, B, C): a(f"{M32} {vr(d,16)}, {vr(A,4)}, {vr(B,4)}, {C}")
    def rowmax(s, extra=None):
        a(f"v_max3_f32 v{T0}, v{s}, v{s+1}, v{s+2}")
        a(f"v_max3_f32 v{T1}, v{s+3}, v{s+4}, v{s+5}")
        a(f"v_max3_f32 v{T2}, v{s+6}, v{s+7}, v{s+8}")
        a(f"v_max3_f32 v{T3}, v{s+9}, v{s+10}, v{s+11}")
        a(f"v_max3_f32 v{T0}, v{T0}, v{s+12}, v{s+13}")
        a(f"v_max3_f32 v{T1}, v{T1}, v{s+14}, v{s+15}")
        a(f"v_max3_f32 v{T0}, v{T0}, v{T1}, v{T2}")
        a(f"v_max3_f32 v{T0}, v{T0}, v{T3}, v{extra if extra is not None else T3}")
        a(f"v_mov_b32 v{T1}, v{T0}")
        a.nop(2)
        a(f"v_permlane32_swap_b32 v{T0}, v{T1}")
        a(f"v_max_f32 v{T0}, v{T0}, v{T1}")
    rdK(0); rdK(1); rdV(0)
    LG.need(tagK[0])
    mf(S[0], KA[0], QA, "0")
    mf(S[0], KB[0], QB, vr(S[0], 16))
    a.nop(12)
    rowmax(S[0])
    a(f"v_xor_b32 v{T0}, 0x80000000, v{T0}")
    a(f"v_lshrrev_b32 v{T0}, 16, v{T0}")
    a(f"v_cndmask_b32 v{QB+2}, 0, v{T0}, s[{sLO}:{sLO+1}]")
    a.nop(2)
    mf(S[0], KA[0], QA, "0")
    mf(S[0], KB[0], QB, vr(S[0], 16))
    a.nop(12)
    def kvdma():
        a(f"s_mov_b32 m0, s{sDL}")
        a(f"s_add_u32 s{sDL}, s{sDL}, 8192")
        a(f"buffer_load_dwordx4 v{vL}, {WS_}, s{sDG} offen lds")
        a(f"s_add_u32 s{sDG}, s{sDG}, 8192")
        return VM.op()
    tagD = {}
    def d_issue(j, part):
        f = DF[j % 3]
        wstep = 5 + j
        if part == 0:
            a(f"s_add_u32 s{sT}, s{sDW}, {wstep*4*40*1024}")
            for n in range(2): a(f"buffer_load_dwordx4 {vr(f+8+4*n,4)}, v{vL}, {WS_}, s{sT} offen offset:{n*1024}{SL}"); VM.op()
        elif part == 1:
            a(f"s_add_u32 s{sT}, s{sDW}, {wstep*4*40*1024}")
            for n in range(2, 4): a(f"buffer_load_dwordx4 {vr(f+8+4*n,4)}, v{vL}, {WS_}, s{sT} offen offset:{n*1024}{SL}"); VM.op()
        elif part == 2:
            a(f"s_add_u32 s{sT}, s{sDW}, {wstep*4*40*1024 + 4096}")
            a(f"buffer_load_dwordx4 {vr(f+24,4)}, v{vL}, {WS_}, s{sT} offen{SL}"); VM.op()
            a(f"s_add_u32 s{sT}, s{sDX}, {j*4096}")
            a(f"buffer_load_dwordx4 {vr(f,4)}, v{vL}, {WS_}, s{sT} offen{SL}"); VM.op()
        else:
            a(f"s_add_u32 s{sT}, s{sDX}, {j*4096 + 49152}")
            a(f"buffer_load_dwordx4 {vr(f+4,4)}, v{vL}, {WS_}, s{sT} offen{SL}"); tagD[j] = VM.op()
    def d_mfma(j, q):
        f = DF[j % 3]; m, n = q & 1, q >> 1
        acc = DACC + (m * 5 + n) * 4
        a(f"{M16} {vr(acc,4)}, {vr(f+8+4*n,4)}, {vr(f+4*m,4)}, {vr(acc,4)}")
    DW0 = 4
    useD = "noD" not in exp
    def tile(t):
        cur = t & 1; nxt = cur ^ 1
        s = S[cur]; sn = S[nxt]
        ex = lambda r: a(f"v_exp_f32 v{s+r}, v{s+r}")
        cv = lambda p: a(f"v_cvt_pk_bf16_f32 v{P+p}, v{s+2*p}, v{s+2*p+1}")
        win, tw = t // 4, t % 4
        j = win - DW0
        dq = []
        if useD and 0 <= j < 12:
            dq = [[0, 1, 2], [3, 4], [5, 6, 7], [8, 9]][tw]
            if tw == 0: VM.need(tagD[j])
        dm = lambda k: d_mfma(j, dq[k]) if k < len(dq) else None
        if t < 63:
            LG.need(tagK[t + 1])
            mf(sn, KA[nxt], QA, "0")
        ex(0); ex(1); dm(0); ex(2); ex(3)
        if t < 63: mf(sn, KB[nxt], QB, vr(sn, 16))
        rdK(t + 2)
        ex(4); ex(5); dm(1); ex(6); ex(7)
        cv(0); cv(1)
        if t > 0:
            LG.need(tagV1[t - 1])
            mf(O, V[nxt][1], P + 4, vr(O, 16))
        rdV(t + 1)
        cv(2); cv(3)
        ex(8); ex(9); dm(2); ex(10); ex(11)
        LG.need(tagV0[t])
        mf(O, V[cur][0], P, vr(O, 16))
        jl = win - (DW0 - 2)
        if useD and 0 <= jl < 12: d_issue(jl, tw)
        for r in range(12, 16): ex(r)
        cv(4); cv(5); cv(6); cv(7)
    nd = 0
    for t in range(64):
        if t == 2:
            a(f"s_waitcnt vmcnt({VM.issued})")
            a("s_barrier")
            lab = a.newlabel("L_f2set")
            a(f"s_cmp_lg_u32 s{sW}, 0")
            a(f"s_cbranch_scc1 {lab}")
            a(f"s_lshl_b32 s{sT}, s{sMT}, 4\ns_add_u32 s{sT}, s{sT}, s{sNG}\ns_lshl_b32 s{sT}, s{sT}, 2\ns_add_u32 s{sT}, s{sT}, {WS_FL2}")
            a(f"v_mov_b32 v{T0}, 0")
            a(f"v_mov_b32 v{T1}, 1")
            a("s_mov_b64 exec, 1")
            a(f"buffer_store_dword v{T1}, v{T0}, {WS_}, s{sT} offen{SC}")
            a("s_mov_b64 exec, -1")
            a.label(lab)
        if useD and t == 4 * (DW0 - 2) - 2:
            a(f"buffer_load_dword v{DPOLL}, v{vFo}, {WS_}, s{sLoop+1} offen{SC}"); tpoll = VM.op()
        if useD and t == 4 * (DW0 - 2) + 2:
            VM.need(tpoll)
            lab = a.newlabel("L_f2")
            a(f"s_mov_b32 s{sT+1}, 0")
            a.label(lab)
            a(f"v_cmp_ne_u32 vcc, 1, v{DPOLL}")
            a(f"s_add_u32 s{sT+1}, s{sT+1}, 1")
            a.nop(2)
            a("s_cmp_eq_u64 vcc, 0")
            a(f"s_cbranch_scc1 {lab}_ok")
            a(f"s_cmp_ge_u32 s{sT+1}, 0x20000")
            a(f"s_cbranch_scc1 {lab}_ok")
            a("s_sleep 4")
            a(f"buffer_load_dword v{DPOLL}, v{vFo}, {WS_}, s{sLoop+1} offen{SC}")
            a("s_waitcnt vmcnt(0)")
            a(f"s_branch {lab}")
            a.label(f"{lab}_ok")
        if t == 28:
            VM.need(tkv)
            a("s_barrier")
        if t % 8 == 0 and t: ST("D", 1 + t // 8)
        tile(t)
        if nd < 10 and (nd < 8 or t >= 2):
            tkv = kvdma(); nd += 1
    LG.need(tagV1[63])
    mf(O, V[1][1], P + 4, vr(O, 16))
    ST("A", 8); ST("D", 9)
    WOF = [DF[0] + 20 * k for k in range(4)] + [16]
    XOF = [72 + 8 * k for k in range(4)] + [36]
    tagW = []
    for k in range(5):
        a(f"s_add_u32 s{sT}, s{sDW}, {k*4*40*1024}")
        a(f"s_add_u32 s{sT+1}, s{sT}, 4096")
        for n in range(5):
            if k == 4 and n == 0: a.nop(8)
            a(f"buffer_load_dwordx4 {vr(WOF[k]+4*n,4)}, v{vL}, {WS_}, s{sT + n//4} offen offset:{(n%4)*1024}{SL}")
    a(f"v_mov_b32 v{T0}, v{O+8}")
    a(f"v_mov_b32 v{T1}, v{O+8}")
    a(f"v_mov_b32 v{T2}, 0")
    a.nop(1)
    a(f"v_permlane32_swap_b32 v{T0}, v{T1}")
    for r in range(12): a(f"v_fma_f32 v{T2}, v{O+r}, 0, v{T2}")
    a(f"s_mov_b32 s{sT}, 0x71800000")
    a(f"v_add_f32 v{T2}, v{T2}, v{T1}")
    a(f"v_cmp_ngt_f32 vcc, s{sT}, v{T2}")
    a.nop(4)
    a("s_cmp_lg_u64 vcc, 0")
    a("s_cbranch_scc1 L_slow")
    a.label("L_fin")
    a(f"v_rcp_f32 v{T1}, v{T1}")
    a.nop(1)
    for r in range(12): a(f"v_mul_f32 v{O+r}, v{O+r}, v{T1}")
    for p in range(6): a(f"v_cvt_pk_bf16_f32 v{P+p}, v{O+2*p}, v{O+2*p+1}")
    a(f"s_lshr_b32 s{sT}, s{sH}, 1")
    a(f"s_mul_i32 s{sT}, s{sT}, {5*256}")
    a(f"s_add_u32 s{sT}, s{sT}, {WS_O}")
    a(f"s_and_b32 s{sT+1}, s{sH}, 1")
    a(f"s_mul_i32 s{sT+2}, s{sT+1}, {3*256}")
    a(f"s_add_u32 s{sT+2}, s{sT+2}, s{sT}")
    a(f"s_lshl_b32 s{sT+1}, s{sT+1}, 3")
    a(f"s_add_u32 s{sT+1}, s{sT+1}, s{sT}")
    a(f"v_permlane32_swap_b32 v{P}, v{P+2}")
    a(f"v_permlane32_swap_b32 v{P+1}, v{P+3}")
    a(f"buffer_store_dwordx4 {vr(P,4)}, v{vOst+1}, {WS_}, s{sT+2} offen{SC}")
    a(f"s_mov_b64 exec, s[{sLO}:{sLO+1}]")
    a(f"buffer_store_dwordx2 {vr(P+4,2)}, v{vOst}, {WS_}, s{sT+1} offen offset:512{SC}")
    a("s_mov_b64 exec, -1")
    XR = 44
    a("v_and_b32 v5, 15, v2")
    a("v_lshrrev_b32 v6, 4, v2")
    a("v_mul_u32_u24 v5, 1280, v5")
    a("v_lshl_add_u32 v5, v6, 3, v5")
    a(f"s_lshl_b32 s{sT}, s{sW}, 5")
    a(f"s_add_u32 s{sFin}, s{sFin}, s{sT}")
    a("s_waitcnt vmcnt(0)")
    a("s_barrier")
    ST("A", 9); ST("D", 10)
    for m in range(4):
        a(f"s_add_u32 s{sT}, s{sFin}, {m*16*1280}")
        a(f"buffer_load_dwordx2 {vr(56+2*m,2)}, v5, {X_}, s{sT} offen")
    a(f"s_lshl_b32 s{sT+2}, s{sQB}, 7")
    a(f"s_add_u32 s{sT+2}, s{sT+2}, {WS_FL3}")
    a(f"s_cmp_lg_u32 s{sW}, 0")
    a("s_cbranch_scc1 L_f3_wait")
    a(f"s_lshl_b32 s{sT}, s{sH}, 2")
    a(f"s_add_u32 s{sT}, s{sT}, s{sT+2}")
    a(f"v_mov_b32 v{T0}, 0")
    a(f"v_mov_b32 v{T1}, 1")
    a("s_mov_b64 exec, 1")
    a(f"buffer_store_dword v{T1}, v{T0}, {WS_}, s{sT} offen{SC}")
    a("s_mov_b64 exec, -1")
    a(f"v_lshlrev_b32 v{T0}, 2, v3")
    a(f"s_mov_b32 s{sT+1}, 0")
    a.label("L_f3")
    a(f"buffer_load_dword v{T1}, v{T0}, {WS_}, s{sT+2} offen{SC}")
    a(f"s_add_u32 s{sT+1}, s{sT+1}, 1")
    a("s_waitcnt vmcnt(0)")
    a(f"v_cmp_ne_u32 vcc, 1, v{T1}")
    a.nop(4)
    a("s_cmp_eq_u64 vcc, 0")
    a("s_cbranch_scc1 L_f3_wait")
    a(f"s_cmp_ge_u32 s{sT+1}, 0x20000")
    a("s_cbranch_scc1 L_f3_wait")
    a("s_sleep 2")
    a("s_branch L_f3")
    a.label("L_f3_wait")
    a("s_barrier")
    ST("A", 10); ST("D", 11)
    for k in range(5):
        for m in range(2):
            a(f"s_add_u32 s{sT}, s{sDX+1}, {k*4096 + m*20480}")
            a(f"buffer_load_dwordx4 {vr(XOF[k]+4*m,4)}, v{vL}, {WS_}, s{sT} offen{SC}")
    for k in range(5):
        a(f"s_waitcnt vmcnt({8-2*k})")
        for n in range(5):
            for m in range(2):
                acc = DACC + (m * 5 + n) * 4
                a(f"{M16} {vr(acc,4)}, {vr(WOF[k]+4*n,4)}, {vr(XOF[k]+4*m,4)}, {vr(acc,4)}")
    ST("A", 11)
    a(f"s_and_b32 s{sT}, s{sW}, 1")
    a(f"s_lshl_b32 s{sT}, s{sT}, 3")
    a(f"s_lshr_b32 s{sT+1}, s{sW}, 1")
    a(f"s_add_u32 s{sT}, s{sT}, s{sT+1}")
    a(f"s_lshl_b32 s{sT}, s{sT}, 10")
    a(f"v_add_u32 v6, s{sT}, v{vL}")
    a(f"v_add_u32 v7, 0x10000, v6")
    a.nop(2)
    for n in range(5):
        for m in range(2):
            off = (n * 16 + m * 4) * 1024
            a(f"ds_write_b128 v{6 if off < 65536 else 7}, {vr(DACC+(m*5+n)*4,4)} offset:{off % 65536}")
    a(f"s_lshl_b32 s{sT}, s{sW}, 14")
    a(f"v_add_u32 v6, s{sT}, v{vL}")
    a("s_waitcnt lgkmcnt(0)")
    a("s_barrier")
    a(f"s_cmp_ge_u32 s{sW}, 5")
    a("s_cbranch_scc1 L_done")
    RB = 124
    for q in range(16): a(f"ds_read_b128 {vr(RB+4*q,4)}, v6 offset:{q*1024}")
    for m in range(4):
        for p in range(2):
            a(f"v_lshlrev_b32 v{72+4*m+2*p}, 16, v{56+2*m+p}")
            a(f"v_and_b32 v{72+4*m+2*p+1}, 0xffff0000, v{56+2*m+p}")
    for m in range(4):
        a(f"s_waitcnt lgkmcnt({12-4*m})")
        acc = 72 + 4 * m
        for p in range(2):
            for k in range(4):
                a(f"v_pk_add_f32 {vr(acc+2*p,2)}, {vr(acc+2*p,2)}, {vr(RB+(m*4+k)*4+2*p,2)}")
            a(f"v_cvt_pk_bf16_f32 v{acc+p}, v{acc+2*p}, v{acc+2*p+1}")
        a(f"s_add_u32 s{sT}, s{sFin}, {m*16*1280}")
        a(f"buffer_store_dwordx2 {vr(acc,2)}, v5, {OUT_}, s{sT} offen")
    a.label("L_done")
    ST.dump(WS_, sW, sT)
    a.label("L_end")
    a("s_endpgm")

    a.label("L_early")
    if 'pflate' not in exp: prefetch1()
    if "notlb" not in exp:
        a("v_lshlrev_b32 v5, 21, v2")
        a("s_mov_b64 exec, 0x3fff")
        a(f"s_cmp_eq_u32 s{sW}, 0")
        a("s_cbranch_scc0 L_early_1")
        a(f"buffer_load_dword v{T[38]}, v5, {WS_}, 0 offen offset:4032 sc1")
        a.label("L_early_1")
        a(f"s_cmp_eq_u32 s{sW}, 1")
        a("s_cbranch_scc0 L_early_2")
        a(f"buffer_load_dword v{T[38]}, v5, {WG_}, 0 offen sc1")
        a(f"buffer_load_dword v{T[38]}, v5, {WU_}, 0 offen sc1")
        a.label("L_early_2")
        a(f"s_cmp_eq_u32 s{sW}, 2")
        a("s_cbranch_scc0 L_early_3")
        a(f"buffer_load_dword v{T[38]}, v5, {OUT_}, 0 offen sc1")
        a(f"buffer_load_dword v{T[38]}, v5, {PK_}, 0 offen sc1")
        a.label("L_early_3")
        a("s_mov_b64 exec, -1")
    a("s_branch L_early_done")
    a.label("L_slow")
    a("s_waitcnt vmcnt(0)")
    vKa, vKb, vV = AD[0]
    a(f"v_mov_b32 v{QB+2}, 0")
    a(f"v_mov_b32 v{vM}, 0xff800000")
    for r in range(16): a(f"v_mov_b32 v{O+r}, 0")
    a(f"s_mov_b32 s{sLoop}, 0")
    a.label("L_slow_loop")
    a(f"ds_read_b128 {vr(KA[0],4)}, v{vKa}")
    a(f"ds_read_b64 {vr(KB[0],2)}, v{vKb}")
    a(f"s_mov_b64 exec, s[{sVM}:{sVM+1}]")
    a(f"ds_read_b128 {vr(V[0][0],4)}, v{vV}")
    a(f"ds_read_b128 {vr(V[0][1],4)}, v{vV} offset:640")
    a("s_mov_b64 exec, -1")
    a("s_waitcnt lgkmcnt(0)")
    s = S[1]
    mf(s, KA[0], QA, "0")
    mf(s, KB[0], QB, vr(s, 16))
    a.nop(12)
    rowmax(s, vM)
    a(f"v_sub_f32 v{T1}, v{vM}, v{T0}")
    a(f"v_exp_f32 v{T1}, v{T1}")
    a(f"v_mov_b32 v{vM}, v{T0}")
    for r in range(16): a(f"v_sub_f32 v{s+r}, v{s+r}, v{T0}")
    for r in range(16): a(f"v_mul_f32 v{O+r}, v{O+r}, v{T1}")
    for r in range(16): a(f"v_exp_f32 v{s+r}, v{s+r}")
    a.nop(1)
    for p in range(8): a(f"v_cvt_pk_bf16_f32 v{P+p}, v{s+2*p}, v{s+2*p+1}")
    a.nop(2)
    mf(O, V[0][0], P, vr(O, 16))
    mf(O, V[0][1], P + 4, vr(O, 16))
    a(f"s_add_u32 s{sLoop}, s{sLoop}, 1")
    a(f"s_and_b32 s{sT}, s{sLoop}, 3")
    a(f"s_cmp_eq_u32 s{sT}, 0")
    a(f"s_movk_i32 s{sT}, 512")
    a(f"s_movk_i32 s{sT+1}, 256")
    a(f"s_movk_i32 s{sT+2}, 1280")
    a(f"s_cselect_b32 s{sT}, {CHUNK-3*512}, s{sT}")
    a(f"s_cselect_b32 s{sT+1}, {CHUNK-3*256}, s{sT+1}")
    a(f"s_cselect_b32 s{sT+2}, {CHUNK-3*1280}, s{sT+2}")
    a(f"v_add_u32 v{vKa}, s{sT}, v{vKa}")
    a(f"v_add_u32 v{vKb}, s{sT+1}, v{vKb}")
    a(f"v_add_u32 v{vV}, s{sT+2}, v{vV}")
    a.nop(8)
    a(f"s_cmp_lt_u32 s{sLoop}, 64")
    a("s_cbranch_scc1 L_slow_loop")
    a(f"s_add_u32 s{sT+1}, s{sDW}, {4*4*40*1024 + 4096}")
    a(f"buffer_load_dwordx4 {vr(WOF[4]+16,4)}, v{vL}, {WS_}, s{sT+1} offen{SL}")
    a(f"v_mov_b32 v{T0}, v{O+8}")
    a(f"v_mov_b32 v{T1}, v{O+8}")
    a.nop(2)
    a(f"v_permlane32_swap_b32 v{T0}, v{T1}")
    a("s_branch L_fin")
    return kernel_header(NAME) + a.text(), kernel_desc(NAME, NV, 102 if stamp else 72)

if __name__ == "__main__":
    import sys
    stamp = sys.argv[2] if len(sys.argv) > 2 and sys.argv[2] != "none" else False
    ex = sys.argv[3] if len(sys.argv) > 3 else ""
    body, desc = gen(stamp, ex)
    hdr = open("parallel_sum__softmax_full_mha__glu_gated_reglu__prompt.s.ref").read().split("; Override launch")[0]
    s = hdr + f"; @launch grid=(256,1,1) block=(512,1,1) lds={LDS_M1}\n"
    s += '.amdgcn_target "amdgcn-amd-amdhsa--gfx950"\n.text\n' + body + '.section .rodata,"a"\n' + desc
    open(sys.argv[1], "w").write(s)
```

```python
class Asm:
    def __init__(self):
        self.lines = []
        self.uid = 0
    def __call__(self, s):
        for l in s.strip("\n").split("\n"):
            self.lines.append("  " + l.strip())
    def c(self, s):
        self.lines.append("  ; " + s)
    def label(self, l):
        self.lines.append(l + ":")
    def newlabel(self, p="L"):
        self.uid += 1
        return f"{p}_{self.uid}"
    def nop(self, n):
        while n > 0:
            k = min(n, 16)
            self(f"s_nop {k-1}")
            n -= k
    def text(self):
        return "\n".join(self.lines) + "\n"

def vr(b, n):
    return f"v[{b}:{b+n-1}]" if n > 1 else f"v{b}"
def sr(b, n):
    return f"s[{b}:{b+n-1}]" if n > 1 else f"s{b}"
def ar(b, n):
    return f"a[{b}:{b+n-1}]" if n > 1 else f"a{b}"

def kernel_header(name):
    return f""".globl {name}
.p2align 8
.type {name},@function
{name}:
"""
def kernel_desc(name, nvgpr, nsgpr=96, accum=None, total=None):
    acc = accum if accum is not None else (nvgpr + 3) // 4 * 4
    tot = total if total is not None else nvgpr
    return f""".p2align 6
.amdhsa_kernel {name}
  .amdhsa_next_free_vgpr {tot}
  .amdhsa_next_free_sgpr {nsgpr}
  .amdhsa_accum_offset {acc}
  .amdhsa_group_segment_fixed_size 0
  .amdhsa_kernarg_size 80
  .amdhsa_user_sgpr_count 2
  .amdhsa_user_sgpr_kernarg_segment_ptr 1
  .amdhsa_system_sgpr_workgroup_id_x 1
.end_amdhsa_kernel
"""

WS_Q  = 0x000000
WS_KV = 0x500000
WS_O  = 0xA00000
WS_H  = 0xE00000
CHUNK = 10240
WS_XN = 0x1500000
WS_END = 0x1800000
WS_STAMP = 0x1400000
import math
def f32bits(x):
    import struct
    return struct.unpack("<I", struct.pack("<f", x))[0]
QSCALE = math.log2(math.e) / math.sqrt(20.0)

class Stamps:
    def __init__(self, a, on, base=52, area=0):
        self.a = a; self.on = on; self.n = 0; self.base = base; self.area = area
    def __call__(self, wait=True):
        if not self.on: return
        if self.n == 0 and not wait: self.a("s_memrealtime s[98:99]")
        if self.on == "light" and self.n > 0:
            self.n += 1
            return
        b = self.base + 2 * self.n
        assert b + 1 < 98
        self.a(f"s_memtime s[{b}:{b+1}]")
        if wait: self.a("s_waitcnt lgkmcnt(0)")
        self.n += 1
    def reset(self, n): self.n = n
    def dump(self, srd, swave, stmp, n=None):
        if not self.on: return
        a = self.a
        n = n or self.n
        a("s_waitcnt vmcnt(0) lgkmcnt(0)")
        a(f"s_memtime s[{self.base+2*n}:{self.base+2*n+1}]")
        a(f"s_memrealtime s[100:101]")
        a("s_waitcnt lgkmcnt(0)")
        a("s_mov_b64 exec, 1")
        a(f"s_lshl_b32 s{stmp}, s2, 3")
        a(f"s_add_u32 s{stmp}, s{stmp}, s{swave}")
        a(f"s_lshl_b32 s{stmp}, s{stmp}, 7")
        a(f"s_add_u32 s{stmp}, s{stmp}, {WS_STAMP + self.area * 0x40000}")
        a("v_mov_b32 v1, 0")
        for i in range(n + 1):
            a(f"v_mov_b32 v2, s{self.base+2*i}")
            a(f"buffer_store_dword v2, v1, {srd}, s{stmp} offen offset:{4*i}")
        a(f"v_mov_b32 v2, s100")
        a(f"buffer_store_dword v2, v1, {srd}, s{stmp} offen offset:124")
        a(f"v_mov_b32 v2, s98")
        a(f"buffer_store_dword v2, v1, {srd}, s{stmp} offen offset:120")

WS_WP = 0x1800000
WS_END = 0x1B00000
WS_FL2 = 0x1B00000
WS_FL3 = 0x1B04000
WS_END = 0x1C00000

class Cnt:
    def __init__(self, a, name, maxv):
        self.a = a; self.name = name; self.maxv = maxv
        self.issued = 0; self.done = 0
    def op(self, n=1):
        self.issued += n
        return self.issued - 1
    def need_n(self, tag):
        if tag < self.done: return None
        n = self.issued - 1 - tag
        n = min(n, self.maxv)
        self.done = self.issued - n
        return n
    def need(self, tag):
        n = self.need_n(tag)
        if n is not None: self.a(f"s_waitcnt {self.name}({n})")
    def drain(self):
        self.done = self.issued

class Stamps2:
    def __init__(self, a, active, base=72):
        self.rt = bool(active) and active.endswith("r")
        if self.rt: active = active[:-1]
        self.ins = "s_memrealtime" if self.rt else "s_memtime"
        self.a = a; self.active = active; self.base = base
    def start(self):
        if not self.active: return
        for i in range(1, 13): self.a(f"s_mov_b32 s{self.base+2*i}, 0")
        self.a("s_memrealtime s[98:99]")
        self.a(f"{self.ins} s[{self.base}:{self.base+1}]")
    def __call__(self, st, i):
        if not self.active or st != self.active: return
        assert 1 <= i <= 11
        b = self.base + 2 * i
        self.a(f"{self.ins} s[{b}:{b+1}]")
        self.a("s_waitcnt lgkmcnt(0)")
    def dump(self, srd, swave, stmp):
        if not self.active: return
        a = self.a; n = 12
        a("s_waitcnt vmcnt(0) lgkmcnt(0)")
        a(f"{self.ins} s[{self.base+2*n}:{self.base+2*n+1}]")
        a(f"s_memrealtime s[100:101]")
        a("s_waitcnt lgkmcnt(0)")
        a("s_mov_b64 exec, 1")
        a(f"s_lshl_b32 s{stmp}, s2, 3")
        a(f"s_add_u32 s{stmp}, s{stmp}, s{swave}")
        a(f"s_lshl_b32 s{stmp}, s{stmp}, 7")
        a(f"s_add_u32 s{stmp}, s{stmp}, {WS_STAMP}")
        a("v_mov_b32 v1, 0")
        for i in range(n + 1):
            a(f"v_mov_b32 v2, s{self.base+2*i}")
            a(f"buffer_store_dword v2, v1, {srd}, s{stmp} offen offset:{4*i}")
        a(f"v_mov_b32 v2, s100")
        a(f"buffer_store_dword v2, v1, {srd}, s{stmp} offen offset:124")
        a(f"v_mov_b32 v2, s98")
        a(f"buffer_store_dword v2, v1, {srd}, s{stmp} offen offset:120")

WS_FL1 = 0x1B10000
WS_FL2 = 0x1B20000
WS_FLP = 0x1B60000
```

```python
from asmlib import *
from k_qkv import ln_rowmath
NAME = "parallel_sum__softmax_full_mha__glu_gated_reglu__prompt_kernel"
LDS_M1 = 163840
M32 = "v_mfma_f32_32x32x16_bf16"; M16 = "v_mfma_f32_16x16x32_bf16"

def gen(stamp=False, exp=""):
    a = Asm()
    ST = Stamps2(a, stamp)
    sX, sWq, sWS, sWg, sWu, sOut, sPk = 8, 12, 16, 20, 24, 28, 32
    sDbg = 36
    sW, sMT, sNT, sIDX, sXCD, sNG = 38, 39, 40, 41, 42, 43
    sLO, sVM, sM = 44, 46, 48
    sT = 50
    sA, sB, sC = 60, 61, 62
    sR = 64
    R_ = lambda b: f"s[{b}:{b+3}]"
    X_, WQ_, WS_, WG_, WU_, OUT_, PK_ = map(R_, (sX, sWq, sWS, sWg, sWu, sOut, sPk))
    SC = " sc1"
    SL = " sc1" if "sc1ld" in exp else ""
    a("s_cmp_ge_u32 s2, 256")
    a("s_cbranch_scc1 L_end")
    ST.start()
    a(f"s_load_dwordx4 s[4:7], s[0:1], 0")
    a(f"s_load_dwordx2 s[{sT}:{sT+1}], s[0:1], 16")
    a(f"s_load_dwordx4 s[{sT+2}:{sT+5}], s[0:1], 32")
    a(f"s_load_dwordx4 s[{sT+6}:{sT+9}], s[0:1], 48")
    a(f"s_load_dwordx4 s[{sA}:{sA+3}], s[0:1], 64")
    a("v_lshrrev_b32 v1, 6, v0")
    a("v_and_b32 v2, 63, v0")
    a(f"v_readfirstlane_b32 s{sW}, v1")
    a(f"s_and_b32 s{sXCD}, s2, 7")
    a(f"s_lshr_b32 s{sIDX}, s2, 3")
    a(f"s_lshr_b32 s{sMT}, s{sXCD}, 2")
    a(f"s_lshl_b32 s{sMT}, s{sMT}, 3")
    a(f"s_and_b32 s3, s{sIDX}, 7")
    a(f"s_add_u32 s{sMT}, s{sMT}, s3")
    a(f"s_and_b32 s{sNG}, s{sXCD}, 3")
    a(f"s_lshl_b32 s{sNG}, s{sNG}, 2")
    a(f"s_lshr_b32 s3, s{sIDX}, 3")
    a(f"s_add_u32 s{sNG}, s{sNG}, s3")
    a(f"s_min_u32 s{sNT}, s{sNG}, 14")
    a(f"s_mov_b32 s{sLO}, -1\ns_mov_b32 s{sLO+1}, 0\ns_mov_b32 s{sVM}, 0xfffff\ns_mov_b32 s{sVM+1}, 0xfffff")
    a("v_and_b32 v3, 31, v2")
    a("v_lshrrev_b32 v4, 5, v2")
    a(f"s_lshl_b32 s{sR}, s{sMT}, 4")
    a(f"s_add_u32 s{sR}, s{sR}, s{sNG}")
    a(f"s_mul_i32 s{sR}, s{sR}, 3")
    a(f"s_add_u32 s{sR}, s{sR}, s{sW}")
    a(f"s_mul_i32 s{sR+1}, s{sR}, 6554")
    a(f"s_lshr_b32 s{sR+1}, s{sR+1}, 16")
    a("s_waitcnt lgkmcnt(0)")
    def srd(b, lo, hi, n): a(f"s_mov_b32 s{b}, s{lo}\ns_and_b32 s{b+1}, s{hi}, 0xffff\ns_mov_b32 s{b+2}, {n}\ns_mov_b32 s{b+3}, 0x20000")
    srd(sX, 4, 5, 2048 * 1280); srd(sWq, 6, 7, 640 * 3840); srd(sWS, sA + 2, sA + 3, WS_END)
    srd(sWg, sT + 2, sT + 3, 640 * 3072); srd(sWu, sT + 4, sT + 5, 640 * 3072); srd(sOut, sT + 8, sT + 9, 2048 * 1280)
    a(f"s_mov_b64 s[{sDbg}:{sDbg+1}], s[{sA}:{sA+1}]")
    a(f"s_cmp_lt_u32 s{sR+1}, 20")
    a(f"s_cselect_b32 s{sPk}, s{sT}, s{sT+6}")
    a(f"s_cselect_b32 s{sPk+1}, s{sT+1}, s{sT+7}")
    a(f"s_mov_b32 s{sPk+2}, {1536*1280}")
    a(f"s_cselect_b32 s{sPk+2}, {640*1280}, s{sPk+2}")
    a(f"s_and_b32 s{sPk+1}, s{sPk+1}, 0xffff")
    a(f"s_mov_b32 s{sPk+3}, 0x20000")
    a(f"s_cmp_ge_u32 s{sW}, 4")
    a("s_cbranch_scc1 L_loader")

    NST, STG, STATS, PKS = 4, 32768, 0, 131072
    XF = [[8, 12], [16, 20]]; WF = [[24, 28], [32, 36]]
    vXA = [[[40 + (hi * 2 + mi) * 4 + ks for ks in range(4)] for mi in range(2)] for hi in range(2)]
    vWA = [[56 + hi * 2 + ni for ni in range(2)] for hi in range(2)]
    ACC = 64
    T = list(range(128, 168))
    SEL, CSD = 168, 172
    U = [176, 177, 178, 179]
    NM2, RS2 = 180, 182
    RSD = 60
    vPF = 184
    sWM, sWN = sR + 2, sR + 3
    a("s_branch L_early")
    a.label("L_early_done")
    a(f"s_and_b32 s{sWM}, s{sW}, 1")
    a(f"s_lshr_b32 s{sWN}, s{sW}, 1")
    a("v_lshrrev_b32 v5, 1, v3")
    a("v_and_b32 v5, 7, v5")
    for mi in range(2):
        a(f"s_xor_b32 s{sT}, s{sWN}, {mi}")
        a(f"s_lshl_b32 s{sT+1}, s{sWM}, 1")
        a(f"s_add_u32 s{sT}, s{sT}, s{sT+1}")
        a(f"s_lshl_b32 s{sT}, s{sT}, 12")
        a(f"v_lshl_add_u32 v6, v3, 7, s{sT}")
        for ks in range(4):
            a(f"v_or_b32 v7, {2*ks}, v4")
            a(f"v_xor_b32 v7, v7, v5")
            a(f"v_lshl_add_u32 v{vXA[0][mi][ks]}, v7, 4, v6")
            a(f"v_add_u32 v{vXA[1][mi][ks]}, 0x10000, v{vXA[0][mi][ks]}")
    a("v_lshrrev_b32 v5, 2, v2")
    a("v_and_b32 v5, 3, v5")
    a("v_lshl_add_u32 v6, v4, 3, v5")
    a("v_lshlrev_b32 v6, 8, v6")
    a("v_lshrrev_b32 v7, 4, v2")
    a("v_and_b32 v7, 1, v7")
    a("v_lshl_add_u32 v6, v7, 5, v6")
    a("v_and_b32 v5, 15, v2")
    a("v_cmp_eq_u32 vcc, v5, v7")
    a("v_mov_b32 v5, 0x3f803f80")
    a("v_and_b32 v7, 3, v2")
    for r in range(4): a(f"v_cndmask_b32 v{SEL+r}, 0, v5, vcc")
    a("v_lshl_add_u32 v6, v7, 3, v6")
    a("v_add_u32 v6, 16384, v6")
    a("v_lshrrev_b32 v5, 2, v2")
    a("v_and_b32 v5, 3, v5")
    for ni in range(2):
        a(f"s_xor_b32 s{sT}, s{sWM}, {ni}")
        a(f"s_lshl_b32 s{sT+1}, s{sWN}, 1")
        a(f"s_add_u32 s{sT}, s{sT}, s{sT+1}")
        a(f"v_xor_b32 v7, s{sT}, v5")
        a(f"v_lshl_add_u32 v{vWA[0][ni]}, v7, 6, v6")
        a(f"v_add_u32 v{vWA[1][ni]}, 0x10000, v{vWA[0][ni]}")
    for r in range(64): a(f"v_mov_b32 v{ACC+r}, 0")
    for r in range(4): a(f"v_mov_b32 v{CSD+r}, 0")
    for r in range(4): a(f"v_mov_b32 v{RSD+r}, 0")

    tags = {}
    CV = Cnt(a, "vmcnt", 63)
    sPB, sPS = sR + 6, 3
    sPBs = [sR + 6, sR + 7, sT + 9]
    def pf1_setup(swave, vreg, sp0):
        lab = a.newlabel("L_pf")
        a(f"s_mul_i32 s{sT}, s{sIDX}, 12")
        a(f"s_mul_i32 s{sT+1}, s{swave}, 3")
        a(f"s_add_u32 s{sT}, s{sT}, s{sT+1}")
        a(f"s_mov_b32 s7, 0x20000")
        a(f"s_cmp_ge_u32 s{sT}, 255")
        a(f"s_cbranch_scc1 {lab}_w")
        a(f"s_mov_b32 s4, s{sX}\ns_mov_b32 s5, s{sX+1}\ns_mov_b32 s6, s{sX+2}\ns_movk_i32 s3, 256")
        a(f"v_lshrrev_b32 v{vreg}, 3, v2")
        a(f"v_mul_u32_u24 v{vreg}, 1280, v{vreg}")
        a("v_and_b32 v1, 7, v2")
        a(f"v_lshl_add_u32 v{vreg}, v1, 4, v{vreg}")
        a(f"s_lshr_b32 s{sT+1}, s{sXCD}, 2")
        a(f"s_mul_i32 s{sT+1}, s{sT+1}, {1024*1280}")
        a(f"s_add_u32 s{sT+1}, s{sT+1}, {sp0*256}")
        for j in range(3):
            a(f"s_add_u32 s{sT+2}, s{sT}, {j}")
            a(f"s_lshr_b32 s{sT+3}, s{sT+2}, 1")
            a(f"s_mul_i32 s{sT+3}, s{sT+3}, {8*1280}")
            a(f"s_and_b32 s{sT+2}, s{sT+2}, 1")
            a(f"s_lshl_b32 s{sT+2}, s{sT+2}, 7")
            a(f"s_add_u32 s{sT+3}, s{sT+3}, s{sT+2}")
            a(f"s_add_u32 s{sPBs[j]}, s{sT+3}, s{sT+1}")
        a(f"s_branch {lab}")
        a.label(f"{lab}_w")
        a(f"s_mov_b32 s4, s{sWq}\ns_mov_b32 s5, s{sWq+1}\ns_mov_b32 s6, s{sWq+2}\ns_mov_b32 s3, {128*3840}")
        a(f"v_lshlrev_b32 v{vreg}, 4, v2")
        a(f"s_sub_u32 s{sT}, s{sT}, 255")
        a(f"s_mul_i32 s{sT}, s{sT}, 3840")
        a(f"s_and_b32 s{sT+1}, s{sXCD}, 3")
        a(f"s_lshl_b32 s{sT+1}, s{sT+1}, 10")
        a(f"s_add_u32 s{sT}, s{sT}, s{sT+1}")
        for j in range(3): a(f"s_add_u32 s{sPBs[j]}, s{sT}, {(sp0*128 + j)*3840}")
        a.label(lab)
    def pf1(j, vreg, dst, cnt=None, adv=1):
        if "nopf1" in exp: return
        a(f"buffer_load_dwordx4 {vr(dst,4)}, v{vreg}, s[4:7], s{sPBs[j]} offen")
        for _ in range(adv): a(f"s_add_u32 s{sPBs[j]}, s{sPBs[j]}, s3")
        if cnt: cnt.op()
    vPK = [185, 186, 187, 188]; vPKr = 189
    sPKc, sPKl = sR + 4, sR + 5
    def pack_setup():
        a(f"s_mul_i32 s{sT+2}, s{sR+1}, 10")
        a(f"s_sub_u32 s{sT+2}, s{sR}, s{sT+2}")
        a(f"s_cmp_lt_u32 s{sR+1}, 20")
        a(f"s_cselect_b32 s{sT+3}, 0, 20")
        a(f"s_cselect_b64 s[{sM}:{sM+1}], -1, 0")
        a(f"s_sub_u32 s{sT+3}, s{sR+1}, s{sT+3}")
        a(f"s_lshl_b32 s{sT+3}, s{sT+3}, 5")
        a(f"s_lshl_b32 s{sPKc}, s{sT+2}, 7")
        a(f"s_lshl_b32 s{sPKl}, s{sW}, 12")
        a(f"s_add_u32 s{sPKl}, s{sPKl}, {PKS}")
        a("v_lshrrev_b32 v5, 3, v2")
        a("v_and_b32 v6, 7, v2")
        for t in range(4):
            a(f"v_add_u32 v7, s{sT+3}, v5")
            if t: a(f"v_add_u32 v7, {8*t}, v7")
            a(f"v_mul_u32_u24 v{U[0]}, 1639, v7")
            a(f"v_lshrrev_b32 v{U[0]}, 16, v{U[0]}")
            a(f"v_mul_u32_u24 v{U[0]}, 40, v{U[0]}")
            a(f"v_sub_u32 v{U[0]}, v7, v{U[0]}")
            a(f"v_cmp_le_u32 vcc, 24, v{U[0]}")
            a(f"v_cmp_le_u32 s[{sT+6}:{sT+7}], 20, v{U[0]}")
            a(f"v_mov_b32 v{U[1]}, 16")
            a(f"v_cndmask_b32 v{U[1]}, 0, v{U[1]}, s[{sT+6}:{sT+7}]")
            a(f"v_cndmask_b32 v{U[1]}, v{U[1]}, -4, vcc")
            a(f"v_cndmask_b32 v{U[1]}, 0, v{U[1]}, s[{sM}:{sM+1}]")
            a(f"v_add_u32 v7, v7, v{U[1]}")
            a("v_mul_u32_u24 v7, 1280, v7")
            a(f"v_lshl_add_u32 v{vPK[t]}, v6, 4, v7")
        a("v_lshrrev_b32 v5, 4, v2")
        a("v_lshrrev_b32 v6, 2, v2")
        a("v_and_b32 v6, 3, v6")
        a("v_lshl_add_u32 v5, v5, 3, v6")
        a("v_lshlrev_b32 v5, 7, v5")
        a("v_and_b32 v6, 3, v2")
        a("v_lshl_add_u32 v5, v6, 3, v5")
        a(f"v_add_u32 v{vPKr}, s{sPKl}, v5")
    def pack_issue(t):
        if 'nopack' in exp: return
        a(f"s_add_u32 m0, s{sPKl}, {t*1024}")
        a.nop(1)
        a(f"buffer_load_dwordx4 v{vPK[t]}, {PK_}, s{sPKc} offen lds")
        tags["pack"] = CV.op()
    def pack_finish():
        if 'nopack' in exp: return
        lab = a.newlabel("L_pk")
        a(f"s_cmp_eq_u32 s{sW}, 3")
        a(f"s_cbranch_scc1 {lab}")
        a(f"s_cmp_ge_u32 s{sR}, 680")
        a(f"s_cbranch_scc1 {lab}")
        a(f"s_lshl_b32 s{sT+1}, s{sR}, 12")
        a(f"s_add_u32 s{sT+1}, s{sT+1}, {WS_WP}")
        a("v_lshlrev_b32 v6, 4, v2")
        a(f"s_waitcnt vmcnt({CV.issued - 1 - tags['pack']})")
        for n in range(4):
            for h in range(2):
                a(f"ds_read_b64_tr_b16 {vr(T[4*n]+2*h,2)}, v{vPKr} offset:{h*512 + n*32}")
        a("s_waitcnt lgkmcnt(0)")
        for n in range(4):
            a(f"buffer_store_dwordx4 {vr(T[4*n],4)}, v6, {WS_}, s{sT+1} offen offset:{n*1024}{SC}")
        a.label(lab)

    def gprefetch_setup(sW, vPF):
        a(f"s_and_b32 s{sT}, s{sW}, 1")
        a(f"s_cmp_eq_u32 s{sT}, 0")
        a(f"s_cselect_b32 s4, s{sWg}, s{sWu}")
        a(f"s_cselect_b32 s5, s{sWg+1}, s{sWu+1}")
        a(f"s_mov_b32 s6, {640*3072}")
        a(f"s_mov_b32 s7, 0x20000")
        a(f"s_lshl_b32 s{sT}, s{sIDX}, 1")
        a(f"s_lshr_b32 s{sT+1}, s{sW}, 1")
        a(f"s_add_u32 s{sT}, s{sT}, s{sT+1}")
        a(f"s_mul_i32 s3, s{sT}, {4*3072}")
        a(f"s_and_b32 s{sT}, s{sXCD}, 3")
        a(f"s_mul_i32 s{sT}, s{sT}, 768")
        a(f"s_add_u32 s3, s3, s{sT}")
        a(f"v_lshrrev_b32 v{vPF}, 4, v2")
        a(f"v_mul_u32_u24 v{vPF}, 3072, v{vPF}")
        a("v_and_b32 v1, 15, v2")
        a(f"v_lshl_add_u32 v{vPF}, v1, 4, v{vPF}")
    def gprefetch(n, vPF, dst, cnt):
        if "nopf2" in exp: return
        a(f"s_add_u32 s{sT}, s3, {(n // 3)*256*3072}")
        a(f"buffer_load_dwordx4 {vr(dst,4)}, v{vPF}, s[4:7], s{sT} offen offset:{(n % 3)*256}")
        cnt.op()

    def rd1(st, ks, buf):
        base = (st % NST) * STG
        hi = base // 65536; b = base % 65536
        X = lambda mi: (("X", mi), f"ds_read_b128 {vr(XF[buf][mi],4)}, v{vXA[hi][mi][ks]} offset:{b}")
        W = lambda ni, h: (("W", ni), f"ds_read_b64_tr_b16 {vr(WF[buf][ni]+2*h,2)}, v{vWA[hi][ni]} offset:{b + ks*4096 + h*1024}")
        return [X(0), W(0, 0), W(0, 1), W(1, 0), W(1, 1), X(1)]
    PKI, GP0 = (2, 2) if 'gp' not in exp else (int(exp.split('gp')[1][0]), int(exp.split('gp')[1][1]))
    def p1_loop(vtype):
        CV.issued = CV.done = 0
        L1 = Cnt(a, "lgkmcnt", 15)
        tg = [{}, {}]
        def emit(lst, buf):
            for key, l in lst:
                a(l); tg[buf][key] = L1.op()
        a("s_barrier")
        ST("A", 1); ST("B", 1)
        emit(rd1(0, 0, 0), 0)
        for st in range(10):
            for ks in range(4):
                buf = (st * 4 + ks) & 1
                if ks < 3: nxt = rd1(st, ks + 1, buf ^ 1)
                elif st < 9: nxt = rd1(st + 1, 0, buf ^ 1)
                else: nxt = []
                if ks == 3 and st < 9:
                    L1.need(L1.issued - 1)
                    a("s_barrier")
                    ST("B", st + 2)
                n = 0
                for mi in range(2):
                    for ni in range(2):
                        d = ACC + (mi * 2 + ni) * 16
                        A, B = (XF[buf][mi], WF[buf][ni]) if vtype else (WF[buf][ni], XF[buf][mi])
                        L1.need(max(tg[buf][("X", mi)], tg[buf][("W", ni)]))
                        a(f"{M32} {vr(d,16)}, {vr(A,4)}, {vr(B,4)}, {vr(d,16)}")
                        emit(nxt[n * 2: n * 2 + 2], buf ^ 1)
                        if n == 3:
                            if 0 <= st - PKI < 4 and ks == 0: pack_issue(st - PKI)
                            if st == 7 and ks == 1: pack_finish()
                        if n == 2: a(f"{M16} {vr(CSD,4)}, {vr(SEL,4)}, {vr(WF[buf][0],4)}, {vr(CSD,4)}")
                        n += 1
                a(f"{M16} {vr(RSD,4)}, {vr(SEL,4)}, {vr(XF[buf][0],4)}, {vr(RSD,4)}")
        ST("A", 2); ST("B", 11)
        a(f"s_lshl_b32 s{sT}, s{sWN}, 1\ns_add_u32 s{sT}, s{sT}, s{sWM}\ns_lshl_b32 s{sT}, s{sT}, 7\ns_add_u32 s{sT}, s{sT}, {STATS+1024}")
        a(f"v_lshl_add_u32 v{U[0]}, v3, 2, s{sT}")
        a(f"s_lshl_b32 s{sT}, s{sWM}, 1\ns_add_u32 s{sT}, s{sT}, s{sWN}\ns_lshl_b32 s{sT}, s{sT}, 7")
        a(f"v_lshl_add_u32 v{U[1]}, v3, 2, s{sT}")
        a.nop(4)
        a("s_mov_b64 exec, 0xffff")
        a(f"ds_write_b32 v{U[0]}, v{CSD}")
        a(f"ds_write_b32 v{U[0]}, v{CSD+1} offset:64")
        a(f"ds_write_b32 v{U[1]}, v{RSD} offset:1536")
        a(f"ds_write_b32 v{U[1]}, v{RSD+1} offset:{1536+64}")
        a("s_mov_b64 exec, -1")
        a("s_waitcnt lgkmcnt(0)")
        a("s_barrier")
        a(f"s_lshl_b32 s{sT}, s{sW}, 7")
        a(f"v_lshl_add_u32 v{U[0]}, v3, 2, s{sT}")
        a("s_waitcnt vmcnt(0)")
        a("s_barrier")
        a(f"ds_read_b32 v{NM2}, v{U[0]} offset:{STATS}")
        a(f"ds_read_b32 v{RS2}, v{U[0]} offset:{STATS+512}")
        a(f"s_cmp_eq_u32 s{sNG}, 15")
        a("s_cbranch_scc1 L_p2")
    def blk(dst, x, y, xo):
        a(f"s_xor_b32 s{dst}, s{y}, {xo}")
        a(f"s_lshl_b32 s{sT+7}, s{x}, 1")
        a(f"s_add_u32 s{dst}, s{dst}, s{sT+7}")

    pack_setup()
    a(f"s_cmp_ge_u32 s{sNT}, 10")
    a("s_cbranch_scc1 L_p1_vtype")
    p1_loop(False)
    NM = [T[0], T[2]]; RS = [T[4], T[6]]
    CSV = [[T[8] + (ni * 4 + g) * 4 for g in range(4)] for ni in range(2)]
    K16 = [8, 9]; K8 = [20, 21]
    for mi in range(2):
        blk(sA, sWM, sWN, mi)
        a(f"s_lshl_b32 s{sA}, s{sA}, 5")
        a(f"v_add_u32 v11, s{sA}, v3")
        a(f"v_lshlrev_b32 v10, 2, v11")
        a(f"ds_read_b32 v{NM[mi]}, v10 offset:{STATS}")
        a(f"ds_read_b32 v{RS[mi]}, v10 offset:{STATS+512}")
        a(f"v_lshlrev_b32 v{K16[mi]}, 4, v11")
        a(f"v_lshlrev_b32 v{K8[mi]}, 3, v11")
    FL = [12, 13]
    a(f"s_cmp_lt_u32 s{sNT}, 5")
    a(f"s_cselect_b32 s{sB}, {f32bits(QSCALE):#x}, 1.0")
    a(f"s_cselect_b32 s{sC}, 0, 5")
    a(f"s_mov_b32 s{sT+6}, {WS_KV}")
    a(f"s_cselect_b32 s{sT+6}, {WS_Q}, s{sT+6}")
    a(f"s_sub_u32 s{sC}, s{sNT}, s{sC}")
    a(f"s_lshl_b32 s{sC}, s{sC}, 7")
    for ni in range(2):
        blk(sA, sWN, sWM, ni)
        a(f"s_lshl_b32 s{sA}, s{sA}, 5")
        a(f"v_lshl_add_u32 v10, v4, 2, s{sA}")
        a(f"v_lshlrev_b32 v10, 2, v10")
        for g in range(4):
            a(f"ds_read_b128 {vr(CSV[ni][g],4)}, v10 offset:{STATS+1024+g*32}")
        a(f"s_add_u32 s{sA}, s{sA}, s{sC}")
        a(f"v_lshl_add_u32 v{FL[ni]}, v4, 3, s{sA}")
    a(f"s_mul_i32 s{sA}, s{sMT}, {CHUNK}")
    a(f"s_add_u32 s{sA}, s{sA}, s{sT+6}")
    a(f"s_add_u32 s{sC}, s{sA}, {16*CHUNK}")
    a(f"s_mov_b32 s{sT+6}, {16*CHUNK}")
    a("s_waitcnt lgkmcnt(0)")
    for mi in range(2): a(f"v_mul_f32 v{RS[mi]}, s{sB}, v{RS[mi]}")
    for ni in range(2):
        for gp in range(2):
            a(f"v_add_u32 v14, {16*gp}, v{FL[ni]}")
            a(f"v_mul_u32_u24 v15, 1639, v14")
            a(f"v_lshrrev_b32 v15, 16, v15")
            a(f"v_mul_u32_u24 v16, 40, v15")
            a(f"v_sub_u32 v16, v14, v16")
            a(f"v_lshrrev_b32 v16, 3, v16")
            a(f"v_cmp_lt_u32 vcc, 2, v16")
            a(f"v_cmp_eq_u32 s[{sM}:{sM+1}], 2, v16")
            a(f"v_lshlrev_b32 v15, 1, v15")
            a(f"v_cndmask_b32 v14, 0, 1, vcc")
            a(f"v_add_u32 v15, v15, v14")
            a(f"v_mul_u32_u24 v14, 3, v14")
            a(f"v_sub_u32 v16, v16, v14")
            a(f"v_mul_lo_u32 v15, v15, s{sT+6}")
            a(f"v_lshl_add_u32 v15, v16, 11, v15")
            for mi in range(2):
                d = ACC + (mi * 2 + ni) * 16
                for g in (2 * gp, 2 * gp + 1):
                    for p in range(2):
                        r = d + 4 * g + 2 * p
                        a(f"v_pk_fma_f32 {vr(r,2)}, {vr(CSV[ni][g]+2*p,2)}, {vr(NM[mi],2)}, {vr(r,2)} op_sel_hi:[1,0,1]")
                        a(f"v_pk_mul_f32 {vr(r,2)}, {vr(r,2)}, {vr(RS[mi],2)} op_sel_hi:[1,0]")
                q = d + 8 * gp
                a(f"v_cvt_pk_bf16_f32 v{q}, v{q}, v{q+1}")
                a(f"v_cvt_pk_bf16_f32 v{q+1}, v{q+2}, v{q+3}")
                a(f"v_cvt_pk_bf16_f32 v{q+2}, v{q+4}, v{q+5}")
                a(f"v_cvt_pk_bf16_f32 v{q+3}, v{q+6}, v{q+7}")
                a(f"v_add_u32 v17, v15, v{K16[mi]}")
                a(f"v_add_u32 v18, v15, v{K8[mi]}")
                a(f"v_permlane32_swap_b32 v{q}, v{q+2}")
                a(f"v_permlane32_swap_b32 v{q+1}, v{q+3}")
                a(f"s_andn2_b64 exec, exec, s[{sM}:{sM+1}]")
                a(f"buffer_store_dwordx4 {vr(q,4)}, v17, {WS_}, s{sA} offen{SC}")
                a(f"s_mov_b64 exec, s[{sM}:{sM+1}]")
                lab = a.newlabel("L_qk_ns")
                a(f"s_cbranch_execz {lab}")
                a(f"buffer_store_dwordx2 {vr(q,2)}, v18, {WS_}, s{sA} offen{SC}")
                a(f"buffer_store_dwordx2 {vr(q+2,2)}, v18, {WS_}, s{sC} offen{SC}")
                a.label(lab)
                a("s_mov_b64 exec, -1")
    a("s_branch L_p2")
    a.label("L_p1_vtype")
    p1_loop(True)
    CSL = [T[0], T[2]]; VB = [8, 9]
    a(f"s_sub_u32 s{sC}, s{sNT}, 10")
    a(f"s_lshl_b32 s{sC}, s{sC}, 7")
    a(f"s_mov_b32 s{sB}, {16*CHUNK}")
    for ni in range(2):
        blk(sA, sWN, sWM, ni)
        a(f"s_lshl_b32 s{sA}, s{sA}, 5")
        a(f"v_add_u32 v14, s{sA}, v3")
        a(f"v_lshlrev_b32 v10, 2, v14")
        a(f"ds_read_b32 v{CSL[ni]}, v10 offset:{STATS+1024}")
        a(f"v_add_u32 v14, s{sC}, v14")
        a(f"v_mul_u32_u24 v15, 3277, v14")
        a(f"v_lshrrev_b32 v15, 16, v15")
        a(f"v_mul_u32_u24 v16, 20, v15")
        a(f"v_sub_u32 v16, v14, v16")
        a(f"v_mul_lo_u32 v15, v15, s{sB}")
        a(f"v_lshl_add_u32 v15, v16, 4, v15")
        a(f"v_mul_u32_u24 v16, 320, v4")
        a(f"v_add_u32 v{VB[ni]}, v15, v16")
    for mi in range(2):
        NMV = [T[8] + g * 4 for g in range(4)]; RSV = [T[24] + g * 4 for g in range(4)]
        blk(sA, sWM, sWN, mi)
        a(f"s_lshl_b32 s{sT}, s{sA}, 7")
        a(f"v_lshl_add_u32 v10, v4, 4, s{sT}")
        for g in range(4):
            a(f"ds_read_b128 {vr(NMV[g],4)}, v10 offset:{STATS+g*32}")
            a(f"ds_read_b128 {vr(RSV[g],4)}, v10 offset:{STATS+512+g*32}")
        a(f"s_mul_i32 s{sA}, s{sA}, {4*320}")
        a(f"s_mul_i32 s{sT}, s{sMT}, {CHUNK}")
        a(f"s_add_u32 s{sA}, s{sA}, s{sT}")
        a(f"s_add_u32 s{sA}, s{sA}, {WS_KV+5120}")
        a("s_waitcnt lgkmcnt(0)")
        for ni in range(2):
            d = ACC + (mi * 2 + ni) * 16
            for gp in range(2):
                for g in (2 * gp, 2 * gp + 1):
                    for p in range(2):
                        r = d + 4 * g + 2 * p
                        a(f"v_pk_fma_f32 {vr(r,2)}, {vr(NMV[g]+2*p,2)}, {vr(CSL[ni],2)}, {vr(r,2)} op_sel_hi:[1,0,1]")
                        a(f"v_pk_mul_f32 {vr(r,2)}, {vr(r,2)}, {vr(RSV[g]+2*p,2)}")
                q = d + 8 * gp
                a(f"v_cvt_pk_bf16_f32 v{q}, v{q}, v{q+1}")
                a(f"v_cvt_pk_bf16_f32 v{q+1}, v{q+2}, v{q+3}")
                a(f"v_cvt_pk_bf16_f32 v{q+2}, v{q+4}, v{q+5}")
                a(f"v_cvt_pk_bf16_f32 v{q+3}, v{q+6}, v{q+7}")
                a.nop(2)
                a(f"v_permlane32_swap_b32 v{q}, v{q+2}")
                a(f"v_permlane32_swap_b32 v{q+1}, v{q+3}")
                a(f"buffer_store_dwordx4 {vr(q,4)}, v{VB[ni]}, {WS_}, s{sA} offen offset:{gp*640}{SC}")

    a.label("L_p2")
    ST("A", 3)
    GSLOT = [122880, 81920, 40960, 0]
    CSA = 122880
    GX = [8, 12]
    GW = [[16 + (b * 6 + n) * 4 for n in range(6)] for b in range(2)]
    GACC = 64
    gXA = [[184 + sl * 4 + ks for ks in range(4)] for sl in range(4)]
    gWA = [[200 + sl * 3 + p for p in range(3)] for sl in range(4)]
    GCS = [160, 164]
    POLL = 212
    sCT = [sR + 4, sR + 5, sR + 6]
    a("v_lshrrev_b32 v5, 1, v3")
    a("v_and_b32 v5, 7, v5")
    a(f"s_lshl_b32 s{sT}, s{sW}, 12")
    a(f"v_lshl_add_u32 v6, v3, 7, s{sT}")
    for ks in range(4):
        a(f"v_or_b32 v7, {2*ks}, v4")
        a(f"v_xor_b32 v7, v7, v5")
        a(f"v_lshl_add_u32 v{gXA[3][ks]}, v7, 4, v6")
        for sl in range(3): a(f"v_add_u32 v{gXA[sl][ks]}, {GSLOT[sl]}, v{gXA[3][ks]}")
    a("v_lshrrev_b32 v5, 2, v2")
    a("v_and_b32 v5, 3, v5")
    a("v_lshl_add_u32 v5, v4, 3, v5")
    a("v_mul_u32_u24 v5, 192, v5")
    a("v_lshrrev_b32 v6, 4, v2")
    a("v_and_b32 v6, 1, v6")
    a("v_lshl_add_u32 v5, v6, 5, v5")
    a("v_and_b32 v6, 3, v2")
    a("v_lshl_add_u32 v5, v6, 3, v5")
    for p in range(3):
        a(f"s_add_u32 s{sCT[p]}, s{sW}, {p}")
        a(f"s_cmp_ge_u32 s{sCT[p]}, 3")
        a(f"s_cselect_b32 s{sT}, 3, 0")
        a(f"s_sub_u32 s{sCT[p]}, s{sCT[p]}, s{sT}")
        a(f"s_cmp_ge_u32 s{sCT[p]}, 3")
        a(f"s_cselect_b32 s{sT}, 3, 0")
        a(f"s_sub_u32 s{sCT[p]}, s{sCT[p]}, s{sT}")
        a(f"s_lshl_b32 s{sT}, s{sCT[p]}, 6")
        a(f"s_add_u32 s{sT}, s{sT}, 16384")
        a(f"v_add_u32 v{gWA[3][p]}, s{sT}, v5")
        for sl in range(3): a(f"v_add_u32 v{gWA[sl][p]}, {GSLOT[sl]}, v{gWA[3][p]}")
    a("s_waitcnt lgkmcnt(0)")
    a(f"v_mul_f32 v{RS2}, v{RS2}, v{RS2}")
    a("s_barrier")
    ST("A", 4); ST("C", 1)
    L2 = Cnt(a, "lgkmcnt", 15)
    tg2 = [{}, {}]
    def emit2(lst, buf):
        for key, l in lst:
            a(l); tg2[buf][key] = L2.op()
    def rd2(st, ks, buf):
        sl = st % 4
        L = [("X", f"ds_read_b128 {vr(GX[buf],4)}, v{gXA[sl][ks]}")]
        for n in range(6):
            mat, p = n & 1, n >> 1
            for h in range(2):
                L.append((n, f"ds_read_b64_tr_b16 {vr(GW[buf][n]+2*h,2)}, v{gWA[sl][p]} offset:{mat*12288 + (16*ks+4*h)*192}"))
        return L
    emit2(rd2(0, 0, 0), 0)
    for r in range(96): a(f"v_mov_b32 v{GACC+r}, 0")
    for r in range(8): a(f"v_mov_b32 v{GCS[0]+r}, 0")
    a(f"v_mov_b32 v{POLL+1}, 0")
    for st in range(10):
        for ks in range(4):
            buf = (st * 4 + ks) & 1
            if ks < 3: nxt = rd2(st, ks + 1, buf ^ 1)
            elif st < 9: nxt = rd2(st + 1, 0, buf ^ 1)
            else: nxt = []
            if ks == 3 and st == 0:
                a("s_waitcnt vmcnt(0)")
            if ks == 3 and st < 9:
                L2.need(L2.issued - 1)
                a("s_barrier")
                ST("C", st + 2)
            if st == 5 and ks == 2:
                lab = a.newlabel("L_f1p")
                a(f"s_cmp_lg_u32 s{sW}, 0")
                a(f"s_cbranch_scc1 {lab}")
                a(f"global_load_dword v{POLL}, v{POLL+1}, s[{sDbg}:{sDbg+1}] sc1")
                a.label(lab)
            if st == 6 and ks == 2:
                lab = a.newlabel("L_f1")
                a(f"s_cmp_lg_u32 s{sW}, 0")
                a(f"s_cbranch_scc1 {lab}_skip")
                a(f"s_mov_b32 s{sT+1}, 0")
                a.label(lab)
                a("s_waitcnt vmcnt(0)")
                a(f"v_readfirstlane_b32 s{sT}, v{POLL}")
                a(f"s_add_u32 s{sT+1}, s{sT+1}, 1")
                a(f"s_cmp_ge_u32 s{sT}, 256")
                a(f"s_cbranch_scc1 {lab}_ok")
                a(f"s_cmp_ge_u32 s{sT+1}, 0x20000")
                a(f"s_cbranch_scc1 {lab}_ok")
                a("s_sleep 4")
                a(f"global_load_dword v{POLL}, v{POLL+1}, s[{sDbg}:{sDbg+1}] sc1")
                a(f"s_branch {lab}")
                a.label(f"{lab}_ok")
                if "inv" in exp: a("buffer_inv sc1")
                a.label(f"{lab}_skip")
            for n in range(6):
                d = GACC + n * 16
                L2.need(tg2[buf][n])
                a(f"{M32} {vr(d,16)}, {vr(GW[buf][n],4)}, {vr(GX[buf],4)}, {vr(d,16)}")
                emit2(nxt[0:3] if n == 0 else nxt[1 + n * 2: 3 + n * 2], buf ^ 1)
                if n >= 4: a(f"{M16} {vr(GCS[n-4],4)}, {vr(SEL,4)}, {vr(GW[buf][n-4],4)}, {vr(GCS[n-4],4)}")
    ST("A", 5); ST("C", 11)
    a(f"s_lshl_b32 s{sT}, s{sCT[0]}, 7")
    a(f"s_add_u32 s{sT}, s{sT}, {CSA}")
    a(f"v_lshl_add_u32 v5, v3, 2, s{sT}")
    a.nop(4)
    a("s_mov_b64 exec, 0xffff")
    for mat in range(2):
        a(f"ds_write_b32 v5, v{GCS[mat]} offset:{mat*384}")
        a(f"ds_write_b32 v5, v{GCS[mat]+1} offset:{mat*384+64}")
    a("s_mov_b64 exec, -1")
    a("s_waitcnt lgkmcnt(0)")
    a("s_barrier")
    a(f"s_lshl_b32 s{sA}, s{sMT}, 2")
    a(f"s_add_u32 s{sA}, s{sA}, s{sW}")
    a(f"s_mul_i32 s{sA}, s{sA}, {2*49152}")
    a(f"s_mul_i32 s{sT}, s{sNG}, {12*256}")
    a(f"s_add_u32 s{sA}, s{sA}, s{sT}")
    a(f"s_add_u32 s{sA}, s{sA}, {WS_H}")
    a("v_lshrrev_b32 v6, 4, v3")
    a("v_mul_u32_u24 v6, 49152, v6")
    a("v_lshl_add_u32 v6, v4, 8, v6")
    a("v_and_b32 v7, 15, v3")
    a("v_lshl_add_u32 v6, v7, 4, v6")
    CB = [16, 184]
    for p in range(3):
        a(f"s_lshl_b32 s{sT}, s{sCT[p]}, 7")
        a(f"s_add_u32 s{sT}, s{sT}, {CSA}")
        a(f"v_lshl_add_u32 v5, v4, 4, s{sT}")
        for mat in range(2):
            for g in range(4):
                a(f"ds_read_b128 {vr(CB[p&1]+(mat*4+g)*4,4)}, v5 offset:{mat*384+g*32}") if p < 2 else None
    for p in range(3):
        cb = CB[p & 1]
        if p == 2:
            pass
        a(f"s_waitcnt lgkmcnt({8 if p == 0 else 8 if p == 1 else 0})")
        g = GACC + (2 * p) * 16; u = GACC + (2 * p + 1) * 16
        for q in range(8):
            a(f"v_pk_fma_f32 {vr(g+2*q,2)}, {vr(cb+2*q,2)}, {vr(NM2,2)}, {vr(g+2*q,2)} op_sel_hi:[1,0,1]")
            a(f"v_pk_fma_f32 {vr(u+2*q,2)}, {vr(cb+16+2*q,2)}, {vr(NM2,2)}, {vr(u+2*q,2)} op_sel_hi:[1,0,1]")
        if p == 0:
            a(f"s_lshl_b32 s{sT}, s{sCT[2]}, 7")
            a(f"s_add_u32 s{sT}, s{sT}, {CSA}")
            a(f"v_lshl_add_u32 v5, v4, 4, s{sT}")
            for mat in range(2):
                for gg in range(4):
                    a(f"ds_read_b128 {vr(16+(mat*4+gg)*4,4)}, v5 offset:{mat*384+gg*32}")
        a(f"s_lshl_b32 s{sT}, s{sCT[p]}, 10")
        a(f"s_add_u32 s{sT}, s{sT}, s{sA}")
        for gp in range(2):
            for q in range(4 * gp, 4 * gp + 4):
                a(f"v_max_f32 v{g+2*q}, 0, v{g+2*q}")
                a(f"v_max_f32 v{g+2*q+1}, 0, v{g+2*q+1}")
                a(f"v_pk_mul_f32 {vr(u+2*q,2)}, {vr(u+2*q,2)}, {vr(RS2,2)} op_sel_hi:[1,0]")
                a(f"v_pk_mul_f32 {vr(g+2*q,2)}, {vr(g+2*q,2)}, {vr(u+2*q,2)}")
                a(f"v_cvt_pk_bf16_f32 v{u+8*gp+(q&3)}, v{g+2*q}, v{g+2*q+1}")
            o = u + 8 * gp
            a.nop(2)
            a(f"v_permlane32_swap_b32 v{o}, v{o+2}")
            a(f"v_permlane32_swap_b32 v{o+1}, v{o+3}")
            a(f"buffer_store_dwordx4 {vr(o,4)}, v6, {WS_}, s{sT} offen offset:{gp*512}{SC}")
    a("s_branch L_p3")

    a.label("L_loader")
    sLW, sXo, sWo, sLd, sGo, sLdW = sR + 2, sR + 3, sR + 4, sR + 5, sR + 6, sR + 7
    vXE, vXO, vWv = 5, 6, 7
    vGd = [44, 45, 46]
    a(f"s_sub_u32 s{sLW}, s{sW}, 4")
    a("v_lshrrev_b32 v9, 4, v2")
    a("v_lshrrev_b32 v10, 3, v2")
    a("v_mul_u32_u24 v10, 1280, v10")
    a("v_and_b32 v11, 7, v2")
    a(f"v_xor_b32 v{vXE}, v11, v9")
    a(f"v_xor_b32 v{vXO}, 4, v{vXE}")
    a(f"v_lshl_add_u32 v{vXE}, v{vXE}, 4, v10")
    a(f"v_lshl_add_u32 v{vXO}, v{vXO}, 4, v10")
    a(f"v_mul_u32_u24 v{vWv}, 3840, v9")
    a("v_lshrrev_b32 v10, 2, v2")
    a("v_and_b32 v10, 3, v10")
    a("v_xor_b32 v10, v10, v9")
    a(f"v_lshl_add_u32 v{vWv}, v10, 6, v{vWv}")
    a("v_and_b32 v10, 3, v2")
    a(f"v_lshl_add_u32 v{vWv}, v10, 4, v{vWv}")
    a(f"s_lshl_b32 s{sXo}, s{sMT}, 7")
    a(f"s_lshl_b32 s{sT}, s{sLW}, 5")
    a(f"s_add_u32 s{sXo}, s{sXo}, s{sT}")
    a(f"s_mul_i32 s{sXo}, s{sXo}, 1280")
    a(f"s_mul_i32 s{sWo}, s{sLW}, {16*3840}")
    a(f"s_lshl_b32 s{sT}, s{sNT}, 8")
    a(f"s_add_u32 s{sWo}, s{sWo}, s{sT}")
    a(f"s_lshl_b32 s{sLd}, s{sLW}, 12")
    VM = Cnt(a, "vmcnt", 63)
    def issue1(st):
        base = (st % NST) * STG
        for j in range(4):
            a(f"s_add_u32 m0, s{sLd}, {base + j*1024}")
            a(f"s_add_u32 s{sT}, s{sXo}, {j*8*1280 + st*128}")
            a(f"buffer_load_dwordx4 v{vXO if j & 1 else vXE}, {X_}, s{sT} offen lds")
            a(f"s_add_u32 m0, s{sLd}, {base + 16384 + j*1024}")
            a(f"s_add_u32 s{sT}, s{sWo}, {(st*64 + j*4)*3840}")
            a(f"buffer_load_dwordx4 v{vWv}, {WQ_}, s{sT} offen lds")
        return VM.op(8)
    def issue2(st):
        base = GSLOT[st % 4]
        for j in range(4):
            a(f"s_add_u32 m0, s{sLd}, {base + j*1024}")
            a(f"s_add_u32 s{sT}, s{sXo}, {j*8*1280 + st*128}")
            a(f"buffer_load_dwordx4 v{vXO if j & 1 else vXE}, {X_}, s{sT} offen lds")
        a(f"s_add_u32 s{sT}, s{sGo}, {st*64*3072}")
        for mat in range(2):
            for t in range(3):
                a(f"s_add_u32 m0, s{sLdW}, {base + 16384 + mat*12288 + t*1024}")
                a.nop(1)
                a(f"buffer_load_dwordx4 v{vGd[t]}, {WU_ if mat else WG_}, s{sT} offen lds")
        return VM.op(10)
    tag1 = {}; tag2 = {}
    pf1_setup(sLW, 47, 0)
    for j in range(3): pf1(j, 47, 48, adv=(2 if "nosp2" in exp else 3))
    sPBl = [sA, sB, sC]
    for j in range(3): a(f"s_mov_b32 s{sPBl[j]}, s{sPBs[j]}")
    SA = [[12 + hi * 4 + j for j in range(4)] for hi in range(2)]
    SD = 20; LS = [36, 37]; LU = [40, 41, 42, 43]
    a("v_lshrrev_b32 v9, 1, v3")
    a("v_and_b32 v9, 7, v9")
    a("v_lshlrev_b32 v10, 2, v4")
    a("v_xor_b32 v9, v9, v10")
    a(f"v_lshl_add_u32 v10, v3, 7, s{sLd}")
    for j in range(4):
        a(f"v_xor_b32 v11, {j}, v9")
        a(f"v_lshl_add_u32 v{SA[0][j]}, v11, 4, v10")
        a(f"v_add_u32 v{SA[1][j]}, 0x10000, v{SA[0][j]}")
    for r in LS: a(f"v_mov_b32 v{r}, 0")
    lab = a.newlabel("L_zf")
    a(f"s_cmp_lg_u32 s{sW}, 4")
    a(f"s_cbranch_scc1 {lab}")
    a(f"s_lshl_b32 s{sT}, s{sMT}, 4\ns_add_u32 s{sT}, s{sT}, s{sNG}\ns_lshl_b32 s{sT}, s{sT}, 2\ns_add_u32 s{sT}, s{sT}, {WS_FL2}")
    a(f"s_lshr_b32 s{sT+1}, s{sIDX}, 2\ns_lshl_b32 s{sT+1}, s{sT+1}, 5\ns_lshl_b32 s{sT+2}, s{sXCD}, 2\ns_add_u32 s{sT+1}, s{sT+1}, s{sT+2}")
    a(f"s_and_b32 s{sT+2}, s{sIDX}, 3\ns_add_u32 s{sT+1}, s{sT+1}, s{sT+2}\ns_lshl_b32 s{sT+1}, s{sT+1}, 2\ns_add_u32 s{sT+1}, s{sT+1}, {WS_FL3}")
    a("v_mov_b32 v9, 0")
    a("s_mov_b64 exec, 1")
    a(f"buffer_store_dword v9, v9, {WS_}, s{sT} offen{SC}")
    a("s_mov_b64 exec, -1")
    a.label(lab)
    for t in range(3):
        a(f"v_add_u32 v10, {64*t}, v2")
        a(f"v_mul_u32_u24 v11, 5462, v10")
        a(f"v_lshrrev_b32 v11, 16, v11")
        a(f"v_mul_u32_u24 v9, 12, v11")
        a(f"v_sub_u32 v9, v10, v9")
        a(f"v_mul_u32_u24 v11, 3072, v11")
        a(f"v_lshl_add_u32 v{vGd[t]}, v9, 4, v11")
    a(f"s_mul_i32 s{sGo}, s{sLW}, {16*3072}")
    a(f"s_mul_i32 s{sT}, s{sNG}, 192")
    a(f"s_add_u32 s{sGo}, s{sGo}, s{sT}")
    a(f"s_mul_i32 s{sLdW}, s{sLW}, 3072")
    PF34 = int(exp.split('pf34_')[1][0]) if 'pf34_' in exp else 2
    def ssq_ops():
        ops = []
        for j in range(4):
            ops.append(f"s_waitcnt lgkmcnt({3-j})")
            for r in range(4):
                x = SD + 4 * j + r; u0, u1 = LU[2 * (r & 1)], LU[2 * (r & 1) + 1]
                ops += [f"v_lshlrev_b32 v{u0}, 16, v{x}", f"v_and_b32 v{u1}, 0xffff0000, v{x}",
                        f"v_fmac_f32 v{LS[0]}, v{u0}, v{u0}", f"v_fmac_f32 v{LS[1]}, v{u1}, v{u1}"]
        return ops
    a("s_waitcnt vmcnt(0)")
    for st in range(2): tag1[st] = issue1(st)
    def pfl(nsp):
        for sp in range(nsp):
            for j in range(3):
                a(f"buffer_load_dwordx4 v[48:51], v47, s[4:7], s{sPBl[j]} offen"); VM.op()
                a(f"s_add_u32 s{sPBl[j]}, s{sPBl[j]}, s3")
    VM.need(tag1[0])
    a("s_barrier")
    issued = 1
    for st in range(10):
        base = (st % NST) * STG
        for j in range(4): a(f"ds_read_b128 {vr(SD+4*j,4)}, v{SA[base // 65536][j]} offset:{base % 65536}")
        n0 = len(a.lines)
        while issued < min(st + 3, 9):
            issued += 1; tag1[issued] = issue1(issued)
        if "nosp2" in exp and st == 0: pfl(1)
        if st == PF34: pfl(2)
        if st == 6:
            gprefetch_setup(sLW, 47)
            for g in range(5): gprefetch(g, 47, 48, VM)
        if st == 7:
            for g in range(5, 9): gprefetch(g, 47, 48, VM)
        if st >= 8: tag2[st - 8] = issue2(st - 8)
        dma = a.lines[n0:]; del a.lines[n0:]
        ops = ssq_ops()
        nd = sum("buffer_load" in l for l in dma)
        per = -(-len(ops) // max(nd - 1, 1)) if nd else len(ops)
        k = 0
        for l in dma:
            a.lines.append(l)
            if "buffer_load" in l:
                k += 1
                if k >= 2:
                    for o in ops[:per]: a(o)
                    ops = ops[per:]
        for o in ops: a(o)
        if st < 9:
            VM.need(tag1[st + 1])
            a("s_barrier")
    a(f"v_add_f32 v{LS[0]}, v{LS[0]}, v{LS[1]}")
    a(f"v_mov_b32 v{LS[1]}, v{LS[0]}")
    a(f"s_lshl_b32 s{sT}, s{sLW}, 7")
    a(f"v_lshl_add_u32 v10, v3, 2, s{sT}")
    a(f"v_permlane32_swap_b32 v{LS[0]}, v{LS[1]}")
    a(f"v_add_f32 v{LS[0]}, v{LS[0]}, v{LS[1]}")
    a("s_barrier")
    a(f"ds_read_b32 v{LU[0]}, v10 offset:{STATS+1536}")
    a("s_waitcnt lgkmcnt(0)")
    ln_rowmath(a, LU[0], LS[0], LU[1], sT)
    a.nop(1)
    a(f"ds_write_b32 v10, v{LU[0]} offset:{STATS}")
    a(f"ds_write_b32 v10, v{LS[0]} offset:{STATS+512}")
    a("s_waitcnt lgkmcnt(0)")
    a("s_barrier")
    tag2[2] = issue2(2)
    sH, sQB, sKV = sA, sB, sC
    a(f"s_lshl_b32 s{sH}, s{sXCD}, 2")
    a(f"s_and_b32 s{sT}, s{sIDX}, 3")
    a(f"s_add_u32 s{sH}, s{sH}, s{sT}")
    a(f"s_lshr_b32 s{sQB}, s{sIDX}, 2")
    a(f"s_mul_i32 s{sKV}, s{sH}, {16*CHUNK}")
    a("v_lshlrev_b32 v8, 4, v2")
    if True:
        a("v_mov_b32 v12, -1\nv_mov_b32 v13, -1\nv_mov_b32 v14, -1\nv_mov_b32 v15, -1")
        a(f"s_lshr_b32 s{sT}, s{sH}, 1")
        a(f"s_mul_i32 s{sT}, s{sT}, {5*256}")
        a(f"s_add_u32 s{sT}, s{sT}, {WS_O}")
        a(f"s_lshl_b32 s{sT+3}, s{sQB}, 4")
        a(f"s_lshl_b32 s{sT+4}, s{sLW}, 2")
        a(f"s_add_u32 s{sT+3}, s{sT+3}, s{sT+4}")
        a(f"s_mul_i32 s{sT+3}, s{sT+3}, 20480")
        a(f"s_add_u32 s{sT}, s{sT}, s{sT+3}")
        a(f"s_and_b32 s{sT+1}, s{sH}, 1")
        a(f"s_mul_i32 s{sT+2}, s{sT+1}, {3*256}")
        a(f"s_add_u32 s{sT+2}, s{sT+2}, s{sT}")
        a(f"s_lshl_b32 s{sT+1}, s{sT+1}, 3")
        a(f"s_add_u32 s{sT+1}, s{sT+1}, s{sT}")
        a("v_lshrrev_b32 v9, 4, v2")
        a("v_mul_u32_u24 v9, 20480, v9")
        a("v_and_b32 v10, 15, v2")
        a("v_lshl_add_u32 v9, v10, 4, v9")
        a(f"buffer_store_dwordx4 v[12:15], v9, {WS_}, s{sT+2} offen{SC}")
        a(f"buffer_store_dwordx4 v[12:15], v9, {WS_}, s{sT+2} offen offset:256{SC}")
        a(f"buffer_store_dwordx2 v[12:13], v9, {WS_}, s{sT+1} offen offset:512{SC}")
        tmark = VM.op(3)
    def kv_dma(n0):
        for j in range(10):
            a(f"s_lshl_b32 s{sT}, s{sLW}, 10")
            a(f"s_add_u32 s{sT}, s{sT}, {(n0 + 4*j)*1024}")
            a(f"s_mov_b32 m0, s{sT}")
            a(f"s_add_u32 s{sT}, s{sT}, s{sKV}")
            a(f"s_add_u32 s{sT}, s{sT}, {WS_KV}")
            a(f"buffer_load_dwordx4 v8, {WS_}, s{sT} offen lds")
        VM.op(10)
    VM.need(tag2[0])
    a("s_barrier")
    tag2[3] = issue2(3)
    for st in range(9):
        VM.need(max(tag2[st + 1], tmark) if st == 0 else tag2[st + 1])
        a("s_barrier")
        if st == 0:
            lab = a.newlabel("L_f1add")
            a(f"s_cmp_lg_u32 s{sW}, 4")
            a(f"s_cbranch_scc1 {lab}")
            a("v_mov_b32 v9, 0")
            a("v_mov_b32 v10, 1")
            a("s_mov_b64 exec, 1")
            a(f"global_atomic_add v9, v10, s[{sDbg}:{sDbg+1}] sc1")
            a("s_mov_b64 exec, -1")
            a.label(lab)
        if st + 4 <= 9: tag2[st + 4] = issue2(st + 4)
        if st == 6: kv_dma(40)
        if st == 7: kv_dma(0)
        if st == 8:
            QOFF = 15 * CHUNK
            for j in range(3):
                a(f"s_add_u32 s{sT}, s{sLW}, {4*j}")
                a(f"s_min_u32 s{sT}, s{sT}, 9")
                a(f"s_lshl_b32 s{sT+1}, s{sT}, 10")
                a(f"s_add_u32 m0, s{sT+1}, {QOFF}")
                a(f"s_cmp_ge_u32 s{sT}, 5")
                a(f"s_cselect_b32 s{sT}, 5120, 0")
                a(f"s_add_u32 s{sT}, s{sT}, s{sT+1}")
                a(f"s_mul_i32 s{sT+1}, s{sQB}, {2*CHUNK}")
                a(f"s_add_u32 s{sT}, s{sT}, s{sT+1}")
                a(f"s_add_u32 s{sT}, s{sT}, s{sKV}")
                a(f"s_add_u32 s{sT}, s{sT}, {WS_Q}")
                a(f"buffer_load_dwordx4 v8, {WS_}, s{sT} offen lds")
            VM.op(3)
    a("s_barrier")
    a("s_waitcnt vmcnt(0)")

    a.label("L_p3")
    ST("A", 6)
    QA, QB = 8, 12
    S = [16, 32]; P = 48; O = 56
    KA = [72, 76]; KB = [80, 84]; V = [[88, 92], [96, 100]]
    AD = [[104 + 3 * z + y for y in range(3)] for z in range(3)]
    T0, T1, T2, T3 = 113, 114, 115, 116
    vM, vOst, vL = 117, 118, 120
    vFo = 121
    DACC = 124
    DF = [164 + 28 * k for k in range(3)]
    DPOLL = 248
    NV = 250
    sH, sQB, sKV = sA, sB, sC
    sDG, sDL, sDX, sDW, sFin, sLoop = sR, sR + 1, sR + 2, sR + 4, sR + 5, sR + 6
    a(f"s_lshl_b32 s{sH}, s{sXCD}, 2")
    a(f"s_and_b32 s{sT}, s{sIDX}, 3")
    a(f"s_add_u32 s{sH}, s{sH}, s{sT}")
    a(f"s_lshr_b32 s{sQB}, s{sIDX}, 2")
    a(f"s_mul_i32 s{sKV}, s{sH}, {16*CHUNK}")
    a(f"v_lshlrev_b32 v{vL}, 4, v2")
    a(f"s_lshl_b32 s{sDL}, s{sW}, 10")
    a(f"s_add_u32 s{sDL}, s{sDL}, {80*1024}")
    a(f"s_add_u32 s{sDG}, s{sDL}, s{sKV}")
    a(f"s_add_u32 s{sDG}, s{sDG}, {WS_KV}")
    a(f"s_lshl_b32 s{sT}, s{sQB}, 8")
    a(f"s_lshl_b32 s{sT+1}, s{sW}, 5")
    a(f"s_add_u32 s{sT}, s{sT}, s{sT+1}")
    a(f"v_add_u32 v5, s{sT}, v3")
    a(f"v_lshrrev_b32 v6, 4, v5")
    a(f"v_mul_u32_u24 v{vOst}, 20480, v6")
    a(f"v_and_b32 v6, 15, v5")
    a(f"v_lshl_add_u32 v{vOst}, v6, 4, v{vOst}")
    a(f"v_lshl_add_u32 v{vOst+1}, v4, 8, v{vOst}")
    a(f"s_lshr_b32 s{sT}, s{sW}, 2")
    a(f"s_mul_i32 s{sT}, s{sT}, 5120")
    a(f"s_add_u32 s{sT}, s{sT}, {15*CHUNK}")
    a(f"v_and_b32 v5, 127, v5")
    a(f"v_lshl_add_u32 v6, v5, 4, s{sT}")
    a(f"v_lshl_add_u32 v6, v4, 11, v6")
    a(f"v_lshl_add_u32 v7, v5, 3, s{sT}")
    a("v_and_b32 v5, 0x13, v3")
    a(f"v_and_b32 v{T0}, 4, v3")
    a(f"v_lshl_or_b32 v5, v{T0}, 1, v5")
    a(f"v_and_b32 v{T0}, 8, v3")
    a(f"v_lshrrev_b32 v{T0}, 1, v{T0}")
    a(f"v_or_b32 v5, v5, v{T0}")
    a(f"v_lshlrev_b32 v{AD[0][0]}, 4, v5")
    a(f"v_lshl_add_u32 v{AD[0][0]}, v4, 11, v{AD[0][0]}")
    a(f"v_lshlrev_b32 v{AD[0][1]}, 3, v5")
    a(f"v_add_u32 v{AD[0][1]}, 4096, v{AD[0][1]}")
    a(f"v_mul_u32_u24 v{AD[0][2]}, 320, v4")
    a(f"v_lshl_add_u32 v{AD[0][2]}, v3, 4, v{AD[0][2]}")
    a(f"v_add_u32 v{AD[0][2]}, 5120, v{AD[0][2]}")
    for z in (1, 2):
        for y in range(3): a(f"v_add_u32 v{AD[z][y]}, {6*z*CHUNK}, v{AD[0][y]}")
    for r in range(4): a(f"v_mov_b32 v{QB+r}, 0")
    for r in range(16): a(f"v_mov_b32 v{O+r}, 0")
    a("v_cmp_eq_u32 vcc, 20, v3")
    a(f"v_mov_b32 v{T0}, 0x3f803f80")
    a.nop(1)
    a(f"v_cndmask_b32 v{T1}, 0, v{T0}, vcc")
    for b in range(2):
        a(f"v_mov_b32 v{KB[b]+2}, 0x3f80")
        a(f"v_mov_b32 v{KB[b]+3}, 0")
        for j in range(2):
            for r in range(4): a(f"v_mov_b32 v{V[b][j]+r}, v{T1}")
    for r in range(8): a(f"v_mov_b32 v{P+r}, 0")
    for r in range(40): a(f"v_mov_b32 v{DACC+r}, 0")
    a(f"s_and_b32 s{sT}, s{sXCD}, 3")
    a(f"s_lshl_b32 s{sT+1}, s{sQB}, 2")
    a(f"s_add_u32 s{sT}, s{sT}, s{sT+1}")
    a(f"s_lshr_b32 s{sT+4}, s{sT}, 1")
    a(f"s_lshl_b32 s{sT}, s{sT}, 2")
    a(f"s_lshr_b32 s{sT+2}, s{sXCD}, 2")
    a(f"s_lshl_b32 s{sT+2}, s{sT+2}, 2")
    a(f"s_and_b32 s{sT+3}, s{sIDX}, 3")
    a(f"s_add_u32 s{sT+2}, s{sT+2}, s{sT+3}")
    a(f"s_mul_i32 s{sFin}, s{sT}, {16*1280}")
    a(f"s_mul_i32 s{sT+3}, s{sT+2}, 160")
    a(f"s_add_u32 s{sFin}, s{sFin}, s{sT+3}")
    a(f"s_and_b32 s{sT+3}, s{sW}, 1")
    a(f"s_lshl_b32 s{sT+3}, s{sT+3}, 1")
    a(f"s_add_u32 s{sT}, s{sT}, s{sT+3}")
    a(f"s_lshr_b32 s{sT+3}, s{sW}, 1")
    a(f"s_lshl_b32 s{sT+5}, s{sT+3}, 10")
    a(f"s_mul_i32 s{sDX}, s{sT}, 49152")
    a(f"s_add_u32 s{sDX}, s{sDX}, s{sT+5}")
    a(f"s_add_u32 s{sDX}, s{sDX}, {WS_H}")
    a(f"s_mul_i32 s{sDX+1}, s{sT}, 20480")
    a(f"s_add_u32 s{sDX+1}, s{sDX+1}, s{sT+5}")
    a(f"s_add_u32 s{sDX+1}, s{sDX+1}, {WS_O}")
    a(f"s_mul_i32 s{sDW}, s{sT+3}, {40*1024}")
    a(f"s_mul_i32 s{sT+5}, s{sT+2}, 5120")
    a(f"s_add_u32 s{sDW}, s{sDW}, s{sT+5}")
    a(f"s_add_u32 s{sDW}, s{sDW}, {WS_WP}")
    a(f"s_lshl_b32 s{sT+4}, s{sT+4}, 6")
    a(f"s_add_u32 s{sLoop+1}, s{sT+4}, {WS_FL2}")
    a("v_and_b32 v5, 15, v2")
    a(f"v_lshlrev_b32 v{vFo}, 2, v5")
    a("s_barrier")
    ST("A", 7); ST("D", 1)
    LG = Cnt(a, "lgkmcnt", 15); VM = Cnt(a, "vmcnt", 63)
    a(f"ds_read_b128 {vr(QA,4)}, v6"); LG.op()
    a(f"s_mov_b64 exec, s[{sLO}:{sLO+1}]")
    a(f"ds_read_b64 {vr(QB,2)}, v7 offset:4096"); tq = LG.op()
    a("s_mov_b64 exec, -1")
    def ad(t, y): return AD[(t // 4) // 6][y]
    def coff(t): return ((t // 4) % 6) * CHUNK
    tagK = {}; tagV0 = {}; tagV1 = {}
    def rdK(t):
        if t > 63: return
        b = t & 1
        a(f"ds_read_b128 {vr(KA[b],4)}, v{ad(t,0)} offset:{coff(t) + (t%4)*512}"); LG.op()
        a(f"ds_read_b64 {vr(KB[b],2)}, v{ad(t,1)} offset:{coff(t) + (t%4)*256}"); tagK[t] = LG.op()
    def rdV(t):
        if t > 63: return
        b = t & 1
        a(f"s_mov_b64 exec, s[{sVM}:{sVM+1}]")
        a(f"ds_read_b128 {vr(V[b][0],4)}, v{ad(t,2)} offset:{coff(t) + (t%4)*1280}"); tagV0[t] = LG.op()
        a(f"ds_read_b128 {vr(V[b][1],4)}, v{ad(t,2)} offset:{coff(t) + (t%4)*1280 + 640}"); tagV1[t] = LG.op()
        a("s_mov_b64 exec, -1")
    def mf(d, A, B, C): a(f"{M32} {vr(d,16)}, {vr(A,4)}, {vr(B,4)}, {C}")
    def rowmax(s, extra=None):
        a(f"v_max3_f32 v{T0}, v{s}, v{s+1}, v{s+2}")
        a(f"v_max3_f32 v{T1}, v{s+3}, v{s+4}, v{s+5}")
        a(f"v_max3_f32 v{T2}, v{s+6}, v{s+7}, v{s+8}")
        a(f"v_max3_f32 v{T3}, v{s+9}, v{s+10}, v{s+11}")
        a(f"v_max3_f32 v{T0}, v{T0}, v{s+12}, v{s+13}")
        a(f"v_max3_f32 v{T1}, v{T1}, v{s+14}, v{s+15}")
        a(f"v_max3_f32 v{T0}, v{T0}, v{T1}, v{T2}")
        a(f"v_max3_f32 v{T0}, v{T0}, v{T3}, v{extra if extra is not None else T3}")
        a(f"v_mov_b32 v{T1}, v{T0}")
        a.nop(2)
        a(f"v_permlane32_swap_b32 v{T0}, v{T1}")
        a(f"v_max_f32 v{T0}, v{T0}, v{T1}")
    rdK(0); rdK(1); rdV(0)
    LG.need(tagK[0])
    mf(S[0], KA[0], QA, "0")
    mf(S[0], KB[0], QB, vr(S[0], 16))
    a.nop(12)
    rowmax(S[0])
    a(f"v_xor_b32 v{T0}, 0x80000000, v{T0}")
    a(f"v_lshrrev_b32 v{T0}, 16, v{T0}")
    a(f"v_cndmask_b32 v{QB+2}, 0, v{T0}, s[{sLO}:{sLO+1}]")
    a.nop(2)
    mf(S[0], KA[0], QA, "0")
    mf(S[0], KB[0], QB, vr(S[0], 16))
    a.nop(12)
    def kvdma():
        a(f"s_mov_b32 m0, s{sDL}")
        a(f"s_add_u32 s{sDL}, s{sDL}, 8192")
        a(f"buffer_load_dwordx4 v{vL}, {WS_}, s{sDG} offen lds")
        a(f"s_add_u32 s{sDG}, s{sDG}, 8192")
        return VM.op()
    tagD = {}
    def d_issue(j, part):
        f = DF[j % 3]
        wstep = 5 + j
        if part == 0:
            a(f"s_add_u32 s{sT}, s{sDW}, {wstep*4*40*1024}")
            for n in range(2): a(f"buffer_load_dwordx4 {vr(f+8+4*n,4)}, v{vL}, {WS_}, s{sT} offen offset:{n*1024}{SL}"); VM.op()
        elif part == 1:
            a(f"s_add_u32 s{sT}, s{sDW}, {wstep*4*40*1024}")
            for n in range(2, 4): a(f"buffer_load_dwordx4 {vr(f+8+4*n,4)}, v{vL}, {WS_}, s{sT} offen offset:{n*1024}{SL}"); VM.op()
        elif part == 2:
            a(f"s_add_u32 s{sT}, s{sDW}, {wstep*4*40*1024 + 4096}")
            a(f"buffer_load_dwordx4 {vr(f+24,4)}, v{vL}, {WS_}, s{sT} offen{SL}"); VM.op()
            a(f"s_add_u32 s{sT}, s{sDX}, {j*4096}")
            a(f"buffer_load_dwordx4 {vr(f,4)}, v{vL}, {WS_}, s{sT} offen{SL}"); VM.op()
        else:
            a(f"s_add_u32 s{sT}, s{sDX}, {j*4096 + 49152}")
            a(f"buffer_load_dwordx4 {vr(f+4,4)}, v{vL}, {WS_}, s{sT} offen{SL}"); tagD[j] = VM.op()
    def d_mfma(j, q):
        f = DF[j % 3]; m, n = q & 1, q >> 1
        acc = DACC + (m * 5 + n) * 4
        a(f"{M16} {vr(acc,4)}, {vr(f+8+4*n,4)}, {vr(f+4*m,4)}, {vr(acc,4)}")
    useD = "noD" not in exp
    DT0 = int(exp.split("dt")[1][:2]) if "dt" in exp else 20
    dsched = {t: [] for t in range(64)}; lsched = {t: [] for t in range(64)}
    dfirst = {}
    for j in range(12):
        for q in range(10):
            t = DT0 + (10 * j + q) * (64 - DT0) // 120
            dsched[t].append((j, q)); dfirst.setdefault(j, t)
    for j in range(12):
        lw = dfirst[j] - 8; lx = max(dfirst[j] - 6, DT0 - 5 + (1 if j else 0))
        if j >= 3:
            last_prev = max(t for t in range(64) for (jj, q) in dsched[t] if jj == j - 3)
            lw = max(lw, last_prev + 1); lx = max(lx, lw + 2)
        lsched[lw].append((j, 0)); lsched[lw + 1].append((j, 1)); lsched[lx].append((j, 2)); lsched[lx + 1].append((j, 3))
        assert lx + 1 < dfirst[j] - 1, (j, lx, dfirst[j])
    TF2 = DT0 - 5
    assert max(len(v) for v in dsched.values()) <= 3
    def tile(t):
        cur = t & 1; nxt = cur ^ 1
        s = S[cur]; sn = S[nxt]
        ex = lambda r: a(f"v_exp_f32 v{s+r}, v{s+r}")
        cv = lambda p: a(f"v_cvt_pk_bf16_f32 v{P+p}, v{s+2*p}, v{s+2*p+1}")
        dq = dsched[t] if useD else []
        def dm(k):
            if k < len(dq):
                j, q = dq[k]
                if q == 0: VM.need(tagD[j])
                d_mfma(j, q)
        if "noprio" not in exp: a(f"s_setprio {3 - (t % 4)}")
        if t < 63:
            LG.need(tagK[t + 1])
            mf(sn, KA[nxt], QA, "0")
        ex(0); ex(1); dm(0); ex(2); ex(3)
        if t < 63: mf(sn, KB[nxt], QB, vr(sn, 16))
        rdK(t + 2)
        ex(4); ex(5); dm(1); ex(6); ex(7)
        cv(0); cv(1)
        if t > 0:
            LG.need(tagV1[t - 1])
            mf(O, V[nxt][1], P + 4, vr(O, 16))
        rdV(t + 1)
        cv(2); cv(3)
        ex(8); ex(9); dm(2); ex(10); ex(11)
        LG.need(tagV0[t])
        mf(O, V[cur][0], P, vr(O, 16))
        if useD:
            for (j, part) in lsched[t]: d_issue(j, part)
        for r in range(12, 16): ex(r)
        cv(4); cv(5); cv(6); cv(7)
    sWOb = sKV
    def wodma(j):
        a(f"s_add_u32 s{sT}, s{sW}, {8*j}")
        a(f"s_min_u32 s{sT}, s{sT}, 99")
        a(f"s_mul_i32 s{sT+1}, s{sT}, 205")
        a(f"s_lshr_b32 s{sT+1}, s{sT+1}, 10")
        a(f"s_mul_i32 s{sT+1}, s{sT+1}, {40960 - 5*1024}")
        a(f"s_lshl_b32 s{sT}, s{sT}, 10")
        a(f"s_mov_b32 m0, s{sT}")
        a(f"s_add_u32 s{sT}, s{sT}, s{sT+1}")
        a(f"s_add_u32 s{sT}, s{sT}, s{sWOb}")
        a(f"buffer_load_dwordx4 v{vL}, {WS_}, s{sT} offen lds")
        return VM.op()
    nd = 0; nwo = 0
    for t in range(64):
        if t == 2:
            a(f"s_waitcnt vmcnt({VM.issued})")
            a("s_barrier")
            lab = a.newlabel("L_f2set")
            a(f"s_cmp_lg_u32 s{sW}, 0")
            a(f"s_cbranch_scc1 {lab}")
            a(f"s_lshl_b32 s{sT}, s{sMT}, 4\ns_add_u32 s{sT}, s{sT}, s{sNG}\ns_lshl_b32 s{sT}, s{sT}, 2\ns_add_u32 s{sT}, s{sT}, {WS_FL2}")
            a(f"v_mov_b32 v{T0}, 0")
            a(f"v_mov_b32 v{T1}, 1")
            a("s_mov_b64 exec, 1")
            a(f"buffer_store_dword v{T1}, v{T0}, {WS_}, s{sT} offen{SC}")
            a("s_mov_b64 exec, -1")
            a.label(lab)
        if useD and t == TF2 - 2:
            a(f"buffer_load_dword v{DPOLL}, v{vFo}, {WS_}, s{sLoop+1} offen{SC}"); tpoll = VM.op()
        if useD and t == TF2:
            VM.need(tpoll)
            lab = a.newlabel("L_f2")
            a(f"s_mov_b32 s{sT+1}, 0")
            a.label(lab)
            a(f"v_cmp_ne_u32 vcc, 1, v{DPOLL}")
            a(f"s_add_u32 s{sT+1}, s{sT+1}, 1")
            a.nop(2)
            a("s_cmp_eq_u64 vcc, 0")
            a(f"s_cbranch_scc1 {lab}_ok")
            a(f"s_cmp_ge_u32 s{sT+1}, 0x20000")
            a(f"s_cbranch_scc1 {lab}_ok")
            a("s_sleep 4")
            a(f"buffer_load_dword v{DPOLL}, v{vFo}, {WS_}, s{sLoop+1} offen{SC}")
            a("s_waitcnt vmcnt(0)")
            a(f"s_branch {lab}")
            a.label(f"{lab}_ok")
        if t == 28:
            VM.need(tkv)
            a("s_barrier")
        if t == 42:
            a("s_barrier")
            a(f"s_lshr_b32 s{sT}, s{sW}, 1")
            a(f"s_mul_i32 s{sT}, s{sT}, {40*1024}")
            a(f"s_sub_u32 s{sWOb}, s{sDW}, s{sT}")
        if t % 8 == 0 and t: ST("D", 1 + t // 8)
        tile(t)
        if nd < 10 and (nd < 8 or t >= 2):
            tkv = kvdma(); nd += 1
        if t >= 42 and nwo < 13:
            two = wodma(nwo); nwo += 1
    LG.need(tagV1[63])
    mf(O, V[1][1], P + 4, vr(O, 16))
    ST("A", 8); ST("D", 9)
    a("s_setprio 0")
    a("v_and_b32 v5, 15, v2")
    a("v_lshrrev_b32 v6, 4, v2")
    a("v_mul_u32_u24 v5, 1280, v5")
    a("v_lshl_add_u32 v5, v6, 3, v5")
    a(f"s_lshl_b32 s{sT}, s{sW}, 5")
    a(f"s_add_u32 s{sFin}, s{sFin}, s{sT}")
    a(f"s_lshr_b32 s{sT}, s{sW}, 1")
    a(f"s_mul_i32 s{sT}, s{sT}, 5120")
    a(f"v_add_u32 v7, s{sT}, v{vL}")
    a(f"v_add_u32 v6, {3*20480}, v7")
    a("v_lshrrev_b32 v16, 1, v3")
    a(f"v_mul_u32_u24 v16, {5*256}, v16")
    a("v_and_b32 v17, 1, v3")
    a("v_lshl_add_u32 v16, v17, 3, v16")
    a(f"v_mul_u32_u24 v17, {2*20480}, v4")
    a("v_add_u32 v16, v16, v17")
    a(f"v_mov_b32 v{T0}, v{O+8}")
    a(f"v_mov_b32 v{T1}, v{O+8}")
    a(f"v_mov_b32 v{T2}, 0")
    a.nop(1)
    a(f"v_permlane32_swap_b32 v{T0}, v{T1}")
    for r in range(12): a(f"v_fma_f32 v{T2}, v{O+r}, 0, v{T2}")
    a(f"s_mov_b32 s{sT}, 0x71800000")
    a(f"v_add_f32 v{T2}, v{T2}, v{T1}")
    a(f"v_cmp_ngt_f32 vcc, s{sT}, v{T2}")
    a.nop(4)
    a("s_cmp_lg_u64 vcc, 0")
    a("s_cbranch_scc1 L_slow")
    a.label("L_fin")
    a(f"v_rcp_f32 v{T1}, v{T1}")
    a.nop(1)
    for r in range(12): a(f"v_mul_f32 v{O+r}, v{O+r}, v{T1}")
    for p in range(6): a(f"v_cvt_pk_bf16_f32 v{P+p}, v{O+2*p}, v{O+2*p+1}")
    a(f"s_lshr_b32 s{sT}, s{sH}, 1")
    a(f"s_mul_i32 s{sT}, s{sT}, {5*256}")
    a(f"s_add_u32 s{sT}, s{sT}, {WS_O}")
    a(f"s_and_b32 s{sT+1}, s{sH}, 1")
    a(f"s_mul_i32 s{sT+2}, s{sT+1}, {3*256}")
    a(f"s_add_u32 s{sT+2}, s{sT+2}, s{sT}")
    a(f"s_lshl_b32 s{sT+1}, s{sT+1}, 3")
    a(f"s_add_u32 s{sT+1}, s{sT+1}, s{sT}")
    a(f"v_permlane32_swap_b32 v{P}, v{P+2}")
    a(f"v_permlane32_swap_b32 v{P+1}, v{P+3}")
    a(f"buffer_store_dwordx4 {vr(P,4)}, v{vOst+1}, {WS_}, s{sT+2} offen{SC}")
    a(f"s_mov_b64 exec, s[{sLO}:{sLO+1}]")
    a(f"buffer_store_dwordx2 {vr(P+4,2)}, v{vOst}, {WS_}, s{sT+1} offen offset:512{SC}")
    a("s_mov_b64 exec, -1")
    for m in range(4):
        a(f"s_add_u32 s{sT}, s{sFin}, {m*16*1280}")
        a(f"buffer_load_dwordx2 {vr(20+2*m,2)}, v5, {X_}, s{sT} offen")
    ST("A", 9); ST("D", 10)
    a(f"s_cmp_lg_u32 s{sW}, 0")
    a("s_cbranch_scc1 L_f3_wait")
    a(f"s_add_u32 s{sT+2}, s{sDX+1}, 512")
    a(f"s_mov_b32 s{sT+1}, 0")
    a.label("L_f3")
    a(f"buffer_load_dword v{T1}, v16, {WS_}, s{sT+2} offen{SC}")
    a(f"s_add_u32 s{sT+1}, s{sT+1}, 1")
    a("s_waitcnt vmcnt(0)")
    a(f"v_cmp_eq_u32 vcc, -1, v{T1}")
    a.nop(4)
    a("s_cmp_eq_u64 vcc, 0")
    a("s_cbranch_scc1 L_f3_wait")
    a(f"s_cmp_ge_u32 s{sT+1}, 0x20000")
    a("s_cbranch_scc1 L_f3_wait")
    a("s_sleep 1")
    a("s_branch L_f3")
    a.label("L_f3_wait")
    a("s_waitcnt vmcnt(0)")
    a("s_barrier")
    ST("A", 10); ST("D", 11)
    XOF = [72 + 8 * k for k in range(4)] + [36]
    WOF = [164 + 20 * k for k in range(4)] + [44]
    a(f"s_mov_b32 s{sT+1}, 0")
    a.label("L_xo")
    for k in range(5):
        for m in range(2):
            a(f"s_add_u32 s{sT}, s{sDX+1}, {k*4096 + m*20480}")
            a(f"buffer_load_dwordx4 {vr(XOF[k]+4*m,4)}, v{vL}, {WS_}, s{sT} offen{SC}")
    for k in range(5):
        for n in range(5):
            off = k * 20480 + n * 1024
            a(f"ds_read_b128 {vr(WOF[k]+4*n,4)}, v{7 if k < 3 else 6} offset:{off if k < 3 else off - 3*20480}")
    for k in range(5):
        a(f"s_waitcnt vmcnt({8-2*k})")
        x = XOF[k]
        a(f"v_max3_u32 v{28+k}, v{x}, v{x+1}, v{x+2}")
        a(f"v_max3_u32 v{28+k}, v{28+k}, v{x+3}, v{x+4}")
        a(f"v_max3_u32 v{28+k}, v{28+k}, v{x+5}, v{x+6}")
        a(f"v_max_u32 v{28+k}, v{28+k}, v{x+7}")
    a("v_max3_u32 v28, v28, v29, v30")
    a("v_max3_u32 v28, v28, v31, v32")
    a("v_cmp_eq_u32 vcc, -1, v28")
    a(f"s_add_u32 s{sT+1}, s{sT+1}, 1")
    a("s_waitcnt lgkmcnt(0)")
    a.nop(2)
    a("s_cmp_eq_u64 vcc, 0")
    a("s_cbranch_scc1 L_xo_ok")
    a(f"s_cmp_lt_u32 s{sT+1}, 0x20000")
    a("s_cbranch_scc1 L_xo")
    a.label("L_xo_ok")
    for k in range(5):
        for n in range(5):
            for m in range(2):
                acc = DACC + (m * 5 + n) * 4
                a(f"{M16} {vr(acc,4)}, {vr(WOF[k]+4*n,4)}, {vr(XOF[k]+4*m,4)}, {vr(acc,4)}")
    ST("A", 11)
    a("s_barrier")
    a(f"s_and_b32 s{sT}, s{sW}, 1")
    a(f"s_lshl_b32 s{sT}, s{sT}, 3")
    a(f"s_lshr_b32 s{sT+1}, s{sW}, 1")
    a(f"s_add_u32 s{sT}, s{sT}, s{sT+1}")
    a(f"s_lshl_b32 s{sT}, s{sT}, 10")
    a(f"v_add_u32 v6, s{sT}, v{vL}")
    a(f"v_add_u32 v7, 0x10000, v6")
    a.nop(2)
    for n in range(5):
        for m in range(2):
            off = (n * 16 + m * 4) * 1024
            a(f"ds_write_b128 v{6 if off < 65536 else 7}, {vr(DACC+(m*5+n)*4,4)} offset:{off % 65536}")
    a(f"s_lshl_b32 s{sT}, s{sW}, 14")
    a(f"v_add_u32 v6, s{sT}, v{vL}")
    a("s_waitcnt lgkmcnt(0)")
    a("s_barrier")
    a(f"s_cmp_ge_u32 s{sW}, 5")
    a("s_cbranch_scc1 L_done")
    RB = 124
    for q in range(16): a(f"ds_read_b128 {vr(RB+4*q,4)}, v6 offset:{q*1024}")
    for m in range(4):
        for p in range(2):
            a(f"v_lshlrev_b32 v{72+4*m+2*p}, 16, v{20+2*m+p}")
            a(f"v_and_b32 v{72+4*m+2*p+1}, 0xffff0000, v{20+2*m+p}")
    for m in range(4):
        a(f"s_waitcnt lgkmcnt({12-4*m})")
        acc = 72 + 4 * m
        for p in range(2):
            for k in range(4):
                a(f"v_pk_add_f32 {vr(acc+2*p,2)}, {vr(acc+2*p,2)}, {vr(RB+(m*4+k)*4+2*p,2)}")
            a(f"v_cvt_pk_bf16_f32 v{acc+p}, v{acc+2*p}, v{acc+2*p+1}")
        a(f"s_add_u32 s{sT}, s{sFin}, {m*16*1280}")
        a(f"buffer_store_dwordx2 {vr(acc,2)}, v5, {OUT_}, s{sT} offen")
    a.label("L_done")
    ST.dump(WS_, sW, sT)
    a.label("L_end")
    a("s_endpgm")

    a.label("L_early")
    pf1_setup(sW, vPF, 1)
    for j in range(3): pf1(j, vPF, T[36], adv=1)
    if "nosp2" not in exp:
        for j in range(3): pf1(j, vPF, T[36], adv=0)
    a("s_branch L_early_done")
    a.label("L_slow")
    vKa, vKb, vV = AD[0]
    a(f"v_mov_b32 v{QB+2}, 0")
    a(f"v_mov_b32 v{vM}, 0xff800000")
    for r in range(16): a(f"v_mov_b32 v{O+r}, 0")
    a(f"s_mov_b32 s{sLoop}, 0")
    a(f"s_mul_i32 s{sT+3}, s{sH}, {16*CHUNK}")
    a(f"s_add_u32 s{sT+3}, s{sT+3}, {WS_KV}")
    a.label("L_slow_loop")
    a(f"buffer_load_dwordx4 {vr(KA[0],4)}, v{vKa}, {WS_}, s{sT+3} offen")
    a(f"buffer_load_dwordx2 {vr(KB[0],2)}, v{vKb}, {WS_}, s{sT+3} offen")
    a(f"s_mov_b64 exec, s[{sVM}:{sVM+1}]")
    a(f"buffer_load_dwordx4 {vr(V[0][0],4)}, v{vV}, {WS_}, s{sT+3} offen")
    a(f"buffer_load_dwordx4 {vr(V[0][1],4)}, v{vV}, {WS_}, s{sT+3} offen offset:640")
    a("s_mov_b64 exec, -1")
    a("s_waitcnt vmcnt(0)")
    s = S[1]
    mf(s, KA[0], QA, "0")
    mf(s, KB[0], QB, vr(s, 16))
    a.nop(12)
    rowmax(s, vM)
    a(f"v_sub_f32 v{T1}, v{vM}, v{T0}")
    a(f"v_exp_f32 v{T1}, v{T1}")
    a(f"v_mov_b32 v{vM}, v{T0}")
    for r in range(16): a(f"v_sub_f32 v{s+r}, v{s+r}, v{T0}")
    for r in range(16): a(f"v_mul_f32 v{O+r}, v{O+r}, v{T1}")
    for r in range(16): a(f"v_exp_f32 v{s+r}, v{s+r}")
    a.nop(1)
    for p in range(8): a(f"v_cvt_pk_bf16_f32 v{P+p}, v{s+2*p}, v{s+2*p+1}")
    a.nop(2)
    mf(O, V[0][0], P, vr(O, 16))
    mf(O, V[0][1], P + 4, vr(O, 16))
    a(f"s_add_u32 s{sLoop}, s{sLoop}, 1")
    a(f"s_and_b32 s{sT}, s{sLoop}, 3")
    a(f"s_cmp_eq_u32 s{sT}, 0")
    a(f"s_movk_i32 s{sT}, 512")
    a(f"s_movk_i32 s{sT+1}, 256")
    a(f"s_movk_i32 s{sT+2}, 1280")
    a(f"s_cselect_b32 s{sT}, {CHUNK-3*512}, s{sT}")
    a(f"s_cselect_b32 s{sT+1}, {CHUNK-3*256}, s{sT+1}")
    a(f"s_cselect_b32 s{sT+2}, {CHUNK-3*1280}, s{sT+2}")
    a(f"v_add_u32 v{vKa}, s{sT}, v{vKa}")
    a(f"v_add_u32 v{vKb}, s{sT+1}, v{vKb}")
    a(f"v_add_u32 v{vV}, s{sT+2}, v{vV}")
    a.nop(8)
    a(f"s_cmp_lt_u32 s{sLoop}, 64")
    a("s_cbranch_scc1 L_slow_loop")
    a.nop(4)
    a(f"v_mov_b32 v{T0}, v{O+8}")
    a(f"v_mov_b32 v{T1}, v{O+8}")
    a.nop(2)
    a(f"v_permlane32_swap_b32 v{T0}, v{T1}")
    a("s_branch L_fin")
    return kernel_header(NAME) + a.text(), kernel_desc(NAME, NV, 102 if stamp else 72)

if __name__ == "__main__":
    import sys
    stamp = sys.argv[2] if len(sys.argv) > 2 and sys.argv[2] != "none" else False
    ex = sys.argv[3] if len(sys.argv) > 3 else ""
    body, desc = gen(stamp, ex)
    hdr = open("parallel_sum__softmax_full_mha__glu_gated_reglu__prompt.s.ref").read().split("; Override launch")[0]
    s = hdr + f"; @launch grid=(256,1,1) block=(512,1,1) lds={LDS_M1}\n"
    s += '.amdgcn_target "amdgcn-amd-amdhsa--gfx950"\n.text\n' + body + '.section .rodata,"a"\n' + desc
    open(sys.argv[1], "w").write(s)
```

```python
from asmlib import *
from k_qkv import ln_rowmath
NAME = "parallel_sum__softmax_full_mha__glu_gated_reglu__prompt_kernel"
LDS_M1 = 163840
M32 = "v_mfma_f32_32x32x16_bf16"; M16 = "v_mfma_f32_16x16x32_bf16"

def gen(stamp=False, exp=""):
    a = Asm()
    ST = Stamps2(a, stamp)
    opt = lambda key, dflt: int(exp.split(key)[1].split("_")[0]) if key in exp else dflt
    sX, sWq, sWS, sWg, sWu, sOut, sPk = 8, 12, 16, 20, 24, 28, 32
    sDbg = 36
    sW, sMT, sNT, sIDX, sXCD, sNG = 38, 39, 40, 41, 42, 43
    sLO, sVM, sM = 44, 46, 48
    sT = 50
    sNon = 58
    sLW = 59
    sA, sB, sC = 60, 61, 62
    sG2 = 63
    sR = 64
    R_ = lambda b: f"s[{b}:{b+3}]"
    X_, WQ_, WS_, WG_, WU_, OUT_, PK_ = map(R_, (sX, sWq, sWS, sWg, sWu, sOut, sPk))
    SC = " sc1"
    NST, STG, STATS, PKS = 4, 32768, 0, 131072
    GSLOT = [122880, 81920, 40960, 0]
    CSA = 122880
    QOFF = 15 * CHUNK

    a("s_cmp_ge_u32 s2, 256")
    a("s_cbranch_scc1 L_end")
    ST.start()
    a(f"s_load_dwordx4 s[4:7], s[0:1], 0")
    a(f"s_load_dwordx2 s[{sT}:{sT+1}], s[0:1], 16")
    a(f"s_load_dwordx4 s[{sT+2}:{sT+5}], s[0:1], 32")
    a(f"s_load_dwordx4 s[{sR}:{sR+3}], s[0:1], 48")
    a(f"s_load_dwordx4 s[{sR+4}:{sR+7}], s[0:1], 64")
    a("v_lshrrev_b32 v1, 6, v0")
    a("v_and_b32 v2, 63, v0")
    a(f"v_readfirstlane_b32 s{sW}, v1")
    a(f"s_and_b32 s{sXCD}, s2, 7")
    a(f"s_lshr_b32 s{sIDX}, s2, 3")
    a(f"s_lshr_b32 s{sMT}, s{sXCD}, 2")
    a(f"s_lshl_b32 s{sMT}, s{sMT}, 3")
    a(f"s_and_b32 s3, s{sIDX}, 7")
    a(f"s_add_u32 s{sMT}, s{sMT}, s3")
    a(f"s_and_b32 s{sNG}, s{sXCD}, 3")
    a(f"s_lshl_b32 s{sNG}, s{sNG}, 2")
    a(f"s_lshr_b32 s3, s{sIDX}, 3")
    a(f"s_add_u32 s{sNG}, s{sNG}, s3")
    a(f"s_min_u32 s{sNT}, s{sNG}, 14")
    a(f"s_and_b32 s{sLW}, s{sW}, 3")
    a(f"s_mov_b32 s{sLO}, -1\ns_mov_b32 s{sLO+1}, 0\ns_mov_b32 s{sVM}, 0xfffff\ns_mov_b32 s{sVM+1}, 0xfffff")
    a("v_and_b32 v3, 31, v2")
    a("v_lshrrev_b32 v4, 5, v2")
    a(f"s_lshl_b32 s{sA}, s{sMT}, 4")
    a(f"s_add_u32 s{sA}, s{sA}, s{sNG}")
    a(f"s_mul_i32 s{sA}, s{sA}, 3")
    a(f"s_add_u32 s{sA}, s{sA}, s{sW}")
    a(f"s_mul_i32 s{sB}, s{sA}, 6554")
    a(f"s_lshr_b32 s{sB}, s{sB}, 16")
    a(f"s_mul_i32 s{sG2}, s{sLW}, {16*3072}")
    a(f"s_mul_i32 s3, s{sNG}, 192")
    a(f"s_add_u32 s{sG2}, s{sG2}, s3")
    a("s_waitcnt lgkmcnt(0)")
    def srd(b, lo, hi, n): a(f"s_mov_b32 s{b}, s{lo}\ns_and_b32 s{b+1}, s{hi}, 0xffff\ns_mov_b32 s{b+2}, {n}\ns_mov_b32 s{b+3}, 0x20000")
    srd(sX, 4, 5, 2048 * 1280); srd(sWq, 6, 7, 640 * 3840); srd(sWS, sR + 6, sR + 7, WS_END)
    srd(sWg, sT + 2, sT + 3, 640 * 3072); srd(sWu, sT + 4, sT + 5, 640 * 3072); srd(sOut, sR + 2, sR + 3, 2048 * 1280)
    a(f"s_mov_b64 s[{sDbg}:{sDbg+1}], s[{sR+4}:{sR+5}]")
    a(f"s_cmp_lt_u32 s{sB}, 20")
    a(f"s_cselect_b32 s{sPk}, s{sT}, s{sR}")
    a(f"s_cselect_b32 s{sPk+1}, s{sT+1}, s{sR+1}")
    a(f"s_mov_b32 s{sPk+2}, {1536*1280}")
    a(f"s_cselect_b32 s{sPk+2}, {640*1280}, s{sPk+2}")
    a(f"s_and_b32 s{sPk+1}, s{sPk+1}, 0xffff")
    a(f"s_mov_b32 s{sPk+3}, 0x20000")

    sPB = [sR + 5, sR + 6, sR + 7]
    vPF = 214; PFD = 216
    lab = a.newlabel("L_pf")
    a(f"s_mul_i32 s{sT}, s{sIDX}, 12")
    a(f"s_mul_i32 s{sT+1}, s{sLW}, 3")
    a(f"s_add_u32 s{sT}, s{sT}, s{sT+1}")
    a(f"s_lshr_b32 s{sT+4}, s{sW}, 2")
    a(f"s_xor_b32 s{sT+4}, s{sT+4}, 1")
    a(f"s_mov_b32 s7, 0x20000")
    a(f"s_cmp_ge_u32 s{sT}, 255")
    a(f"s_cbranch_scc1 {lab}_w")
    a(f"s_mov_b32 s4, s{sX}\ns_mov_b32 s5, s{sX+1}\ns_mov_b32 s6, s{sX+2}\ns_movk_i32 s3, 256")
    a(f"v_lshrrev_b32 v{vPF}, 3, v2")
    a(f"v_mul_u32_u24 v{vPF}, 1280, v{vPF}")
    a("v_and_b32 v1, 7, v2")
    a(f"v_lshl_add_u32 v{vPF}, v1, 4, v{vPF}")
    a(f"s_lshr_b32 s{sT+1}, s{sXCD}, 2")
    a(f"s_mul_i32 s{sT+1}, s{sT+1}, {1024*1280}")
    for j in range(3):
        a(f"s_add_u32 s{sT+2}, s{sT}, {j}")
        a(f"s_lshr_b32 s{sT+3}, s{sT+2}, 1")
        a(f"s_mul_i32 s{sT+3}, s{sT+3}, {8*1280}")
        a(f"s_and_b32 s{sT+2}, s{sT+2}, 1")
        a(f"s_lshl_b32 s{sT+2}, s{sT+2}, 7")
        a(f"s_add_u32 s{sT+3}, s{sT+3}, s{sT+2}")
        a(f"s_add_u32 s{sPB[j]}, s{sT+3}, s{sT+1}")
    a(f"s_branch {lab}")
    a.label(f"{lab}_w")
    a(f"s_mov_b32 s4, s{sWq}\ns_mov_b32 s5, s{sWq+1}\ns_mov_b32 s6, s{sWq+2}\ns_mov_b32 s3, {128*3840}")
    a(f"v_lshlrev_b32 v{vPF}, 4, v2")
    a(f"s_sub_u32 s{sT}, s{sT}, 255")
    a(f"s_mul_i32 s{sT}, s{sT}, 3840")
    a(f"s_and_b32 s{sT+1}, s{sXCD}, 3")
    a(f"s_lshl_b32 s{sT+1}, s{sT+1}, 10")
    a(f"s_add_u32 s{sT}, s{sT}, s{sT+1}")
    for j in range(3): a(f"s_add_u32 s{sPB[j]}, s{sT}, {j*3840}")
    a.label(lab)
    a(f"s_mul_i32 s{sT}, s{sT+4}, s3")
    for j in range(3): a(f"s_add_u32 s{sPB[j]}, s{sPB[j]}, s{sT}")
    def pf1(cnt=None, adv=1):
        for j in range(3):
            a(f"buffer_load_dwordx4 {vr(PFD,4)}, v{vPF}, s[4:7], s{sPB[j]} offen")
            for _ in range(adv): a(f"s_add_u32 s{sPB[j]}, s{sPB[j]}, s3")
            if cnt: cnt.op()
    pf1()
    vXE, vXO = 220, 221; vGd = [222, 223, 224]
    SEL = 168
    sXo, sLd, sLdW, sF2 = sR, sR + 1, sR + 2, sR + 3
    a(f"s_lshl_b32 s{sF2}, s{sMT}, 3\ns_add_u32 s{sF2}, s{sF2}, s{sW}\ns_lshl_b32 s{sF2}, s{sF2}, 4\ns_add_u32 s{sF2}, s{sF2}, s{sNG}")
    a(f"s_lshl_b32 s{sF2}, s{sF2}, 7\ns_add_u32 s{sF2}, s{sF2}, {WS_FL2}")
    a(f"s_or_b32 s{sT}, s2, s{sW}")
    a(f"s_cmp_lg_u32 s{sT}, 0")
    a("s_cbranch_scc1 L_nonce_done")
    a(f"s_memrealtime s[{sT}:{sT+1}]")
    a("v_mov_b32 v9, 0")
    a("s_waitcnt lgkmcnt(0)")
    a(f"s_or_b32 s{sT}, s{sT}, 1")
    a(f"v_mov_b32 v10, s{sT}")
    a("s_mov_b64 exec, 1")
    a(f"global_store_dword v9, v10, s[{sDbg}:{sDbg+1}] sc1")
    a("s_mov_b64 exec, -1")
    a.label("L_nonce_done")
    a("v_lshrrev_b32 v9, 4, v2")
    a("v_lshrrev_b32 v10, 3, v2")
    a("v_mul_u32_u24 v10, 1280, v10")
    a("v_and_b32 v11, 7, v2")
    a(f"v_xor_b32 v{vXE}, v11, v9")
    a(f"v_xor_b32 v{vXO}, 4, v{vXE}")
    a(f"v_lshl_add_u32 v{vXE}, v{vXE}, 4, v10")
    a(f"v_lshl_add_u32 v{vXO}, v{vXO}, 4, v10")
    a(f"s_lshl_b32 s{sXo}, s{sMT}, 7")
    a(f"s_lshl_b32 s{sT}, s{sLW}, 5")
    a(f"s_add_u32 s{sXo}, s{sXo}, s{sT}")
    a(f"s_mul_i32 s{sXo}, s{sXo}, 1280")
    a(f"s_lshl_b32 s{sLd}, s{sLW}, 12")
    a(f"s_mul_i32 s{sLdW}, s{sLW}, 3072")
    a(f"s_cmp_ge_u32 s{sW}, 4")
    a("s_cbranch_scc1 L_B")

    vNon = 215
    def nonce_issue(cnt):
        a(f"v_mov_b32 v{vNon}, 0")
        a(f"global_load_dword v{vNon}, v{vNon}, s[{sDbg}:{sDbg+1}] sc1")
        return cnt.op()
    def nonce_get(cnt, tag):
        lab = a.newlabel("L_non")
        cnt.need(tag)
        a(f"s_mov_b32 s{sT+1}, 0")
        a.label(lab)
        a(f"v_readfirstlane_b32 s{sNon}, v{vNon}")
        a(f"s_add_u32 s{sT+1}, s{sT+1}, 1")
        a(f"s_cmp_lg_u32 s{sNon}, 0")
        a(f"s_cbranch_scc1 {lab}_ok")
        a(f"s_cmp_ge_u32 s{sT+1}, 0x20000")
        a(f"s_cbranch_scc1 {lab}_ok")
        a("s_sleep 8")
        a(f"v_mov_b32 v{vNon}, 0")
        a(f"global_load_dword v{vNon}, v{vNon}, s[{sDbg}:{sDbg+1}] sc1")
        a("s_waitcnt vmcnt(0)")
        a(f"s_branch {lab}")
        a.label(f"{lab}_ok")
    def common_late_setup():
        for t in range(3):
            a(f"v_add_u32 v10, {64*t}, v2")
            a(f"v_mul_u32_u24 v11, 5462, v10")
            a(f"v_lshrrev_b32 v11, 16, v11")
            a(f"v_mul_u32_u24 v9, 12, v11")
            a(f"v_sub_u32 v9, v10, v9")
            a(f"v_mul_u32_u24 v11, 3072, v11")
            a(f"v_lshl_add_u32 v{vGd[t]}, v9, 4, v11")
        a("v_lshrrev_b32 v9, 4, v2")
        a("v_and_b32 v9, 1, v9")
        a("v_and_b32 v10, 15, v2")
        a("v_cmp_eq_u32 vcc, v10, v9")
        a("v_mov_b32 v10, 0x3f803f80")
        a.nop(1)
        for r in range(4): a(f"v_cndmask_b32 v{SEL+r}, 0, v10, vcc")
    def issue2(st, cnt):
        base = GSLOT[st % 4]
        for j in range(4):
            a(f"s_add_u32 m0, s{sLd}, {base + j*1024}")
            a(f"s_add_u32 s{sT}, s{sXo}, {j*8*1280 + st*128}")
            a(f"buffer_load_dwordx4 v{vXO if j & 1 else vXE}, {X_}, s{sT} offen lds")
        a(f"s_add_u32 s{sT}, s{sG2}, {st*64*3072}")
        for mat in range(2):
            for t in range(3):
                a(f"s_add_u32 m0, s{sLdW}, {base + 16384 + mat*12288 + t*1024}")
                a.nop(1)
                a(f"buffer_load_dwordx4 v{vGd[t]}, {WU_ if mat else WG_}, s{sT} offen lds")
        return cnt.op(10)

    pf1(adv=0)
    XF = [[8, 12], [16, 20]]; WF = [[24, 28], [32, 36]]
    vXA = [[[40 + (hi * 2 + mi) * 4 + ks for ks in range(4)] for mi in range(2)] for hi in range(2)]
    vWA = [[56 + hi * 2 + ni for ni in range(2)] for hi in range(2)]
    RSD = 60
    ACC = 64
    T = list(range(128, 168))
    CSD = 172
    U = [176, 177, 178, 179]
    vPK = [185, 186, 187, 188]; vPKr = 189
    sWM, sWN, sPKc, sPKl, sPKb = sR + 4, sR + 5, sR + 6, sR + 7, sC
    common_late_setup()
    a(f"s_and_b32 s{sWM}, s{sW}, 1")
    a(f"s_lshr_b32 s{sWN}, s{sW}, 1")
    a("v_lshrrev_b32 v5, 1, v3")
    a("v_and_b32 v5, 7, v5")
    for mi in range(2):
        a(f"s_xor_b32 s{sT}, s{sWN}, {mi}")
        a(f"s_lshl_b32 s{sT+1}, s{sWM}, 1")
        a(f"s_add_u32 s{sT}, s{sT}, s{sT+1}")
        a(f"s_lshl_b32 s{sT}, s{sT}, 12")
        a(f"v_lshl_add_u32 v6, v3, 7, s{sT}")
        for ks in range(4):
            a(f"v_or_b32 v7, {2*ks}, v4")
            a(f"v_xor_b32 v7, v7, v5")
            a(f"v_lshl_add_u32 v{vXA[0][mi][ks]}, v7, 4, v6")
            a(f"v_add_u32 v{vXA[1][mi][ks]}, 0x10000, v{vXA[0][mi][ks]}")
    a("v_lshrrev_b32 v5, 2, v2")
    a("v_and_b32 v5, 3, v5")
    a("v_lshl_add_u32 v6, v4, 3, v5")
    a("v_lshlrev_b32 v6, 8, v6")
    a("v_lshrrev_b32 v7, 4, v2")
    a("v_and_b32 v7, 1, v7")
    a("v_lshl_add_u32 v6, v7, 5, v6")
    a("v_and_b32 v7, 3, v2")
    a("v_lshl_add_u32 v6, v7, 3, v6")
    a("v_add_u32 v6, 16384, v6")
    for ni in range(2):
        a(f"s_xor_b32 s{sT}, s{sWM}, {ni}")
        a(f"s_lshl_b32 s{sT+1}, s{sWN}, 1")
        a(f"s_add_u32 s{sT}, s{sT}, s{sT+1}")
        a(f"v_xor_b32 v7, s{sT}, v5")
        a(f"v_lshl_add_u32 v{vWA[0][ni]}, v7, 6, v6")
        a(f"v_add_u32 v{vWA[1][ni]}, 0x10000, v{vWA[0][ni]}")
    for r in range(64): a(f"v_mov_b32 v{ACC+r}, 0")
    for r in range(4): a(f"v_mov_b32 v{CSD+r}, 0\nv_mov_b32 v{RSD+r}, 0")
    a(f"s_mov_b32 s{sPKb}, s{sA}")
    a(f"s_mul_i32 s{sT+2}, s{sB}, 10")
    a(f"s_sub_u32 s{sT+2}, s{sA}, s{sT+2}")
    a(f"s_cmp_lt_u32 s{sB}, 20")
    a(f"s_cselect_b32 s{sT+3}, 0, 20")
    a(f"s_cselect_b64 s[{sM}:{sM+1}], -1, 0")
    a(f"s_sub_u32 s{sT+3}, s{sB}, s{sT+3}")
    a(f"s_lshl_b32 s{sT+3}, s{sT+3}, 5")
    a(f"s_lshl_b32 s{sPKc}, s{sT+2}, 7")
    a(f"s_lshl_b32 s{sPKl}, s{sW}, 12")
    a(f"s_add_u32 s{sPKl}, s{sPKl}, {PKS}")
    a("v_lshrrev_b32 v5, 3, v2")
    a("v_and_b32 v6, 7, v2")
    for t in range(4):
        a(f"v_add_u32 v7, s{sT+3}, v5")
        if t: a(f"v_add_u32 v7, {8*t}, v7")
        a(f"v_mul_u32_u24 v{U[0]}, 1639, v7")
        a(f"v_lshrrev_b32 v{U[0]}, 16, v{U[0]}")
        a(f"v_mul_u32_u24 v{U[0]}, 40, v{U[0]}")
        a(f"v_sub_u32 v{U[0]}, v7, v{U[0]}")
        a(f"v_cmp_le_u32 vcc, 24, v{U[0]}")
        a(f"v_cmp_le_u32 s[{sT+6}:{sT+7}], 20, v{U[0]}")
        a(f"v_mov_b32 v{U[1]}, 16")
        a(f"v_cndmask_b32 v{U[1]}, 0, v{U[1]}, s[{sT+6}:{sT+7}]")
        a(f"v_cndmask_b32 v{U[1]}, v{U[1]}, -4, vcc")
        a(f"v_cndmask_b32 v{U[1]}, 0, v{U[1]}, s[{sM}:{sM+1}]")
        a(f"v_add_u32 v7, v7, v{U[1]}")
        a("v_mul_u32_u24 v7, 1280, v7")
        a(f"v_lshl_add_u32 v{vPK[t]}, v6, 4, v7")
    a("v_lshrrev_b32 v5, 4, v2")
    a("v_lshrrev_b32 v6, 2, v2")
    a("v_and_b32 v6, 3, v6")
    a("v_lshl_add_u32 v5, v5, 3, v6")
    a("v_lshlrev_b32 v5, 7, v5")
    a("v_and_b32 v6, 3, v2")
    a("v_lshl_add_u32 v5, v6, 3, v5")
    a(f"v_add_u32 v{vPKr}, s{sPKl}, v5")
    def gprefetch_setup():
        a(f"s_and_b32 s{sT}, s{sW}, 1")
        a(f"s_cmp_eq_u32 s{sT}, 0")
        a(f"s_cselect_b32 s4, s{sWg}, s{sWu}")
        a(f"s_cselect_b32 s5, s{sWg+1}, s{sWu+1}")
        a(f"s_mov_b32 s6, {640*3072}")
        a(f"s_lshl_b32 s{sT}, s{sIDX}, 1")
        a(f"s_lshr_b32 s{sT+1}, s{sLW}, 1")
        a(f"s_add_u32 s{sT}, s{sT}, s{sT+1}")
        a(f"s_mul_i32 s3, s{sT}, {4*3072}")
        a(f"s_and_b32 s{sT}, s{sXCD}, 3")
        a(f"s_mul_i32 s{sT}, s{sT}, 768")
        a(f"s_add_u32 s3, s3, s{sT}")
        a(f"v_lshrrev_b32 v{vPF}, 4, v2")
        a(f"v_mul_u32_u24 v{vPF}, 3072, v{vPF}")
        a("v_and_b32 v1, 15, v2")
        a(f"v_lshl_add_u32 v{vPF}, v1, 4, v{vPF}")
    gprefetch_setup()
    CV = Cnt(a, "vmcnt", 63); tags = {}
    def gprefetch(n):
        if "nopf2" in exp: return
        a(f"s_add_u32 s{sT}, s3, {(n // 3)*256*3072}")
        a(f"buffer_load_dwordx4 {vr(PFD,4)}, v{vPF}, s[4:7], s{sT} offen offset:{(n % 3)*256}")
        CV.op()
    def pack_issue(t):
        a(f"s_add_u32 m0, s{sPKl}, {t*1024}")
        a.nop(1)
        a(f"buffer_load_dwordx4 v{vPK[t]}, {PK_}, s{sPKc} offen lds")
        tags["pack"] = CV.op()
    def pack_finish():
        lab = a.newlabel("L_pk")
        a(f"s_cmp_eq_u32 s{sW}, 3")
        a(f"s_cbranch_scc1 {lab}")
        a(f"s_cmp_ge_u32 s{sPKb}, 680")
        a(f"s_cbranch_scc1 {lab}")
        a(f"s_lshl_b32 s{sT+1}, s{sPKb}, 12")
        a(f"s_add_u32 s{sT+1}, s{sT+1}, {WS_WP}")
        a("v_lshlrev_b32 v6, 4, v2")
        a(f"s_waitcnt vmcnt({CV.issued - 1 - tags['pack']})")
        for n in range(4):
            for h in range(2):
                a(f"ds_read_b64_tr_b16 {vr(T[4*n]+2*h,2)}, v{vPKr} offset:{h*512 + n*32}")
        a("s_waitcnt lgkmcnt(0)")
        for n in range(4):
            a(f"buffer_store_dwordx4 {vr(T[4*n],4)}, v6, {WS_}, s{sT+1} offen offset:{n*1024}{SC}")
        a.label(lab)
    def rd1(st, ks, buf):
        base = (st % NST) * STG
        hi = base // 65536; b = base % 65536
        X = lambda mi: (("X", mi), f"ds_read_b128 {vr(XF[buf][mi],4)}, v{vXA[hi][mi][ks]} offset:{b}")
        W = lambda ni, h: (("W", ni), f"ds_read_b64_tr_b16 {vr(WF[buf][ni]+2*h,2)}, v{vWA[hi][ni]} offset:{b + ks*4096 + h*1024}")
        return [X(0), W(0, 0), W(0, 1), W(1, 0), W(1, 1), X(1)]
    PKI, GP0 = opt("pki", 2), opt("gp", 3)
    def p1_loop(vtype):
        CV.issued = CV.done = 0
        L1 = Cnt(a, "lgkmcnt", 15)
        tg = [{}, {}]
        def emit(lst, buf):
            for key, l in lst:
                a(l); tg[buf][key] = L1.op()
        a("s_barrier")
        ST("A", 1); ST("B", 1)
        emit(rd1(0, 0, 0), 0)
        for st in range(10):
            for ks in range(4):
                buf = (st * 4 + ks) & 1
                if ks < 3: nxt = rd1(st, ks + 1, buf ^ 1)
                elif st < 9: nxt = rd1(st + 1, 0, buf ^ 1)
                else: nxt = []
                if ks == 3 and st < 9:
                    L1.need(L1.issued - 1)
                    a("s_barrier")
                    ST("B", st + 2)
                n = 0
                for mi in range(2):
                    for ni in range(2):
                        d = ACC + (mi * 2 + ni) * 16
                        A, B = (XF[buf][mi], WF[buf][ni]) if vtype else (WF[buf][ni], XF[buf][mi])
                        L1.need(max(tg[buf][("X", mi)], tg[buf][("W", ni)]))
                        a(f"{M32} {vr(d,16)}, {vr(A,4)}, {vr(B,4)}, {vr(d,16)}")
                        emit(nxt[n * 2: n * 2 + 2], buf ^ 1)
                        if n == 3:
                            gi = (st - GP0) * 2 + (ks >> 1)
                            if 0 <= gi < 9 and (ks & 1): gprefetch(gi)
                            if 0 <= st - PKI < 4 and ks == 0: pack_issue(st - PKI)
                            if st == 7 and ks == 1: pack_finish()
                            if st == 8 and ks == 1: tags["non"] = nonce_issue(CV)
                        if n == 2: a(f"{M16} {vr(CSD,4)}, {vr(SEL,4)}, {vr(WF[buf][0],4)}, {vr(CSD,4)}")
                        n += 1
                a(f"{M16} {vr(RSD,4)}, {vr(SEL,4)}, {vr(XF[buf][0],4)}, {vr(RSD,4)}")
        ST("A", 2); ST("B", 11)
        a(f"s_lshl_b32 s{sT}, s{sWN}, 1\ns_add_u32 s{sT}, s{sT}, s{sWM}\ns_lshl_b32 s{sT}, s{sT}, 7\ns_add_u32 s{sT}, s{sT}, {STATS+1024}")
        a(f"v_lshl_add_u32 v{U[0]}, v3, 2, s{sT}")
        a(f"s_lshl_b32 s{sT}, s{sWM}, 1\ns_add_u32 s{sT}, s{sT}, s{sWN}\ns_lshl_b32 s{sT}, s{sT}, 7")
        a(f"v_lshl_add_u32 v{U[1]}, v3, 2, s{sT}")
        a.nop(2)
        a("s_mov_b64 exec, 0xffff")
        a(f"ds_write_b32 v{U[0]}, v{CSD}")
        a(f"ds_write_b32 v{U[0]}, v{CSD+1} offset:64")
        a(f"ds_write_b32 v{U[1]}, v{RSD} offset:1536")
        a(f"ds_write_b32 v{U[1]}, v{RSD+1} offset:{1536+64}")
        a("s_mov_b64 exec, -1")
        a("s_waitcnt lgkmcnt(0)")
        a("s_barrier")
        nonce_get(CV, tags["non"])
        a(f"s_cmp_eq_u32 s{sNG}, 15")
        a("s_cbranch_scc1 L_A_dummy")
    def blk(dst, x, y, xo):
        a(f"s_xor_b32 s{dst}, s{y}, {xo}")
        a(f"s_lshl_b32 s{sT+7}, s{x}, 1")
        a(f"s_add_u32 s{dst}, s{dst}, s{sT+7}")
    sH, sQB, sKV = sA, sB, sC
    def p3_ids():
        a(f"s_lshl_b32 s{sH}, s{sXCD}, 2")
        a(f"s_and_b32 s{sT}, s{sIDX}, 3")
        a(f"s_add_u32 s{sH}, s{sH}, s{sT}")
        a(f"s_lshr_b32 s{sQB}, s{sIDX}, 2")
        a(f"s_mul_i32 s{sKV}, s{sH}, {16*CHUNK}")
    VA = Cnt(a, "vmcnt", 63); tag2 = {}
    def capture(fn):
        n0 = len(a.lines); fn(); L = a.lines[n0:]; del a.lines[n0:]
        return L
    def atoms(lines):
        out = []; cur = None
        for l in lines:
            t = l.strip()
            if t == "; {": cur = []
            elif t == "; }": out.append(cur); cur = None
            elif cur is not None: cur.append(l)
            else: out.append([l])
        return out
    def marker_prefill():
        a.c("{")
        p3_ids()
        a("v_mov_b32 v12, -1\nv_mov_b32 v13, -1\nv_mov_b32 v14, -1\nv_mov_b32 v15, -1")
        a(f"s_lshr_b32 s{sT+1}, s{sH}, 1")
        a(f"s_mul_i32 s{sT+1}, s{sT+1}, {5*256}")
        a(f"s_add_u32 s{sT+1}, s{sT+1}, {WS_O}")
        a(f"s_lshl_b32 s{sT+3}, s{sQB}, 4")
        a(f"s_lshl_b32 s{sT+4}, s{sW}, 2")
        a(f"s_add_u32 s{sT+3}, s{sT+3}, s{sT+4}")
        a(f"s_mul_i32 s{sT+3}, s{sT+3}, 20480")
        a(f"s_add_u32 s{sT+1}, s{sT+1}, s{sT+3}")
        a(f"s_and_b32 s{sT+3}, s{sH}, 1")
        a(f"s_mul_i32 s{sT+2}, s{sT+3}, {3*256}")
        a(f"s_add_u32 s{sT+2}, s{sT+2}, s{sT+1}")
        a(f"s_lshl_b32 s{sT+3}, s{sT+3}, 3")
        a(f"s_add_u32 s{sT+1}, s{sT+1}, s{sT+3}")
        a("v_lshrrev_b32 v9, 4, v2")
        a("v_mul_u32_u24 v9, 20480, v9")
        a("v_and_b32 v10, 15, v2")
        a("v_lshl_add_u32 v9, v10, 4, v9")
        a(f"buffer_store_dwordx4 v[12:15], v9, {WS_}, s{sT+2} offen{SC}")
        a(f"buffer_store_dwordx4 v[12:15], v9, {WS_}, s{sT+2} offen offset:256{SC}")
        a(f"buffer_store_dwordx2 v[12:13], v9, {WS_}, s{sT+1} offen offset:512{SC}")
        a.c("}")
    SEGF = [0.42, 0.30, 0.28]
    def a_segments(body):
        at = atoms(body + capture(marker_prefill))
        tot = sum(len(x) for x in at)
        VA.issued = VA.done = 0
        done = 0; acc = 0.0
        for seg in range(4):
            dma = atoms(capture(lambda: tag2.__setitem__(seg + 2, issue2(seg + 2, VA)))) if seg >= 1 else []
            units = []; cur = []
            for x in dma:
                cur += x
                if "buffer_load" in x[0]: units.append(cur); cur = []
            mine = []
            if seg < 3:
                acc += SEGF[seg]
                while at and (done < acc * tot - 1e-9 or seg == 2):
                    done += len(at[0]); mine.append(at.pop(0))
            per = -(-len(mine) // max(len(units), 1))
            if not units:
                for x in mine: a.lines += x
            for u in units:
                a.lines += u
                for x in mine[:per]: a.lines += x
                mine = mine[per:]
            if seg == 0: a("s_waitcnt lgkmcnt(0)")
            if seg == 2: VA.need(tag2[3])
            if seg == 3: a("s_waitcnt vmcnt(10)")
            if seg < 3: a("s_barrier")
        VA.done = VA.issued - 10
        a("s_branch L_A_ld")

    a(f"s_cmp_ge_u32 s{sNT}, 10")
    a("s_cbranch_scc1 L_p1_vtype")
    p1_loop(False)
    NM = [T[0], T[1]]; RS = [T[2], T[3]]
    CSV = [[T[8] + (ni * 4 + g) * 4 for g in range(4)] for ni in range(2)]
    K16 = [8, 9]; K8 = [20, 21]; FL = [12, 13]
    a(f"s_cmp_lt_u32 s{sNT}, 5")
    a(f"s_cselect_b32 s{sB}, {f32bits(QSCALE):#x}, 1.0")
    a(f"s_cselect_b32 s{sC}, 0, 5")
    a(f"s_mov_b32 s{sT+6}, {WS_KV}")
    a(f"s_cselect_b32 s{sT+6}, {WS_Q}, s{sT+6}")
    a(f"s_sub_u32 s{sC}, s{sNT}, s{sC}")
    a(f"s_lshl_b32 s{sC}, s{sC}, 7")
    for mi in range(2):
        blk(sA, sWM, sWN, mi)
        a(f"s_lshl_b32 s{sA}, s{sA}, 5")
        a(f"v_add_u32 v11, s{sA}, v3")
        a(f"v_lshlrev_b32 v{22+mi}, 2, v11")
        a(f"v_lshlrev_b32 v{K16[mi]}, 4, v11")
        a(f"v_lshlrev_b32 v{K8[mi]}, 3, v11")
    for ni in range(2):
        blk(sA, sWN, sWM, ni)
        a(f"s_lshl_b32 s{sA}, s{sA}, 5")
        a(f"v_lshl_add_u32 v10, v4, 2, s{sA}")
        a(f"v_lshlrev_b32 v10, 2, v10")
        for g in range(4):
            a(f"ds_read_b128 {vr(CSV[ni][g],4)}, v10 offset:{STATS+1024+g*32}")
        a(f"s_add_u32 s{sA}, s{sA}, s{sC}")
        a(f"v_lshl_add_u32 v{FL[ni]}, v4, 3, s{sA}")
    a(f"s_mul_i32 s{sA}, s{sMT}, {CHUNK}")
    a(f"s_add_u32 s{sA}, s{sA}, s{sT+6}")
    a(f"s_add_u32 s{sC}, s{sA}, {16*CHUNK}")
    a(f"s_mov_b32 s{sPKc}, {16*CHUNK}")
    a("s_barrier")
    ST("A", 3)
    n0 = len(a.lines)
    for mi in range(2):
        a(f"ds_read_b32 v{NM[mi]}, v{22+mi} offset:{STATS}")
        a(f"ds_read_b32 v{RS[mi]}, v{22+mi} offset:{STATS+512}")
    a("s_waitcnt lgkmcnt(0)")
    for mi in range(2): a(f"v_mul_f32 v{RS[mi]}, s{sB}, v{RS[mi]}")
    for ni in range(2):
        for gp in range(2):
            a(f"v_add_u32 v14, {16*gp}, v{FL[ni]}")
            a(f"v_mul_u32_u24 v15, 1639, v14")
            a(f"v_lshrrev_b32 v15, 16, v15")
            a(f"v_mul_u32_u24 v16, 40, v15")
            a(f"v_sub_u32 v16, v14, v16")
            a(f"v_lshrrev_b32 v16, 3, v16")
            a(f"v_cmp_lt_u32 vcc, 2, v16")
            a(f"v_cmp_eq_u32 s[{sM}:{sM+1}], 2, v16")
            a(f"v_lshlrev_b32 v15, 1, v15")
            a(f"v_cndmask_b32 v14, 0, 1, vcc")
            a(f"v_add_u32 v15, v15, v14")
            a(f"v_mul_u32_u24 v14, 3, v14")
            a(f"v_sub_u32 v16, v16, v14")
            a(f"v_mul_lo_u32 v15, v15, s{sPKc}")
            a(f"v_lshl_add_u32 v15, v16, 11, v15")
            for mi in range(2):
                d = ACC + (mi * 2 + ni) * 16
                for g in (2 * gp, 2 * gp + 1):
                    for e in range(4):
                        a(f"v_fmac_f32 v{d+4*g+e}, v{CSV[ni][g]+e}, v{NM[mi]}")
                q = d + 8 * gp
                for e in range(8): a(f"v_mul_f32 v{q+e}, v{q+e}, v{RS[mi]}")
                a(f"v_cvt_pk_bf16_f32 v{q}, v{q}, v{q+1}")
                a(f"v_cvt_pk_bf16_f32 v{q+1}, v{q+2}, v{q+3}")
                a(f"v_cvt_pk_bf16_f32 v{q+2}, v{q+4}, v{q+5}")
                a(f"v_cvt_pk_bf16_f32 v{q+3}, v{q+6}, v{q+7}")
                a(f"v_add_u32 v17, v15, v{K16[mi]}")
                a(f"v_add_u32 v18, v15, v{K8[mi]}")
                a(f"v_permlane32_swap_b32 v{q}, v{q+2}")
                a(f"v_permlane32_swap_b32 v{q+1}, v{q+3}")
                a.c("{")
                a(f"s_andn2_b64 exec, exec, s[{sM}:{sM+1}]")
                a(f"buffer_store_dwordx4 {vr(q,4)}, v17, {WS_}, s{sA} offen{SC}")
                a(f"s_mov_b64 exec, s[{sM}:{sM+1}]")
                lab = a.newlabel("L_qk_ns")
                a(f"s_cbranch_execz {lab}")
                a(f"buffer_store_dwordx2 {vr(q,2)}, v18, {WS_}, s{sA} offen{SC}")
                a(f"buffer_store_dwordx2 {vr(q+2,2)}, v18, {WS_}, s{sC} offen{SC}")
                a.label(lab)
                a("s_mov_b64 exec, -1")
                a.c("}")
    body = a.lines[n0:]; del a.lines[n0:]
    a_segments(body)
    a.label("L_p1_vtype")
    p1_loop(True)
    CSL = [40, 41]; VB = [42, 43]
    NMV = [[T[8] + g * 4 for g in range(4)], [8 + g * 4 for g in range(4)]]
    RSV = [[T[24] + g * 4 for g in range(4)], [24 + g * 4 for g in range(4)]]
    a(f"s_sub_u32 s{sC}, s{sNT}, 10")
    a(f"s_lshl_b32 s{sC}, s{sC}, 7")
    a(f"s_mov_b32 s{sB}, {16*CHUNK}")
    for ni in range(2):
        blk(sA, sWN, sWM, ni)
        a(f"s_lshl_b32 s{sA}, s{sA}, 5")
        a(f"v_add_u32 v44, s{sA}, v3")
        a(f"v_lshlrev_b32 v45, 2, v44")
        a(f"ds_read_b32 v{CSL[ni]}, v45 offset:{STATS+1024}")
        a(f"v_add_u32 v44, s{sC}, v44")
        a(f"v_mul_u32_u24 v45, 3277, v44")
        a(f"v_lshrrev_b32 v45, 16, v45")
        a(f"v_mul_u32_u24 v46, 20, v45")
        a(f"v_sub_u32 v46, v44, v46")
        a(f"v_mul_lo_u32 v45, v45, s{sB}")
        a(f"v_lshl_add_u32 v45, v46, 4, v45")
        a(f"v_mul_u32_u24 v46, 320, v4")
        a(f"v_add_u32 v{VB[ni]}, v45, v46")
    sVo = [sB, sC]
    for mi in range(2):
        blk(sA, sWM, sWN, mi)
        a(f"s_lshl_b32 s{sT}, s{sA}, 7")
        a(f"v_lshl_add_u32 v{47+mi}, v4, 4, s{sT}")
        a(f"s_mul_i32 s{sA}, s{sA}, {4*320}")
        a(f"s_mul_i32 s{sT}, s{sMT}, {CHUNK}")
        a(f"s_add_u32 s{sA}, s{sA}, s{sT}")
        a(f"s_add_u32 s{sVo[mi]}, s{sA}, {WS_KV+5120}")
    a("s_barrier")
    ST("A", 3)
    n0 = len(a.lines)
    for mi in range(2):
        for g in range(4):
            a(f"ds_read_b128 {vr(NMV[mi][g],4)}, v{47+mi} offset:{STATS+g*32}")
            a(f"ds_read_b128 {vr(RSV[mi][g],4)}, v{47+mi} offset:{STATS+512+g*32}")
        if mi == 0: a("s_waitcnt lgkmcnt(7)")
    a("s_waitcnt lgkmcnt(8)")
    for mi in range(2):
        if mi == 1: a("s_waitcnt lgkmcnt(0)")
        for ni in range(2):
            d = ACC + (mi * 2 + ni) * 16
            for gp in range(2):
                for g in (2 * gp, 2 * gp + 1):
                    for e in range(4): a(f"v_fmac_f32 v{d+4*g+e}, v{NMV[mi][g]+e}, v{CSL[ni]}")
                for g in (2 * gp, 2 * gp + 1):
                    for e in range(4): a(f"v_mul_f32 v{d+4*g+e}, v{d+4*g+e}, v{RSV[mi][g]+e}")
                q = d + 8 * gp
                a(f"v_cvt_pk_bf16_f32 v{q}, v{q}, v{q+1}")
                a(f"v_cvt_pk_bf16_f32 v{q+1}, v{q+2}, v{q+3}")
                a(f"v_cvt_pk_bf16_f32 v{q+2}, v{q+4}, v{q+5}")
                a(f"v_cvt_pk_bf16_f32 v{q+3}, v{q+6}, v{q+7}")
                a.nop(2)
                a(f"v_permlane32_swap_b32 v{q}, v{q+2}")
                a(f"v_permlane32_swap_b32 v{q+1}, v{q+3}")
                a(f"buffer_store_dwordx4 {vr(q,4)}, v{VB[ni]}, {WS_}, s{sVo[mi]} offen offset:{gp*640}{SC}")
    body = a.lines[n0:]; del a.lines[n0:]
    a_segments(body)
    a.label("L_A_dummy")
    a("s_barrier")
    a_segments([])
    a.label("L_A_ld")
    a("v_lshlrev_b32 v8, 4, v2")
    def kv_dma(n0):
        for j in range(10):
            a(f"s_lshl_b32 s{sT}, s{sW}, 10")
            a(f"s_add_u32 s{sT}, s{sT}, {(n0 + 4*j)*1024}")
            a(f"s_mov_b32 m0, s{sT}")
            a(f"s_add_u32 s{sT}, s{sT}, s{sKV}")
            a(f"s_add_u32 s{sT}, s{sT}, {WS_KV}")
            a(f"buffer_load_dwordx4 v8, {WS_}, s{sT} offen lds")
        VA.op(10)
    nxt2 = 6
    for st in range(3, 9):
        if st + 1 >= 5: VA.need(tag2[st + 1])
        a("s_barrier")
        if st == 3:
            lab = a.newlabel("L_f1add")
            a(f"s_cmp_lg_u32 s{sW}, 0")
            a(f"s_cbranch_scc1 {lab}")
            a(f"s_lshl_b32 s{sT}, s2, 7")
            a(f"s_add_u32 s{sT}, s{sT}, {WS_FL1}")
            a("v_mov_b32 v9, 0")
            a(f"v_mov_b32 v10, s{sNon}")
            a("s_mov_b64 exec, 1")
            a(f"buffer_store_dword v10, v9, {WS_}, s{sT} offen{SC}")
            a("s_mov_b64 exec, -1")
            a.label(lab)
        for _ in range(1 if st == 3 else 2):
            if nxt2 <= min(st + 4, 9):
                tag2[nxt2] = issue2(nxt2, VA); nxt2 += 1
        if st == 6: kv_dma(40)
        if st == 7: kv_dma(0)
        if st == 8:
            for j in range(3):
                a(f"s_add_u32 s{sT}, s{sW}, {4*j}")
                a(f"s_min_u32 s{sT}, s{sT}, 9")
                a(f"s_lshl_b32 s{sT+1}, s{sT}, 10")
                a(f"s_add_u32 m0, s{sT+1}, {QOFF}")
                a(f"s_cmp_ge_u32 s{sT}, 5")
                a(f"s_cselect_b32 s{sT}, 5120, 0")
                a(f"s_add_u32 s{sT}, s{sT}, s{sT+1}")
                a(f"s_mul_i32 s{sT+1}, s{sQB}, {2*CHUNK}")
                a(f"s_add_u32 s{sT}, s{sT}, s{sT+1}")
                a(f"s_add_u32 s{sT}, s{sT}, s{sKV}")
                a(f"s_add_u32 s{sT}, s{sT}, {WS_Q}")
                a(f"buffer_load_dwordx4 v8, {WS_}, s{sT} offen lds")
    a("s_mov_b32 s3, 0")
    a("s_branch L_p3")

    a.label("L_B")
    for j in range(3): a(f"s_add_u32 s{sPB[j]}, s{sPB[j]}, s3\ns_add_u32 s{sPB[j]}, s{sPB[j]}, s3")
    sWo = sR + 4
    vWv = 7
    a("v_lshrrev_b32 v9, 4, v2")
    a(f"v_mul_u32_u24 v{vWv}, 3840, v9")
    a("v_lshrrev_b32 v10, 2, v2")
    a("v_and_b32 v10, 3, v10")
    a("v_xor_b32 v10, v10, v9")
    a(f"v_lshl_add_u32 v{vWv}, v10, 6, v{vWv}")
    a("v_and_b32 v10, 3, v2")
    a(f"v_lshl_add_u32 v{vWv}, v10, 4, v{vWv}")
    a(f"s_mul_i32 s{sWo}, s{sLW}, {16*3840}")
    a(f"s_lshl_b32 s{sT}, s{sNT}, 8")
    a(f"s_add_u32 s{sWo}, s{sWo}, s{sT}")
    VM = Cnt(a, "vmcnt", 63)
    def issue1(st):
        base = (st % NST) * STG
        for j in range(4):
            a(f"s_add_u32 m0, s{sLd}, {base + j*1024}")
            a(f"s_add_u32 s{sT}, s{sXo}, {j*8*1280 + st*128}")
            a(f"buffer_load_dwordx4 v{vXO if j & 1 else vXE}, {X_}, s{sT} offen lds")
            a(f"s_add_u32 m0, s{sLd}, {base + 16384 + j*1024}")
            a(f"s_add_u32 s{sT}, s{sWo}, {(st*64 + j*4)*3840}")
            a(f"buffer_load_dwordx4 v{vWv}, {WQ_}, s{sT} offen lds")
        return VM.op(8)
    tag1 = {}
    SA = [[12 + hi * 4 + j for j in range(4)] for hi in range(2)]
    SD = 20; LS = [36, 37]; LU = [40, 41, 42, 43]
    GX = [8, 12]
    GW = [[16 + (b * 6 + n) * 4 for n in range(6)] for b in range(2)]
    GACC = 64
    gXA = [[184 + sl * 4 + ks for ks in range(4)] for sl in range(4)]
    gWA = [[200 + sl * 3 + p for p in range(3)] for sl in range(4)]
    GCS = [160, 164]; NM2, RS2 = 180, 181; POLL = 225
    sCT = [sA, sB, sC]
    a("v_lshrrev_b32 v9, 1, v3")
    a("v_and_b32 v9, 7, v9")
    a(f"v_lshl_add_u32 v10, v3, 7, s{sLd}")
    for ks in range(4):
        a(f"v_or_b32 v11, {2*ks}, v4")
        a(f"v_xor_b32 v11, v11, v9")
        a(f"v_lshl_add_u32 v{gXA[3][ks]}, v11, 4, v10")
        for sl in range(3): a(f"v_add_u32 v{gXA[sl][ks]}, {GSLOT[sl]}, v{gXA[3][ks]}")
    a("v_lshlrev_b32 v11, 2, v4")
    a("v_xor_b32 v9, v9, v11")
    for j in range(4):
        a(f"v_xor_b32 v11, {j}, v9")
        a(f"v_lshl_add_u32 v{SA[0][j]}, v11, 4, v10")
        a(f"v_add_u32 v{SA[1][j]}, 0x10000, v{SA[0][j]}")
    for r in LS: a(f"v_mov_b32 v{r}, 0")
    a("s_waitcnt vmcnt(0)")
    tag1[0] = issue1(0)
    tag1[1] = issue1(1)
    common_late_setup()
    a("v_lshrrev_b32 v5, 2, v2")
    a("v_and_b32 v5, 3, v5")
    a("v_lshl_add_u32 v5, v4, 3, v5")
    a("v_mul_u32_u24 v5, 192, v5")
    a("v_lshrrev_b32 v6, 4, v2")
    a("v_and_b32 v6, 1, v6")
    a("v_lshl_add_u32 v5, v6, 5, v5")
    a("v_and_b32 v6, 3, v2")
    a("v_lshl_add_u32 v5, v6, 3, v5")
    for p in range(3):
        a(f"s_add_u32 s{sCT[p]}, s{sLW}, {p}")
        for _ in range(2):
            a(f"s_cmp_ge_u32 s{sCT[p]}, 3")
            a(f"s_cselect_b32 s{sT}, 3, 0")
            a(f"s_sub_u32 s{sCT[p]}, s{sCT[p]}, s{sT}")
        a(f"s_lshl_b32 s{sT}, s{sCT[p]}, 6")
        a(f"s_add_u32 s{sT}, s{sT}, 16384")
        a(f"v_add_u32 v{gWA[3][p]}, s{sT}, v5")
        for sl in range(3): a(f"v_add_u32 v{gWA[sl][p]}, {GSLOT[sl]}, v{gWA[3][p]}")
    for r in range(96): a(f"v_mov_b32 v{GACC+r}, 0")
    for r in range(8): a(f"v_mov_b32 v{GCS[0]+r}, 0")
    a(f"v_lshlrev_b32 v{POLL+4}, 7, v2")
    def f1_loads():
        for q in range(4):
            a(f"s_mov_b32 s{sT}, {WS_FL1 + q*8192}")
            a(f"buffer_load_dword v{POLL+q}, v{POLL+4}, {WS_}, s{sT} offen{SC}")
    def ssq_ops():
        ops = []
        for j in range(4):
            ops.append(f"s_waitcnt lgkmcnt({3-j})")
            for r in range(4):
                x = SD + 4 * j + r; u0, u1 = LU[2 * (r & 1)], LU[2 * (r & 1) + 1]
                ops += [f"v_lshlrev_b32 v{u0}, 16, v{x}", f"v_and_b32 v{u1}, 0xffff0000, v{x}",
                        f"v_fmac_f32 v{LS[0]}, v{u0}, v{u0}", f"v_fmac_f32 v{LS[1]}, v{u1}, v{u1}"]
        return ops
    VM.need(tag1[0])
    a("s_barrier")
    issued = 1
    tagB = {}
    PF34 = opt("pfc", 2)
    for st in range(10):
        base = (st % NST) * STG
        for j in range(4): a(f"ds_read_b128 {vr(SD+4*j,4)}, v{SA[base // 65536][j]} offset:{base % 65536}")
        n0 = len(a.lines)
        while issued < min(st + 3, 9):
            issued += 1; tag1[issued] = issue1(issued)
        if st == PF34: pf1(VM); pf1(VM, adv=0)
        if st == 7: tnon = nonce_issue(VM)
        if st == 8: tagB[0] = issue2(0, VM)
        dma = a.lines[n0:]; del a.lines[n0:]
        ops = ssq_ops()
        nd = sum("buffer_load" in l for l in dma)
        per = -(-len(ops) // max(nd - 1, 1)) if nd else len(ops)
        k = 0
        for l in dma:
            a.lines.append(l)
            if "buffer_load" in l:
                k += 1
                if k >= 2:
                    for o in ops[:per]: a(o)
                    ops = ops[per:]
        for o in ops: a(o)
        if st == 8: nonce_get(VM, tnon)
        if st < 9:
            VM.need(tag1[st + 1])
            a("s_barrier")
    a(f"v_add_f32 v{RS2}, v{LS[0]}, v{LS[1]}")
    a(f"v_mov_b32 v{LS[1]}, v{RS2}")
    a(f"s_lshl_b32 s{sT}, s{sLW}, 7")
    a(f"v_lshl_add_u32 v10, v3, 2, s{sT}")
    a(f"v_permlane32_swap_b32 v{RS2}, v{LS[1]}")
    a(f"v_add_f32 v{RS2}, v{RS2}, v{LS[1]}")
    tagB[1] = issue2(1, VM)
    a("s_barrier")
    a(f"ds_read_b32 v{NM2}, v10 offset:{STATS+1536}")
    a("s_waitcnt lgkmcnt(0)")
    ln_rowmath(a, NM2, RS2, LU[1], sT)
    a.nop(1)
    a(f"ds_write_b32 v10, v{NM2} offset:{STATS}")
    a(f"ds_write_b32 v10, v{RS2} offset:{STATS+512}")
    a(f"v_mul_f32 v{RS2}, v{RS2}, v{RS2}")
    VM.need(tagB[0])
    a("s_waitcnt lgkmcnt(0)")
    a("s_barrier")
    if "noprioB" not in exp: a("s_setprio 2")
    ST("A", 4); ST("C", 1)
    L2 = Cnt(a, "lgkmcnt", 15)
    tg2 = [{}, {}]
    def emit2(lst, buf):
        for key, l in lst:
            a(l); tg2[buf][key] = L2.op()
    def rd2(st, ks, buf):
        sl = st % 4
        L = [("X", f"ds_read_b128 {vr(GX[buf],4)}, v{gXA[sl][ks]}")]
        for n in range(6):
            mat, p = n & 1, n >> 1
            for h in range(2):
                L.append((n, f"ds_read_b64_tr_b16 {vr(GW[buf][n]+2*h,2)}, v{gWA[sl][p]} offset:{mat*12288 + (16*ks+4*h)*192}"))
        return L
    emit2(rd2(0, 0, 0), 0)
    tagB[2] = issue2(2, VM)
    for st in range(10):
        for ks in range(4):
            buf = (st * 4 + ks) & 1
            if ks < 3: nxt = rd2(st, ks + 1, buf ^ 1)
            elif st < 9: nxt = rd2(st + 1, 0, buf ^ 1)
            else: nxt = []
            if ks == 3 and st < 9:
                if st + 1 <= 2: VM.need(tagB[st + 1])
                L2.need(L2.issued - 1)
                a("s_barrier")
                ST("C", st + 2)
            if st == 5 and ks == 2:
                lab = a.newlabel("L_f1p")
                a(f"s_cmp_lg_u32 s{sW}, 4")
                a(f"s_cbranch_scc1 {lab}")
                f1_loads()
                a.label(lab)
            if st == 6 and ks == 2:
                lab = a.newlabel("L_f1")
                a(f"s_cmp_lg_u32 s{sW}, 4")
                a(f"s_cbranch_scc1 {lab}_ok")
                a(f"s_mov_b32 s{sT+1}, 0")
                a.label(lab)
                a("s_waitcnt vmcnt(0)")
                for q in range(4): a(f"v_xor_b32 v{POLL+q}, s{sNon}, v{POLL+q}")
                a(f"v_or3_b32 v{POLL}, v{POLL}, v{POLL+1}, v{POLL+2}")
                a(f"v_or_b32 v{POLL}, v{POLL}, v{POLL+3}")
                a(f"v_cmp_ne_u32 vcc, 0, v{POLL}")
                a(f"s_add_u32 s{sT+1}, s{sT+1}, 1")
                a.nop(2)
                a("s_cmp_eq_u64 vcc, 0")
                a(f"s_cbranch_scc1 {lab}_ok")
                a(f"s_cmp_ge_u32 s{sT+1}, 0x20000")
                a(f"s_cbranch_scc1 {lab}_ok")
                a("s_sleep 8")
                f1_loads()
                a(f"s_branch {lab}")
                a.label(f"{lab}_ok")
            for n in range(6):
                d = GACC + n * 16
                L2.need(tg2[buf][n])
                a(f"{M32} {vr(d,16)}, {vr(GW[buf][n],4)}, {vr(GX[buf],4)}, {vr(d,16)}")
                emit2(nxt[0:3] if n == 0 else nxt[1 + n * 2: 3 + n * 2], buf ^ 1)
                if n >= 4: a(f"{M16} {vr(GCS[n-4],4)}, {vr(SEL,4)}, {vr(GW[buf][n-4],4)}, {vr(GCS[n-4],4)}")
    ST("A", 5); ST("C", 11)
    a(f"s_lshl_b32 s{sT}, s{sCT[0]}, 7")
    a(f"s_add_u32 s{sT}, s{sT}, {CSA}")
    a(f"v_lshl_add_u32 v5, v3, 2, s{sT}")
    a(f"s_lshl_b32 s{sR+4}, s{sMT}, 2")
    a(f"s_add_u32 s{sR+4}, s{sR+4}, s{sLW}")
    a(f"s_mul_i32 s{sR+4}, s{sR+4}, {2*49152}")
    a(f"s_mul_i32 s{sT}, s{sNG}, {12*256}")
    a(f"s_add_u32 s{sR+4}, s{sR+4}, s{sT}")
    a(f"s_add_u32 s{sR+4}, s{sR+4}, {WS_H}")
    a("s_mov_b64 exec, 0xffff")
    for mat in range(2):
        a(f"ds_write_b32 v5, v{GCS[mat]} offset:{mat*384}")
        a(f"ds_write_b32 v5, v{GCS[mat]+1} offset:{mat*384+64}")
    a("s_mov_b64 exec, -1")
    a("v_lshrrev_b32 v6, 4, v3")
    a("v_mul_u32_u24 v6, 49152, v6")
    a("v_lshl_add_u32 v6, v4, 8, v6")
    a("v_and_b32 v7, 15, v3")
    a("v_lshl_add_u32 v6, v7, 4, v6")
    a("s_waitcnt lgkmcnt(0)")
    a("s_barrier")
    a("s_setprio 3")
    CB = [16, 184]
    def cs_read(p):
        a(f"s_lshl_b32 s{sT}, s{sCT[p]}, 7")
        a(f"s_add_u32 s{sT}, s{sT}, {CSA}")
        a(f"v_lshl_add_u32 v5, v4, 4, s{sT}")
        for mat in range(2):
            for g in range(4):
                a(f"ds_read_b128 {vr(CB[p&1]+(mat*4+g)*4,4)}, v5 offset:{mat*384+g*32}")
    cs_read(0); cs_read(1)
    for p in range(3):
        cb = CB[p & 1]
        a(f"s_waitcnt lgkmcnt({8 if p < 2 else 0})")
        g = GACC + (2 * p) * 16; u = GACC + (2 * p + 1) * 16
        for e in range(16):
            a(f"v_fmac_f32 v{g+e}, v{cb+e}, v{NM2}")
            a(f"v_fmac_f32 v{u+e}, v{cb+16+e}, v{NM2}")
        if p == 0: cs_read(2)
        a(f"s_lshl_b32 s{sT}, s{sCT[p]}, 10")
        a(f"s_add_u32 s{sT}, s{sT}, s{sR+4}")
        for gp in range(2):
            for e in range(8 * gp, 8 * gp + 8):
                a(f"v_max_f32 v{g+e}, 0, v{g+e}")
                a(f"v_mul_f32 v{u+e}, v{u+e}, v{RS2}")
            for e in range(8 * gp, 8 * gp + 8): a(f"v_mul_f32 v{g+e}, v{g+e}, v{u+e}")
            o = u + 8 * gp
            for q in range(4): a(f"v_cvt_pk_bf16_f32 v{o+q}, v{g+8*gp+2*q}, v{g+8*gp+2*q+1}")
            a.nop(2)
            a(f"v_permlane32_swap_b32 v{o}, v{o+2}")
            a(f"v_permlane32_swap_b32 v{o+1}, v{o+3}")
            a(f"buffer_store_dwordx4 {vr(o,4)}, v6, {WS_}, s{sT} offen offset:{gp*512}{SC}")
    p3_ids()
    a("s_mov_b32 s3, 1")

    a.label("L_p3")
    ST("A", 6)
    QA, QB = 8, 12
    S = [16, 32]; P = 48; O = 56
    KA = [72, 76]; KB = [80, 84]; V = [[88, 92], [96, 100]]
    AD = [[104 + 3 * z + y for y in range(3)] for z in range(3)]
    T0, T1, T2, T3 = 113, 114, 115, 116
    vM, vOst, vL, vFo = 117, 118, 120, 121
    DACC = 124
    DF = [164 + 28 * k for k in range(3)]
    DPOLL = 248
    NV = 250
    sDX, sDW, sFin, sLoop, sFp = sR, sR + 2, sR + 4, sR + 5, sR + 6
    a(f"v_lshlrev_b32 v{vL}, 4, v2")
    a(f"s_lshl_b32 s{sT}, s{sQB}, 8")
    a(f"s_lshl_b32 s{sT+1}, s{sW}, 5")
    a(f"s_add_u32 s{sT}, s{sT}, s{sT+1}")
    a(f"v_add_u32 v5, s{sT}, v3")
    a(f"v_lshrrev_b32 v6, 4, v5")
    a(f"v_mul_u32_u24 v{vOst}, 20480, v6")
    a(f"v_and_b32 v6, 15, v5")
    a(f"v_lshl_add_u32 v{vOst}, v6, 4, v{vOst}")
    a(f"v_lshl_add_u32 v{vOst+1}, v4, 8, v{vOst}")
    a(f"s_lshr_b32 s{sT}, s{sW}, 2")
    a(f"s_mul_i32 s{sT}, s{sT}, 5120")
    a(f"s_add_u32 s{sT}, s{sT}, {QOFF}")
    a(f"v_and_b32 v5, 127, v5")
    a(f"v_lshl_add_u32 v6, v5, 4, s{sT}")
    a(f"v_lshl_add_u32 v6, v4, 11, v6")
    a(f"v_lshl_add_u32 v7, v5, 3, s{sT}")
    a("v_and_b32 v5, 0x13, v3")
    a(f"v_and_b32 v{T0}, 4, v3")
    a(f"v_lshl_or_b32 v5, v{T0}, 1, v5")
    a(f"v_and_b32 v{T0}, 8, v3")
    a(f"v_lshrrev_b32 v{T0}, 1, v{T0}")
    a(f"v_or_b32 v5, v5, v{T0}")
    a(f"v_lshlrev_b32 v{AD[0][0]}, 4, v5")
    a(f"v_lshl_add_u32 v{AD[0][0]}, v4, 11, v{AD[0][0]}")
    a(f"v_lshlrev_b32 v{AD[0][1]}, 3, v5")
    a(f"v_add_u32 v{AD[0][1]}, 4096, v{AD[0][1]}")
    a(f"v_mul_u32_u24 v{AD[0][2]}, 320, v4")
    a(f"v_lshl_add_u32 v{AD[0][2]}, v3, 4, v{AD[0][2]}")
    a(f"v_add_u32 v{AD[0][2]}, 5120, v{AD[0][2]}")
    for z in (1, 2):
        for y in range(3): a(f"v_add_u32 v{AD[z][y]}, {6*z*CHUNK}, v{AD[0][y]}")
    for r in range(4): a(f"v_mov_b32 v{QB+r}, 0")
    for r in range(16): a(f"v_mov_b32 v{O+r}, 0")
    a("v_cmp_eq_u32 vcc, 20, v3")
    a(f"v_mov_b32 v{T0}, 0x3f803f80")
    a.nop(1)
    a(f"v_cndmask_b32 v{T1}, 0, v{T0}, vcc")
    for b in range(2):
        a(f"v_mov_b32 v{KB[b]+2}, 0x3f80")
        a(f"v_mov_b32 v{KB[b]+3}, 0")
        for j in range(2):
            for r in range(4): a(f"v_mov_b32 v{V[b][j]+r}, v{T1}")
    for r in range(8): a(f"v_mov_b32 v{P+r}, 0")
    for r in range(40): a(f"v_mov_b32 v{DACC+r}, 0")
    a(f"s_and_b32 s{sT}, s{sXCD}, 3")
    a(f"s_lshl_b32 s{sT+1}, s{sQB}, 2")
    a(f"s_add_u32 s{sT}, s{sT}, s{sT+1}")
    a(f"s_lshl_b32 s{sT+4}, s{sT}, 1")
    a(f"s_lshl_b32 s{sT}, s{sT}, 2")
    a(f"s_lshr_b32 s{sT+2}, s{sXCD}, 2")
    a(f"s_lshl_b32 s{sT+2}, s{sT+2}, 2")
    a(f"s_and_b32 s{sT+3}, s{sIDX}, 3")
    a(f"s_add_u32 s{sT+2}, s{sT+2}, s{sT+3}")
    a(f"s_mul_i32 s{sFin}, s{sT}, {16*1280}")
    a(f"s_mul_i32 s{sT+3}, s{sT+2}, 160")
    a(f"s_add_u32 s{sFin}, s{sFin}, s{sT+3}")
    a(f"s_and_b32 s{sT+3}, s{sW}, 1")
    a(f"s_add_u32 s{sT+4}, s{sT+4}, s{sT+3}")
    a(f"s_lshl_b32 s{sT+3}, s{sT+3}, 1")
    a(f"s_add_u32 s{sT}, s{sT}, s{sT+3}")
    a(f"s_lshr_b32 s{sT+3}, s{sW}, 1")
    a(f"s_lshl_b32 s{sT+5}, s{sT+3}, 10")
    a(f"s_mul_i32 s{sDX}, s{sT}, 49152")
    a(f"s_add_u32 s{sDX}, s{sDX}, s{sT+5}")
    a(f"s_add_u32 s{sDX}, s{sDX}, {WS_H}")
    a(f"s_mul_i32 s{sDX+1}, s{sT}, 20480")
    a(f"s_add_u32 s{sDX+1}, s{sDX+1}, s{sT+5}")
    a(f"s_add_u32 s{sDX+1}, s{sDX+1}, {WS_O}")
    a(f"s_mul_i32 s{sDW}, s{sT+3}, {40*1024}")
    a(f"s_mul_i32 s{sT+5}, s{sT+2}, 5120")
    a(f"s_add_u32 s{sDW}, s{sDW}, s{sT+5}")
    a(f"s_add_u32 s{sDW}, s{sDW}, {WS_WP}")
    a(f"s_lshr_b32 s{sT+5}, s{sT+4}, 2")
    a(f"s_lshl_b32 s{sT+5}, s{sT+5}, 3")
    a(f"s_and_b32 s{sT+4}, s{sT+4}, 3")
    a(f"s_add_u32 s{sT+5}, s{sT+5}, s{sT+4}")
    a(f"s_lshl_b32 s{sT+5}, s{sT+5}, 11")
    a(f"s_add_u32 s{sFp}, s{sT+5}, {WS_FL2 + 4*2048}")
    a("v_and_b32 v5, 15, v2")
    a(f"v_lshlrev_b32 v{vFo}, 7, v5")
    a("s_cmp_eq_u32 s3, 1")
    a("s_cbranch_scc1 L_p3_go")
    a("s_waitcnt vmcnt(0)")
    a("s_barrier")
    a.label("L_p3_go")
    ST("A", 7); ST("D", 1)
    LG = Cnt(a, "lgkmcnt", 15); VM = Cnt(a, "vmcnt", 63)
    a(f"ds_read_b128 {vr(QA,4)}, v6"); LG.op()
    a(f"s_mov_b64 exec, s[{sLO}:{sLO+1}]")
    a(f"ds_read_b64 {vr(QB,2)}, v7 offset:4096"); LG.op()
    a("s_mov_b64 exec, -1")
    def ad(t, y): return AD[(t // 4) // 6][y]
    def coff(t): return ((t // 4) % 6) * CHUNK
    tagK = {}; tagV0 = {}; tagV1 = {}
    def rdK(t):
        if t > 63: return
        b = t & 1
        a(f"ds_read_b128 {vr(KA[b],4)}, v{ad(t,0)} offset:{coff(t) + (t%4)*512}"); LG.op()
        a(f"ds_read_b64 {vr(KB[b],2)}, v{ad(t,1)} offset:{coff(t) + (t%4)*256}"); tagK[t] = LG.op()
    def rdV(t):
        if t > 63: return
        b = t & 1
        a(f"s_mov_b64 exec, s[{sVM}:{sVM+1}]")
        a(f"ds_read_b128 {vr(V[b][0],4)}, v{ad(t,2)} offset:{coff(t) + (t%4)*1280}"); tagV0[t] = LG.op()
        a(f"ds_read_b128 {vr(V[b][1],4)}, v{ad(t,2)} offset:{coff(t) + (t%4)*1280 + 640}"); tagV1[t] = LG.op()
        a("s_mov_b64 exec, -1")
    def mf(d, A, B, C): a(f"{M32} {vr(d,16)}, {vr(A,4)}, {vr(B,4)}, {C}")
    def rowmax(s, extra=None):
        a(f"v_max3_f32 v{T0}, v{s}, v{s+1}, v{s+2}")
        a(f"v_max3_f32 v{T1}, v{s+3}, v{s+4}, v{s+5}")
        a(f"v_max3_f32 v{T2}, v{s+6}, v{s+7}, v{s+8}")
        a(f"v_max3_f32 v{T3}, v{s+9}, v{s+10}, v{s+11}")
        a(f"v_max3_f32 v{T0}, v{T0}, v{s+12}, v{s+13}")
        a(f"v_max3_f32 v{T1}, v{T1}, v{s+14}, v{s+15}")
        a(f"v_max3_f32 v{T0}, v{T0}, v{T1}, v{T2}")
        a(f"v_max3_f32 v{T0}, v{T0}, v{T3}, v{extra if extra is not None else T3}")
        a(f"v_mov_b32 v{T1}, v{T0}")
        a.nop(2)
        a(f"v_permlane32_swap_b32 v{T0}, v{T1}")
        a(f"v_max_f32 v{T0}, v{T0}, v{T1}")
    rdK(0); rdK(1); rdV(0)
    LG.need(tagK[0])
    mf(S[0], KA[0], QA, "0")
    mf(S[0], KB[0], QB, vr(S[0], 16))
    a.nop(12)
    rowmax(S[0])
    a(f"v_xor_b32 v{T0}, 0x80000000, v{T0}")
    a(f"v_lshrrev_b32 v{T0}, 16, v{T0}")
    a(f"v_cndmask_b32 v{QB+2}, 0, v{T0}, s[{sLO}:{sLO+1}]")
    a.nop(2)
    mf(S[0], KA[0], QA, "0")
    mf(S[0], KB[0], QB, vr(S[0], 16))
    a.nop(12)
    def kvdma(j):
        lo, hi = 8 * j, 8 * j + 7
        f = lambda i: 80 + i if i < 40 else 90 + i if i < 60 else 60 + i if i < 70 else 80 + i
        a(f"s_add_u32 s{sT}, s{sW}, {f(lo)}")
        if f(hi) - f(lo) != 7:
            brk = next(i for i in range(lo, hi + 1) if f(i) - f(lo) != i - lo)
            a(f"s_add_u32 s{sT+1}, s{sW}, {f(brk) - (brk - lo)}")
            a(f"s_cmp_ge_u32 s{sW}, {brk - lo}")
            a(f"s_cselect_b32 s{sT}, s{sT+1}, s{sT}")
        a(f"s_lshl_b32 s{sT}, s{sT}, 10")
        a(f"s_mov_b32 m0, s{sT}")
        a(f"s_add_u32 s{sT}, s{sT}, s{sKV}")
        a(f"s_add_u32 s{sT}, s{sT}, {WS_KV}")
        a(f"buffer_load_dwordx4 v{vL}, {WS_}, s{sT} offen lds")
        return VM.op()
    tagD = {}
    def d_issue(j, part):
        f = DF[j % 3]
        wstep = 5 + j
        if part < 2:
            a(f"s_add_u32 s{sT}, s{sDW}, {wstep*4*40*1024}")
            for n in range(2 * part, 2 * part + 2): a(f"buffer_load_dwordx4 {vr(f+8+4*n,4)}, v{vL}, {WS_}, s{sT} offen offset:{n*1024}"); VM.op()
        elif part == 2:
            a(f"s_add_u32 s{sT}, s{sDW}, {wstep*4*40*1024 + 4096}")
            a(f"buffer_load_dwordx4 {vr(f+24,4)}, v{vL}, {WS_}, s{sT} offen"); VM.op()
            a(f"s_add_u32 s{sT}, s{sDX}, {j*4096}")
            a(f"buffer_load_dwordx4 {vr(f,4)}, v{vL}, {WS_}, s{sT} offen"); VM.op()
        else:
            a(f"s_add_u32 s{sT}, s{sDX}, {j*4096 + 49152}")
            a(f"buffer_load_dwordx4 {vr(f+4,4)}, v{vL}, {WS_}, s{sT} offen"); tagD[j] = VM.op()
    def d_mfma(j, q):
        f = DF[j % 3]; m, n = q & 1, q >> 1
        acc = DACC + (m * 5 + n) * 4
        a(f"{M16} {vr(acc,4)}, {vr(f+8+4*n,4)}, {vr(f+4*m,4)}, {vr(acc,4)}")
    useD = "noD" not in exp
    DT0 = opt("dt", 20)
    dsched = {t: [] for t in range(64)}; lsched = {t: [] for t in range(64)}; dfirst = {}
    for j in range(12):
        for q in range(10):
            t = DT0 + (10 * j + q) * (64 - DT0) // 120
            dsched[t].append((j, q)); dfirst.setdefault(j, t)
    for j in range(12):
        lw = dfirst[j] - 8; lx = max(dfirst[j] - 6, DT0 - 5 + (1 if j else 0))
        if j >= 3:
            last_prev = max(t for t in range(64) for (jj, q) in dsched[t] if jj == j - 3)
            lw = max(lw, last_prev + 1); lx = max(lx, lw + 2)
        lsched[lw].append((j, 0)); lsched[lw + 1].append((j, 1)); lsched[lx].append((j, 2)); lsched[lx + 1].append((j, 3))
        assert lx + 1 < dfirst[j] - 1, (j, lx, dfirst[j])
    TF2 = DT0 - 5
    assert max(len(v) for v in dsched.values()) <= 3
    def tile(t):
        cur = t & 1; nxt = cur ^ 1
        s = S[cur]; sn = S[nxt]
        ex = lambda r: a(f"v_exp_f32 v{s+r}, v{s+r}")
        cv = lambda p: a(f"v_cvt_pk_bf16_f32 v{P+p}, v{s+2*p}, v{s+2*p+1}")
        dq = dsched[t] if useD else []
        def dm(k):
            if k < len(dq):
                j, q = dq[k]
                if q == 0: VM.need(tagD[j])
                d_mfma(j, q)
        a(f"s_setprio {3 - (t % 4)}")
        if t < 63:
            LG.need(tagK[t + 1])
            mf(sn, KA[nxt], QA, "0")
        ex(0); ex(1); dm(0); ex(2); ex(3)
        if t < 63: mf(sn, KB[nxt], QB, vr(sn, 16))
        rdK(t + 2)
        ex(4); ex(5); dm(1); ex(6); ex(7)
        cv(0); cv(1)
        if t > 0:
            LG.need(tagV1[t - 1])
            mf(O, V[nxt][1], P + 4, vr(O, 16))
        rdV(t + 1)
        cv(2); cv(3)
        ex(8); ex(9); dm(2); ex(10); ex(11)
        LG.need(tagV0[t])
        mf(O, V[cur][0], P, vr(O, 16))
        if useD:
            for (j, part) in lsched[t]: d_issue(j, part)
        for r in range(12, 16): ex(r)
        cv(4); cv(5); cv(6); cv(7)
    sWOb = sKV
    def wodma(j):
        a(f"s_add_u32 s{sT}, s{sW}, {8*j}")
        a(f"s_min_u32 s{sT}, s{sT}, 99")
        a(f"s_mul_i32 s{sT+1}, s{sT}, 205")
        a(f"s_lshr_b32 s{sT+1}, s{sT+1}, 10")
        a(f"s_mul_i32 s{sT+1}, s{sT+1}, {40960 - 5*1024}")
        a(f"s_lshl_b32 s{sT}, s{sT}, 10")
        a(f"s_mov_b32 m0, s{sT}")
        a(f"s_add_u32 s{sT}, s{sT}, s{sT+1}")
        a(f"s_add_u32 s{sT}, s{sT}, s{sWOb}")
        a(f"buffer_load_dwordx4 v{vL}, {WS_}, s{sT} offen lds")
        return VM.op()
    nd = 0; nwo = 0
    TB1 = opt("tb", 8)
    for t in range(64):
        if t == 2:
            a(f"s_waitcnt vmcnt({VM.issued})")
            a(f"v_mov_b32 v{T0}, 0")
            a(f"v_mov_b32 v{T1}, s{sNon}")
            a("s_mov_b64 exec, 1")
            a(f"buffer_store_dword v{T1}, v{T0}, {WS_}, s{sF2} offen{SC}"); VM.op()
            a("s_mov_b64 exec, -1")
        if t == TB1:
            a("s_barrier")
        if useD and t == TF2 - 2:
            a(f"buffer_load_dword v{DPOLL}, v{vFo}, {WS_}, s{sFp} offen{SC}"); tpoll = VM.op()
        if useD and t == TF2:
            VM.need(tpoll)
            lab = a.newlabel("L_f2")
            a(f"s_mov_b32 s{sT+1}, 0")
            a.label(lab)
            a(f"v_cmp_ne_u32 vcc, s{sNon}, v{DPOLL}")
            a(f"s_add_u32 s{sT+1}, s{sT+1}, 1")
            a.nop(2)
            a("s_cmp_eq_u64 vcc, 0")
            a(f"s_cbranch_scc1 {lab}_ok")
            a(f"s_cmp_ge_u32 s{sT+1}, 0x20000")
            a(f"s_cbranch_scc1 {lab}_ok")
            a("s_sleep 4")
            a(f"buffer_load_dword v{DPOLL}, v{vFo}, {WS_}, s{sFp} offen{SC}")
            a("s_waitcnt vmcnt(0)")
            a(f"s_branch {lab}")
            a.label(f"{lab}_ok")
        if t == 28:
            VM.need(tkv)
            a("s_barrier")
        if t == 42:
            a("s_barrier")
            a(f"s_lshr_b32 s{sT}, s{sW}, 1")
            a(f"s_mul_i32 s{sT}, s{sT}, {40*1024}")
            a(f"s_sub_u32 s{sWOb}, s{sDW}, s{sT}")
        if t % 8 == 0 and t: ST("D", 1 + t // 8)
        tile(t)
        if nd < 10 and (nd < 7 or t >= TB1):
            tkv = kvdma(nd); nd += 1
        if t >= 42 and nwo < 13:
            wodma(nwo); nwo += 1
    LG.need(tagV1[63])
    mf(O, V[1][1], P + 4, vr(O, 16))
    ST("A", 8); ST("D", 9)
    a("s_setprio 0")
    a("v_and_b32 v5, 15, v2")
    a("v_lshrrev_b32 v6, 4, v2")
    a("v_mul_u32_u24 v5, 1280, v5")
    a("v_lshl_add_u32 v5, v6, 3, v5")
    a(f"s_lshl_b32 s{sT}, s{sW}, 5")
    a(f"s_add_u32 s{sFin}, s{sFin}, s{sT}")
    a(f"s_lshr_b32 s{sT}, s{sW}, 1")
    a(f"s_mul_i32 s{sT}, s{sT}, 5120")
    a(f"v_add_u32 v7, s{sT}, v{vL}")
    a(f"v_add_u32 v6, {3*20480}, v7")
    a("v_lshrrev_b32 v16, 1, v3")
    a(f"v_mul_u32_u24 v16, {5*256}, v16")
    a("v_and_b32 v17, 1, v3")
    a("v_lshl_add_u32 v16, v17, 3, v16")
    a(f"v_mul_u32_u24 v17, {2*20480}, v4")
    a("v_add_u32 v16, v16, v17")
    a(f"v_mov_b32 v{T0}, v{O+8}")
    a(f"v_mov_b32 v{T1}, v{O+8}")
    a(f"v_mov_b32 v{T2}, 0")
    a.nop(1)
    a(f"v_permlane32_swap_b32 v{T0}, v{T1}")
    for r in range(12): a(f"v_fma_f32 v{T2}, v{O+r}, 0, v{T2}")
    a(f"s_mov_b32 s{sT}, 0x71800000")
    a(f"v_add_f32 v{T2}, v{T2}, v{T1}")
    a(f"v_cmp_ngt_f32 vcc, s{sT}, v{T2}")
    a.nop(4)
    a("s_cmp_lg_u64 vcc, 0")
    a("s_cbranch_scc1 L_slow")
    a.label("L_fin")
    a(f"v_rcp_f32 v{T1}, v{T1}")
    a(f"s_lshr_b32 s{sT}, s{sH}, 1")
    a(f"s_mul_i32 s{sT}, s{sT}, {5*256}")
    a(f"s_add_u32 s{sT}, s{sT}, {WS_O}")
    a(f"s_and_b32 s{sT+1}, s{sH}, 1")
    a(f"s_mul_i32 s{sT+2}, s{sT+1}, {3*256}")
    a(f"s_add_u32 s{sT+2}, s{sT+2}, s{sT}")
    a(f"s_lshl_b32 s{sT+1}, s{sT+1}, 3")
    a(f"s_add_u32 s{sT+1}, s{sT+1}, s{sT}")
    for r in range(12): a(f"v_mul_f32 v{O+r}, v{O+r}, v{T1}")
    for p in range(6): a(f"v_cvt_pk_bf16_f32 v{P+p}, v{O+2*p}, v{O+2*p+1}")
    a(f"v_permlane32_swap_b32 v{P}, v{P+2}")
    a(f"v_permlane32_swap_b32 v{P+1}, v{P+3}")
    a(f"buffer_store_dwordx4 {vr(P,4)}, v{vOst+1}, {WS_}, s{sT+2} offen{SC}")
    a(f"s_mov_b64 exec, s[{sLO}:{sLO+1}]")
    a(f"buffer_store_dwordx2 {vr(P+4,2)}, v{vOst}, {WS_}, s{sT+1} offen offset:512{SC}")
    a("s_mov_b64 exec, -1")
    for m in range(4):
        a(f"s_add_u32 s{sT}, s{sFin}, {m*16*1280}")
        a(f"buffer_load_dwordx2 {vr(20+2*m,2)}, v5, {X_}, s{sT} offen")
    ST("A", 9); ST("D", 10)
    a(f"s_cmp_lg_u32 s{sW}, 0")
    a("s_cbranch_scc1 L_f3_wait")
    a(f"s_add_u32 s{sT+2}, s{sDX+1}, 512")
    a(f"s_mov_b32 s{sT+1}, 0")
    a.label("L_f3")
    a(f"buffer_load_dword v{T1}, v16, {WS_}, s{sT+2} offen{SC}")
    a(f"s_add_u32 s{sT+1}, s{sT+1}, 1")
    a("s_waitcnt vmcnt(0)")
    a(f"v_cmp_eq_u32 vcc, -1, v{T1}")
    a.nop(4)
    a("s_cmp_eq_u64 vcc, 0")
    a("s_cbranch_scc1 L_f3_wait")
    a(f"s_cmp_ge_u32 s{sT+1}, 0x20000")
    a("s_cbranch_scc1 L_f3_wait")
    a("s_sleep 1")
    a("s_branch L_f3")
    a.label("L_f3_wait")
    a("s_waitcnt vmcnt(0)")
    a("s_barrier")
    ST("A", 10); ST("D", 11)
    XOF = [72 + 8 * k for k in range(4)] + [36]
    WOF = [164 + 20 * k for k in range(4)] + [44]
    a(f"s_mov_b32 s{sT+1}, 0")
    a.label("L_xo")
    for k in range(5):
        for m in range(2):
            a(f"s_add_u32 s{sT}, s{sDX+1}, {k*4096 + m*20480}")
            a(f"buffer_load_dwordx4 {vr(XOF[k]+4*m,4)}, v{vL}, {WS_}, s{sT} offen{SC}")
    for k in range(5):
        for n in range(5):
            off = k * 20480 + n * 1024
            a(f"ds_read_b128 {vr(WOF[k]+4*n,4)}, v{7 if k < 3 else 6} offset:{off if k < 3 else off - 3*20480}")
    for k in range(5):
        a(f"s_waitcnt vmcnt({8-2*k})")
        x = XOF[k]
        a(f"v_max3_u32 v{28+k}, v{x}, v{x+1}, v{x+2}")
        a(f"v_max3_u32 v{28+k}, v{28+k}, v{x+3}, v{x+4}")
        a(f"v_max3_u32 v{28+k}, v{28+k}, v{x+5}, v{x+6}")
        a(f"v_max_u32 v{28+k}, v{28+k}, v{x+7}")
    a("v_max3_u32 v28, v28, v29, v30")
    a("v_max3_u32 v28, v28, v31, v32")
    a("v_cmp_eq_u32 vcc, -1, v28")
    a(f"s_add_u32 s{sT+1}, s{sT+1}, 1")
    a("s_waitcnt lgkmcnt(0)")
    a.nop(2)
    a("s_cmp_eq_u64 vcc, 0")
    a("s_cbranch_scc1 L_xo_ok")
    a(f"s_cmp_lt_u32 s{sT+1}, 0x20000")
    a("s_cbranch_scc1 L_xo")
    a.label("L_xo_ok")
    a("s_barrier")
    for k in range(5):
        for n in range(5):
            for m in range(2):
                acc = DACC + (m * 5 + n) * 4
                a(f"{M16} {vr(acc,4)}, {vr(WOF[k]+4*n,4)}, {vr(XOF[k]+4*m,4)}, {vr(acc,4)}")
    ST("A", 11)
    a(f"s_and_b32 s{sT}, s{sW}, 1")
    a(f"s_lshl_b32 s{sT}, s{sT}, 3")
    a(f"s_lshr_b32 s{sT+1}, s{sW}, 1")
    a(f"s_add_u32 s{sT}, s{sT}, s{sT+1}")
    a(f"s_lshl_b32 s{sT}, s{sT}, 10")
    a(f"v_add_u32 v6, s{sT}, v{vL}")
    a(f"v_add_u32 v7, 0x10000, v6")
    a.nop(2)
    for n in range(5):
        for m in range(2):
            off = (n * 16 + m * 4) * 1024
            a(f"ds_write_b128 v{6 if off < 65536 else 7}, {vr(DACC+(m*5+n)*4,4)} offset:{off % 65536}")
    a(f"s_lshl_b32 s{sT}, s{sW}, 14")
    a(f"v_add_u32 v6, s{sT}, v{vL}")
    for m in range(4):
        for p in range(2):
            a(f"v_lshlrev_b32 v{72+4*m+2*p}, 16, v{20+2*m+p}")
            a(f"v_and_b32 v{72+4*m+2*p+1}, 0xffff0000, v{20+2*m+p}")
    a("s_waitcnt lgkmcnt(0)")
    a("s_barrier")
    a(f"s_cmp_ge_u32 s{sW}, 5")
    a("s_cbranch_scc1 L_done")
    RB = 124
    for q in range(16): a(f"ds_read_b128 {vr(RB+4*q,4)}, v6 offset:{q*1024}")
    for m in range(4):
        a(f"s_waitcnt lgkmcnt({12-4*m})")
        acc = 72 + 4 * m
        for p in range(2):
            for k in range(4):
                a(f"v_pk_add_f32 {vr(acc+2*p,2)}, {vr(acc+2*p,2)}, {vr(RB+(m*4+k)*4+2*p,2)}")
            a(f"v_cvt_pk_bf16_f32 v{acc+p}, v{acc+2*p}, v{acc+2*p+1}")
        a(f"s_add_u32 s{sT}, s{sFin}, {m*16*1280}")
        a(f"buffer_store_dwordx2 {vr(acc,2)}, v5, {OUT_}, s{sT} offen")
    a.label("L_done")
    if "dbgst" in exp:
        a("s_waitcnt vmcnt(0) lgkmcnt(0)")
        a("s_memrealtime s[96:97]")
        a("s_waitcnt lgkmcnt(0)")
        a(f"s_lshl_b32 s{sT}, s2, 3")
        a(f"s_add_u32 s{sT}, s{sT}, s{sW}")
        a(f"s_cmp_lg_u32 s{sT}, {opt('dbgst', 0)}")
        a("s_cbranch_scc1 L_end")
        a("s_mov_b64 exec, 1")
        a("v_mov_b32 v1, 0")
        for i in range(1, 13):
            a(f"s_sub_u32 s{sT}, s{72+2*i}, s72")
            a(f"v_mov_b32 v2, s{sT}")
            a(f"global_store_dword v1, v2, s[{sDbg}:{sDbg+1}] offset:{4*i}")
        a("s_endpgm")
    ST.dump(WS_, sW, sT)
    a.label("L_end")
    a("s_endpgm")

    a.label("L_slow")
    vKa, vKb, vV = AD[0]
    a(f"v_mov_b32 v{QB+2}, 0")
    a(f"v_mov_b32 v{vM}, 0xff800000")
    for r in range(16): a(f"v_mov_b32 v{O+r}, 0")
    a(f"s_mov_b32 s{sLoop}, 0")
    a(f"s_mul_i32 s{sT+3}, s{sH}, {16*CHUNK}")
    a(f"s_add_u32 s{sT+3}, s{sT+3}, {WS_KV}")
    a.label("L_slow_loop")
    a(f"buffer_load_dwordx4 {vr(KA[0],4)}, v{vKa}, {WS_}, s{sT+3} offen")
    a(f"buffer_load_dwordx2 {vr(KB[0],2)}, v{vKb}, {WS_}, s{sT+3} offen")
    a(f"s_mov_b64 exec, s[{sVM}:{sVM+1}]")
    a(f"buffer_load_dwordx4 {vr(V[0][0],4)}, v{vV}, {WS_}, s{sT+3} offen")
    a(f"buffer_load_dwordx4 {vr(V[0][1],4)}, v{vV}, {WS_}, s{sT+3} offen offset:640")
    a("s_mov_b64 exec, -1")
    a("s_waitcnt vmcnt(0)")
    s = S[1]
    mf(s, KA[0], QA, "0")
    mf(s, KB[0], QB, vr(s, 16))
    a.nop(12)
    rowmax(s, vM)
    a(f"v_sub_f32 v{T1}, v{vM}, v{T0}")
    a(f"v_exp_f32 v{T1}, v{T1}")
    a(f"v_mov_b32 v{vM}, v{T0}")
    for r in range(16): a(f"v_sub_f32 v{s+r}, v{s+r}, v{T0}")
    for r in range(16): a(f"v_mul_f32 v{O+r}, v{O+r}, v{T1}")
    for r in range(16): a(f"v_exp_f32 v{s+r}, v{s+r}")
    a.nop(1)
    for p in range(8): a(f"v_cvt_pk_bf16_f32 v{P+p}, v{s+2*p}, v{s+2*p+1}")
    a.nop(2)
    mf(O, V[0][0], P, vr(O, 16))
    mf(O, V[0][1], P + 4, vr(O, 16))
    a(f"s_add_u32 s{sLoop}, s{sLoop}, 1")
    a(f"s_and_b32 s{sT}, s{sLoop}, 3")
    a(f"s_cmp_eq_u32 s{sT}, 0")
    a(f"s_movk_i32 s{sT}, 512")
    a(f"s_movk_i32 s{sT+1}, 256")
    a(f"s_movk_i32 s{sT+2}, 1280")
    a(f"s_cselect_b32 s{sT}, {CHUNK-3*512}, s{sT}")
    a(f"s_cselect_b32 s{sT+1}, {CHUNK-3*256}, s{sT+1}")
    a(f"s_cselect_b32 s{sT+2}, {CHUNK-3*1280}, s{sT+2}")
    a(f"v_add_u32 v{vKa}, s{sT}, v{vKa}")
    a(f"v_add_u32 v{vKb}, s{sT+1}, v{vKb}")
    a(f"v_add_u32 v{vV}, s{sT+2}, v{vV}")
    a.nop(8)
    a(f"s_cmp_lt_u32 s{sLoop}, 64")
    a("s_cbranch_scc1 L_slow_loop")
    a.nop(4)
    a(f"v_mov_b32 v{T0}, v{O+8}")
    a(f"v_mov_b32 v{T1}, v{O+8}")
    a.nop(2)
    a(f"v_permlane32_swap_b32 v{T0}, v{T1}")
    a("s_branch L_fin")
    return kernel_header(NAME) + a.text(), kernel_desc(NAME, NV, 102 if stamp else 72)

if __name__ == "__main__":
    import sys
    stamp = sys.argv[2] if len(sys.argv) > 2 and sys.argv[2] != "none" else False
    ex = sys.argv[3] if len(sys.argv) > 3 else ""
    body, desc = gen(stamp, ex)
    hdr = open("parallel_sum__softmax_full_mha__glu_gated_reglu__prompt.s.ref").read().split("; Override launch")[0]
    s = hdr + f"; @launch grid=(256,1,1) block=(512,1,1) lds={LDS_M1}\n"
    s += '.amdgcn_target "amdgcn-amd-amdhsa--gfx950"\n.text\n' + body + '.section .rodata,"a"\n' + desc
    open(sys.argv[1], "w").write(s)
```

```python
from asmlib import *
from k_qkv import ln_rowmath
NAME = "parallel_sum__softmax_full_mha__glu_gated_reglu__prompt_kernel"
LDS_M1 = 163840
M32 = "v_mfma_f32_32x32x16_bf16"; M16 = "v_mfma_f32_16x16x32_bf16"

def gen(stamp=False, exp=""):
    a = Asm()
    ST = Stamps2(a, stamp)
    opt = lambda key, dflt: int(exp.split(key)[1].split("_")[0]) if key in exp else dflt
    sX, sWq, sWS, sWg, sWu, sOut, sPk = 8, 12, 16, 20, 24, 28, 32
    sDbg = 36
    sW, sMT, sNT, sIDX, sXCD, sNG = 38, 39, 40, 41, 42, 43
    sLO, sVM, sM = 44, 46, 48
    sT = 50
    sNon = 58
    sLW = 59
    sA, sB, sC = 60, 61, 62
    sG2 = 63
    sR = 64
    R_ = lambda b: f"s[{b}:{b+3}]"
    X_, WQ_, WS_, WG_, WU_, OUT_, PK_ = map(R_, (sX, sWq, sWS, sWg, sWu, sOut, sPk))
    SC = " sc1"
    NST, STG, STATS, PKS = 4, 32768, 0, 131072
    GSLOT = [122880, 81920, 40960, 0]
    CSA = 122880
    QOFF = 15 * CHUNK

    a("s_cmp_ge_u32 s2, 256")
    a("s_cbranch_scc1 L_end")
    ST.start()
    a(f"s_load_dwordx4 s[4:7], s[0:1], 0")
    a(f"s_load_dwordx2 s[{sT}:{sT+1}], s[0:1], 16")
    a(f"s_load_dwordx4 s[{sT+2}:{sT+5}], s[0:1], 32")
    a(f"s_load_dwordx4 s[{sR}:{sR+3}], s[0:1], 48")
    a(f"s_load_dwordx4 s[{sR+4}:{sR+7}], s[0:1], 64")
    a("v_lshrrev_b32 v1, 6, v0")
    a("v_and_b32 v2, 63, v0")
    a(f"v_readfirstlane_b32 s{sW}, v1")
    a(f"s_and_b32 s{sXCD}, s2, 7")
    a(f"s_lshr_b32 s{sIDX}, s2, 3")
    a(f"s_lshr_b32 s{sMT}, s{sXCD}, 2")
    a(f"s_lshl_b32 s{sMT}, s{sMT}, 3")
    a(f"s_and_b32 s3, s{sIDX}, 7")
    a(f"s_add_u32 s{sMT}, s{sMT}, s3")
    a(f"s_and_b32 s{sNG}, s{sXCD}, 3")
    a(f"s_lshl_b32 s{sNG}, s{sNG}, 2")
    a(f"s_lshr_b32 s3, s{sIDX}, 3")
    a(f"s_add_u32 s{sNG}, s{sNG}, s3")
    a(f"s_min_u32 s{sNT}, s{sNG}, 14")
    a(f"s_and_b32 s{sLW}, s{sW}, 3")
    a(f"s_mov_b32 s{sLO}, -1\ns_mov_b32 s{sLO+1}, 0\ns_mov_b32 s{sVM}, 0xfffff\ns_mov_b32 s{sVM+1}, 0xfffff")
    a("v_and_b32 v3, 31, v2")
    a("v_lshrrev_b32 v4, 5, v2")
    a(f"s_lshl_b32 s{sA}, s{sMT}, 4")
    a(f"s_add_u32 s{sA}, s{sA}, s{sNG}")
    a(f"s_mul_i32 s{sA}, s{sA}, 3")
    a(f"s_add_u32 s{sA}, s{sA}, s{sW}")
    a(f"s_mul_i32 s{sB}, s{sA}, 6554")
    a(f"s_lshr_b32 s{sB}, s{sB}, 16")
    a(f"s_mul_i32 s{sG2}, s{sLW}, {16*3072}")
    a(f"s_mul_i32 s3, s{sNG}, 192")
    a(f"s_add_u32 s{sG2}, s{sG2}, s3")
    a("s_waitcnt lgkmcnt(0)")
    def srd(b, lo, hi, n): a(f"s_mov_b32 s{b}, s{lo}\ns_and_b32 s{b+1}, s{hi}, 0xffff\ns_mov_b32 s{b+2}, {n}\ns_mov_b32 s{b+3}, 0x20000")
    srd(sX, 4, 5, 2048 * 1280); srd(sWq, 6, 7, 640 * 3840); srd(sWS, sR + 6, sR + 7, WS_END)
    srd(sWg, sT + 2, sT + 3, 640 * 3072); srd(sWu, sT + 4, sT + 5, 640 * 3072); srd(sOut, sR + 2, sR + 3, 2048 * 1280)
    a(f"s_mov_b64 s[{sDbg}:{sDbg+1}], s[{sR+4}:{sR+5}]")
    a(f"s_cmp_lt_u32 s{sB}, 20")
    a(f"s_cselect_b32 s{sPk}, s{sT}, s{sR}")
    a(f"s_cselect_b32 s{sPk+1}, s{sT+1}, s{sR+1}")
    a(f"s_mov_b32 s{sPk+2}, {1536*1280}")
    a(f"s_cselect_b32 s{sPk+2}, {640*1280}, s{sPk+2}")
    a(f"s_and_b32 s{sPk+1}, s{sPk+1}, 0xffff")
    a(f"s_mov_b32 s{sPk+3}, 0x20000")

    sPB = [sR + 5, sR + 6, sR + 7]
    vPF = 214; PFD = 216
    lab = a.newlabel("L_pf")
    a(f"s_mul_i32 s{sT}, s{sIDX}, 12")
    a(f"s_mul_i32 s{sT+1}, s{sLW}, 3")
    a(f"s_add_u32 s{sT}, s{sT}, s{sT+1}")
    a(f"s_lshr_b32 s{sT+4}, s{sW}, 2")
    a(f"s_xor_b32 s{sT+4}, s{sT+4}, 1")
    a(f"s_mov_b32 s7, 0x20000")
    a(f"s_cmp_ge_u32 s{sT}, 255")
    a(f"s_cbranch_scc1 {lab}_w")
    a(f"s_mov_b32 s4, s{sX}\ns_mov_b32 s5, s{sX+1}\ns_mov_b32 s6, s{sX+2}\ns_movk_i32 s3, 256")
    a(f"v_lshrrev_b32 v{vPF}, 3, v2")
    a(f"v_mul_u32_u24 v{vPF}, 1280, v{vPF}")
    a("v_and_b32 v1, 7, v2")
    a(f"v_lshl_add_u32 v{vPF}, v1, 4, v{vPF}")
    a(f"s_lshr_b32 s{sT+1}, s{sXCD}, 2")
    a(f"s_mul_i32 s{sT+1}, s{sT+1}, {1024*1280}")
    for j in range(3):
        a(f"s_add_u32 s{sT+2}, s{sT}, {j}")
        a(f"s_lshr_b32 s{sT+3}, s{sT+2}, 1")
        a(f"s_mul_i32 s{sT+3}, s{sT+3}, {8*1280}")
        a(f"s_and_b32 s{sT+2}, s{sT+2}, 1")
        a(f"s_lshl_b32 s{sT+2}, s{sT+2}, 7")
        a(f"s_add_u32 s{sT+3}, s{sT+3}, s{sT+2}")
        a(f"s_add_u32 s{sPB[j]}, s{sT+3}, s{sT+1}")
    a(f"s_branch {lab}")
    a.label(f"{lab}_w")
    a(f"s_mov_b32 s4, s{sWq}\ns_mov_b32 s5, s{sWq+1}\ns_mov_b32 s6, s{sWq+2}\ns_mov_b32 s3, {128*3840}")
    a(f"v_lshlrev_b32 v{vPF}, 4, v2")
    a(f"s_sub_u32 s{sT}, s{sT}, 255")
    a(f"s_mul_i32 s{sT}, s{sT}, 3840")
    a(f"s_and_b32 s{sT+1}, s{sXCD}, 3")
    a(f"s_lshl_b32 s{sT+1}, s{sT+1}, 10")
    a(f"s_add_u32 s{sT}, s{sT}, s{sT+1}")
    for j in range(3): a(f"s_add_u32 s{sPB[j]}, s{sT}, {j*3840}")
    a.label(lab)
    a(f"s_mul_i32 s{sT}, s{sT+4}, s3")
    for j in range(3): a(f"s_add_u32 s{sPB[j]}, s{sPB[j]}, s{sT}")
    def pf1(cnt=None, adv=1):
        for j in range(3):
            a(f"buffer_load_dwordx4 {vr(PFD,4)}, v{vPF}, s[4:7], s{sPB[j]} offen")
            for _ in range(adv): a(f"s_add_u32 s{sPB[j]}, s{sPB[j]}, s3")
            if cnt: cnt.op()
    pf1()
    vXE, vXO = 220, 221; vGd = [222, 223, 224]
    SEL = 168
    sXo, sLd, sLdW, sF2 = sR, sR + 1, sR + 2, sR + 3
    a(f"s_lshl_b32 s{sF2}, s{sMT}, 3\ns_add_u32 s{sF2}, s{sF2}, s{sW}\ns_lshl_b32 s{sF2}, s{sF2}, 4\ns_add_u32 s{sF2}, s{sF2}, s{sNG}")
    a(f"s_lshl_b32 s{sF2}, s{sF2}, 7\ns_add_u32 s{sF2}, s{sF2}, {WS_FL2}")
    a(f"s_or_b32 s{sT}, s2, s{sW}")
    a(f"s_cmp_lg_u32 s{sT}, 0")
    a("s_cbranch_scc1 L_nonce_done")
    a(f"s_memrealtime s[{sT}:{sT+1}]")
    a("v_mov_b32 v9, 0")
    a("s_waitcnt lgkmcnt(0)")
    a(f"s_or_b32 s{sT}, s{sT}, 1")
    a(f"v_mov_b32 v10, s{sT}")
    a("s_mov_b64 exec, 1")
    a(f"global_store_dword v9, v10, s[{sDbg}:{sDbg+1}] sc1")
    a("s_mov_b64 exec, -1")
    a.label("L_nonce_done")
    a("v_lshrrev_b32 v9, 4, v2")
    a("v_lshrrev_b32 v10, 3, v2")
    a("v_mul_u32_u24 v10, 1280, v10")
    a("v_and_b32 v11, 7, v2")
    a(f"v_xor_b32 v{vXE}, v11, v9")
    a(f"v_xor_b32 v{vXO}, 4, v{vXE}")
    a(f"v_lshl_add_u32 v{vXE}, v{vXE}, 4, v10")
    a(f"v_lshl_add_u32 v{vXO}, v{vXO}, 4, v10")
    a(f"s_lshl_b32 s{sXo}, s{sMT}, 7")
    a(f"s_lshl_b32 s{sT}, s{sLW}, 5")
    a(f"s_add_u32 s{sXo}, s{sXo}, s{sT}")
    a(f"s_mul_i32 s{sXo}, s{sXo}, 1280")
    a(f"s_lshl_b32 s{sLd}, s{sLW}, 12")
    a(f"s_mul_i32 s{sLdW}, s{sLW}, 3072")
    a(f"s_cmp_ge_u32 s{sW}, 4")
    a("s_cbranch_scc1 L_B")

    vNon = 215
    def nonce_issue(cnt):
        a(f"v_mov_b32 v{vNon}, 0")
        a(f"global_load_dword v{vNon}, v{vNon}, s[{sDbg}:{sDbg+1}] sc1")
        return cnt.op()
    def nonce_get(cnt, tag):
        lab = a.newlabel("L_non")
        cnt.need(tag)
        a(f"s_mov_b32 s{sT+1}, 0")
        a.label(lab)
        a(f"v_readfirstlane_b32 s{sNon}, v{vNon}")
        a(f"s_add_u32 s{sT+1}, s{sT+1}, 1")
        a(f"s_cmp_lg_u32 s{sNon}, 0")
        a(f"s_cbranch_scc1 {lab}_ok")
        a(f"s_cmp_ge_u32 s{sT+1}, 0x20000")
        a(f"s_cbranch_scc1 {lab}_ok")
        a("s_sleep 8")
        a(f"v_mov_b32 v{vNon}, 0")
        a(f"global_load_dword v{vNon}, v{vNon}, s[{sDbg}:{sDbg+1}] sc1")
        a("s_waitcnt vmcnt(0)")
        a(f"s_branch {lab}")
        a.label(f"{lab}_ok")
    def common_late_setup():
        for t in range(3):
            a(f"v_add_u32 v10, {64*t}, v2")
            a(f"v_mul_u32_u24 v11, 5462, v10")
            a(f"v_lshrrev_b32 v11, 16, v11")
            a(f"v_mul_u32_u24 v9, 12, v11")
            a(f"v_sub_u32 v9, v10, v9")
            a(f"v_mul_u32_u24 v11, 3072, v11")
            a(f"v_lshl_add_u32 v{vGd[t]}, v9, 4, v11")
        a("v_lshrrev_b32 v9, 4, v2")
        a("v_and_b32 v9, 1, v9")
        a("v_and_b32 v10, 15, v2")
        a("v_cmp_eq_u32 vcc, v10, v9")
        a("v_mov_b32 v10, 0x3f803f80")
        a.nop(1)
        for r in range(4): a(f"v_cndmask_b32 v{SEL+r}, 0, v10, vcc")
    def issue2(st, cnt):
        base = GSLOT[st % 4]
        for j in range(4):
            a(f"s_add_u32 m0, s{sLd}, {base + j*1024}")
            a(f"s_add_u32 s{sT}, s{sXo}, {j*8*1280 + st*128}")
            a(f"buffer_load_dwordx4 v{vXO if j & 1 else vXE}, {X_}, s{sT} offen lds")
        a(f"s_add_u32 s{sT}, s{sG2}, {st*64*3072}")
        for mat in range(2):
            for t in range(3):
                a(f"s_add_u32 m0, s{sLdW}, {base + 16384 + mat*12288 + t*1024}")
                a.nop(1)
                a(f"buffer_load_dwordx4 v{vGd[t]}, {WU_ if mat else WG_}, s{sT} offen lds")
        return cnt.op(10)

    pf1(adv=0)
    XF = [[8, 12], [16, 20]]; WF = [[24, 28], [32, 36]]
    vXA = [[[40 + (hi * 2 + mi) * 4 + ks for ks in range(4)] for mi in range(2)] for hi in range(2)]
    vWA = [[56 + hi * 2 + ni for ni in range(2)] for hi in range(2)]
    RSD = 60
    ACC = 64
    T = list(range(128, 168))
    CSD = 172
    U = [176, 177, 178, 179]
    vPK = [185, 186, 187, 188]; vPKr = 189
    sWM, sWN, sPKc, sPKl, sPKb = sR + 4, sR + 5, sR + 6, sR + 7, sC
    common_late_setup()
    a(f"s_and_b32 s{sWM}, s{sW}, 1")
    a(f"s_lshr_b32 s{sWN}, s{sW}, 1")
    a("v_lshrrev_b32 v5, 1, v3")
    a("v_and_b32 v5, 7, v5")
    for mi in range(2):
        a(f"s_xor_b32 s{sT}, s{sWN}, {mi}")
        a(f"s_lshl_b32 s{sT+1}, s{sWM}, 1")
        a(f"s_add_u32 s{sT}, s{sT}, s{sT+1}")
        a(f"s_lshl_b32 s{sT}, s{sT}, 12")
        a(f"v_lshl_add_u32 v6, v3, 7, s{sT}")
        for ks in range(4):
            a(f"v_or_b32 v7, {2*ks}, v4")
            a(f"v_xor_b32 v7, v7, v5")
            a(f"v_lshl_add_u32 v{vXA[0][mi][ks]}, v7, 4, v6")
            a(f"v_add_u32 v{vXA[1][mi][ks]}, 0x10000, v{vXA[0][mi][ks]}")
    a("v_lshrrev_b32 v5, 2, v2")
    a("v_and_b32 v5, 3, v5")
    a("v_lshl_add_u32 v6, v4, 3, v5")
    a("v_lshlrev_b32 v6, 8, v6")
    a("v_lshrrev_b32 v7, 4, v2")
    a("v_and_b32 v7, 1, v7")
    a("v_lshl_add_u32 v6, v7, 5, v6")
    a("v_and_b32 v7, 3, v2")
    a("v_lshl_add_u32 v6, v7, 3, v6")
    a("v_add_u32 v6, 16384, v6")
    for ni in range(2):
        a(f"s_xor_b32 s{sT}, s{sWM}, {ni}")
        a(f"s_lshl_b32 s{sT+1}, s{sWN}, 1")
        a(f"s_add_u32 s{sT}, s{sT}, s{sT+1}")
        a(f"v_xor_b32 v7, s{sT}, v5")
        a(f"v_lshl_add_u32 v{vWA[0][ni]}, v7, 6, v6")
        a(f"v_add_u32 v{vWA[1][ni]}, 0x10000, v{vWA[0][ni]}")
    for r in range(64): a(f"v_mov_b32 v{ACC+r}, 0")
    for r in range(4): a(f"v_mov_b32 v{CSD+r}, 0\nv_mov_b32 v{RSD+r}, 0")
    a(f"s_mov_b32 s{sPKb}, s{sA}")
    a(f"s_mul_i32 s{sT+2}, s{sB}, 10")
    a(f"s_sub_u32 s{sT+2}, s{sA}, s{sT+2}")
    a(f"s_cmp_lt_u32 s{sB}, 20")
    a(f"s_cselect_b32 s{sT+3}, 0, 20")
    a(f"s_cselect_b64 s[{sM}:{sM+1}], -1, 0")
    a(f"s_sub_u32 s{sT+3}, s{sB}, s{sT+3}")
    a(f"s_lshl_b32 s{sT+3}, s{sT+3}, 5")
    a(f"s_lshl_b32 s{sPKc}, s{sT+2}, 7")
    a(f"s_lshl_b32 s{sPKl}, s{sW}, 12")
    a(f"s_add_u32 s{sPKl}, s{sPKl}, {PKS}")
    a("v_lshrrev_b32 v5, 3, v2")
    a("v_and_b32 v6, 7, v2")
    for t in range(4):
        a(f"v_add_u32 v7, s{sT+3}, v5")
        if t: a(f"v_add_u32 v7, {8*t}, v7")
        a(f"v_mul_u32_u24 v{U[0]}, 1639, v7")
        a(f"v_lshrrev_b32 v{U[0]}, 16, v{U[0]}")
        a(f"v_mul_u32_u24 v{U[0]}, 40, v{U[0]}")
        a(f"v_sub_u32 v{U[0]}, v7, v{U[0]}")
        a(f"v_cmp_le_u32 vcc, 24, v{U[0]}")
        a(f"v_cmp_le_u32 s[{sT+6}:{sT+7}], 20, v{U[0]}")
        a(f"v_mov_b32 v{U[1]}, 16")
        a(f"v_cndmask_b32 v{U[1]}, 0, v{U[1]}, s[{sT+6}:{sT+7}]")
        a(f"v_cndmask_b32 v{U[1]}, v{U[1]}, -4, vcc")
        a(f"v_cndmask_b32 v{U[1]}, 0, v{U[1]}, s[{sM}:{sM+1}]")
        a(f"v_add_u32 v7, v7, v{U[1]}")
        a("v_mul_u32_u24 v7, 1280, v7")
        a(f"v_lshl_add_u32 v{vPK[t]}, v6, 4, v7")
    a("v_lshrrev_b32 v5, 4, v2")
    a("v_lshrrev_b32 v6, 2, v2")
    a("v_and_b32 v6, 3, v6")
    a("v_lshl_add_u32 v5, v5, 3, v6")
    a("v_lshlrev_b32 v5, 7, v5")
    a("v_and_b32 v6, 3, v2")
    a("v_lshl_add_u32 v5, v6, 3, v5")
    a(f"v_add_u32 v{vPKr}, s{sPKl}, v5")
    def gprefetch_setup():
        a(f"s_and_b32 s{sT}, s{sW}, 1")
        a(f"s_cmp_eq_u32 s{sT}, 0")
        a(f"s_cselect_b32 s4, s{sWg}, s{sWu}")
        a(f"s_cselect_b32 s5, s{sWg+1}, s{sWu+1}")
        a(f"s_mov_b32 s6, {640*3072}")
        a(f"s_lshl_b32 s{sT}, s{sIDX}, 1")
        a(f"s_lshr_b32 s{sT+1}, s{sLW}, 1")
        a(f"s_add_u32 s{sT}, s{sT}, s{sT+1}")
        a(f"s_mul_i32 s3, s{sT}, {4*3072}")
        a(f"s_and_b32 s{sT}, s{sXCD}, 3")
        a(f"s_mul_i32 s{sT}, s{sT}, 768")
        a(f"s_add_u32 s3, s3, s{sT}")
        a(f"v_lshrrev_b32 v{vPF}, 4, v2")
        a(f"v_mul_u32_u24 v{vPF}, 3072, v{vPF}")
        a("v_and_b32 v1, 15, v2")
        a(f"v_lshl_add_u32 v{vPF}, v1, 4, v{vPF}")
    gprefetch_setup()
    CV = Cnt(a, "vmcnt", 63); tags = {}
    def gprefetch(n):
        if "nopf2" in exp: return
        a(f"s_add_u32 s{sT}, s3, {(n // 3)*256*3072}")
        a(f"buffer_load_dwordx4 {vr(PFD,4)}, v{vPF}, s[4:7], s{sT} offen offset:{(n % 3)*256}")
        CV.op()
    def pack_issue(t):
        a(f"s_add_u32 m0, s{sPKl}, {t*1024}")
        a.nop(1)
        a(f"buffer_load_dwordx4 v{vPK[t]}, {PK_}, s{sPKc} offen lds")
        tags["pack"] = CV.op()
    def pack_finish():
        lab = a.newlabel("L_pk")
        a(f"s_cmp_eq_u32 s{sW}, 3")
        a(f"s_cbranch_scc1 {lab}")
        a(f"s_cmp_ge_u32 s{sPKb}, 680")
        a(f"s_cbranch_scc1 {lab}")
        a(f"s_lshl_b32 s{sT+1}, s{sPKb}, 12")
        a(f"s_add_u32 s{sT+1}, s{sT+1}, {WS_WP}")
        a("v_lshlrev_b32 v6, 4, v2")
        a(f"s_waitcnt vmcnt({CV.issued - 1 - tags['pack']})")
        for n in range(4):
            for h in range(2):
                a(f"ds_read_b64_tr_b16 {vr(T[4*n]+2*h,2)}, v{vPKr} offset:{h*512 + n*32}")
        a("s_waitcnt lgkmcnt(0)")
        for n in range(4):
            a(f"buffer_store_dwordx4 {vr(T[4*n],4)}, v6, {WS_}, s{sT+1} offen offset:{n*1024}{SC}")
        a.label(lab)
    def rd1(st, ks, buf):
        base = (st % NST) * STG
        hi = base // 65536; b = base % 65536
        X = lambda mi: (("X", mi), f"ds_read_b128 {vr(XF[buf][mi],4)}, v{vXA[hi][mi][ks]} offset:{b}")
        W = lambda ni, h: (("W", ni), f"ds_read_b64_tr_b16 {vr(WF[buf][ni]+2*h,2)}, v{vWA[hi][ni]} offset:{b + ks*4096 + h*1024}")
        return [X(0), W(0, 0), W(0, 1), W(1, 0), W(1, 1), X(1)]
    PKI, GP0 = opt("pki", 2), opt("gp", 3)
    def p1_loop(vtype):
        CV.issued = CV.done = 0
        L1 = Cnt(a, "lgkmcnt", 15)
        tg = [{}, {}]
        def emit(lst, buf):
            for key, l in lst:
                a(l); tg[buf][key] = L1.op()
        a("s_barrier")
        ST("A", 1); ST("B", 1)
        emit(rd1(0, 0, 0), 0)
        for st in range(10):
            for ks in range(4):
                buf = (st * 4 + ks) & 1
                if ks < 3: nxt = rd1(st, ks + 1, buf ^ 1)
                elif st < 9: nxt = rd1(st + 1, 0, buf ^ 1)
                else: nxt = []
                if ks == 3 and st < 9:
                    L1.need(L1.issued - 1)
                    a("s_barrier")
                    ST("B", st + 2)
                n = 0
                for mi in range(2):
                    for ni in range(2):
                        d = ACC + (mi * 2 + ni) * 16
                        A, B = (XF[buf][mi], WF[buf][ni]) if vtype else (WF[buf][ni], XF[buf][mi])
                        L1.need(max(tg[buf][("X", mi)], tg[buf][("W", ni)]))
                        a(f"{M32} {vr(d,16)}, {vr(A,4)}, {vr(B,4)}, {vr(d,16)}")
                        emit(nxt[n * 2: n * 2 + 2], buf ^ 1)
                        if n == 3:
                            gi = (st - GP0) * 2 + (ks >> 1)
                            if 0 <= gi < 9 and (ks & 1): gprefetch(gi)
                            if 0 <= st - PKI < 4 and ks == 0: pack_issue(st - PKI)
                            if st == 7 and ks == 1: pack_finish()
                            if st == 8 and ks == 1: tags["non"] = nonce_issue(CV)
                        if n == 2: a(f"{M16} {vr(CSD,4)}, {vr(SEL,4)}, {vr(WF[buf][0],4)}, {vr(CSD,4)}")
                        n += 1
                a(f"{M16} {vr(RSD,4)}, {vr(SEL,4)}, {vr(XF[buf][0],4)}, {vr(RSD,4)}")
        ST("A", 2); ST("B", 11)
        a(f"s_lshl_b32 s{sT}, s{sWN}, 1\ns_add_u32 s{sT}, s{sT}, s{sWM}\ns_lshl_b32 s{sT}, s{sT}, 7\ns_add_u32 s{sT}, s{sT}, {STATS+1024}")
        a(f"v_lshl_add_u32 v{U[0]}, v3, 2, s{sT}")
        a(f"s_lshl_b32 s{sT}, s{sWM}, 1\ns_add_u32 s{sT}, s{sT}, s{sWN}\ns_lshl_b32 s{sT}, s{sT}, 7")
        a(f"v_lshl_add_u32 v{U[1]}, v3, 2, s{sT}")
        a.nop(2)
        a("s_mov_b64 exec, 0xffff")
        a(f"ds_write_b32 v{U[0]}, v{CSD}")
        a(f"ds_write_b32 v{U[0]}, v{CSD+1} offset:64")
        a(f"ds_write_b32 v{U[1]}, v{RSD} offset:1536")
        a(f"ds_write_b32 v{U[1]}, v{RSD+1} offset:{1536+64}")
        a("s_mov_b64 exec, -1")
        a("s_waitcnt lgkmcnt(0)")
        a("s_barrier")
        nonce_get(CV, tags["non"])
        a(f"s_cmp_eq_u32 s{sNG}, 15")
        a("s_cbranch_scc1 L_A_dummy")
    def blk(dst, x, y, xo):
        a(f"s_xor_b32 s{dst}, s{y}, {xo}")
        a(f"s_lshl_b32 s{sT+7}, s{x}, 1")
        a(f"s_add_u32 s{dst}, s{dst}, s{sT+7}")
    sH, sQB, sKV = sA, sB, sC
    def p3_ids():
        a(f"s_lshl_b32 s{sH}, s{sXCD}, 2")
        a(f"s_and_b32 s{sT}, s{sIDX}, 3")
        a(f"s_add_u32 s{sH}, s{sH}, s{sT}")
        a(f"s_lshr_b32 s{sQB}, s{sIDX}, 2")
        a(f"s_mul_i32 s{sKV}, s{sH}, {16*CHUNK}")
    VA = Cnt(a, "vmcnt", 63); tag2 = {}
    def capture(fn):
        n0 = len(a.lines); fn(); L = a.lines[n0:]; del a.lines[n0:]
        return L
    def atoms(lines):
        out = []; cur = None
        for l in lines:
            t = l.strip()
            if t == "; {": cur = []
            elif t == "; }": out.append(cur); cur = None
            elif cur is not None: cur.append(l)
            else: out.append([l])
        return out
    def marker_prefill():
        a.c("{")
        p3_ids()
        a("v_mov_b32 v12, -1\nv_mov_b32 v13, -1\nv_mov_b32 v14, -1\nv_mov_b32 v15, -1")
        a(f"s_lshr_b32 s{sT+1}, s{sH}, 1")
        a(f"s_mul_i32 s{sT+1}, s{sT+1}, {5*256}")
        a(f"s_add_u32 s{sT+1}, s{sT+1}, {WS_O}")
        a(f"s_lshl_b32 s{sT+3}, s{sQB}, 4")
        a(f"s_lshl_b32 s{sT+4}, s{sW}, 2")
        a(f"s_add_u32 s{sT+3}, s{sT+3}, s{sT+4}")
        a(f"s_mul_i32 s{sT+3}, s{sT+3}, 20480")
        a(f"s_add_u32 s{sT+1}, s{sT+1}, s{sT+3}")
        a(f"s_and_b32 s{sT+3}, s{sH}, 1")
        a(f"s_mul_i32 s{sT+2}, s{sT+3}, {3*256}")
        a(f"s_add_u32 s{sT+2}, s{sT+2}, s{sT+1}")
        a(f"s_lshl_b32 s{sT+3}, s{sT+3}, 3")
        a(f"s_add_u32 s{sT+1}, s{sT+1}, s{sT+3}")
        a("v_lshrrev_b32 v9, 4, v2")
        a("v_mul_u32_u24 v9, 20480, v9")
        a("v_and_b32 v10, 15, v2")
        a("v_lshl_add_u32 v9, v10, 4, v9")
        a(f"buffer_store_dwordx4 v[12:15], v9, {WS_}, s{sT+2} offen{SC}")
        a(f"buffer_store_dwordx4 v[12:15], v9, {WS_}, s{sT+2} offen offset:256{SC}")
        a(f"buffer_store_dwordx2 v[12:13], v9, {WS_}, s{sT+1} offen offset:512{SC}")
        a.c("}")
    SEGF = [0.42, 0.30, 0.28]
    def a_segments(body):
        at = atoms(body + capture(marker_prefill))
        tot = sum(len(x) for x in at)
        VA.issued = VA.done = 0
        done = 0; acc = 0.0
        for seg in range(4):
            dma = atoms(capture(lambda: tag2.__setitem__(seg + 2, issue2(seg + 2, VA)))) if seg >= 1 else []
            units = []; cur = []
            for x in dma:
                cur += x
                if "buffer_load" in x[0]: units.append(cur); cur = []
            mine = []
            if seg < 3:
                acc += SEGF[seg]
                while at and (done < acc * tot - 1e-9 or seg == 2):
                    done += len(at[0]); mine.append(at.pop(0))
            per = -(-len(mine) // max(len(units), 1))
            if not units:
                for x in mine: a.lines += x
            for u in units:
                a.lines += u
                for x in mine[:per]: a.lines += x
                mine = mine[per:]
            if seg == 0: a("s_waitcnt lgkmcnt(0)")
            if seg == 2: VA.need(tag2[3])
            if seg == 3: a("s_waitcnt vmcnt(10)")
            if seg < 3: a("s_barrier")
        VA.done = VA.issued - 10
        a("s_branch L_A_ld")

    a(f"s_cmp_ge_u32 s{sNT}, 10")
    a("s_cbranch_scc1 L_p1_vtype")
    p1_loop(False)
    NM = [T[0], T[1]]; RS = [T[2], T[3]]
    CSV = [[T[8] + (ni * 4 + g) * 4 for g in range(4)] for ni in range(2)]
    K16 = [8, 9]; K8 = [20, 21]; FL = [12, 13]
    a(f"s_cmp_lt_u32 s{sNT}, 5")
    a(f"s_cselect_b32 s{sB}, {f32bits(QSCALE):#x}, 1.0")
    a(f"s_cselect_b32 s{sC}, 0, 5")
    a(f"s_mov_b32 s{sT+6}, {WS_KV}")
    a(f"s_cselect_b32 s{sT+6}, {WS_Q}, s{sT+6}")
    a(f"s_sub_u32 s{sC}, s{sNT}, s{sC}")
    a(f"s_lshl_b32 s{sC}, s{sC}, 7")
    for mi in range(2):
        blk(sA, sWM, sWN, mi)
        a(f"s_lshl_b32 s{sA}, s{sA}, 5")
        a(f"v_add_u32 v11, s{sA}, v3")
        a(f"v_lshlrev_b32 v{22+mi}, 2, v11")
        a(f"v_lshlrev_b32 v{K16[mi]}, 4, v11")
        a(f"v_lshlrev_b32 v{K8[mi]}, 3, v11")
    for ni in range(2):
        blk(sA, sWN, sWM, ni)
        a(f"s_lshl_b32 s{sA}, s{sA}, 5")
        a(f"v_lshl_add_u32 v10, v4, 2, s{sA}")
        a(f"v_lshlrev_b32 v10, 2, v10")
        for g in range(4):
            a(f"ds_read_b128 {vr(CSV[ni][g],4)}, v10 offset:{STATS+1024+g*32}")
        a(f"s_add_u32 s{sA}, s{sA}, s{sC}")
        a(f"v_lshl_add_u32 v{FL[ni]}, v4, 3, s{sA}")
    a(f"s_mul_i32 s{sA}, s{sMT}, {CHUNK}")
    a(f"s_add_u32 s{sA}, s{sA}, s{sT+6}")
    a(f"s_add_u32 s{sC}, s{sA}, {16*CHUNK}")
    a(f"s_mov_b32 s{sPKc}, {16*CHUNK}")
    a("s_barrier")
    ST("A", 3)
    n0 = len(a.lines)
    for mi in range(2):
        a(f"ds_read_b32 v{NM[mi]}, v{22+mi} offset:{STATS}")
        a(f"ds_read_b32 v{RS[mi]}, v{22+mi} offset:{STATS+512}")
    a("s_waitcnt lgkmcnt(0)")
    for mi in range(2): a(f"v_mul_f32 v{RS[mi]}, s{sB}, v{RS[mi]}")
    for ni in range(2):
        for gp in range(2):
            a(f"v_add_u32 v14, {16*gp}, v{FL[ni]}")
            a(f"v_mul_u32_u24 v15, 1639, v14")
            a(f"v_lshrrev_b32 v15, 16, v15")
            a(f"v_mul_u32_u24 v16, 40, v15")
            a(f"v_sub_u32 v16, v14, v16")
            a(f"v_lshrrev_b32 v16, 3, v16")
            a(f"v_cmp_lt_u32 vcc, 2, v16")
            a(f"v_cmp_eq_u32 s[{sM}:{sM+1}], 2, v16")
            a(f"v_lshlrev_b32 v15, 1, v15")
            a(f"v_cndmask_b32 v14, 0, 1, vcc")
            a(f"v_add_u32 v15, v15, v14")
            a(f"v_mul_u32_u24 v14, 3, v14")
            a(f"v_sub_u32 v16, v16, v14")
            a(f"v_mul_lo_u32 v15, v15, s{sPKc}")
            a(f"v_lshl_add_u32 v15, v16, 11, v15")
            for mi in range(2):
                d = ACC + (mi * 2 + ni) * 16
                for g in (2 * gp, 2 * gp + 1):
                    for e in range(4):
                        a(f"v_fmac_f32 v{d+4*g+e}, v{CSV[ni][g]+e}, v{NM[mi]}")
                q = d + 8 * gp
                for e in range(8): a(f"v_mul_f32 v{q+e}, v{q+e}, v{RS[mi]}")
                a(f"v_cvt_pk_bf16_f32 v{q}, v{q}, v{q+1}")
                a(f"v_cvt_pk_bf16_f32 v{q+1}, v{q+2}, v{q+3}")
                a(f"v_cvt_pk_bf16_f32 v{q+2}, v{q+4}, v{q+5}")
                a(f"v_cvt_pk_bf16_f32 v{q+3}, v{q+6}, v{q+7}")
                a(f"v_add_u32 v17, v15, v{K16[mi]}")
                a(f"v_add_u32 v18, v15, v{K8[mi]}")
                a(f"v_permlane32_swap_b32 v{q}, v{q+2}")
                a(f"v_permlane32_swap_b32 v{q+1}, v{q+3}")
                a.c("{")
                a(f"s_andn2_b64 exec, exec, s[{sM}:{sM+1}]")
                a(f"buffer_store_dwordx4 {vr(q,4)}, v17, {WS_}, s{sA} offen{SC}")
                a(f"s_mov_b64 exec, s[{sM}:{sM+1}]")
                lab = a.newlabel("L_qk_ns")
                a(f"s_cbranch_execz {lab}")
                a(f"buffer_store_dwordx2 {vr(q,2)}, v18, {WS_}, s{sA} offen{SC}")
                a(f"buffer_store_dwordx2 {vr(q+2,2)}, v18, {WS_}, s{sC} offen{SC}")
                a.label(lab)
                a("s_mov_b64 exec, -1")
                a.c("}")
    body = a.lines[n0:]; del a.lines[n0:]
    a_segments(body)
    a.label("L_p1_vtype")
    p1_loop(True)
    CSL = [40, 41]; VB = [42, 43]
    NMV = [[T[8] + g * 4 for g in range(4)], [8 + g * 4 for g in range(4)]]
    RSV = [[T[24] + g * 4 for g in range(4)], [24 + g * 4 for g in range(4)]]
    a(f"s_sub_u32 s{sC}, s{sNT}, 10")
    a(f"s_lshl_b32 s{sC}, s{sC}, 7")
    a(f"s_mov_b32 s{sB}, {16*CHUNK}")
    for ni in range(2):
        blk(sA, sWN, sWM, ni)
        a(f"s_lshl_b32 s{sA}, s{sA}, 5")
        a(f"v_add_u32 v44, s{sA}, v3")
        a(f"v_lshlrev_b32 v45, 2, v44")
        a(f"ds_read_b32 v{CSL[ni]}, v45 offset:{STATS+1024}")
        a(f"v_add_u32 v44, s{sC}, v44")
        a(f"v_mul_u32_u24 v45, 3277, v44")
        a(f"v_lshrrev_b32 v45, 16, v45")
        a(f"v_mul_u32_u24 v46, 20, v45")
        a(f"v_sub_u32 v46, v44, v46")
        a(f"v_mul_lo_u32 v45, v45, s{sB}")
        a(f"v_lshl_add_u32 v45, v46, 4, v45")
        a(f"v_mul_u32_u24 v46, 320, v4")
        a(f"v_add_u32 v{VB[ni]}, v45, v46")
    sVo = [sB, sC]
    for mi in range(2):
        blk(sA, sWM, sWN, mi)
        a(f"s_lshl_b32 s{sT}, s{sA}, 7")
        a(f"v_lshl_add_u32 v{47+mi}, v4, 4, s{sT}")
        a(f"s_mul_i32 s{sA}, s{sA}, {4*320}")
        a(f"s_mul_i32 s{sT}, s{sMT}, {CHUNK}")
        a(f"s_add_u32 s{sA}, s{sA}, s{sT}")
        a(f"s_add_u32 s{sVo[mi]}, s{sA}, {WS_KV+5120}")
    a("s_barrier")
    ST("A", 3)
    n0 = len(a.lines)
    for mi in range(2):
        for g in range(4):
            a(f"ds_read_b128 {vr(NMV[mi][g],4)}, v{47+mi} offset:{STATS+g*32}")
            a(f"ds_read_b128 {vr(RSV[mi][g],4)}, v{47+mi} offset:{STATS+512+g*32}")
        if mi == 0: a("s_waitcnt lgkmcnt(7)")
    a("s_waitcnt lgkmcnt(8)")
    for mi in range(2):
        if mi == 1: a("s_waitcnt lgkmcnt(0)")
        for ni in range(2):
            d = ACC + (mi * 2 + ni) * 16
            for gp in range(2):
                for g in (2 * gp, 2 * gp + 1):
                    for e in range(4): a(f"v_fmac_f32 v{d+4*g+e}, v{NMV[mi][g]+e}, v{CSL[ni]}")
                for g in (2 * gp, 2 * gp + 1):
                    for e in range(4): a(f"v_mul_f32 v{d+4*g+e}, v{d+4*g+e}, v{RSV[mi][g]+e}")
                q = d + 8 * gp
                a(f"v_cvt_pk_bf16_f32 v{q}, v{q}, v{q+1}")
                a(f"v_cvt_pk_bf16_f32 v{q+1}, v{q+2}, v{q+3}")
                a(f"v_cvt_pk_bf16_f32 v{q+2}, v{q+4}, v{q+5}")
                a(f"v_cvt_pk_bf16_f32 v{q+3}, v{q+6}, v{q+7}")
                a.nop(2)
                a(f"v_permlane32_swap_b32 v{q}, v{q+2}")
                a(f"v_permlane32_swap_b32 v{q+1}, v{q+3}")
                a(f"buffer_store_dwordx4 {vr(q,4)}, v{VB[ni]}, {WS_}, s{sVo[mi]} offen offset:{gp*640}{SC}")
    body = a.lines[n0:]; del a.lines[n0:]
    a_segments(body)
    a.label("L_A_dummy")
    a("s_barrier")
    a_segments([])
    a.label("L_A_ld")
    a("v_lshlrev_b32 v8, 4, v2")
    def kv_dma(n0):
        for j in range(10):
            a(f"s_lshl_b32 s{sT}, s{sW}, 10")
            a(f"s_add_u32 s{sT}, s{sT}, {(n0 + 4*j)*1024}")
            a(f"s_mov_b32 m0, s{sT}")
            a(f"s_add_u32 s{sT}, s{sT}, s{sKV}")
            a(f"s_add_u32 s{sT}, s{sT}, {WS_KV}")
            a(f"buffer_load_dwordx4 v8, {WS_}, s{sT} offen lds")
        VA.op(10)
    nxt2 = 6
    for st in range(3, 9):
        if st + 1 >= 5: VA.need(tag2[st + 1])
        a("s_barrier")
        if st == 3:
            lab = a.newlabel("L_f1add")
            a(f"s_cmp_lg_u32 s{sW}, 0")
            a(f"s_cbranch_scc1 {lab}")
            a(f"s_lshl_b32 s{sT}, s2, 7")
            a(f"s_add_u32 s{sT}, s{sT}, {WS_FL1}")
            a("v_mov_b32 v9, 0")
            a(f"v_mov_b32 v10, s{sNon}")
            a("s_mov_b64 exec, 1")
            a(f"buffer_store_dword v10, v9, {WS_}, s{sT} offen{SC}")
            a("s_mov_b64 exec, -1")
            a.label(lab)
        for _ in range(1 if st == 3 else 2):
            if nxt2 <= min(st + 4, 9):
                tag2[nxt2] = issue2(nxt2, VA); nxt2 += 1
        if st == 6: kv_dma(40)
        if st == 7: kv_dma(0)
        if st == 8:
            for j in range(3):
                a(f"s_add_u32 s{sT}, s{sW}, {4*j}")
                a(f"s_min_u32 s{sT}, s{sT}, 9")
                a(f"s_lshl_b32 s{sT+1}, s{sT}, 10")
                a(f"s_add_u32 m0, s{sT+1}, {QOFF}")
                a(f"s_cmp_ge_u32 s{sT}, 5")
                a(f"s_cselect_b32 s{sT}, 5120, 0")
                a(f"s_add_u32 s{sT}, s{sT}, s{sT+1}")
                a(f"s_mul_i32 s{sT+1}, s{sQB}, {2*CHUNK}")
                a(f"s_add_u32 s{sT}, s{sT}, s{sT+1}")
                a(f"s_add_u32 s{sT}, s{sT}, s{sKV}")
                a(f"s_add_u32 s{sT}, s{sT}, {WS_Q}")
                a(f"buffer_load_dwordx4 v8, {WS_}, s{sT} offen lds")
    a("s_mov_b32 s3, 0")
    a("s_branch L_p3")

    a.label("L_B")
    for j in range(3): a(f"s_add_u32 s{sPB[j]}, s{sPB[j]}, s3\ns_add_u32 s{sPB[j]}, s{sPB[j]}, s3")
    sWo = sR + 4
    vWv = 7
    a("v_lshrrev_b32 v9, 4, v2")
    a(f"v_mul_u32_u24 v{vWv}, 3840, v9")
    a("v_lshrrev_b32 v10, 2, v2")
    a("v_and_b32 v10, 3, v10")
    a("v_xor_b32 v10, v10, v9")
    a(f"v_lshl_add_u32 v{vWv}, v10, 6, v{vWv}")
    a("v_and_b32 v10, 3, v2")
    a(f"v_lshl_add_u32 v{vWv}, v10, 4, v{vWv}")
    a(f"s_mul_i32 s{sWo}, s{sLW}, {16*3840}")
    a(f"s_lshl_b32 s{sT}, s{sNT}, 8")
    a(f"s_add_u32 s{sWo}, s{sWo}, s{sT}")
    VM = Cnt(a, "vmcnt", 63)
    def issue1(st):
        base = (st % NST) * STG
        for j in range(4):
            a(f"s_add_u32 m0, s{sLd}, {base + j*1024}")
            a(f"s_add_u32 s{sT}, s{sXo}, {j*8*1280 + st*128}")
            a(f"buffer_load_dwordx4 v{vXO if j & 1 else vXE}, {X_}, s{sT} offen lds")
            a(f"s_add_u32 m0, s{sLd}, {base + 16384 + j*1024}")
            a(f"s_add_u32 s{sT}, s{sWo}, {(st*64 + j*4)*3840}")
            a(f"buffer_load_dwordx4 v{vWv}, {WQ_}, s{sT} offen lds")
        return VM.op(8)
    tag1 = {}
    SA = [[12 + hi * 4 + j for j in range(4)] for hi in range(2)]
    SD = 20; LS = [36, 37]; LU = [40, 41, 42, 43]
    GX = [8, 12]
    GW = [[16 + (b * 6 + n) * 4 for n in range(6)] for b in range(2)]
    GACC = 64
    gXA = [[184 + sl * 4 + ks for ks in range(4)] for sl in range(4)]
    gWA = [[200 + sl * 3 + p for p in range(3)] for sl in range(4)]
    GCS = [160, 164]; NM2, RS2 = 180, 181; POLL = 225
    sCT = [sA, sB, sC]
    a("v_lshrrev_b32 v9, 1, v3")
    a("v_and_b32 v9, 7, v9")
    a(f"v_lshl_add_u32 v10, v3, 7, s{sLd}")
    for ks in range(4):
        a(f"v_or_b32 v11, {2*ks}, v4")
        a(f"v_xor_b32 v11, v11, v9")
        a(f"v_lshl_add_u32 v{gXA[3][ks]}, v11, 4, v10")
        for sl in range(3): a(f"v_add_u32 v{gXA[sl][ks]}, {GSLOT[sl]}, v{gXA[3][ks]}")
    a("v_lshlrev_b32 v11, 2, v4")
    a("v_xor_b32 v9, v9, v11")
    for j in range(4):
        a(f"v_xor_b32 v11, {j}, v9")
        a(f"v_lshl_add_u32 v{SA[0][j]}, v11, 4, v10")
        a(f"v_add_u32 v{SA[1][j]}, 0x10000, v{SA[0][j]}")
    for r in LS: a(f"v_mov_b32 v{r}, 0")
    a("s_waitcnt vmcnt(0)")
    tag1[0] = issue1(0)
    tag1[1] = issue1(1)
    common_late_setup()
    a("v_lshrrev_b32 v5, 2, v2")
    a("v_and_b32 v5, 3, v5")
    a("v_lshl_add_u32 v5, v4, 3, v5")
    a("v_mul_u32_u24 v5, 192, v5")
    a("v_lshrrev_b32 v6, 4, v2")
    a("v_and_b32 v6, 1, v6")
    a("v_lshl_add_u32 v5, v6, 5, v5")
    a("v_and_b32 v6, 3, v2")
    a("v_lshl_add_u32 v5, v6, 3, v5")
    for p in range(3):
        a(f"s_add_u32 s{sCT[p]}, s{sLW}, {p}")
        for _ in range(2):
            a(f"s_cmp_ge_u32 s{sCT[p]}, 3")
            a(f"s_cselect_b32 s{sT}, 3, 0")
            a(f"s_sub_u32 s{sCT[p]}, s{sCT[p]}, s{sT}")
        a(f"s_lshl_b32 s{sT}, s{sCT[p]}, 6")
        a(f"s_add_u32 s{sT}, s{sT}, 16384")
        a(f"v_add_u32 v{gWA[3][p]}, s{sT}, v5")
        for sl in range(3): a(f"v_add_u32 v{gWA[sl][p]}, {GSLOT[sl]}, v{gWA[3][p]}")
    for r in range(96): a(f"v_mov_b32 v{GACC+r}, 0")
    for r in range(8): a(f"v_mov_b32 v{GCS[0]+r}, 0")
    a(f"v_lshlrev_b32 v{POLL+4}, 7, v2")
    def f1_loads():
        for q in range(4):
            a(f"s_mov_b32 s{sT}, {WS_FL1 + q*8192}")
            a(f"buffer_load_dword v{POLL+q}, v{POLL+4}, {WS_}, s{sT} offen{SC}")
    def ssq_ops():
        ops = []
        for j in range(4):
            ops.append(f"s_waitcnt lgkmcnt({3-j})")
            for r in range(4):
                x = SD + 4 * j + r; u0, u1 = LU[2 * (r & 1)], LU[2 * (r & 1) + 1]
                ops += [f"v_lshlrev_b32 v{u0}, 16, v{x}", f"v_and_b32 v{u1}, 0xffff0000, v{x}",
                        f"v_fmac_f32 v{LS[0]}, v{u0}, v{u0}", f"v_fmac_f32 v{LS[1]}, v{u1}, v{u1}"]
        return ops
    VM.need(tag1[0])
    a("s_barrier")
    issued = 1
    tagB = {}
    PF34 = opt("pfc", 2)
    for st in range(10):
        base = (st % NST) * STG
        for j in range(4): a(f"ds_read_b128 {vr(SD+4*j,4)}, v{SA[base // 65536][j]} offset:{base % 65536}")
        n0 = len(a.lines)
        while issued < min(st + 3, 9):
            issued += 1; tag1[issued] = issue1(issued)
        if st == PF34: pf1(VM); pf1(VM, adv=0)
        if st == 7: tnon = nonce_issue(VM)
        if st == 8: tagB[0] = issue2(0, VM)
        dma = a.lines[n0:]; del a.lines[n0:]
        ops = ssq_ops()
        nd = sum("buffer_load" in l for l in dma)
        per = -(-len(ops) // max(nd - 1, 1)) if nd else len(ops)
        k = 0
        for l in dma:
            a.lines.append(l)
            if "buffer_load" in l:
                k += 1
                if k >= 2:
                    for o in ops[:per]: a(o)
                    ops = ops[per:]
        for o in ops: a(o)
        if st == 8: nonce_get(VM, tnon)
        if st < 9:
            VM.need(tag1[st + 1])
            a("s_barrier")
    a(f"v_add_f32 v{RS2}, v{LS[0]}, v{LS[1]}")
    a(f"v_mov_b32 v{LS[1]}, v{RS2}")
    a(f"s_lshl_b32 s{sT}, s{sLW}, 7")
    a(f"v_lshl_add_u32 v10, v3, 2, s{sT}")
    a(f"v_permlane32_swap_b32 v{RS2}, v{LS[1]}")
    a(f"v_add_f32 v{RS2}, v{RS2}, v{LS[1]}")
    tagB[1] = issue2(1, VM)
    a("s_barrier")
    a(f"ds_read_b32 v{NM2}, v10 offset:{STATS+1536}")
    a("s_waitcnt lgkmcnt(0)")
    ln_rowmath(a, NM2, RS2, LU[1], sT)
    a.nop(1)
    a(f"ds_write_b32 v10, v{NM2} offset:{STATS}")
    a(f"ds_write_b32 v10, v{RS2} offset:{STATS+512}")
    a(f"v_mul_f32 v{RS2}, v{RS2}, v{RS2}")
    VM.need(tagB[0])
    a("s_waitcnt lgkmcnt(0)")
    a("s_barrier")
    if "noprioB" not in exp: a("s_setprio 2")
    ST("A", 4); ST("C", 1)
    L2 = Cnt(a, "lgkmcnt", 15)
    tg2 = [{}, {}]
    def emit2(lst, buf):
        for key, l in lst:
            a(l); tg2[buf][key] = L2.op()
    def rd2(st, ks, buf):
        sl = st % 4
        L = [("X", f"ds_read_b128 {vr(GX[buf],4)}, v{gXA[sl][ks]}")]
        for n in range(6):
            mat, p = n & 1, n >> 1
            for h in range(2):
                L.append((n, f"ds_read_b64_tr_b16 {vr(GW[buf][n]+2*h,2)}, v{gWA[sl][p]} offset:{mat*12288 + (16*ks+4*h)*192}"))
        return L
    emit2(rd2(0, 0, 0), 0)
    tagB[2] = issue2(2, VM)
    for st in range(10):
        for ks in range(4):
            buf = (st * 4 + ks) & 1
            if ks < 3: nxt = rd2(st, ks + 1, buf ^ 1)
            elif st < 9: nxt = rd2(st + 1, 0, buf ^ 1)
            else: nxt = []
            if ks == 3 and st < 9:
                if st + 1 <= 2: VM.need(tagB[st + 1])
                L2.need(L2.issued - 1)
                a("s_barrier")
                ST("C", st + 2)
            if st == 5 and ks == 2:
                lab = a.newlabel("L_f1p")
                a(f"s_cmp_lg_u32 s{sW}, 4")
                a(f"s_cbranch_scc1 {lab}")
                f1_loads()
                a.label(lab)
            if st == 6 and ks == 2:
                lab = a.newlabel("L_f1")
                a(f"s_cmp_lg_u32 s{sW}, 4")
                a(f"s_cbranch_scc1 {lab}_ok")
                a(f"s_mov_b32 s{sT+1}, 0")
                a.label(lab)
                a("s_waitcnt vmcnt(0)")
                for q in range(4): a(f"v_xor_b32 v{POLL+q}, s{sNon}, v{POLL+q}")
                a(f"v_or3_b32 v{POLL}, v{POLL}, v{POLL+1}, v{POLL+2}")
                a(f"v_or_b32 v{POLL}, v{POLL}, v{POLL+3}")
                a(f"v_cmp_ne_u32 vcc, 0, v{POLL}")
                a(f"s_add_u32 s{sT+1}, s{sT+1}, 1")
                a.nop(2)
                a("s_cmp_eq_u64 vcc, 0")
                a(f"s_cbranch_scc1 {lab}_ok")
                a(f"s_cmp_ge_u32 s{sT+1}, 0x20000")
                a(f"s_cbranch_scc1 {lab}_ok")
                a("s_sleep 8")
                f1_loads()
                a(f"s_branch {lab}")
                a.label(f"{lab}_ok")
            for n in range(6):
                d = GACC + n * 16
                L2.need(tg2[buf][n])
                a(f"{M32} {vr(d,16)}, {vr(GW[buf][n],4)}, {vr(GX[buf],4)}, {vr(d,16)}")
                emit2(nxt[0:3] if n == 0 else nxt[1 + n * 2: 3 + n * 2], buf ^ 1)
                if n >= 4: a(f"{M16} {vr(GCS[n-4],4)}, {vr(SEL,4)}, {vr(GW[buf][n-4],4)}, {vr(GCS[n-4],4)}")
    ST("A", 5); ST("C", 11)
    a(f"s_lshl_b32 s{sT}, s{sCT[0]}, 7")
    a(f"s_add_u32 s{sT}, s{sT}, {CSA}")
    a(f"v_lshl_add_u32 v5, v3, 2, s{sT}")
    a(f"s_lshl_b32 s{sR+4}, s{sMT}, 2")
    a(f"s_add_u32 s{sR+4}, s{sR+4}, s{sLW}")
    a(f"s_mul_i32 s{sR+4}, s{sR+4}, {2*49152}")
    a(f"s_mul_i32 s{sT}, s{sNG}, {12*256}")
    a(f"s_add_u32 s{sR+4}, s{sR+4}, s{sT}")
    a(f"s_add_u32 s{sR+4}, s{sR+4}, {WS_H}")
    a("s_mov_b64 exec, 0xffff")
    for mat in range(2):
        a(f"ds_write_b32 v5, v{GCS[mat]} offset:{mat*384}")
        a(f"ds_write_b32 v5, v{GCS[mat]+1} offset:{mat*384+64}")
    a("s_mov_b64 exec, -1")
    a("v_lshrrev_b32 v6, 4, v3")
    a("v_mul_u32_u24 v6, 49152, v6")
    a("v_lshl_add_u32 v6, v4, 8, v6")
    a("v_and_b32 v7, 15, v3")
    a("v_lshl_add_u32 v6, v7, 4, v6")
    a("s_waitcnt lgkmcnt(0)")
    a("s_barrier")
    a("s_setprio 3")
    CB = [16, 184]
    def cs_read(p):
        a(f"s_lshl_b32 s{sT}, s{sCT[p]}, 7")
        a(f"s_add_u32 s{sT}, s{sT}, {CSA}")
        a(f"v_lshl_add_u32 v5, v4, 4, s{sT}")
        for mat in range(2):
            for g in range(4):
                a(f"ds_read_b128 {vr(CB[p&1]+(mat*4+g)*4,4)}, v5 offset:{mat*384+g*32}")
    cs_read(0); cs_read(1)
    for p in range(3):
        cb = CB[p & 1]
        a(f"s_waitcnt lgkmcnt({8 if p < 2 else 0})")
        g = GACC + (2 * p) * 16; u = GACC + (2 * p + 1) * 16
        for e in range(16):
            a(f"v_fmac_f32 v{g+e}, v{cb+e}, v{NM2}")
            a(f"v_fmac_f32 v{u+e}, v{cb+16+e}, v{NM2}")
        if p == 0: cs_read(2)
        a(f"s_lshl_b32 s{sT}, s{sCT[p]}, 10")
        a(f"s_add_u32 s{sT}, s{sT}, s{sR+4}")
        for gp in range(2):
            for e in range(8 * gp, 8 * gp + 8):
                a(f"v_max_f32 v{g+e}, 0, v{g+e}")
                a(f"v_mul_f32 v{u+e}, v{u+e}, v{RS2}")
            for e in range(8 * gp, 8 * gp + 8): a(f"v_mul_f32 v{g+e}, v{g+e}, v{u+e}")
            o = u + 8 * gp
            for q in range(4): a(f"v_cvt_pk_bf16_f32 v{o+q}, v{g+8*gp+2*q}, v{g+8*gp+2*q+1}")
            a.nop(2)
            a(f"v_permlane32_swap_b32 v{o}, v{o+2}")
            a(f"v_permlane32_swap_b32 v{o+1}, v{o+3}")
            a(f"buffer_store_dwordx4 {vr(o,4)}, v6, {WS_}, s{sT} offen offset:{gp*512}{SC}")
    p3_ids()
    a("s_mov_b32 s3, 1")

    a.label("L_p3")
    ST("A", 6)
    QA, QB = 8, 12
    S = [16, 32]; P = 48; O = 56
    KA = [72, 76]; KB = [80, 84]; V = [[88, 92], [96, 100]]
    AD = [[104 + 3 * z + y for y in range(3)] for z in range(3)]
    T0, T1, T2, T3 = 113, 114, 115, 116
    vM, vOst, vL, vFo = 117, 118, 120, 121
    DACC = 124
    DF = [164 + 28 * k for k in range(3)]
    DPOLL = 248
    NV = 250
    sDX, sDW, sFin, sLoop, sFp = sR, sR + 2, sR + 4, sR + 5, sR + 6
    a(f"v_lshlrev_b32 v{vL}, 4, v2")
    a(f"s_lshl_b32 s{sT}, s{sQB}, 8")
    a(f"s_lshl_b32 s{sT+1}, s{sW}, 5")
    a(f"s_add_u32 s{sT}, s{sT}, s{sT+1}")
    a(f"v_add_u32 v5, s{sT}, v3")
    a(f"v_lshrrev_b32 v6, 4, v5")
    a(f"v_mul_u32_u24 v{vOst}, 20480, v6")
    a(f"v_and_b32 v6, 15, v5")
    a(f"v_lshl_add_u32 v{vOst}, v6, 4, v{vOst}")
    a(f"v_lshl_add_u32 v{vOst+1}, v4, 8, v{vOst}")
    a(f"s_lshr_b32 s{sT}, s{sW}, 2")
    a(f"s_mul_i32 s{sT}, s{sT}, 5120")
    a(f"s_add_u32 s{sT}, s{sT}, {QOFF}")
    a(f"v_and_b32 v5, 127, v5")
    a(f"v_lshl_add_u32 v6, v5, 4, s{sT}")
    a(f"v_lshl_add_u32 v6, v4, 11, v6")
    a(f"v_lshl_add_u32 v7, v5, 3, s{sT}")
    a("v_and_b32 v5, 0x13, v3")
    a(f"v_and_b32 v{T0}, 4, v3")
    a(f"v_lshl_or_b32 v5, v{T0}, 1, v5")
    a(f"v_and_b32 v{T0}, 8, v3")
    a(f"v_lshrrev_b32 v{T0}, 1, v{T0}")
    a(f"v_or_b32 v5, v5, v{T0}")
    a(f"v_lshlrev_b32 v{AD[0][0]}, 4, v5")
    a(f"v_lshl_add_u32 v{AD[0][0]}, v4, 11, v{AD[0][0]}")
    a(f"v_lshlrev_b32 v{AD[0][1]}, 3, v5")
    a(f"v_add_u32 v{AD[0][1]}, 4096, v{AD[0][1]}")
    a(f"v_mul_u32_u24 v{AD[0][2]}, 320, v4")
    a(f"v_lshl_add_u32 v{AD[0][2]}, v3, 4, v{AD[0][2]}")
    a(f"v_add_u32 v{AD[0][2]}, 5120, v{AD[0][2]}")
    for z in (1, 2):
        for y in range(3): a(f"v_add_u32 v{AD[z][y]}, {6*z*CHUNK}, v{AD[0][y]}")
    for r in range(4): a(f"v_mov_b32 v{QB+r}, 0")
    for r in range(16): a(f"v_mov_b32 v{O+r}, 0")
    a("v_cmp_eq_u32 vcc, 20, v3")
    a(f"v_mov_b32 v{T0}, 0x3f803f80")
    a.nop(1)
    a(f"v_cndmask_b32 v{T1}, 0, v{T0}, vcc")
    for b in range(2):
        a(f"v_mov_b32 v{KB[b]+2}, 0x3f80")
        a(f"v_mov_b32 v{KB[b]+3}, 0")
        for j in range(2):
            for r in range(4): a(f"v_mov_b32 v{V[b][j]+r}, v{T1}")
    for r in range(8): a(f"v_mov_b32 v{P+r}, 0")
    for r in range(40): a(f"v_mov_b32 v{DACC+r}, 0")
    a(f"s_and_b32 s{sT}, s{sXCD}, 3")
    a(f"s_lshl_b32 s{sT+1}, s{sQB}, 2")
    a(f"s_add_u32 s{sT}, s{sT}, s{sT+1}")
    a(f"s_lshl_b32 s{sT+4}, s{sT}, 1")
    a(f"s_lshl_b32 s{sT}, s{sT}, 2")
    a(f"s_lshr_b32 s{sT+2}, s{sXCD}, 2")
    a(f"s_lshl_b32 s{sT+2}, s{sT+2}, 2")
    a(f"s_and_b32 s{sT+3}, s{sIDX}, 3")
    a(f"s_add_u32 s{sT+2}, s{sT+2}, s{sT+3}")
    a(f"s_mul_i32 s{sFin}, s{sT}, {16*1280}")
    a(f"s_mul_i32 s{sT+3}, s{sT+2}, 160")
    a(f"s_add_u32 s{sFin}, s{sFin}, s{sT+3}")
    a(f"s_and_b32 s{sT+3}, s{sW}, 1")
    a(f"s_add_u32 s{sT+4}, s{sT+4}, s{sT+3}")
    a(f"s_lshl_b32 s{sT+3}, s{sT+3}, 1")
    a(f"s_add_u32 s{sT}, s{sT}, s{sT+3}")
    a(f"s_lshr_b32 s{sT+3}, s{sW}, 1")
    a(f"s_lshl_b32 s{sT+5}, s{sT+3}, 10")
    a(f"s_mul_i32 s{sDX}, s{sT}, 49152")
    a(f"s_add_u32 s{sDX}, s{sDX}, s{sT+5}")
    a(f"s_add_u32 s{sDX}, s{sDX}, {WS_H}")
    a(f"s_mul_i32 s{sDX+1}, s{sT}, 20480")
    a(f"s_add_u32 s{sDX+1}, s{sDX+1}, s{sT+5}")
    a(f"s_add_u32 s{sDX+1}, s{sDX+1}, {WS_O}")
    a(f"s_mul_i32 s{sDW}, s{sT+3}, {40*1024}")
    a(f"s_mul_i32 s{sT+5}, s{sT+2}, 5120")
    a(f"s_add_u32 s{sDW}, s{sDW}, s{sT+5}")
    a(f"s_add_u32 s{sDW}, s{sDW}, {WS_WP}")
    a(f"s_lshr_b32 s{sT+5}, s{sT+4}, 2")
    a(f"s_lshl_b32 s{sT+5}, s{sT+5}, 3")
    a(f"s_and_b32 s{sT+4}, s{sT+4}, 3")
    a(f"s_add_u32 s{sT+5}, s{sT+5}, s{sT+4}")
    a(f"s_lshl_b32 s{sT+5}, s{sT+5}, 11")
    a(f"s_add_u32 s{sFp}, s{sT+5}, {WS_FL2 + 4*2048}")
    a("v_and_b32 v5, 15, v2")
    a(f"v_lshlrev_b32 v{vFo}, 7, v5")
    a("s_cmp_eq_u32 s3, 1")
    a("s_cbranch_scc1 L_p3_go")
    a("s_waitcnt vmcnt(0)")
    a("s_barrier")
    a.label("L_p3_go")
    ST("A", 7); ST("D", 1)
    LG = Cnt(a, "lgkmcnt", 15); VM = Cnt(a, "vmcnt", 63)
    a(f"ds_read_b128 {vr(QA,4)}, v6"); LG.op()
    a(f"s_mov_b64 exec, s[{sLO}:{sLO+1}]")
    a(f"ds_read_b64 {vr(QB,2)}, v7 offset:4096"); LG.op()
    a("s_mov_b64 exec, -1")
    def ad(t, y): return AD[(t // 4) // 6][y]
    def coff(t): return ((t // 4) % 6) * CHUNK
    tagK = {}; tagV0 = {}; tagV1 = {}
    def rdK(t):
        if t > 63: return
        b = t & 1
        a(f"ds_read_b128 {vr(KA[b],4)}, v{ad(t,0)} offset:{coff(t) + (t%4)*512}"); LG.op()
        a(f"ds_read_b64 {vr(KB[b],2)}, v{ad(t,1)} offset:{coff(t) + (t%4)*256}"); tagK[t] = LG.op()
    def rdV(t):
        if t > 63: return
        b = t & 1
        a(f"s_mov_b64 exec, s[{sVM}:{sVM+1}]")
        a(f"ds_read_b128 {vr(V[b][0],4)}, v{ad(t,2)} offset:{coff(t) + (t%4)*1280}"); tagV0[t] = LG.op()
        a(f"ds_read_b128 {vr(V[b][1],4)}, v{ad(t,2)} offset:{coff(t) + (t%4)*1280 + 640}"); tagV1[t] = LG.op()
        a("s_mov_b64 exec, -1")
    def mf(d, A, B, C): a(f"{M32} {vr(d,16)}, {vr(A,4)}, {vr(B,4)}, {C}")
    def rowmax(s, extra=None):
        a(f"v_max3_f32 v{T0}, v{s}, v{s+1}, v{s+2}")
        a(f"v_max3_f32 v{T1}, v{s+3}, v{s+4}, v{s+5}")
        a(f"v_max3_f32 v{T2}, v{s+6}, v{s+7}, v{s+8}")
        a(f"v_max3_f32 v{T3}, v{s+9}, v{s+10}, v{s+11}")
        a(f"v_max3_f32 v{T0}, v{T0}, v{s+12}, v{s+13}")
        a(f"v_max3_f32 v{T1}, v{T1}, v{s+14}, v{s+15}")
        a(f"v_max3_f32 v{T0}, v{T0}, v{T1}, v{T2}")
        a(f"v_max3_f32 v{T0}, v{T0}, v{T3}, v{extra if extra is not None else T3}")
        a(f"v_mov_b32 v{T1}, v{T0}")
        a.nop(2)
        a(f"v_permlane32_swap_b32 v{T0}, v{T1}")
        a(f"v_max_f32 v{T0}, v{T0}, v{T1}")
    rdK(0); rdK(1); rdV(0)
    LG.need(tagK[0])
    mf(S[0], KA[0], QA, "0")
    mf(S[0], KB[0], QB, vr(S[0], 16))
    a.nop(12)
    rowmax(S[0])
    a(f"v_xor_b32 v{T0}, 0x80000000, v{T0}")
    a(f"v_lshrrev_b32 v{T0}, 16, v{T0}")
    a(f"v_cndmask_b32 v{QB+2}, 0, v{T0}, s[{sLO}:{sLO+1}]")
    a.nop(2)
    mf(S[0], KA[0], QA, "0")
    mf(S[0], KB[0], QB, vr(S[0], 16))
    a.nop(12)
    def kvdma(j):
        lo, hi = 8 * j, 8 * j + 7
        f = lambda i: 80 + i if i < 40 else 90 + i if i < 60 else 60 + i if i < 70 else 80 + i
        a(f"s_add_u32 s{sT}, s{sW}, {f(lo)}")
        if f(hi) - f(lo) != 7:
            brk = next(i for i in range(lo, hi + 1) if f(i) - f(lo) != i - lo)
            a(f"s_add_u32 s{sT+1}, s{sW}, {f(brk) - (brk - lo)}")
            a(f"s_cmp_ge_u32 s{sW}, {brk - lo}")
            a(f"s_cselect_b32 s{sT}, s{sT+1}, s{sT}")
        a(f"s_lshl_b32 s{sT}, s{sT}, 10")
        a(f"s_mov_b32 m0, s{sT}")
        a(f"s_add_u32 s{sT}, s{sT}, s{sKV}")
        a(f"s_add_u32 s{sT}, s{sT}, {WS_KV}")
        a(f"buffer_load_dwordx4 v{vL}, {WS_}, s{sT} offen lds")
        return VM.op()
    tagD = {}
    def d_issue(j, part):
        f = DF[j % 3]
        wstep = 5 + j
        if part < 2:
            a(f"s_add_u32 s{sT}, s{sDW}, {wstep*4*40*1024}")
            for n in range(2 * part, 2 * part + 2): a(f"buffer_load_dwordx4 {vr(f+8+4*n,4)}, v{vL}, {WS_}, s{sT} offen offset:{n*1024}"); VM.op()
        elif part == 2:
            a(f"s_add_u32 s{sT}, s{sDW}, {wstep*4*40*1024 + 4096}")
            a(f"buffer_load_dwordx4 {vr(f+24,4)}, v{vL}, {WS_}, s{sT} offen"); VM.op()
            a(f"s_add_u32 s{sT}, s{sDX}, {j*4096}")
            a(f"buffer_load_dwordx4 {vr(f,4)}, v{vL}, {WS_}, s{sT} offen"); VM.op()
        else:
            a(f"s_add_u32 s{sT}, s{sDX}, {j*4096 + 49152}")
            a(f"buffer_load_dwordx4 {vr(f+4,4)}, v{vL}, {WS_}, s{sT} offen"); tagD[j] = VM.op()
    def d_mfma(j, q):
        f = DF[j % 3]; m, n = q & 1, q >> 1
        acc = DACC + (m * 5 + n) * 4
        a(f"{M16} {vr(acc,4)}, {vr(f+8+4*n,4)}, {vr(f+4*m,4)}, {vr(acc,4)}")
    useD = "noD" not in exp
    DT0 = opt("dt", 20)
    dsched = {t: [] for t in range(64)}; lsched = {t: [] for t in range(64)}; dfirst = {}
    for j in range(12):
        for q in range(10):
            t = DT0 + (10 * j + q) * (64 - DT0) // 120
            dsched[t].append((j, q)); dfirst.setdefault(j, t)
    for j in range(12):
        lw = dfirst[j] - 8; lx = max(dfirst[j] - 6, DT0 - 5 + (1 if j else 0))
        if j >= 3:
            last_prev = max(t for t in range(64) for (jj, q) in dsched[t] if jj == j - 3)
            lw = max(lw, last_prev + 1); lx = max(lx, lw + 2)
        lsched[lw].append((j, 0)); lsched[lw + 1].append((j, 1)); lsched[lx].append((j, 2)); lsched[lx + 1].append((j, 3))
        assert lx + 1 < dfirst[j] - 1, (j, lx, dfirst[j])
    TF2 = DT0 - 5
    assert max(len(v) for v in dsched.values()) <= 3
    def tile(t):
        cur = t & 1; nxt = cur ^ 1
        s = S[cur]; sn = S[nxt]
        ex = lambda r: a(f"v_exp_f32 v{s+r}, v{s+r}")
        cv = lambda p: a(f"v_cvt_pk_bf16_f32 v{P+p}, v{s+2*p}, v{s+2*p+1}")
        dq = dsched[t] if useD else []
        def dm(k):
            if k < len(dq):
                j, q = dq[k]
                if q == 0: VM.need(tagD[j])
                d_mfma(j, q)
        a(f"s_setprio {3 - (t % 4)}")
        if t < 63:
            LG.need(tagK[t + 1])
            mf(sn, KA[nxt], QA, "0")
        ex(0); ex(1); dm(0); ex(2); ex(3)
        if t < 63: mf(sn, KB[nxt], QB, vr(sn, 16))
        rdK(t + 2)
        ex(4); ex(5); dm(1); ex(6); ex(7)
        cv(0); cv(1)
        if t > 0:
            LG.need(tagV1[t - 1])
            mf(O, V[nxt][1], P + 4, vr(O, 16))
        rdV(t + 1)
        cv(2); cv(3)
        ex(8); ex(9); dm(2); ex(10); ex(11)
        LG.need(tagV0[t])
        mf(O, V[cur][0], P, vr(O, 16))
        if useD:
            for (j, part) in lsched[t]: d_issue(j, part)
        for r in range(12, 16): ex(r)
        cv(4); cv(5); cv(6); cv(7)
    sWOb = sKV
    def wodma(j):
        a(f"s_add_u32 s{sT}, s{sW}, {8*j}")
        a(f"s_min_u32 s{sT}, s{sT}, 99")
        a(f"s_mul_i32 s{sT+1}, s{sT}, 205")
        a(f"s_lshr_b32 s{sT+1}, s{sT+1}, 10")
        a(f"s_mul_i32 s{sT+1}, s{sT+1}, {40960 - 5*1024}")
        a(f"s_lshl_b32 s{sT}, s{sT}, 10")
        a(f"s_mov_b32 m0, s{sT}")
        a(f"s_add_u32 s{sT}, s{sT}, s{sT+1}")
        a(f"s_add_u32 s{sT}, s{sT}, s{sWOb}")
        a(f"buffer_load_dwordx4 v{vL}, {WS_}, s{sT} offen lds")
        return VM.op()
    nd = 0; nwo = 0
    TB1 = opt("tb", 8)
    for t in range(64):
        if t == 2:
            a(f"s_waitcnt vmcnt({VM.issued})")
            a(f"v_mov_b32 v{T0}, 0")
            a(f"v_mov_b32 v{T1}, s{sNon}")
            a("s_mov_b64 exec, 1")
            a(f"buffer_store_dword v{T1}, v{T0}, {WS_}, s{sF2} offen{SC}"); VM.op()
            a("s_mov_b64 exec, -1")
        if t == TB1:
            a("s_barrier")
        if useD and t == TF2 - 2:
            a(f"buffer_load_dword v{DPOLL}, v{vFo}, {WS_}, s{sFp} offen{SC}"); tpoll = VM.op()
        if useD and t == TF2:
            VM.need(tpoll)
            lab = a.newlabel("L_f2")
            a(f"s_mov_b32 s{sT+1}, 0")
            a.label(lab)
            a(f"v_cmp_ne_u32 vcc, s{sNon}, v{DPOLL}")
            a(f"s_add_u32 s{sT+1}, s{sT+1}, 1")
            a.nop(2)
            a("s_cmp_eq_u64 vcc, 0")
            a(f"s_cbranch_scc1 {lab}_ok")
            a(f"s_cmp_ge_u32 s{sT+1}, 0x20000")
            a(f"s_cbranch_scc1 {lab}_ok")
            a("s_sleep 4")
            a(f"buffer_load_dword v{DPOLL}, v{vFo}, {WS_}, s{sFp} offen{SC}")
            a("s_waitcnt vmcnt(0)")
            a(f"s_branch {lab}")
            a.label(f"{lab}_ok")
        if t == 28:
            VM.need(tkv)
            a("s_barrier")
        if t == 42:
            a("s_barrier")
            a(f"s_lshr_b32 s{sT}, s{sW}, 1")
            a(f"s_mul_i32 s{sT}, s{sT}, {40*1024}")
            a(f"s_sub_u32 s{sWOb}, s{sDW}, s{sT}")
        if t % 8 == 0 and t: ST("D", 1 + t // 8)
        tile(t)
        if nd < 10 and (nd < 7 or t >= TB1):
            tkv = kvdma(nd); nd += 1
        if t >= 42 and nwo < 13:
            wodma(nwo); nwo += 1
    LG.need(tagV1[63])
    mf(O, V[1][1], P + 4, vr(O, 16))
    ST("A", 8); ST("D", 9)
    a("s_setprio 0")
    a("v_and_b32 v5, 15, v2")
    a("v_lshrrev_b32 v6, 4, v2")
    a("v_mul_u32_u24 v5, 1280, v5")
    a("v_lshl_add_u32 v5, v6, 3, v5")
    a(f"s_lshl_b32 s{sT}, s{sW}, 5")
    a(f"s_add_u32 s{sFin}, s{sFin}, s{sT}")
    a(f"s_lshr_b32 s{sT}, s{sW}, 1")
    a(f"s_mul_i32 s{sT}, s{sT}, 5120")
    a(f"v_add_u32 v7, s{sT}, v{vL}")
    a(f"v_add_u32 v6, {3*20480}, v7")
    a("v_lshrrev_b32 v16, 1, v3")
    a(f"v_mul_u32_u24 v16, {5*256}, v16")
    a("v_and_b32 v17, 1, v3")
    a("v_lshl_add_u32 v16, v17, 3, v16")
    a(f"v_mul_u32_u24 v17, {2*20480}, v4")
    a("v_add_u32 v16, v16, v17")
    a(f"v_mov_b32 v{T0}, v{O+8}")
    a(f"v_mov_b32 v{T1}, v{O+8}")
    a(f"v_mov_b32 v{T2}, 0")
    a.nop(1)
    a(f"v_permlane32_swap_b32 v{T0}, v{T1}")
    for r in range(12): a(f"v_fma_f32 v{T2}, v{O+r}, 0, v{T2}")
    a(f"s_mov_b32 s{sT}, 0x71800000")
    a(f"v_add_f32 v{T2}, v{T2}, v{T1}")
    a(f"v_cmp_ngt_f32 vcc, s{sT}, v{T2}")
    a.nop(4)
    a("s_cmp_lg_u64 vcc, 0")
    a("s_cbranch_scc1 L_slow")
    a.label("L_fin")
    a(f"v_rcp_f32 v{T1}, v{T1}")
    a(f"s_lshr_b32 s{sT}, s{sH}, 1")
    a(f"s_mul_i32 s{sT}, s{sT}, {5*256}")
    a(f"s_add_u32 s{sT}, s{sT}, {WS_O}")
    a(f"s_and_b32 s{sT+1}, s{sH}, 1")
    a(f"s_mul_i32 s{sT+2}, s{sT+1}, {3*256}")
    a(f"s_add_u32 s{sT+2}, s{sT+2}, s{sT}")
    a(f"s_lshl_b32 s{sT+1}, s{sT+1}, 3")
    a(f"s_add_u32 s{sT+1}, s{sT+1}, s{sT}")
    for r in range(12): a(f"v_mul_f32 v{O+r}, v{O+r}, v{T1}")
    for p in range(6): a(f"v_cvt_pk_bf16_f32 v{P+p}, v{O+2*p}, v{O+2*p+1}")
    a(f"v_permlane32_swap_b32 v{P}, v{P+2}")
    a(f"v_permlane32_swap_b32 v{P+1}, v{P+3}")
    a(f"buffer_store_dwordx4 {vr(P,4)}, v{vOst+1}, {WS_}, s{sT+2} offen{SC}")
    a(f"s_mov_b64 exec, s[{sLO}:{sLO+1}]")
    a(f"buffer_store_dwordx2 {vr(P+4,2)}, v{vOst}, {WS_}, s{sT+1} offen offset:512{SC}")
    a("s_mov_b64 exec, -1")
    for m in range(4):
        a(f"s_add_u32 s{sT}, s{sFin}, {m*16*1280}")
        a(f"buffer_load_dwordx2 {vr(20+2*m,2)}, v5, {X_}, s{sT} offen")
    ST("A", 9); ST("D", 10)
    a(f"s_cmp_lg_u32 s{sW}, 0")
    a("s_cbranch_scc1 L_f3_wait")
    a(f"s_add_u32 s{sT+2}, s{sDX+1}, 512")
    a(f"s_mov_b32 s{sT+1}, 0")
    a.label("L_f3")
    a(f"buffer_load_dword v{T1}, v16, {WS_}, s{sT+2} offen{SC}")
    a(f"s_add_u32 s{sT+1}, s{sT+1}, 1")
    a("s_waitcnt vmcnt(0)")
    a(f"v_cmp_eq_u32 vcc, -1, v{T1}")
    a.nop(4)
    a("s_cmp_eq_u64 vcc, 0")
    a("s_cbranch_scc1 L_f3_wait")
    a(f"s_cmp_ge_u32 s{sT+1}, 0x20000")
    a("s_cbranch_scc1 L_f3_wait")
    a("s_sleep 1")
    a("s_branch L_f3")
    a.label("L_f3_wait")
    a("s_waitcnt vmcnt(0)")
    a("s_barrier")
    ST("A", 10); ST("D", 11)
    XOF = [72 + 8 * k for k in range(4)] + [36]
    WOF = [164 + 20 * k for k in range(4)] + [44]
    a(f"s_mov_b32 s{sT+1}, 0")
    a.label("L_xo")
    for k in range(5):
        for m in range(2):
            a(f"s_add_u32 s{sT}, s{sDX+1}, {k*4096 + m*20480}")
            a(f"buffer_load_dwordx4 {vr(XOF[k]+4*m,4)}, v{vL}, {WS_}, s{sT} offen{SC}")
    for k in range(5):
        for n in range(5):
            off = k * 20480 + n * 1024
            a(f"ds_read_b128 {vr(WOF[k]+4*n,4)}, v{7 if k < 3 else 6} offset:{off if k < 3 else off - 3*20480}")
    for k in range(5):
        a(f"s_waitcnt vmcnt({8-2*k})")
        x = XOF[k]
        a(f"v_max3_u32 v{28+k}, v{x}, v{x+1}, v{x+2}")
        a(f"v_max3_u32 v{28+k}, v{28+k}, v{x+3}, v{x+4}")
        a(f"v_max3_u32 v{28+k}, v{28+k}, v{x+5}, v{x+6}")
        a(f"v_max_u32 v{28+k}, v{28+k}, v{x+7}")
    a("v_max3_u32 v28, v28, v29, v30")
    a("v_max3_u32 v28, v28, v31, v32")
    a("v_cmp_eq_u32 vcc, -1, v28")
    a(f"s_add_u32 s{sT+1}, s{sT+1}, 1")
    a("s_waitcnt lgkmcnt(0)")
    a.nop(2)
    a("s_cmp_eq_u64 vcc, 0")
    a("s_cbranch_scc1 L_xo_ok")
    a(f"s_cmp_lt_u32 s{sT+1}, 0x20000")
    a("s_cbranch_scc1 L_xo")
    a.label("L_xo_ok")
    a("s_barrier")
    for k in range(5):
        for n in range(5):
            for m in range(2):
                acc = DACC + (m * 5 + n) * 4
                a(f"{M16} {vr(acc,4)}, {vr(WOF[k]+4*n,4)}, {vr(XOF[k]+4*m,4)}, {vr(acc,4)}")
    ST("A", 11)
    a(f"s_and_b32 s{sT}, s{sW}, 1")
    a(f"s_lshl_b32 s{sT}, s{sT}, 3")
    a(f"s_lshr_b32 s{sT+1}, s{sW}, 1")
    a(f"s_add_u32 s{sT}, s{sT}, s{sT+1}")
    a(f"s_lshl_b32 s{sT}, s{sT}, 10")
    a(f"v_add_u32 v6, s{sT}, v{vL}")
    a(f"v_add_u32 v7, 0x10000, v6")
    a.nop(2)
    for n in range(5):
        for m in range(2):
            off = (n * 16 + m * 4) * 1024
            a(f"ds_write_b128 v{6 if off < 65536 else 7}, {vr(DACC+(m*5+n)*4,4)} offset:{off % 65536}")
    a(f"s_lshl_b32 s{sT}, s{sW}, 14")
    a(f"v_add_u32 v6, s{sT}, v{vL}")
    for m in range(4):
        for p in range(2):
            a(f"v_lshlrev_b32 v{72+4*m+2*p}, 16, v{20+2*m+p}")
            a(f"v_and_b32 v{72+4*m+2*p+1}, 0xffff0000, v{20+2*m+p}")
    a("s_waitcnt lgkmcnt(0)")
    a("s_barrier")
    a(f"s_cmp_ge_u32 s{sW}, 5")
    a("s_cbranch_scc1 L_done")
    RB = 124
    for q in range(16): a(f"ds_read_b128 {vr(RB+4*q,4)}, v6 offset:{q*1024}")
    for m in range(4):
        a(f"s_waitcnt lgkmcnt({12-4*m})")
        acc = 72 + 4 * m
        for p in range(2):
            for k in range(4):
                a(f"v_pk_add_f32 {vr(acc+2*p,2)}, {vr(acc+2*p,2)}, {vr(RB+(m*4+k)*4+2*p,2)}")
            a(f"v_cvt_pk_bf16_f32 v{acc+p}, v{acc+2*p}, v{acc+2*p+1}")
        a(f"s_add_u32 s{sT}, s{sFin}, {m*16*1280}")
        a(f"buffer_store_dwordx2 {vr(acc,2)}, v5, {OUT_}, s{sT} offen")
    a.label("L_done")
    ST.dump(WS_, sW, sT)
    a.label("L_end")
    a("s_endpgm")

    a.label("L_slow")
    vKa, vKb, vV = AD[0]
    a(f"v_mov_b32 v{QB+2}, 0")
    a(f"v_mov_b32 v{vM}, 0xff800000")
    for r in range(16): a(f"v_mov_b32 v{O+r}, 0")
    a(f"s_mov_b32 s{sLoop}, 0")
    a(f"s_mul_i32 s{sT+3}, s{sH}, {16*CHUNK}")
    a(f"s_add_u32 s{sT+3}, s{sT+3}, {WS_KV}")
    a.label("L_slow_loop")
    a(f"buffer_load_dwordx4 {vr(KA[0],4)}, v{vKa}, {WS_}, s{sT+3} offen")
    a(f"buffer_load_dwordx2 {vr(KB[0],2)}, v{vKb}, {WS_}, s{sT+3} offen")
    a(f"s_mov_b64 exec, s[{sVM}:{sVM+1}]")
    a(f"buffer_load_dwordx4 {vr(V[0][0],4)}, v{vV}, {WS_}, s{sT+3} offen")
    a(f"buffer_load_dwordx4 {vr(V[0][1],4)}, v{vV}, {WS_}, s{sT+3} offen offset:640")
    a("s_mov_b64 exec, -1")
    a("s_waitcnt vmcnt(0)")
    s = S[1]
    mf(s, KA[0], QA, "0")
    mf(s, KB[0], QB, vr(s, 16))
    a.nop(12)
    rowmax(s, vM)
    a(f"v_sub_f32 v{T1}, v{vM}, v{T0}")
    a(f"v_exp_f32 v{T1}, v{T1}")
    a(f"v_mov_b32 v{vM}, v{T0}")
    for r in range(16): a(f"v_sub_f32 v{s+r}, v{s+r}, v{T0}")
    for r in range(16): a(f"v_mul_f32 v{O+r}, v{O+r}, v{T1}")
    for r in range(16): a(f"v_exp_f32 v{s+r}, v{s+r}")
    a.nop(1)
    for p in range(8): a(f"v_cvt_pk_bf16_f32 v{P+p}, v{s+2*p}, v{s+2*p+1}")
    a.nop(2)
    mf(O, V[0][0], P, vr(O, 16))
    mf(O, V[0][1], P + 4, vr(O, 16))
    a(f"s_add_u32 s{sLoop}, s{sLoop}, 1")
    a(f"s_and_b32 s{sT}, s{sLoop}, 3")
    a(f"s_cmp_eq_u32 s{sT}, 0")
    a(f"s_movk_i32 s{sT}, 512")
    a(f"s_movk_i32 s{sT+1}, 256")
    a(f"s_movk_i32 s{sT+2}, 1280")
    a(f"s_cselect_b32 s{sT}, {CHUNK-3*512}, s{sT}")
    a(f"s_cselect_b32 s{sT+1}, {CHUNK-3*256}, s{sT+1}")
    a(f"s_cselect_b32 s{sT+2}, {CHUNK-3*1280}, s{sT+2}")
    a(f"v_add_u32 v{vKa}, s{sT}, v{vKa}")
    a(f"v_add_u32 v{vKb}, s{sT+1}, v{vKb}")
    a(f"v_add_u32 v{vV}, s{sT+2}, v{vV}")
    a.nop(8)
    a(f"s_cmp_lt_u32 s{sLoop}, 64")
    a("s_cbranch_scc1 L_slow_loop")
    a.nop(4)
    a(f"v_mov_b32 v{T0}, v{O+8}")
    a(f"v_mov_b32 v{T1}, v{O+8}")
    a.nop(2)
    a(f"v_permlane32_swap_b32 v{T0}, v{T1}")
    a("s_branch L_fin")
    return kernel_header(NAME) + a.text(), kernel_desc(NAME, NV, 102 if stamp else 72)

if __name__ == "__main__":
    import sys
    stamp = sys.argv[2] if len(sys.argv) > 2 and sys.argv[2] != "none" else False
    ex = sys.argv[3] if len(sys.argv) > 3 else ""
    body, desc = gen(stamp, ex)
    hdr = open("parallel_sum__softmax_full_mha__glu_gated_reglu__prompt.s.ref").read().split("; Override launch")[0]
    s = hdr + f"; @launch grid=(256,1,1) block=(512,1,1) lds={LDS_M1}\n"
    s += '.amdgcn_target "amdgcn-amd-amdhsa--gfx950"\n.text\n' + body + '.section .rodata,"a"\n' + desc
    open(sys.argv[1], "w").write(s)
```

```python
from asmlib import *
from k_qkv import ln_rowmath
NAME = "parallel_sum__softmax_full_mha__glu_gated_reglu__prompt_kernel"
LDS_M1 = 163840
M32 = "v_mfma_f32_32x32x16_bf16"; M16 = "v_mfma_f32_16x16x32_bf16"

def gen(stamp=False, exp=""):
    a = Asm()
    ST = Stamps2(a, stamp)
    opt = lambda key, dflt: int(exp.split(key)[1].split("_")[0]) if key in exp else dflt
    sX, sWq, sWS, sWg, sWu, sOut, sPk = 8, 12, 16, 20, 24, 28, 32
    sDbg = 36
    sW, sMT, sNT, sIDX, sXCD, sNG = 38, 39, 40, 41, 42, 43
    sLO, sVM, sM = 44, 46, 48
    sT = 50
    sNon = 58
    sLW = 59
    sA, sB, sC = 60, 61, 62
    sG2 = 63
    sR = 64
    R_ = lambda b: f"s[{b}:{b+3}]"
    X_, WQ_, WS_, WG_, WU_, OUT_, PK_ = map(R_, (sX, sWq, sWS, sWg, sWu, sOut, sPk))
    SC = " sc1"
    NST, STG, STATS, PKS = 4, 32768, 0, 131072
    GSLOT = [122880, 81920, 40960, 0]
    CSA = 122880
    QOFF = 15 * CHUNK

    a("s_cmp_ge_u32 s2, 256")
    a("s_cbranch_scc1 L_end")
    ST.start()
    a(f"s_load_dwordx4 s[4:7], s[0:1], 0")
    a(f"s_load_dwordx2 s[{sT}:{sT+1}], s[0:1], 16")
    a(f"s_load_dwordx4 s[{sT+2}:{sT+5}], s[0:1], 32")
    a(f"s_load_dwordx4 s[{sR}:{sR+3}], s[0:1], 48")
    a(f"s_load_dwordx4 s[{sR+4}:{sR+7}], s[0:1], 64")
    a("v_lshrrev_b32 v1, 6, v0")
    a("v_and_b32 v2, 63, v0")
    a(f"v_readfirstlane_b32 s{sW}, v1")
    a(f"s_and_b32 s{sXCD}, s2, 7")
    a(f"s_lshr_b32 s{sIDX}, s2, 3")
    a(f"s_lshr_b32 s{sMT}, s{sXCD}, 2")
    a(f"s_lshl_b32 s{sMT}, s{sMT}, 3")
    a(f"s_and_b32 s3, s{sIDX}, 7")
    a(f"s_add_u32 s{sMT}, s{sMT}, s3")
    a(f"s_and_b32 s{sNG}, s{sXCD}, 3")
    a(f"s_lshl_b32 s{sNG}, s{sNG}, 2")
    a(f"s_lshr_b32 s3, s{sIDX}, 3")
    a(f"s_add_u32 s{sNG}, s{sNG}, s3")
    a(f"s_min_u32 s{sNT}, s{sNG}, 14")
    a(f"s_and_b32 s{sLW}, s{sW}, 3")
    a(f"s_mov_b32 s{sLO}, -1\ns_mov_b32 s{sLO+1}, 0\ns_mov_b32 s{sVM}, 0xfffff\ns_mov_b32 s{sVM+1}, 0xfffff")
    a("v_and_b32 v3, 31, v2")
    a("v_lshrrev_b32 v4, 5, v2")
    a(f"s_lshl_b32 s{sA}, s{sMT}, 4")
    a(f"s_add_u32 s{sA}, s{sA}, s{sNG}")
    a(f"s_mul_i32 s{sA}, s{sA}, 3")
    a(f"s_add_u32 s{sA}, s{sA}, s{sW}")
    a(f"s_mul_i32 s{sB}, s{sA}, 6554")
    a(f"s_lshr_b32 s{sB}, s{sB}, 16")
    a(f"s_mul_i32 s{sG2}, s{sLW}, {16*3072}")
    a(f"s_mul_i32 s3, s{sNG}, 192")
    a(f"s_add_u32 s{sG2}, s{sG2}, s3")
    a("s_waitcnt lgkmcnt(0)")
    def srd(b, lo, hi, n): a(f"s_mov_b32 s{b}, s{lo}\ns_and_b32 s{b+1}, s{hi}, 0xffff\ns_mov_b32 s{b+2}, {n}\ns_mov_b32 s{b+3}, 0x20000")
    srd(sX, 4, 5, 2048 * 1280); srd(sWq, 6, 7, 640 * 3840); srd(sWS, sR + 6, sR + 7, WS_END)
    srd(sWg, sT + 2, sT + 3, 640 * 3072); srd(sWu, sT + 4, sT + 5, 640 * 3072); srd(sOut, sR + 2, sR + 3, 2048 * 1280)
    a(f"s_mov_b64 s[{sDbg}:{sDbg+1}], s[{sR+4}:{sR+5}]")
    a(f"s_cmp_lt_u32 s{sB}, 20")
    a(f"s_cselect_b32 s{sPk}, s{sT}, s{sR}")
    a(f"s_cselect_b32 s{sPk+1}, s{sT+1}, s{sR+1}")
    a(f"s_mov_b32 s{sPk+2}, {1536*1280}")
    a(f"s_cselect_b32 s{sPk+2}, {640*1280}, s{sPk+2}")
    a(f"s_and_b32 s{sPk+1}, s{sPk+1}, 0xffff")
    a(f"s_mov_b32 s{sPk+3}, 0x20000")

    sPB = [sR + 5, sR + 6, sR + 7]
    vPF = 214; PFD = 216
    lab = a.newlabel("L_pf")
    a(f"s_mul_i32 s{sT}, s{sIDX}, 12")
    a(f"s_mul_i32 s{sT+1}, s{sLW}, 3")
    a(f"s_add_u32 s{sT}, s{sT}, s{sT+1}")
    a(f"s_lshr_b32 s{sT+4}, s{sW}, 2")
    a(f"s_xor_b32 s{sT+4}, s{sT+4}, 1")
    a(f"s_mov_b32 s7, 0x20000")
    a(f"s_cmp_ge_u32 s{sT}, 255")
    a(f"s_cbranch_scc1 {lab}_w")
    a(f"s_mov_b32 s4, s{sX}\ns_mov_b32 s5, s{sX+1}\ns_mov_b32 s6, s{sX+2}\ns_movk_i32 s3, 256")
    a(f"v_lshrrev_b32 v{vPF}, 3, v2")
    a(f"v_mul_u32_u24 v{vPF}, 1280, v{vPF}")
    a("v_and_b32 v1, 7, v2")
    a(f"v_lshl_add_u32 v{vPF}, v1, 4, v{vPF}")
    a(f"s_lshr_b32 s{sT+1}, s{sXCD}, 2")
    a(f"s_mul_i32 s{sT+1}, s{sT+1}, {1024*1280}")
    for j in range(3):
        a(f"s_add_u32 s{sT+2}, s{sT}, {j}")
        a(f"s_lshr_b32 s{sT+3}, s{sT+2}, 1")
        a(f"s_mul_i32 s{sT+3}, s{sT+3}, {8*1280}")
        a(f"s_and_b32 s{sT+2}, s{sT+2}, 1")
        a(f"s_lshl_b32 s{sT+2}, s{sT+2}, 7")
        a(f"s_add_u32 s{sT+3}, s{sT+3}, s{sT+2}")
        a(f"s_add_u32 s{sPB[j]}, s{sT+3}, s{sT+1}")
    a(f"s_branch {lab}")
    a.label(f"{lab}_w")
    a(f"s_mov_b32 s4, s{sWq}\ns_mov_b32 s5, s{sWq+1}\ns_mov_b32 s6, s{sWq+2}\ns_mov_b32 s3, {128*3840}")
    a(f"v_lshlrev_b32 v{vPF}, 4, v2")
    a(f"s_sub_u32 s{sT}, s{sT}, 255")
    a(f"s_mul_i32 s{sT}, s{sT}, 3840")
    a(f"s_and_b32 s{sT+1}, s{sXCD}, 3")
    a(f"s_lshl_b32 s{sT+1}, s{sT+1}, 10")
    a(f"s_add_u32 s{sT}, s{sT}, s{sT+1}")
    for j in range(3): a(f"s_add_u32 s{sPB[j]}, s{sT}, {j*3840}")
    a.label(lab)
    a(f"s_mul_i32 s{sT}, s{sT+4}, s3")
    for j in range(3): a(f"s_add_u32 s{sPB[j]}, s{sPB[j]}, s{sT}")
    def pf1(cnt=None, adv=1):
        for j in range(3):
            a(f"buffer_load_dwordx4 {vr(PFD,4)}, v{vPF}, s[4:7], s{sPB[j]} offen")
            for _ in range(adv): a(f"s_add_u32 s{sPB[j]}, s{sPB[j]}, s3")
            if cnt: cnt.op()
    pf1()
    vXE, vXO = 220, 221; vGd = [222, 223, 224]
    SEL = 168
    sXo, sLd, sLdW, sF2 = sR, sR + 1, sR + 2, sR + 3
    a(f"s_lshl_b32 s{sF2}, s{sMT}, 3\ns_add_u32 s{sF2}, s{sF2}, s{sW}\ns_lshl_b32 s{sF2}, s{sF2}, 4\ns_add_u32 s{sF2}, s{sF2}, s{sNG}")
    a(f"s_lshl_b32 s{sF2}, s{sF2}, 7\ns_add_u32 s{sF2}, s{sF2}, {WS_FL2}")
    a(f"s_or_b32 s{sT}, s2, s{sW}")
    a(f"s_cmp_lg_u32 s{sT}, 0")
    a("s_cbranch_scc1 L_nonce_done")
    a(f"s_memrealtime s[{sT}:{sT+1}]")
    a("v_mov_b32 v9, 0")
    a("s_waitcnt lgkmcnt(0)")
    a(f"s_or_b32 s{sT}, s{sT}, 1")
    a(f"v_mov_b32 v10, s{sT}")
    a("s_mov_b64 exec, 1")
    a(f"global_store_dword v9, v10, s[{sDbg}:{sDbg+1}] sc1")
    a("s_mov_b64 exec, -1")
    a.label("L_nonce_done")
    a("v_lshrrev_b32 v9, 4, v2")
    a("v_lshrrev_b32 v10, 3, v2")
    a("v_mul_u32_u24 v10, 1280, v10")
    a("v_and_b32 v11, 7, v2")
    a(f"v_xor_b32 v{vXE}, v11, v9")
    a(f"v_xor_b32 v{vXO}, 4, v{vXE}")
    a(f"v_lshl_add_u32 v{vXE}, v{vXE}, 4, v10")
    a(f"v_lshl_add_u32 v{vXO}, v{vXO}, 4, v10")
    a(f"s_lshl_b32 s{sXo}, s{sMT}, 7")
    a(f"s_lshl_b32 s{sT}, s{sLW}, 5")
    a(f"s_add_u32 s{sXo}, s{sXo}, s{sT}")
    a(f"s_mul_i32 s{sXo}, s{sXo}, 1280")
    a(f"s_lshl_b32 s{sLd}, s{sLW}, 12")
    a(f"s_mul_i32 s{sLdW}, s{sLW}, 3072")
    a(f"s_cmp_ge_u32 s{sW}, 4")
    a("s_cbranch_scc1 L_B")

    vNon = 215
    def nonce_issue(cnt):
        a(f"v_mov_b32 v{vNon}, 0")
        a(f"global_load_dword v{vNon}, v{vNon}, s[{sDbg}:{sDbg+1}] sc1")
        return cnt.op()
    def nonce_get(cnt, tag):
        lab = a.newlabel("L_non")
        cnt.need(tag)
        a(f"s_mov_b32 s{sT+1}, 0")
        a.label(lab)
        a(f"v_readfirstlane_b32 s{sNon}, v{vNon}")
        a(f"s_add_u32 s{sT+1}, s{sT+1}, 1")
        a(f"s_cmp_lg_u32 s{sNon}, 0")
        a(f"s_cbranch_scc1 {lab}_ok")
        a(f"s_cmp_ge_u32 s{sT+1}, 0x20000")
        a(f"s_cbranch_scc1 {lab}_ok")
        a("s_sleep 8")
        a(f"v_mov_b32 v{vNon}, 0")
        a(f"global_load_dword v{vNon}, v{vNon}, s[{sDbg}:{sDbg+1}] sc1")
        a("s_waitcnt vmcnt(0)")
        a(f"s_branch {lab}")
        a.label(f"{lab}_ok")
    def common_late_setup():
        for t in range(3):
            a(f"v_add_u32 v10, {64*t}, v2")
            a(f"v_mul_u32_u24 v11, 5462, v10")
            a(f"v_lshrrev_b32 v11, 16, v11")
            a(f"v_mul_u32_u24 v9, 12, v11")
            a(f"v_sub_u32 v9, v10, v9")
            a(f"v_mul_u32_u24 v11, 3072, v11")
            a(f"v_lshl_add_u32 v{vGd[t]}, v9, 4, v11")
        a("v_lshrrev_b32 v9, 4, v2")
        a("v_and_b32 v9, 1, v9")
        a("v_and_b32 v10, 15, v2")
        a("v_cmp_eq_u32 vcc, v10, v9")
        a("v_mov_b32 v10, 0x3f803f80")
        a.nop(1)
        for r in range(4): a(f"v_cndmask_b32 v{SEL+r}, 0, v10, vcc")
    def issue2(st, cnt):
        base = GSLOT[st % 4]
        for j in range(4):
            a(f"s_add_u32 m0, s{sLd}, {base + j*1024}")
            a(f"s_add_u32 s{sT}, s{sXo}, {j*8*1280 + st*128}")
            a(f"buffer_load_dwordx4 v{vXO if j & 1 else vXE}, {X_}, s{sT} offen lds")
        a(f"s_add_u32 s{sT}, s{sG2}, {st*64*3072}")
        for mat in range(2):
            for t in range(3):
                a(f"s_add_u32 m0, s{sLdW}, {base + 16384 + mat*12288 + t*1024}")
                a.nop(1)
                a(f"buffer_load_dwordx4 v{vGd[t]}, {WU_ if mat else WG_}, s{sT} offen lds")
        return cnt.op(10)

    pf1(adv=0)
    if "tlb" in exp:
        G = opt("tlb", 21)
        a(f"v_lshlrev_b32 v5, {G}, v2")
        for k, (srdn, off) in enumerate(((WS_, 4032), (WG_, 0), (WU_, 0), (OUT_, 0), (PK_, 0))):
            a(f"s_cmp_lg_u32 s{sW}, {k % 4}")
            lab = a.newlabel("L_tw")
            a(f"s_cbranch_scc1 {lab}")
            a(f"buffer_load_dword v{PFD}, v5, {srdn}, 0 offen offset:{off} sc1")
            a.label(lab)
    XF = [[8, 12], [16, 20]]; WF = [[24, 28], [32, 36]]
    vXA = [[[40 + (hi * 2 + mi) * 4 + ks for ks in range(4)] for mi in range(2)] for hi in range(2)]
    vWA = [[56 + hi * 2 + ni for ni in range(2)] for hi in range(2)]
    RSD = 60
    ACC = 64
    T = list(range(128, 168))
    CSD = 172
    U = [176, 177, 178, 179]
    vPK = [185, 186, 187, 188]; vPKr = 189
    sWM, sWN, sPKc, sPKl, sPKb = sR + 4, sR + 5, sR + 6, sR + 7, sC
    common_late_setup()
    a(f"s_and_b32 s{sWM}, s{sW}, 1")
    a(f"s_lshr_b32 s{sWN}, s{sW}, 1")
    a("v_lshrrev_b32 v5, 1, v3")
    a("v_and_b32 v5, 7, v5")
    for mi in range(2):
        a(f"s_xor_b32 s{sT}, s{sWN}, {mi}")
        a(f"s_lshl_b32 s{sT+1}, s{sWM}, 1")
        a(f"s_add_u32 s{sT}, s{sT}, s{sT+1}")
        a(f"s_lshl_b32 s{sT}, s{sT}, 12")
        a(f"v_lshl_add_u32 v6, v3, 7, s{sT}")
        for ks in range(4):
            a(f"v_or_b32 v7, {2*ks}, v4")
            a(f"v_xor_b32 v7, v7, v5")
            a(f"v_lshl_add_u32 v{vXA[0][mi][ks]}, v7, 4, v6")
            a(f"v_add_u32 v{vXA[1][mi][ks]}, 0x10000, v{vXA[0][mi][ks]}")
    a("v_lshrrev_b32 v5, 2, v2")
    a("v_and_b32 v5, 3, v5")
    a("v_lshl_add_u32 v6, v4, 3, v5")
    a("v_lshlrev_b32 v6, 8, v6")
    a("v_lshrrev_b32 v7, 4, v2")
    a("v_and_b32 v7, 1, v7")
    a("v_lshl_add_u32 v6, v7, 5, v6")
    a("v_and_b32 v7, 3, v2")
    a("v_lshl_add_u32 v6, v7, 3, v6")
    a("v_add_u32 v6, 16384, v6")
    for ni in range(2):
        a(f"s_xor_b32 s{sT}, s{sWM}, {ni}")
        a(f"s_lshl_b32 s{sT+1}, s{sWN}, 1")
        a(f"s_add_u32 s{sT}, s{sT}, s{sT+1}")
        a(f"v_xor_b32 v7, s{sT}, v5")
        a(f"v_lshl_add_u32 v{vWA[0][ni]}, v7, 6, v6")
        a(f"v_add_u32 v{vWA[1][ni]}, 0x10000, v{vWA[0][ni]}")
    for r in range(64): a(f"v_mov_b32 v{ACC+r}, 0")
    for r in range(4): a(f"v_mov_b32 v{CSD+r}, 0\nv_mov_b32 v{RSD+r}, 0")
    a(f"s_mov_b32 s{sPKb}, s{sA}")
    a(f"s_mul_i32 s{sT+2}, s{sB}, 10")
    a(f"s_sub_u32 s{sT+2}, s{sA}, s{sT+2}")
    a(f"s_cmp_lt_u32 s{sB}, 20")
    a(f"s_cselect_b32 s{sT+3}, 0, 20")
    a(f"s_cselect_b64 s[{sM}:{sM+1}], -1, 0")
    a(f"s_sub_u32 s{sT+3}, s{sB}, s{sT+3}")
    a(f"s_lshl_b32 s{sT+3}, s{sT+3}, 5")
    a(f"s_lshl_b32 s{sPKc}, s{sT+2}, 7")
    a(f"s_lshl_b32 s{sPKl}, s{sW}, 12")
    a(f"s_add_u32 s{sPKl}, s{sPKl}, {PKS}")
    a("v_lshrrev_b32 v5, 3, v2")
    a("v_and_b32 v6, 7, v2")
    for t in range(4):
        a(f"v_add_u32 v7, s{sT+3}, v5")
        if t: a(f"v_add_u32 v7, {8*t}, v7")
        a(f"v_mul_u32_u24 v{U[0]}, 1639, v7")
        a(f"v_lshrrev_b32 v{U[0]}, 16, v{U[0]}")
        a(f"v_mul_u32_u24 v{U[0]}, 40, v{U[0]}")
        a(f"v_sub_u32 v{U[0]}, v7, v{U[0]}")
        a(f"v_cmp_le_u32 vcc, 24, v{U[0]}")
        a(f"v_cmp_le_u32 s[{sT+6}:{sT+7}], 20, v{U[0]}")
        a(f"v_mov_b32 v{U[1]}, 16")
        a(f"v_cndmask_b32 v{U[1]}, 0, v{U[1]}, s[{sT+6}:{sT+7}]")
        a(f"v_cndmask_b32 v{U[1]}, v{U[1]}, -4, vcc")
        a(f"v_cndmask_b32 v{U[1]}, 0, v{U[1]}, s[{sM}:{sM+1}]")
        a(f"v_add_u32 v7, v7, v{U[1]}")
        a("v_mul_u32_u24 v7, 1280, v7")
        a(f"v_lshl_add_u32 v{vPK[t]}, v6, 4, v7")
    a("v_lshrrev_b32 v5, 4, v2")
    a("v_lshrrev_b32 v6, 2, v2")
    a("v_and_b32 v6, 3, v6")
    a("v_lshl_add_u32 v5, v5, 3, v6")
    a("v_lshlrev_b32 v5, 7, v5")
    a("v_and_b32 v6, 3, v2")
    a("v_lshl_add_u32 v5, v6, 3, v5")
    a(f"v_add_u32 v{vPKr}, s{sPKl}, v5")
    def gprefetch_setup():
        a(f"s_and_b32 s{sT}, s{sW}, 1")
        a(f"s_cmp_eq_u32 s{sT}, 0")
        a(f"s_cselect_b32 s4, s{sWg}, s{sWu}")
        a(f"s_cselect_b32 s5, s{sWg+1}, s{sWu+1}")
        a(f"s_mov_b32 s6, {640*3072}")
        a(f"s_lshl_b32 s{sT}, s{sIDX}, 1")
        a(f"s_lshr_b32 s{sT+1}, s{sLW}, 1")
        a(f"s_add_u32 s{sT}, s{sT}, s{sT+1}")
        a(f"s_mul_i32 s3, s{sT}, {4*3072}")
        a(f"s_and_b32 s{sT}, s{sXCD}, 3")
        a(f"s_mul_i32 s{sT}, s{sT}, 768")
        a(f"s_add_u32 s3, s3, s{sT}")
        a(f"v_lshrrev_b32 v{vPF}, 4, v2")
        a(f"v_mul_u32_u24 v{vPF}, 3072, v{vPF}")
        a("v_and_b32 v1, 15, v2")
        a(f"v_lshl_add_u32 v{vPF}, v1, 4, v{vPF}")
    gprefetch_setup()
    CV = Cnt(a, "vmcnt", 63); tags = {}
    def gprefetch(n):
        if "nopf2" in exp: return
        a(f"s_add_u32 s{sT}, s3, {(n // 3)*256*3072}")
        a(f"buffer_load_dwordx4 {vr(PFD,4)}, v{vPF}, s[4:7], s{sT} offen offset:{(n % 3)*256}")
        CV.op()
    def pack_issue(t):
        a(f"s_add_u32 m0, s{sPKl}, {t*1024}")
        a.nop(1)
        a(f"buffer_load_dwordx4 v{vPK[t]}, {PK_}, s{sPKc} offen lds")
        tags["pack"] = CV.op()
    def pack_finish():
        lab = a.newlabel("L_pk")
        a(f"s_cmp_eq_u32 s{sW}, 3")
        a(f"s_cbranch_scc1 {lab}")
        a(f"s_cmp_ge_u32 s{sPKb}, 680")
        a(f"s_cbranch_scc1 {lab}")
        a(f"s_lshl_b32 s{sT+1}, s{sPKb}, 12")
        a(f"s_add_u32 s{sT+1}, s{sT+1}, {WS_WP}")
        a("v_lshlrev_b32 v6, 4, v2")
        a(f"s_waitcnt vmcnt({CV.issued - 1 - tags['pack']})")
        for n in range(4):
            for h in range(2):
                a(f"ds_read_b64_tr_b16 {vr(T[4*n]+2*h,2)}, v{vPKr} offset:{h*512 + n*32}")
        a("s_waitcnt lgkmcnt(0)")
        for n in range(4):
            a(f"buffer_store_dwordx4 {vr(T[4*n],4)}, v6, {WS_}, s{sT+1} offen offset:{n*1024}{SC}")
        a.label(lab)
    def rd1(st, ks, buf):
        base = (st % NST) * STG
        hi = base // 65536; b = base % 65536
        X = lambda mi: (("X", mi), f"ds_read_b128 {vr(XF[buf][mi],4)}, v{vXA[hi][mi][ks]} offset:{b}")
        W = lambda ni, h: (("W", ni), f"ds_read_b64_tr_b16 {vr(WF[buf][ni]+2*h,2)}, v{vWA[hi][ni]} offset:{b + ks*4096 + h*1024}")
        return [X(0), W(0, 0), W(0, 1), W(1, 0), W(1, 1), X(1)]
    PKI, GP0 = opt("pki", 2), opt("gp", 3)
    def p1_loop(vtype):
        CV.issued = CV.done = 0
        L1 = Cnt(a, "lgkmcnt", 15)
        tg = [{}, {}]
        def emit(lst, buf):
            for key, l in lst:
                a(l); tg[buf][key] = L1.op()
        a("s_barrier")
        ST("A", 1); ST("B", 1)
        emit(rd1(0, 0, 0), 0)
        for st in range(10):
            for ks in range(4):
                buf = (st * 4 + ks) & 1
                if ks < 3: nxt = rd1(st, ks + 1, buf ^ 1)
                elif st < 9: nxt = rd1(st + 1, 0, buf ^ 1)
                else: nxt = []
                if ks == 3 and st < 9:
                    L1.need(L1.issued - 1)
                    a("s_barrier")
                    ST("B", st + 2)
                n = 0
                for mi in range(2):
                    for ni in range(2):
                        d = ACC + (mi * 2 + ni) * 16
                        A, B = (XF[buf][mi], WF[buf][ni]) if vtype else (WF[buf][ni], XF[buf][mi])
                        L1.need(max(tg[buf][("X", mi)], tg[buf][("W", ni)]))
                        a(f"{M32} {vr(d,16)}, {vr(A,4)}, {vr(B,4)}, {vr(d,16)}")
                        emit(nxt[n * 2: n * 2 + 2], buf ^ 1)
                        if n == 3:
                            gi = (st - GP0) * 2 + (ks >> 1)
                            if 0 <= gi < 9 and (ks & 1): gprefetch(gi)
                            if 0 <= st - PKI < 4 and ks == 0: pack_issue(st - PKI)
                            if st == 7 and ks == 1: pack_finish()
                            if st == 8 and ks == 1: tags["non"] = nonce_issue(CV)
                        if n == 2: a(f"{M16} {vr(CSD,4)}, {vr(SEL,4)}, {vr(WF[buf][0],4)}, {vr(CSD,4)}")
                        n += 1
                a(f"{M16} {vr(RSD,4)}, {vr(SEL,4)}, {vr(XF[buf][0],4)}, {vr(RSD,4)}")
        ST("A", 2); ST("B", 11)
        a(f"s_lshl_b32 s{sT}, s{sWN}, 1\ns_add_u32 s{sT}, s{sT}, s{sWM}\ns_lshl_b32 s{sT}, s{sT}, 7\ns_add_u32 s{sT}, s{sT}, {STATS+1024}")
        a(f"v_lshl_add_u32 v{U[0]}, v3, 2, s{sT}")
        a(f"s_lshl_b32 s{sT}, s{sWM}, 1\ns_add_u32 s{sT}, s{sT}, s{sWN}\ns_lshl_b32 s{sT}, s{sT}, 7")
        a(f"v_lshl_add_u32 v{U[1]}, v3, 2, s{sT}")
        a.nop(2)
        a("s_mov_b64 exec, 0xffff")
        a(f"ds_write_b32 v{U[0]}, v{CSD}")
        a(f"ds_write_b32 v{U[0]}, v{CSD+1} offset:64")
        a(f"ds_write_b32 v{U[1]}, v{RSD} offset:1536")
        a(f"ds_write_b32 v{U[1]}, v{RSD+1} offset:{1536+64}")
        a("s_mov_b64 exec, -1")
        a("s_waitcnt lgkmcnt(0)")
        a("s_barrier")
        nonce_get(CV, tags["non"])
        a(f"s_cmp_eq_u32 s{sNG}, 15")
        a("s_cbranch_scc1 L_A_dummy")
    def blk(dst, x, y, xo):
        a(f"s_xor_b32 s{dst}, s{y}, {xo}")
        a(f"s_lshl_b32 s{sT+7}, s{x}, 1")
        a(f"s_add_u32 s{dst}, s{dst}, s{sT+7}")
    sH, sQB, sKV = sA, sB, sC
    def p3_ids():
        a(f"s_lshl_b32 s{sH}, s{sXCD}, 2")
        a(f"s_and_b32 s{sT}, s{sIDX}, 3")
        a(f"s_add_u32 s{sH}, s{sH}, s{sT}")
        a(f"s_lshr_b32 s{sQB}, s{sIDX}, 2")
        a(f"s_mul_i32 s{sKV}, s{sH}, {16*CHUNK}")
    VA = Cnt(a, "vmcnt", 63); tag2 = {}
    def capture(fn):
        n0 = len(a.lines); fn(); L = a.lines[n0:]; del a.lines[n0:]
        return L
    def atoms(lines):
        out = []; cur = None
        for l in lines:
            t = l.strip()
            if t == "; {": cur = []
            elif t == "; }": out.append(cur); cur = None
            elif cur is not None: cur.append(l)
            else: out.append([l])
        return out
    def marker_prefill():
        a.c("{")
        p3_ids()
        a("v_mov_b32 v12, -1\nv_mov_b32 v13, -1\nv_mov_b32 v14, -1\nv_mov_b32 v15, -1")
        a(f"s_lshr_b32 s{sT+1}, s{sH}, 1")
        a(f"s_mul_i32 s{sT+1}, s{sT+1}, {5*256}")
        a(f"s_add_u32 s{sT+1}, s{sT+1}, {WS_O}")
        a(f"s_lshl_b32 s{sT+3}, s{sQB}, 4")
        a(f"s_lshl_b32 s{sT+4}, s{sW}, 2")
        a(f"s_add_u32 s{sT+3}, s{sT+3}, s{sT+4}")
        a(f"s_mul_i32 s{sT+3}, s{sT+3}, 20480")
        a(f"s_add_u32 s{sT+1}, s{sT+1}, s{sT+3}")
        a(f"s_and_b32 s{sT+3}, s{sH}, 1")
        a(f"s_mul_i32 s{sT+2}, s{sT+3}, {3*256}")
        a(f"s_add_u32 s{sT+2}, s{sT+2}, s{sT+1}")
        a(f"s_lshl_b32 s{sT+3}, s{sT+3}, 3")
        a(f"s_add_u32 s{sT+1}, s{sT+1}, s{sT+3}")
        a("v_lshrrev_b32 v9, 4, v2")
        a("v_mul_u32_u24 v9, 20480, v9")
        a("v_and_b32 v10, 15, v2")
        a("v_lshl_add_u32 v9, v10, 4, v9")
        a(f"buffer_store_dwordx4 v[12:15], v9, {WS_}, s{sT+2} offen{SC}")
        a(f"buffer_store_dwordx4 v[12:15], v9, {WS_}, s{sT+2} offen offset:256{SC}")
        a(f"buffer_store_dwordx2 v[12:13], v9, {WS_}, s{sT+1} offen offset:512{SC}")
        a.c("}")
    SEGF = [0.42, 0.30, 0.28]
    def a_segments(body):
        at = atoms(body + capture(marker_prefill))
        tot = sum(len(x) for x in at)
        VA.issued = VA.done = 0
        done = 0; acc = 0.0
        for seg in range(4):
            dma = atoms(capture(lambda: tag2.__setitem__(seg + 2, issue2(seg + 2, VA)))) if seg >= 1 else []
            units = []; cur = []
            for x in dma:
                cur += x
                if "buffer_load" in x[0]: units.append(cur); cur = []
            mine = []
            if seg < 3:
                acc += SEGF[seg]
                while at and (done < acc * tot - 1e-9 or seg == 2):
                    done += len(at[0]); mine.append(at.pop(0))
            per = -(-len(mine) // max(len(units), 1))
            if not units:
                for x in mine: a.lines += x
            for u in units:
                a.lines += u
                for x in mine[:per]: a.lines += x
                mine = mine[per:]
            if seg == 0: a("s_waitcnt lgkmcnt(0)")
            if seg == 2: VA.need(tag2[3])
            if seg == 3: a("s_waitcnt vmcnt(10)")
            if seg < 3: a("s_barrier")
        VA.done = VA.issued - 10
        a("s_branch L_A_ld")

    a(f"s_cmp_ge_u32 s{sNT}, 10")
    a("s_cbranch_scc1 L_p1_vtype")
    p1_loop(False)
    NM = [T[0], T[1]]; RS = [T[2], T[3]]
    CSV = [[T[8] + (ni * 4 + g) * 4 for g in range(4)] for ni in range(2)]
    K16 = [8, 9]; K8 = [20, 21]; FL = [12, 13]
    a(f"s_cmp_lt_u32 s{sNT}, 5")
    a(f"s_cselect_b32 s{sB}, {f32bits(QSCALE):#x}, 1.0")
    a(f"s_cselect_b32 s{sC}, 0, 5")
    a(f"s_mov_b32 s{sT+6}, {WS_KV}")
    a(f"s_cselect_b32 s{sT+6}, {WS_Q}, s{sT+6}")
    a(f"s_sub_u32 s{sC}, s{sNT}, s{sC}")
    a(f"s_lshl_b32 s{sC}, s{sC}, 7")
    for mi in range(2):
        blk(sA, sWM, sWN, mi)
        a(f"s_lshl_b32 s{sA}, s{sA}, 5")
        a(f"v_add_u32 v11, s{sA}, v3")
        a(f"v_lshlrev_b32 v{22+mi}, 2, v11")
        a(f"v_lshlrev_b32 v{K16[mi]}, 4, v11")
        a(f"v_lshlrev_b32 v{K8[mi]}, 3, v11")
    for ni in range(2):
        blk(sA, sWN, sWM, ni)
        a(f"s_lshl_b32 s{sA}, s{sA}, 5")
        a(f"v_lshl_add_u32 v10, v4, 2, s{sA}")
        a(f"v_lshlrev_b32 v10, 2, v10")
        for g in range(4):
            a(f"ds_read_b128 {vr(CSV[ni][g],4)}, v10 offset:{STATS+1024+g*32}")
        a(f"s_add_u32 s{sA}, s{sA}, s{sC}")
        a(f"v_lshl_add_u32 v{FL[ni]}, v4, 3, s{sA}")
    a(f"s_mul_i32 s{sA}, s{sMT}, {CHUNK}")
    a(f"s_add_u32 s{sA}, s{sA}, s{sT+6}")
    a(f"s_add_u32 s{sC}, s{sA}, {16*CHUNK}")
    a(f"s_mov_b32 s{sPKc}, {16*CHUNK}")
    a("s_barrier")
    ST("A", 3)
    n0 = len(a.lines)
    for mi in range(2):
        a(f"ds_read_b32 v{NM[mi]}, v{22+mi} offset:{STATS}")
        a(f"ds_read_b32 v{RS[mi]}, v{22+mi} offset:{STATS+512}")
    a("s_waitcnt lgkmcnt(0)")
    for mi in range(2): a(f"v_mul_f32 v{RS[mi]}, s{sB}, v{RS[mi]}")
    for ni in range(2):
        for gp in range(2):
            a(f"v_add_u32 v14, {16*gp}, v{FL[ni]}")
            a(f"v_mul_u32_u24 v15, 1639, v14")
            a(f"v_lshrrev_b32 v15, 16, v15")
            a(f"v_mul_u32_u24 v16, 40, v15")
            a(f"v_sub_u32 v16, v14, v16")
            a(f"v_lshrrev_b32 v16, 3, v16")
            a(f"v_cmp_lt_u32 vcc, 2, v16")
            a(f"v_cmp_eq_u32 s[{sM}:{sM+1}], 2, v16")
            a(f"v_lshlrev_b32 v15, 1, v15")
            a(f"v_cndmask_b32 v14, 0, 1, vcc")
            a(f"v_add_u32 v15, v15, v14")
            a(f"v_mul_u32_u24 v14, 3, v14")
            a(f"v_sub_u32 v16, v16, v14")
            a(f"v_mul_lo_u32 v15, v15, s{sPKc}")
            a(f"v_lshl_add_u32 v15, v16, 11, v15")
            for mi in range(2):
                d = ACC + (mi * 2 + ni) * 16
                for g in (2 * gp, 2 * gp + 1):
                    for e in range(4):
                        a(f"v_fmac_f32 v{d+4*g+e}, v{CSV[ni][g]+e}, v{NM[mi]}")
                q = d + 8 * gp
                for e in range(8): a(f"v_mul_f32 v{q+e}, v{q+e}, v{RS[mi]}")
                a(f"v_cvt_pk_bf16_f32 v{q}, v{q}, v{q+1}")
                a(f"v_cvt_pk_bf16_f32 v{q+1}, v{q+2}, v{q+3}")
                a(f"v_cvt_pk_bf16_f32 v{q+2}, v{q+4}, v{q+5}")
                a(f"v_cvt_pk_bf16_f32 v{q+3}, v{q+6}, v{q+7}")
                a(f"v_add_u32 v17, v15, v{K16[mi]}")
                a(f"v_add_u32 v18, v15, v{K8[mi]}")
                a(f"v_permlane32_swap_b32 v{q}, v{q+2}")
                a(f"v_permlane32_swap_b32 v{q+1}, v{q+3}")
                a.c("{")
                a(f"s_andn2_b64 exec, exec, s[{sM}:{sM+1}]")
                a(f"buffer_store_dwordx4 {vr(q,4)}, v17, {WS_}, s{sA} offen{SC}")
                a(f"s_mov_b64 exec, s[{sM}:{sM+1}]")
                lab = a.newlabel("L_qk_ns")
                a(f"s_cbranch_execz {lab}")
                a(f"buffer_store_dwordx2 {vr(q,2)}, v18, {WS_}, s{sA} offen{SC}")
                a(f"buffer_store_dwordx2 {vr(q+2,2)}, v18, {WS_}, s{sC} offen{SC}")
                a.label(lab)
                a("s_mov_b64 exec, -1")
                a.c("}")
    body = a.lines[n0:]; del a.lines[n0:]
    a_segments(body)
    a.label("L_p1_vtype")
    p1_loop(True)
    CSL = [40, 41]; VB = [42, 43]
    NMV = [[T[8] + g * 4 for g in range(4)], [8 + g * 4 for g in range(4)]]
    RSV = [[T[24] + g * 4 for g in range(4)], [24 + g * 4 for g in range(4)]]
    a(f"s_sub_u32 s{sC}, s{sNT}, 10")
    a(f"s_lshl_b32 s{sC}, s{sC}, 7")
    a(f"s_mov_b32 s{sB}, {16*CHUNK}")
    for ni in range(2):
        blk(sA, sWN, sWM, ni)
        a(f"s_lshl_b32 s{sA}, s{sA}, 5")
        a(f"v_add_u32 v44, s{sA}, v3")
        a(f"v_lshlrev_b32 v45, 2, v44")
        a(f"ds_read_b32 v{CSL[ni]}, v45 offset:{STATS+1024}")
        a(f"v_add_u32 v44, s{sC}, v44")
        a(f"v_mul_u32_u24 v45, 3277, v44")
        a(f"v_lshrrev_b32 v45, 16, v45")
        a(f"v_mul_u32_u24 v46, 20, v45")
        a(f"v_sub_u32 v46, v44, v46")
        a(f"v_mul_lo_u32 v45, v45, s{sB}")
        a(f"v_lshl_add_u32 v45, v46, 4, v45")
        a(f"v_mul_u32_u24 v46, 320, v4")
        a(f"v_add_u32 v{VB[ni]}, v45, v46")
    sVo = [sB, sC]
    for mi in range(2):
        blk(sA, sWM, sWN, mi)
        a(f"s_lshl_b32 s{sT}, s{sA}, 7")
        a(f"v_lshl_add_u32 v{47+mi}, v4, 4, s{sT}")
        a(f"s_mul_i32 s{sA}, s{sA}, {4*320}")
        a(f"s_mul_i32 s{sT}, s{sMT}, {CHUNK}")
        a(f"s_add_u32 s{sA}, s{sA}, s{sT}")
        a(f"s_add_u32 s{sVo[mi]}, s{sA}, {WS_KV+5120}")
    a("s_barrier")
    ST("A", 3)
    n0 = len(a.lines)
    for mi in range(2):
        for g in range(4):
            a(f"ds_read_b128 {vr(NMV[mi][g],4)}, v{47+mi} offset:{STATS+g*32}")
            a(f"ds_read_b128 {vr(RSV[mi][g],4)}, v{47+mi} offset:{STATS+512+g*32}")
        if mi == 0: a("s_waitcnt lgkmcnt(7)")
    a("s_waitcnt lgkmcnt(8)")
    for mi in range(2):
        if mi == 1: a("s_waitcnt lgkmcnt(0)")
        for ni in range(2):
            d = ACC + (mi * 2 + ni) * 16
            for gp in range(2):
                for g in (2 * gp, 2 * gp + 1):
                    for e in range(4): a(f"v_fmac_f32 v{d+4*g+e}, v{NMV[mi][g]+e}, v{CSL[ni]}")
                for g in (2 * gp, 2 * gp + 1):
                    for e in range(4): a(f"v_mul_f32 v{d+4*g+e}, v{d+4*g+e}, v{RSV[mi][g]+e}")
                q = d + 8 * gp
                a(f"v_cvt_pk_bf16_f32 v{q}, v{q}, v{q+1}")
                a(f"v_cvt_pk_bf16_f32 v{q+1}, v{q+2}, v{q+3}")
                a(f"v_cvt_pk_bf16_f32 v{q+2}, v{q+4}, v{q+5}")
                a(f"v_cvt_pk_bf16_f32 v{q+3}, v{q+6}, v{q+7}")
                a.nop(2)
                a(f"v_permlane32_swap_b32 v{q}, v{q+2}")
                a(f"v_permlane32_swap_b32 v{q+1}, v{q+3}")
                a(f"buffer_store_dwordx4 {vr(q,4)}, v{VB[ni]}, {WS_}, s{sVo[mi]} offen offset:{gp*640}{SC}")
    body = a.lines[n0:]; del a.lines[n0:]
    a_segments(body)
    a.label("L_A_dummy")
    a("s_barrier")
    a_segments([])
    a.label("L_A_ld")
    a("v_lshlrev_b32 v8, 4, v2")
    def kv_dma(n0):
        for j in range(10):
            a(f"s_lshl_b32 s{sT}, s{sW}, 10")
            a(f"s_add_u32 s{sT}, s{sT}, {(n0 + 4*j)*1024}")
            a(f"s_mov_b32 m0, s{sT}")
            a(f"s_add_u32 s{sT}, s{sT}, s{sKV}")
            a(f"s_add_u32 s{sT}, s{sT}, {WS_KV}")
            a(f"buffer_load_dwordx4 v8, {WS_}, s{sT} offen lds")
        VA.op(10)
    nxt2 = 6
    for st in range(3, 9):
        if st + 1 >= 5: VA.need(tag2[st + 1])
        a("s_barrier")
        if st == 3:
            lab = a.newlabel("L_f1add")
            a(f"s_cmp_lg_u32 s{sW}, 0")
            a(f"s_cbranch_scc1 {lab}")
            a(f"s_lshl_b32 s{sT}, s2, 7")
            a(f"s_add_u32 s{sT}, s{sT}, {WS_FL1}")
            a("v_mov_b32 v9, 0")
            a(f"v_mov_b32 v10, s{sNon}")
            a("s_mov_b64 exec, 1")
            a(f"buffer_store_dword v10, v9, {WS_}, s{sT} offen{SC}")
            a("s_mov_b64 exec, -1")
            a.label(lab)
        for _ in range(1 if st == 3 else 2):
            if nxt2 <= min(st + 4, 9):
                tag2[nxt2] = issue2(nxt2, VA); nxt2 += 1
        if st == 6: kv_dma(40)
        if st == 7: kv_dma(0)
        if st == 8:
            for j in range(3):
                a(f"s_add_u32 s{sT}, s{sW}, {4*j}")
                a(f"s_min_u32 s{sT}, s{sT}, 9")
                a(f"s_lshl_b32 s{sT+1}, s{sT}, 10")
                a(f"s_add_u32 m0, s{sT+1}, {QOFF}")
                a(f"s_cmp_ge_u32 s{sT}, 5")
                a(f"s_cselect_b32 s{sT}, 5120, 0")
                a(f"s_add_u32 s{sT}, s{sT}, s{sT+1}")
                a(f"s_mul_i32 s{sT+1}, s{sQB}, {2*CHUNK}")
                a(f"s_add_u32 s{sT}, s{sT}, s{sT+1}")
                a(f"s_add_u32 s{sT}, s{sT}, s{sKV}")
                a(f"s_add_u32 s{sT}, s{sT}, {WS_Q}")
                a(f"buffer_load_dwordx4 v8, {WS_}, s{sT} offen lds")
    a("s_mov_b32 s3, 0")
    a("s_branch L_p3")

    a.label("L_B")
    for j in range(3): a(f"s_add_u32 s{sPB[j]}, s{sPB[j]}, s3\ns_add_u32 s{sPB[j]}, s{sPB[j]}, s3")
    sWo = sR + 4
    vWv = 7
    a("v_lshrrev_b32 v9, 4, v2")
    a(f"v_mul_u32_u24 v{vWv}, 3840, v9")
    a("v_lshrrev_b32 v10, 2, v2")
    a("v_and_b32 v10, 3, v10")
    a("v_xor_b32 v10, v10, v9")
    a(f"v_lshl_add_u32 v{vWv}, v10, 6, v{vWv}")
    a("v_and_b32 v10, 3, v2")
    a(f"v_lshl_add_u32 v{vWv}, v10, 4, v{vWv}")
    a(f"s_mul_i32 s{sWo}, s{sLW}, {16*3840}")
    a(f"s_lshl_b32 s{sT}, s{sNT}, 8")
    a(f"s_add_u32 s{sWo}, s{sWo}, s{sT}")
    VM = Cnt(a, "vmcnt", 63)
    def issue1(st):
        base = (st % NST) * STG
        for j in range(4):
            a(f"s_add_u32 m0, s{sLd}, {base + j*1024}")
            a(f"s_add_u32 s{sT}, s{sXo}, {j*8*1280 + st*128}")
            a(f"buffer_load_dwordx4 v{vXO if j & 1 else vXE}, {X_}, s{sT} offen lds")
            a(f"s_add_u32 m0, s{sLd}, {base + 16384 + j*1024}")
            a(f"s_add_u32 s{sT}, s{sWo}, {(st*64 + j*4)*3840}")
            a(f"buffer_load_dwordx4 v{vWv}, {WQ_}, s{sT} offen lds")
        return VM.op(8)
    tag1 = {}
    SA = [[12 + hi * 4 + j for j in range(4)] for hi in range(2)]
    SD = 20; LS = [36, 37]; LU = [40, 41, 42, 43]
    GX = [8, 12]
    GW = [[16 + (b * 6 + n) * 4 for n in range(6)] for b in range(2)]
    GACC = 64
    gXA = [[184 + sl * 4 + ks for ks in range(4)] for sl in range(4)]
    gWA = [[200 + sl * 3 + p for p in range(3)] for sl in range(4)]
    GCS = [160, 164]; NM2, RS2 = 180, 181; POLL = 225
    sCT = [sA, sB, sC]
    a("v_lshrrev_b32 v9, 1, v3")
    a("v_and_b32 v9, 7, v9")
    a(f"v_lshl_add_u32 v10, v3, 7, s{sLd}")
    for ks in range(4):
        a(f"v_or_b32 v11, {2*ks}, v4")
        a(f"v_xor_b32 v11, v11, v9")
        a(f"v_lshl_add_u32 v{gXA[3][ks]}, v11, 4, v10")
        for sl in range(3): a(f"v_add_u32 v{gXA[sl][ks]}, {GSLOT[sl]}, v{gXA[3][ks]}")
    a("v_lshlrev_b32 v11, 2, v4")
    a("v_xor_b32 v9, v9, v11")
    for j in range(4):
        a(f"v_xor_b32 v11, {j}, v9")
        a(f"v_lshl_add_u32 v{SA[0][j]}, v11, 4, v10")
        a(f"v_add_u32 v{SA[1][j]}, 0x10000, v{SA[0][j]}")
    for r in LS: a(f"v_mov_b32 v{r}, 0")
    a("s_waitcnt vmcnt(0)")
    tag1[0] = issue1(0)
    tag1[1] = issue1(1)
    common_late_setup()
    a("v_lshrrev_b32 v5, 2, v2")
    a("v_and_b32 v5, 3, v5")
    a("v_lshl_add_u32 v5, v4, 3, v5")
    a("v_mul_u32_u24 v5, 192, v5")
    a("v_lshrrev_b32 v6, 4, v2")
    a("v_and_b32 v6, 1, v6")
    a("v_lshl_add_u32 v5, v6, 5, v5")
    a("v_and_b32 v6, 3, v2")
    a("v_lshl_add_u32 v5, v6, 3, v5")
    for p in range(3):
        a(f"s_add_u32 s{sCT[p]}, s{sLW}, {p}")
        for _ in range(2):
            a(f"s_cmp_ge_u32 s{sCT[p]}, 3")
            a(f"s_cselect_b32 s{sT}, 3, 0")
            a(f"s_sub_u32 s{sCT[p]}, s{sCT[p]}, s{sT}")
        a(f"s_lshl_b32 s{sT}, s{sCT[p]}, 6")
        a(f"s_add_u32 s{sT}, s{sT}, 16384")
        a(f"v_add_u32 v{gWA[3][p]}, s{sT}, v5")
        for sl in range(3): a(f"v_add_u32 v{gWA[sl][p]}, {GSLOT[sl]}, v{gWA[3][p]}")
    for r in range(96): a(f"v_mov_b32 v{GACC+r}, 0")
    for r in range(8): a(f"v_mov_b32 v{GCS[0]+r}, 0")
    a(f"v_lshlrev_b32 v{POLL+4}, 7, v2")
    def f1_loads():
        for q in range(4):
            a(f"s_mov_b32 s{sT}, {WS_FL1 + q*8192}")
            a(f"buffer_load_dword v{POLL+q}, v{POLL+4}, {WS_}, s{sT} offen{SC}")
    def ssq_ops():
        ops = []
        for j in range(4):
            ops.append(f"s_waitcnt lgkmcnt({3-j})")
            for r in range(4):
                x = SD + 4 * j + r; u0, u1 = LU[2 * (r & 1)], LU[2 * (r & 1) + 1]
                ops += [f"v_lshlrev_b32 v{u0}, 16, v{x}", f"v_and_b32 v{u1}, 0xffff0000, v{x}",
                        f"v_fmac_f32 v{LS[0]}, v{u0}, v{u0}", f"v_fmac_f32 v{LS[1]}, v{u1}, v{u1}"]
        return ops
    VM.need(tag1[0])
    a("s_barrier")
    issued = 1
    tagB = {}
    PF34 = opt("pfc", 2)
    for st in range(10):
        base = (st % NST) * STG
        for j in range(4): a(f"ds_read_b128 {vr(SD+4*j,4)}, v{SA[base // 65536][j]} offset:{base % 65536}")
        n0 = len(a.lines)
        while issued < min(st + 3, 9):
            issued += 1; tag1[issued] = issue1(issued)
        if st == PF34: pf1(VM); pf1(VM, adv=0)
        if st == 7: tnon = nonce_issue(VM)
        if st == 8: tagB[0] = issue2(0, VM)
        dma = a.lines[n0:]; del a.lines[n0:]
        ops = ssq_ops()
        nd = sum("buffer_load" in l for l in dma)
        per = -(-len(ops) // max(nd - 1, 1)) if nd else len(ops)
        k = 0
        for l in dma:
            a.lines.append(l)
            if "buffer_load" in l:
                k += 1
                if k >= 2:
                    for o in ops[:per]: a(o)
                    ops = ops[per:]
        for o in ops: a(o)
        if st == 8: nonce_get(VM, tnon)
        if st < 9:
            VM.need(tag1[st + 1])
            a("s_barrier")
    a(f"v_add_f32 v{RS2}, v{LS[0]}, v{LS[1]}")
    a(f"v_mov_b32 v{LS[1]}, v{RS2}")
    a(f"s_lshl_b32 s{sT}, s{sLW}, 7")
    a(f"v_lshl_add_u32 v10, v3, 2, s{sT}")
    a(f"v_permlane32_swap_b32 v{RS2}, v{LS[1]}")
    a(f"v_add_f32 v{RS2}, v{RS2}, v{LS[1]}")
    tagB[1] = issue2(1, VM)
    a("s_barrier")
    a(f"ds_read_b32 v{NM2}, v10 offset:{STATS+1536}")
    a("s_waitcnt lgkmcnt(0)")
    ln_rowmath(a, NM2, RS2, LU[1], sT)
    a.nop(1)
    a(f"ds_write_b32 v10, v{NM2} offset:{STATS}")
    a(f"ds_write_b32 v10, v{RS2} offset:{STATS+512}")
    a(f"v_mul_f32 v{RS2}, v{RS2}, v{RS2}")
    VM.need(tagB[0])
    a("s_waitcnt lgkmcnt(0)")
    a("s_barrier")
    if "noprioB" not in exp: a("s_setprio 2")
    ST("A", 4); ST("C", 1)
    L2 = Cnt(a, "lgkmcnt", 15)
    tg2 = [{}, {}]
    def emit2(lst, buf):
        for key, l in lst:
            a(l); tg2[buf][key] = L2.op()
    def rd2(st, ks, buf):
        sl = st % 4
        L = [("X", f"ds_read_b128 {vr(GX[buf],4)}, v{gXA[sl][ks]}")]
        for n in range(6):
            mat, p = n & 1, n >> 1
            for h in range(2):
                L.append((n, f"ds_read_b64_tr_b16 {vr(GW[buf][n]+2*h,2)}, v{gWA[sl][p]} offset:{mat*12288 + (16*ks+4*h)*192}"))
        return L
    emit2(rd2(0, 0, 0), 0)
    tagB[2] = issue2(2, VM)
    for st in range(10):
        for ks in range(4):
            buf = (st * 4 + ks) & 1
            if ks < 3: nxt = rd2(st, ks + 1, buf ^ 1)
            elif st < 9: nxt = rd2(st + 1, 0, buf ^ 1)
            else: nxt = []
            if ks == 3 and st < 9:
                if st + 1 <= 2: VM.need(tagB[st + 1])
                L2.need(L2.issued - 1)
                a("s_barrier")
                ST("C", st + 2)
            if st == 5 and ks == 2:
                lab = a.newlabel("L_f1p")
                a(f"s_cmp_lg_u32 s{sW}, 4")
                a(f"s_cbranch_scc1 {lab}")
                f1_loads()
                a.label(lab)
            if st == 6 and ks == 2:
                lab = a.newlabel("L_f1")
                a(f"s_cmp_lg_u32 s{sW}, 4")
                a(f"s_cbranch_scc1 {lab}_ok")
                a(f"s_mov_b32 s{sT+1}, 0")
                a.label(lab)
                a("s_waitcnt vmcnt(0)")
                for q in range(4): a(f"v_xor_b32 v{POLL+q}, s{sNon}, v{POLL+q}")
                a(f"v_or3_b32 v{POLL}, v{POLL}, v{POLL+1}, v{POLL+2}")
                a(f"v_or_b32 v{POLL}, v{POLL}, v{POLL+3}")
                a(f"v_cmp_ne_u32 vcc, 0, v{POLL}")
                a(f"s_add_u32 s{sT+1}, s{sT+1}, 1")
                a.nop(2)
                a("s_cmp_eq_u64 vcc, 0")
                a(f"s_cbranch_scc1 {lab}_ok")
                a(f"s_cmp_ge_u32 s{sT+1}, 0x20000")
                a(f"s_cbranch_scc1 {lab}_ok")
                a("s_sleep 8")
                f1_loads()
                a(f"s_branch {lab}")
                a.label(f"{lab}_ok")
            for n in range(6):
                d = GACC + n * 16
                L2.need(tg2[buf][n])
                a(f"{M32} {vr(d,16)}, {vr(GW[buf][n],4)}, {vr(GX[buf],4)}, {vr(d,16)}")
                emit2(nxt[0:3] if n == 0 else nxt[1 + n * 2: 3 + n * 2], buf ^ 1)
                if n >= 4: a(f"{M16} {vr(GCS[n-4],4)}, {vr(SEL,4)}, {vr(GW[buf][n-4],4)}, {vr(GCS[n-4],4)}")
    ST("A", 5); ST("C", 11)
    a(f"s_lshl_b32 s{sT}, s{sCT[0]}, 7")
    a(f"s_add_u32 s{sT}, s{sT}, {CSA}")
    a(f"v_lshl_add_u32 v5, v3, 2, s{sT}")
    a(f"s_lshl_b32 s{sR+4}, s{sMT}, 2")
    a(f"s_add_u32 s{sR+4}, s{sR+4}, s{sLW}")
    a(f"s_mul_i32 s{sR+4}, s{sR+4}, {2*49152}")
    a(f"s_mul_i32 s{sT}, s{sNG}, {12*256}")
    a(f"s_add_u32 s{sR+4}, s{sR+4}, s{sT}")
    a(f"s_add_u32 s{sR+4}, s{sR+4}, {WS_H}")
    a("s_mov_b64 exec, 0xffff")
    for mat in range(2):
        a(f"ds_write_b32 v5, v{GCS[mat]} offset:{mat*384}")
        a(f"ds_write_b32 v5, v{GCS[mat]+1} offset:{mat*384+64}")
    a("s_mov_b64 exec, -1")
    a("v_lshrrev_b32 v6, 4, v3")
    a("v_mul_u32_u24 v6, 49152, v6")
    a("v_lshl_add_u32 v6, v4, 8, v6")
    a("v_and_b32 v7, 15, v3")
    a("v_lshl_add_u32 v6, v7, 4, v6")
    a("s_waitcnt lgkmcnt(0)")
    a("s_barrier")
    a("s_setprio 3")
    CB = [16, 184]
    def cs_read(p):
        a(f"s_lshl_b32 s{sT}, s{sCT[p]}, 7")
        a(f"s_add_u32 s{sT}, s{sT}, {CSA}")
        a(f"v_lshl_add_u32 v5, v4, 4, s{sT}")
        for mat in range(2):
            for g in range(4):
                a(f"ds_read_b128 {vr(CB[p&1]+(mat*4+g)*4,4)}, v5 offset:{mat*384+g*32}")
    cs_read(0); cs_read(1)
    for p in range(3):
        cb = CB[p & 1]
        a(f"s_waitcnt lgkmcnt({8 if p < 2 else 0})")
        g = GACC + (2 * p) * 16; u = GACC + (2 * p + 1) * 16
        for e in range(16):
            a(f"v_fmac_f32 v{g+e}, v{cb+e}, v{NM2}")
            a(f"v_fmac_f32 v{u+e}, v{cb+16+e}, v{NM2}")
        if p == 0: cs_read(2)
        a(f"s_lshl_b32 s{sT}, s{sCT[p]}, 10")
        a(f"s_add_u32 s{sT}, s{sT}, s{sR+4}")
        for gp in range(2):
            for e in range(8 * gp, 8 * gp + 8):
                a(f"v_max_f32 v{g+e}, 0, v{g+e}")
                a(f"v_mul_f32 v{u+e}, v{u+e}, v{RS2}")
            for e in range(8 * gp, 8 * gp + 8): a(f"v_mul_f32 v{g+e}, v{g+e}, v{u+e}")
            o = u + 8 * gp
            for q in range(4): a(f"v_cvt_pk_bf16_f32 v{o+q}, v{g+8*gp+2*q}, v{g+8*gp+2*q+1}")
            a.nop(2)
            a(f"v_permlane32_swap_b32 v{o}, v{o+2}")
            a(f"v_permlane32_swap_b32 v{o+1}, v{o+3}")
            a(f"buffer_store_dwordx4 {vr(o,4)}, v6, {WS_}, s{sT} offen offset:{gp*512}{SC}")
    p3_ids()
    a("s_mov_b32 s3, 1")

    a.label("L_p3")
    ST("A", 6)
    QA, QB = 8, 12
    S = [16, 32]; P = 48; O = 56
    KA = [72, 76]; KB = [80, 84]; V = [[88, 92], [96, 100]]
    AD = [[104 + 3 * z + y for y in range(3)] for z in range(3)]
    T0, T1, T2, T3 = 113, 114, 115, 116
    vM, vOst, vL, vFo = 117, 118, 120, 121
    DACC = 124
    DF = [164 + 28 * k for k in range(3)]
    DPOLL = 248
    NV = 250
    sDX, sDW, sFin, sLoop, sFp = sR, sR + 2, sR + 4, sR + 5, sR + 6
    a(f"v_lshlrev_b32 v{vL}, 4, v2")
    a(f"s_lshl_b32 s{sT}, s{sQB}, 8")
    a(f"s_lshl_b32 s{sT+1}, s{sW}, 5")
    a(f"s_add_u32 s{sT}, s{sT}, s{sT+1}")
    a(f"v_add_u32 v5, s{sT}, v3")
    a(f"v_lshrrev_b32 v6, 4, v5")
    a(f"v_mul_u32_u24 v{vOst}, 20480, v6")
    a(f"v_and_b32 v6, 15, v5")
    a(f"v_lshl_add_u32 v{vOst}, v6, 4, v{vOst}")
    a(f"v_lshl_add_u32 v{vOst+1}, v4, 8, v{vOst}")
    a(f"s_lshr_b32 s{sT}, s{sW}, 2")
    a(f"s_mul_i32 s{sT}, s{sT}, 5120")
    a(f"s_add_u32 s{sT}, s{sT}, {QOFF}")
    a(f"v_and_b32 v5, 127, v5")
    a(f"v_lshl_add_u32 v6, v5, 4, s{sT}")
    a(f"v_lshl_add_u32 v6, v4, 11, v6")
    a(f"v_lshl_add_u32 v7, v5, 3, s{sT}")
    a("v_and_b32 v5, 0x13, v3")
    a(f"v_and_b32 v{T0}, 4, v3")
    a(f"v_lshl_or_b32 v5, v{T0}, 1, v5")
    a(f"v_and_b32 v{T0}, 8, v3")
    a(f"v_lshrrev_b32 v{T0}, 1, v{T0}")
    a(f"v_or_b32 v5, v5, v{T0}")
    a(f"v_lshlrev_b32 v{AD[0][0]}, 4, v5")
    a(f"v_lshl_add_u32 v{AD[0][0]}, v4, 11, v{AD[0][0]}")
    a(f"v_lshlrev_b32 v{AD[0][1]}, 3, v5")
    a(f"v_add_u32 v{AD[0][1]}, 4096, v{AD[0][1]}")
    a(f"v_mul_u32_u24 v{AD[0][2]}, 320, v4")
    a(f"v_lshl_add_u32 v{AD[0][2]}, v3, 4, v{AD[0][2]}")
    a(f"v_add_u32 v{AD[0][2]}, 5120, v{AD[0][2]}")
    for z in (1, 2):
        for y in range(3): a(f"v_add_u32 v{AD[z][y]}, {6*z*CHUNK}, v{AD[0][y]}")
    for r in range(4): a(f"v_mov_b32 v{QB+r}, 0")
    for r in range(16): a(f"v_mov_b32 v{O+r}, 0")
    a("v_cmp_eq_u32 vcc, 20, v3")
    a(f"v_mov_b32 v{T0}, 0x3f803f80")
    a.nop(1)
    a(f"v_cndmask_b32 v{T1}, 0, v{T0}, vcc")
    for b in range(2):
        a(f"v_mov_b32 v{KB[b]+2}, 0x3f80")
        a(f"v_mov_b32 v{KB[b]+3}, 0")
        for j in range(2):
            for r in range(4): a(f"v_mov_b32 v{V[b][j]+r}, v{T1}")
    for r in range(8): a(f"v_mov_b32 v{P+r}, 0")
    for r in range(40): a(f"v_mov_b32 v{DACC+r}, 0")
    a(f"s_and_b32 s{sT}, s{sXCD}, 3")
    a(f"s_lshl_b32 s{sT+1}, s{sQB}, 2")
    a(f"s_add_u32 s{sT}, s{sT}, s{sT+1}")
    a(f"s_lshl_b32 s{sT+4}, s{sT}, 1")
    a(f"s_lshl_b32 s{sT}, s{sT}, 2")
    a(f"s_lshr_b32 s{sT+2}, s{sXCD}, 2")
    a(f"s_lshl_b32 s{sT+2}, s{sT+2}, 2")
    a(f"s_and_b32 s{sT+3}, s{sIDX}, 3")
    a(f"s_add_u32 s{sT+2}, s{sT+2}, s{sT+3}")
    a(f"s_mul_i32 s{sFin}, s{sT}, {16*1280}")
    a(f"s_mul_i32 s{sT+3}, s{sT+2}, 160")
    a(f"s_add_u32 s{sFin}, s{sFin}, s{sT+3}")
    a(f"s_and_b32 s{sT+3}, s{sW}, 1")
    a(f"s_add_u32 s{sT+4}, s{sT+4}, s{sT+3}")
    a(f"s_lshl_b32 s{sT+3}, s{sT+3}, 1")
    a(f"s_add_u32 s{sT}, s{sT}, s{sT+3}")
    a(f"s_lshr_b32 s{sT+3}, s{sW}, 1")
    a(f"s_lshl_b32 s{sT+5}, s{sT+3}, 10")
    a(f"s_mul_i32 s{sDX}, s{sT}, 49152")
    a(f"s_add_u32 s{sDX}, s{sDX}, s{sT+5}")
    a(f"s_add_u32 s{sDX}, s{sDX}, {WS_H}")
    a(f"s_mul_i32 s{sDX+1}, s{sT}, 20480")
    a(f"s_add_u32 s{sDX+1}, s{sDX+1}, s{sT+5}")
    a(f"s_add_u32 s{sDX+1}, s{sDX+1}, {WS_O}")
    a(f"s_mul_i32 s{sDW}, s{sT+3}, {40*1024}")
    a(f"s_mul_i32 s{sT+5}, s{sT+2}, 5120")
    a(f"s_add_u32 s{sDW}, s{sDW}, s{sT+5}")
    a(f"s_add_u32 s{sDW}, s{sDW}, {WS_WP}")
    a(f"s_lshr_b32 s{sT+5}, s{sT+4}, 2")
    a(f"s_lshl_b32 s{sT+5}, s{sT+5}, 3")
    a(f"s_and_b32 s{sT+4}, s{sT+4}, 3")
    a(f"s_add_u32 s{sT+5}, s{sT+5}, s{sT+4}")
    a(f"s_lshl_b32 s{sT+5}, s{sT+5}, 11")
    a(f"s_add_u32 s{sFp}, s{sT+5}, {WS_FL2 + 4*2048}")
    a("v_and_b32 v5, 15, v2")
    a(f"v_lshlrev_b32 v{vFo}, 7, v5")
    a("s_cmp_eq_u32 s3, 1")
    a("s_cbranch_scc1 L_p3_go")
    a("s_waitcnt vmcnt(0)")
    a("s_barrier")
    a.label("L_p3_go")
    ST("A", 7); ST("D", 1)
    LG = Cnt(a, "lgkmcnt", 15); VM = Cnt(a, "vmcnt", 63)
    a(f"ds_read_b128 {vr(QA,4)}, v6"); LG.op()
    a(f"s_mov_b64 exec, s[{sLO}:{sLO+1}]")
    a(f"ds_read_b64 {vr(QB,2)}, v7 offset:4096"); LG.op()
    a("s_mov_b64 exec, -1")
    def ad(t, y): return AD[(t // 4) // 6][y]
    def coff(t): return ((t // 4) % 6) * CHUNK
    tagK = {}; tagV0 = {}; tagV1 = {}
    def rdK(t):
        if t > 63: return
        b = t & 1
        a(f"ds_read_b128 {vr(KA[b],4)}, v{ad(t,0)} offset:{coff(t) + (t%4)*512}"); LG.op()
        a(f"ds_read_b64 {vr(KB[b],2)}, v{ad(t,1)} offset:{coff(t) + (t%4)*256}"); tagK[t] = LG.op()
    def rdV(t):
        if t > 63: return
        b = t & 1
        a(f"s_mov_b64 exec, s[{sVM}:{sVM+1}]")
        a(f"ds_read_b128 {vr(V[b][0],4)}, v{ad(t,2)} offset:{coff(t) + (t%4)*1280}"); tagV0[t] = LG.op()
        a(f"ds_read_b128 {vr(V[b][1],4)}, v{ad(t,2)} offset:{coff(t) + (t%4)*1280 + 640}"); tagV1[t] = LG.op()
        a("s_mov_b64 exec, -1")
    def mf(d, A, B, C): a(f"{M32} {vr(d,16)}, {vr(A,4)}, {vr(B,4)}, {C}")
    def rowmax(s, extra=None):
        a(f"v_max3_f32 v{T0}, v{s}, v{s+1}, v{s+2}")
        a(f"v_max3_f32 v{T1}, v{s+3}, v{s+4}, v{s+5}")
        a(f"v_max3_f32 v{T2}, v{s+6}, v{s+7}, v{s+8}")
        a(f"v_max3_f32 v{T3}, v{s+9}, v{s+10}, v{s+11}")
        a(f"v_max3_f32 v{T0}, v{T0}, v{s+12}, v{s+13}")
        a(f"v_max3_f32 v{T1}, v{T1}, v{s+14}, v{s+15}")
        a(f"v_max3_f32 v{T0}, v{T0}, v{T1}, v{T2}")
        a(f"v_max3_f32 v{T0}, v{T0}, v{T3}, v{extra if extra is not None else T3}")
        a(f"v_mov_b32 v{T1}, v{T0}")
        a.nop(2)
        a(f"v_permlane32_swap_b32 v{T0}, v{T1}")
        a(f"v_max_f32 v{T0}, v{T0}, v{T1}")
    rdK(0); rdK(1); rdV(0)
    LG.need(tagK[0])
    mf(S[0], KA[0], QA, "0")
    mf(S[0], KB[0], QB, vr(S[0], 16))
    a.nop(12)
    rowmax(S[0])
    a(f"v_xor_b32 v{T0}, 0x80000000, v{T0}")
    a(f"v_lshrrev_b32 v{T0}, 16, v{T0}")
    a(f"v_cndmask_b32 v{QB+2}, 0, v{T0}, s[{sLO}:{sLO+1}]")
    a.nop(2)
    mf(S[0], KA[0], QA, "0")
    mf(S[0], KB[0], QB, vr(S[0], 16))
    a.nop(12)
    def kvdma(j):
        lo, hi = 8 * j, 8 * j + 7
        f = lambda i: 80 + i if i < 40 else 90 + i if i < 60 else 60 + i if i < 70 else 80 + i
        a(f"s_add_u32 s{sT}, s{sW}, {f(lo)}")
        if f(hi) - f(lo) != 7:
            brk = next(i for i in range(lo, hi + 1) if f(i) - f(lo) != i - lo)
            a(f"s_add_u32 s{sT+1}, s{sW}, {f(brk) - (brk - lo)}")
            a(f"s_cmp_ge_u32 s{sW}, {brk - lo}")
            a(f"s_cselect_b32 s{sT}, s{sT+1}, s{sT}")
        a(f"s_lshl_b32 s{sT}, s{sT}, 10")
        a(f"s_mov_b32 m0, s{sT}")
        a(f"s_add_u32 s{sT}, s{sT}, s{sKV}")
        a(f"s_add_u32 s{sT}, s{sT}, {WS_KV}")
        a(f"buffer_load_dwordx4 v{vL}, {WS_}, s{sT} offen lds")
        return VM.op()
    tagD = {}
    def d_issue(j, part):
        f = DF[j % 3]
        wstep = 5 + j
        if part < 2:
            a(f"s_add_u32 s{sT}, s{sDW}, {wstep*4*40*1024}")
            for n in range(2 * part, 2 * part + 2): a(f"buffer_load_dwordx4 {vr(f+8+4*n,4)}, v{vL}, {WS_}, s{sT} offen offset:{n*1024}"); VM.op()
        elif part == 2:
            a(f"s_add_u32 s{sT}, s{sDW}, {wstep*4*40*1024 + 4096}")
            a(f"buffer_load_dwordx4 {vr(f+24,4)}, v{vL}, {WS_}, s{sT} offen"); VM.op()
            a(f"s_add_u32 s{sT}, s{sDX}, {j*4096}")
            a(f"buffer_load_dwordx4 {vr(f,4)}, v{vL}, {WS_}, s{sT} offen"); VM.op()
        else:
            a(f"s_add_u32 s{sT}, s{sDX}, {j*4096 + 49152}")
            a(f"buffer_load_dwordx4 {vr(f+4,4)}, v{vL}, {WS_}, s{sT} offen"); tagD[j] = VM.op()
    def d_mfma(j, q):
        f = DF[j % 3]; m, n = q & 1, q >> 1
        acc = DACC + (m * 5 + n) * 4
        a(f"{M16} {vr(acc,4)}, {vr(f+8+4*n,4)}, {vr(f+4*m,4)}, {vr(acc,4)}")
    useD = "noD" not in exp
    DT0 = opt("dt", 20)
    dsched = {t: [] for t in range(64)}; lsched = {t: [] for t in range(64)}; dfirst = {}
    for j in range(12):
        for q in range(10):
            t = DT0 + (10 * j + q) * (64 - DT0) // 120
            dsched[t].append((j, q)); dfirst.setdefault(j, t)
    for j in range(12):
        lw = dfirst[j] - 8; lx = max(dfirst[j] - 6, DT0 - 5 + (1 if j else 0))
        if j >= 3:
            last_prev = max(t for t in range(64) for (jj, q) in dsched[t] if jj == j - 3)
            lw = max(lw, last_prev + 1); lx = max(lx, lw + 2)
        lsched[lw].append((j, 0)); lsched[lw + 1].append((j, 1)); lsched[lx].append((j, 2)); lsched[lx + 1].append((j, 3))
        assert lx + 1 < dfirst[j] - 1, (j, lx, dfirst[j])
    TF2 = DT0 - 5
    assert max(len(v) for v in dsched.values()) <= 3
    def tile(t):
        cur = t & 1; nxt = cur ^ 1
        s = S[cur]; sn = S[nxt]
        ex = lambda r: a(f"v_exp_f32 v{s+r}, v{s+r}")
        cv = lambda p: a(f"v_cvt_pk_bf16_f32 v{P+p}, v{s+2*p}, v{s+2*p+1}")
        dq = dsched[t] if useD else []
        def dm(k):
            if k < len(dq):
                j, q = dq[k]
                if q == 0: VM.need(tagD[j])
                d_mfma(j, q)
        a(f"s_setprio {3 - (t % 4)}")
        if t < 63:
            LG.need(tagK[t + 1])
            mf(sn, KA[nxt], QA, "0")
        ex(0); ex(1); dm(0); ex(2); ex(3)
        if t < 63: mf(sn, KB[nxt], QB, vr(sn, 16))
        rdK(t + 2)
        ex(4); ex(5); dm(1); ex(6); ex(7)
        cv(0); cv(1)
        if t > 0:
            LG.need(tagV1[t - 1])
            mf(O, V[nxt][1], P + 4, vr(O, 16))
        rdV(t + 1)
        cv(2); cv(3)
        ex(8); ex(9); dm(2); ex(10); ex(11)
        LG.need(tagV0[t])
        mf(O, V[cur][0], P, vr(O, 16))
        if useD:
            for (j, part) in lsched[t]: d_issue(j, part)
        for r in range(12, 16): ex(r)
        cv(4); cv(5); cv(6); cv(7)
    sWOb = sKV
    def wodma(j):
        a(f"s_add_u32 s{sT}, s{sW}, {8*j}")
        a(f"s_min_u32 s{sT}, s{sT}, 99")
        a(f"s_mul_i32 s{sT+1}, s{sT}, 205")
        a(f"s_lshr_b32 s{sT+1}, s{sT+1}, 10")
        a(f"s_mul_i32 s{sT+1}, s{sT+1}, {40960 - 5*1024}")
        a(f"s_lshl_b32 s{sT}, s{sT}, 10")
        a(f"s_mov_b32 m0, s{sT}")
        a(f"s_add_u32 s{sT}, s{sT}, s{sT+1}")
        a(f"s_add_u32 s{sT}, s{sT}, s{sWOb}")
        a(f"buffer_load_dwordx4 v{vL}, {WS_}, s{sT} offen lds")
        return VM.op()
    nd = 0; nwo = 0
    TB1 = opt("tb", 8)
    for t in range(64):
        if t == 2:
            a(f"s_waitcnt vmcnt({VM.issued})")
            a(f"v_mov_b32 v{T0}, 0")
            a(f"v_mov_b32 v{T1}, s{sNon}")
            a("s_mov_b64 exec, 1")
            a(f"buffer_store_dword v{T1}, v{T0}, {WS_}, s{sF2} offen{SC}"); VM.op()
            a("s_mov_b64 exec, -1")
        if t == TB1:
            a("s_barrier")
        if useD and t == TF2 - 2:
            a(f"buffer_load_dword v{DPOLL}, v{vFo}, {WS_}, s{sFp} offen{SC}"); tpoll = VM.op()
        if useD and t == TF2:
            VM.need(tpoll)
            lab = a.newlabel("L_f2")
            a(f"s_mov_b32 s{sT+1}, 0")
            a.label(lab)
            a(f"v_cmp_ne_u32 vcc, s{sNon}, v{DPOLL}")
            a(f"s_add_u32 s{sT+1}, s{sT+1}, 1")
            a.nop(2)
            a("s_cmp_eq_u64 vcc, 0")
            a(f"s_cbranch_scc1 {lab}_ok")
            a(f"s_cmp_ge_u32 s{sT+1}, 0x20000")
            a(f"s_cbranch_scc1 {lab}_ok")
            a("s_sleep 4")
            a(f"buffer_load_dword v{DPOLL}, v{vFo}, {WS_}, s{sFp} offen{SC}")
            a("s_waitcnt vmcnt(0)")
            a(f"s_branch {lab}")
            a.label(f"{lab}_ok")
        if t == 28:
            VM.need(tkv)
            a("s_barrier")
        if t == 42:
            a("s_barrier")
            a(f"s_lshr_b32 s{sT}, s{sW}, 1")
            a(f"s_mul_i32 s{sT}, s{sT}, {40*1024}")
            a(f"s_sub_u32 s{sWOb}, s{sDW}, s{sT}")
        if t % 8 == 0 and t: ST("D", 1 + t // 8)
        tile(t)
        if nd < 10 and (nd < 7 or t >= TB1):
            tkv = kvdma(nd); nd += 1
        if t >= 42 and nwo < 13:
            wodma(nwo); nwo += 1
    LG.need(tagV1[63])
    mf(O, V[1][1], P + 4, vr(O, 16))
    ST("A", 8); ST("D", 9)
    a("s_setprio 0")
    a("v_and_b32 v5, 15, v2")
    a("v_lshrrev_b32 v6, 4, v2")
    a("v_mul_u32_u24 v5, 1280, v5")
    a("v_lshl_add_u32 v5, v6, 3, v5")
    a(f"s_lshl_b32 s{sT}, s{sW}, 5")
    a(f"s_add_u32 s{sFin}, s{sFin}, s{sT}")
    a(f"s_lshr_b32 s{sT}, s{sW}, 1")
    a(f"s_mul_i32 s{sT}, s{sT}, 5120")
    a(f"v_add_u32 v7, s{sT}, v{vL}")
    a(f"v_add_u32 v6, {3*20480}, v7")
    a("v_lshrrev_b32 v16, 1, v3")
    a(f"v_mul_u32_u24 v16, {5*256}, v16")
    a("v_and_b32 v17, 1, v3")
    a("v_lshl_add_u32 v16, v17, 3, v16")
    a(f"v_mul_u32_u24 v17, {2*20480}, v4")
    a("v_add_u32 v16, v16, v17")
    a(f"v_mov_b32 v{T0}, v{O+8}")
    a(f"v_mov_b32 v{T1}, v{O+8}")
    a(f"v_mov_b32 v{T2}, 0")
    a.nop(1)
    a(f"v_permlane32_swap_b32 v{T0}, v{T1}")
    for r in range(12): a(f"v_fma_f32 v{T2}, v{O+r}, 0, v{T2}")
    a(f"s_mov_b32 s{sT}, 0x71800000")
    a(f"v_add_f32 v{T2}, v{T2}, v{T1}")
    a(f"v_cmp_ngt_f32 vcc, s{sT}, v{T2}")
    a.nop(4)
    a("s_cmp_lg_u64 vcc, 0")
    a("s_cbranch_scc1 L_slow")
    a.label("L_fin")
    a(f"v_rcp_f32 v{T1}, v{T1}")
    a(f"s_lshr_b32 s{sT}, s{sH}, 1")
    a(f"s_mul_i32 s{sT}, s{sT}, {5*256}")
    a(f"s_add_u32 s{sT}, s{sT}, {WS_O}")
    a(f"s_and_b32 s{sT+1}, s{sH}, 1")
    a(f"s_mul_i32 s{sT+2}, s{sT+1}, {3*256}")
    a(f"s_add_u32 s{sT+2}, s{sT+2}, s{sT}")
    a(f"s_lshl_b32 s{sT+1}, s{sT+1}, 3")
    a(f"s_add_u32 s{sT+1}, s{sT+1}, s{sT}")
    for r in range(12): a(f"v_mul_f32 v{O+r}, v{O+r}, v{T1}")
    for p in range(6): a(f"v_cvt_pk_bf16_f32 v{P+p}, v{O+2*p}, v{O+2*p+1}")
    a(f"v_permlane32_swap_b32 v{P}, v{P+2}")
    a(f"v_permlane32_swap_b32 v{P+1}, v{P+3}")
    a(f"buffer_store_dwordx4 {vr(P,4)}, v{vOst+1}, {WS_}, s{sT+2} offen{SC}")
    a(f"s_mov_b64 exec, s[{sLO}:{sLO+1}]")
    a(f"buffer_store_dwordx2 {vr(P+4,2)}, v{vOst}, {WS_}, s{sT+1} offen offset:512{SC}")
    a("s_mov_b64 exec, -1")
    for m in range(4):
        a(f"s_add_u32 s{sT}, s{sFin}, {m*16*1280}")
        a(f"buffer_load_dwordx2 {vr(20+2*m,2)}, v5, {X_}, s{sT} offen")
    ST("A", 9); ST("D", 10)
    a(f"s_cmp_lg_u32 s{sW}, 0")
    a("s_cbranch_scc1 L_f3_wait")
    a(f"s_add_u32 s{sT+2}, s{sDX+1}, 512")
    a(f"s_mov_b32 s{sT+1}, 0")
    a.label("L_f3")
    a(f"buffer_load_dword v{T1}, v16, {WS_}, s{sT+2} offen{SC}")
    a(f"s_add_u32 s{sT+1}, s{sT+1}, 1")
    a("s_waitcnt vmcnt(0)")
    a(f"v_cmp_eq_u32 vcc, -1, v{T1}")
    a.nop(4)
    a("s_cmp_eq_u64 vcc, 0")
    a("s_cbranch_scc1 L_f3_wait")
    a(f"s_cmp_ge_u32 s{sT+1}, 0x20000")
    a("s_cbranch_scc1 L_f3_wait")
    a("s_sleep 1")
    a("s_branch L_f3")
    a.label("L_f3_wait")
    a("s_waitcnt vmcnt(0)")
    a("s_barrier")
    ST("A", 10); ST("D", 11)
    XOF = [72 + 8 * k for k in range(4)] + [36]
    WOF = [164 + 20 * k for k in range(4)] + [44]
    a(f"s_mov_b32 s{sT+1}, 0")
    a.label("L_xo")
    for k in range(5):
        for m in range(2):
            a(f"s_add_u32 s{sT}, s{sDX+1}, {k*4096 + m*20480}")
            a(f"buffer_load_dwordx4 {vr(XOF[k]+4*m,4)}, v{vL}, {WS_}, s{sT} offen{SC}")
    for k in range(5):
        for n in range(5):
            off = k * 20480 + n * 1024
            a(f"ds_read_b128 {vr(WOF[k]+4*n,4)}, v{7 if k < 3 else 6} offset:{off if k < 3 else off - 3*20480}")
    for k in range(5):
        a(f"s_waitcnt vmcnt({8-2*k})")
        x = XOF[k]
        a(f"v_max3_u32 v{28+k}, v{x}, v{x+1}, v{x+2}")
        a(f"v_max3_u32 v{28+k}, v{28+k}, v{x+3}, v{x+4}")
        a(f"v_max3_u32 v{28+k}, v{28+k}, v{x+5}, v{x+6}")
        a(f"v_max_u32 v{28+k}, v{28+k}, v{x+7}")
    a("v_max3_u32 v28, v28, v29, v30")
    a("v_max3_u32 v28, v28, v31, v32")
    a("v_cmp_eq_u32 vcc, -1, v28")
    a(f"s_add_u32 s{sT+1}, s{sT+1}, 1")
    a("s_waitcnt lgkmcnt(0)")
    a.nop(2)
    a("s_cmp_eq_u64 vcc, 0")
    a("s_cbranch_scc1 L_xo_ok")
    a(f"s_cmp_lt_u32 s{sT+1}, 0x20000")
    a("s_cbranch_scc1 L_xo")
    a.label("L_xo_ok")
    a("s_barrier")
    for k in range(5):
        for n in range(5):
            for m in range(2):
                acc = DACC + (m * 5 + n) * 4
                a(f"{M16} {vr(acc,4)}, {vr(WOF[k]+4*n,4)}, {vr(XOF[k]+4*m,4)}, {vr(acc,4)}")
    ST("A", 11)
    a(f"s_and_b32 s{sT}, s{sW}, 1")
    a(f"s_lshl_b32 s{sT}, s{sT}, 3")
    a(f"s_lshr_b32 s{sT+1}, s{sW}, 1")
    a(f"s_add_u32 s{sT}, s{sT}, s{sT+1}")
    a(f"s_lshl_b32 s{sT}, s{sT}, 10")
    a(f"v_add_u32 v6, s{sT}, v{vL}")
    a(f"v_add_u32 v7, 0x10000, v6")
    a.nop(2)
    for n in range(5):
        for m in range(2):
            off = (n * 16 + m * 4) * 1024
            a(f"ds_write_b128 v{6 if off < 65536 else 7}, {vr(DACC+(m*5+n)*4,4)} offset:{off % 65536}")
    a(f"s_lshl_b32 s{sT}, s{sW}, 14")
    a(f"v_add_u32 v6, s{sT}, v{vL}")
    for m in range(4):
        for p in range(2):
            a(f"v_lshlrev_b32 v{72+4*m+2*p}, 16, v{20+2*m+p}")
            a(f"v_and_b32 v{72+4*m+2*p+1}, 0xffff0000, v{20+2*m+p}")
    a("s_waitcnt lgkmcnt(0)")
    a("s_barrier")
    a(f"s_cmp_ge_u32 s{sW}, 5")
    a("s_cbranch_scc1 L_done")
    RB = 124
    for q in range(16): a(f"ds_read_b128 {vr(RB+4*q,4)}, v6 offset:{q*1024}")
    for m in range(4):
        a(f"s_waitcnt lgkmcnt({12-4*m})")
        acc = 72 + 4 * m
        for p in range(2):
            for k in range(4):
                a(f"v_pk_add_f32 {vr(acc+2*p,2)}, {vr(acc+2*p,2)}, {vr(RB+(m*4+k)*4+2*p,2)}")
            a(f"v_cvt_pk_bf16_f32 v{acc+p}, v{acc+2*p}, v{acc+2*p+1}")
        a(f"s_add_u32 s{sT}, s{sFin}, {m*16*1280}")
        a(f"buffer_store_dwordx2 {vr(acc,2)}, v5, {OUT_}, s{sT} offen")
    a.label("L_done")
    if "dbgst" in exp:
        a("s_waitcnt vmcnt(0) lgkmcnt(0)")
        a("s_memrealtime s[96:97]")
        a("s_waitcnt lgkmcnt(0)")
        a(f"s_lshl_b32 s{sT}, s2, 3")
        a(f"s_add_u32 s{sT}, s{sT}, s{sW}")
        a(f"s_cmp_lg_u32 s{sT}, {opt('dbgst', 0)}")
        a("s_cbranch_scc1 L_end")
        a("s_mov_b64 exec, 1")
        a("v_mov_b32 v1, 0")
        for i in range(1, 13):
            a(f"s_sub_u32 s{sT}, s{72+2*i}, s72")
            a(f"v_mov_b32 v2, s{sT}")
            a(f"global_store_dword v1, v2, s[{sDbg}:{sDbg+1}] offset:{4*i}")
        a("s_endpgm")
    ST.dump(WS_, sW, sT)
    a.label("L_end")
    a("s_endpgm")

    a.label("L_slow")
    vKa, vKb, vV = AD[0]
    a(f"v_mov_b32 v{QB+2}, 0")
    a(f"v_mov_b32 v{vM}, 0xff800000")
    for r in range(16): a(f"v_mov_b32 v{O+r}, 0")
    a(f"s_mov_b32 s{sLoop}, 0")
    a(f"s_mul_i32 s{sT+3}, s{sH}, {16*CHUNK}")
    a(f"s_add_u32 s{sT+3}, s{sT+3}, {WS_KV}")
    a.label("L_slow_loop")
    a(f"buffer_load_dwordx4 {vr(KA[0],4)}, v{vKa}, {WS_}, s{sT+3} offen")
    a(f"buffer_load_dwordx2 {vr(KB[0],2)}, v{vKb}, {WS_}, s{sT+3} offen")
    a(f"s_mov_b64 exec, s[{sVM}:{sVM+1}]")
    a(f"buffer_load_dwordx4 {vr(V[0][0],4)}, v{vV}, {WS_}, s{sT+3} offen")
    a(f"buffer_load_dwordx4 {vr(V[0][1],4)}, v{vV}, {WS_}, s{sT+3} offen offset:640")
    a("s_mov_b64 exec, -1")
    a("s_waitcnt vmcnt(0)")
    s = S[1]
    mf(s, KA[0], QA, "0")
    mf(s, KB[0], QB, vr(s, 16))
    a.nop(12)
    rowmax(s, vM)
    a(f"v_sub_f32 v{T1}, v{vM}, v{T0}")
    a(f"v_exp_f32 v{T1}, v{T1}")
    a(f"v_mov_b32 v{vM}, v{T0}")
    for r in range(16): a(f"v_sub_f32 v{s+r}, v{s+r}, v{T0}")
    for r in range(16): a(f"v_mul_f32 v{O+r}, v{O+r}, v{T1}")
    for r in range(16): a(f"v_exp_f32 v{s+r}, v{s+r}")
    a.nop(1)
    for p in range(8): a(f"v_cvt_pk_bf16_f32 v{P+p}, v{s+2*p}, v{s+2*p+1}")
    a.nop(2)
    mf(O, V[0][0], P, vr(O, 16))
    mf(O, V[0][1], P + 4, vr(O, 16))
    a(f"s_add_u32 s{sLoop}, s{sLoop}, 1")
    a(f"s_and_b32 s{sT}, s{sLoop}, 3")
    a(f"s_cmp_eq_u32 s{sT}, 0")
    a(f"s_movk_i32 s{sT}, 512")
    a(f"s_movk_i32 s{sT+1}, 256")
    a(f"s_movk_i32 s{sT+2}, 1280")
    a(f"s_cselect_b32 s{sT}, {CHUNK-3*512}, s{sT}")
    a(f"s_cselect_b32 s{sT+1}, {CHUNK-3*256}, s{sT+1}")
    a(f"s_cselect_b32 s{sT+2}, {CHUNK-3*1280}, s{sT+2}")
    a(f"v_add_u32 v{vKa}, s{sT}, v{vKa}")
    a(f"v_add_u32 v{vKb}, s{sT+1}, v{vKb}")
    a(f"v_add_u32 v{vV}, s{sT+2}, v{vV}")
    a.nop(8)
    a(f"s_cmp_lt_u32 s{sLoop}, 64")
    a("s_cbranch_scc1 L_slow_loop")
    a.nop(4)
    a(f"v_mov_b32 v{T0}, v{O+8}")
    a(f"v_mov_b32 v{T1}, v{O+8}")
    a.nop(2)
    a(f"v_permlane32_swap_b32 v{T0}, v{T1}")
    a("s_branch L_fin")
    return kernel_header(NAME) + a.text(), kernel_desc(NAME, NV, 102 if stamp else 72)

if __name__ == "__main__":
    import sys
    stamp = sys.argv[2] if len(sys.argv) > 2 and sys.argv[2] != "none" else False
    ex = sys.argv[3] if len(sys.argv) > 3 else ""
    body, desc = gen(stamp, ex)
    hdr = open("parallel_sum__softmax_full_mha__glu_gated_reglu__prompt.s.ref").read().split("; Override launch")[0]
    s = hdr + f"; @launch grid=(256,1,1) block=(512,1,1) lds={LDS_M1}\n"
    s += '.amdgcn_target "amdgcn-amd-amdhsa--gfx950"\n.text\n' + body + '.section .rodata,"a"\n' + desc
    open(sys.argv[1], "w").write(s)
```

```python
from asmlib import *
from k_qkv import ln_rowmath
NAME = "parallel_sum__softmax_full_mha__glu_gated_reglu__prompt_kernel"
LDS_M1 = 163840
M32 = "v_mfma_f32_32x32x16_bf16"; M16 = "v_mfma_f32_16x16x32_bf16"

def gen(stamp=False, exp=""):
    a = Asm()
    ST = Stamps2(a, stamp)
    opt = lambda key, dflt: int(exp.split(key)[1].split("_")[0]) if key in exp else dflt
    sX, sWq, sWS, sWg, sWu, sOut, sPk = 8, 12, 16, 20, 24, 28, 32
    sDbg = 36
    sW, sMT, sNT, sIDX, sXCD, sNG = 38, 39, 40, 41, 42, 43
    sLO, sVM, sM = 44, 46, 48
    sT = 50
    sNon = 58
    sLW = 59
    sA, sB, sC = 60, 61, 62
    sG2 = 63
    sR = 64
    R_ = lambda b: f"s[{b}:{b+3}]"
    X_, WQ_, WS_, WG_, WU_, OUT_, PK_ = map(R_, (sX, sWq, sWS, sWg, sWu, sOut, sPk))
    SC = " sc1"
    NST, STG, PKS = 4, 32768, 131072
    ST_NM, ST_RS, ST_CS, ST_SUM = 18432, 18944, 21504, 22016
    GSLOT = [122880, 81920, 40960, 0]
    CSA = 122880
    QOFF = 15 * CHUNK

    a("s_cmp_ge_u32 s2, 256")
    a("s_cbranch_scc1 L_end")
    ST.start()
    if "cpf" in exp:
        a("s_getpc_b64 s[4:5]")
        a.label("L_pc")
        a("s_lshr_b32 s3, s2, 3")
        a("s_lshl_b32 s3, s3, 11")
        a("v_lshlrev_b32 v1, 2, v0")
        a("v_add_u32 v1, s3, v1")
        a(f"v_min_u32 v1, L_code_end - L_pc - 4, v1")
        a("global_load_dword v230, v1, s[4:5]")
    a(f"s_load_dwordx4 s[4:7], s[0:1], 0")
    a(f"s_load_dwordx2 s[{sT}:{sT+1}], s[0:1], 16")
    a(f"s_load_dwordx4 s[{sT+2}:{sT+5}], s[0:1], 32")
    a(f"s_load_dwordx4 s[{sR}:{sR+3}], s[0:1], 48")
    a(f"s_load_dwordx4 s[{sR+4}:{sR+7}], s[0:1], 64")
    a("v_lshrrev_b32 v1, 6, v0")
    a("v_and_b32 v2, 63, v0")
    a(f"v_readfirstlane_b32 s{sW}, v1")
    a(f"s_and_b32 s{sXCD}, s2, 7")
    a(f"s_lshr_b32 s{sIDX}, s2, 3")
    a(f"s_lshr_b32 s{sMT}, s{sXCD}, 2")
    a(f"s_lshl_b32 s{sMT}, s{sMT}, 3")
    a(f"s_and_b32 s3, s{sIDX}, 7")
    a(f"s_add_u32 s{sMT}, s{sMT}, s3")
    a(f"s_and_b32 s{sNG}, s{sXCD}, 3")
    a(f"s_lshl_b32 s{sNG}, s{sNG}, 2")
    a(f"s_lshr_b32 s3, s{sIDX}, 3")
    a(f"s_add_u32 s{sNG}, s{sNG}, s3")
    a(f"s_min_u32 s{sNT}, s{sNG}, 14")
    a(f"s_and_b32 s{sLW}, s{sW}, 3")
    a(f"s_mov_b32 s{sLO}, -1\ns_mov_b32 s{sLO+1}, 0\ns_mov_b32 s{sVM}, 0xfffff\ns_mov_b32 s{sVM+1}, 0xfffff")
    a("v_and_b32 v3, 31, v2")
    a("v_lshrrev_b32 v4, 5, v2")
    a(f"s_lshl_b32 s{sA}, s{sMT}, 4")
    a(f"s_add_u32 s{sA}, s{sA}, s{sNG}")
    a(f"s_mul_i32 s{sA}, s{sA}, 3")
    a(f"s_add_u32 s{sA}, s{sA}, s{sW}")
    a(f"s_mul_i32 s{sB}, s{sA}, 6554")
    a(f"s_lshr_b32 s{sB}, s{sB}, 16")
    a(f"s_mul_i32 s{sG2}, s{sLW}, {16*3072}")
    a(f"s_mul_i32 s3, s{sNG}, 192")
    a(f"s_add_u32 s{sG2}, s{sG2}, s3")
    a("s_waitcnt lgkmcnt(0)")
    def srd(b, lo, hi, n): a(f"s_mov_b32 s{b}, s{lo}\ns_and_b32 s{b+1}, s{hi}, 0xffff\ns_mov_b32 s{b+2}, {n}\ns_mov_b32 s{b+3}, 0x20000")
    srd(sX, 4, 5, 2048 * 1280); srd(sWq, 6, 7, 640 * 3840); srd(sWS, sR + 6, sR + 7, WS_END)
    srd(sWg, sT + 2, sT + 3, 640 * 3072); srd(sWu, sT + 4, sT + 5, 640 * 3072); srd(sOut, sR + 2, sR + 3, 2048 * 1280)
    a(f"s_mov_b64 s[{sDbg}:{sDbg+1}], s[{sR+4}:{sR+5}]")
    a(f"s_cmp_lt_u32 s{sB}, 20")
    a(f"s_cselect_b32 s{sPk}, s{sT}, s{sR}")
    a(f"s_cselect_b32 s{sPk+1}, s{sT+1}, s{sR+1}")
    a(f"s_mov_b32 s{sPk+2}, {1536*1280}")
    a(f"s_cselect_b32 s{sPk+2}, {640*1280}, s{sPk+2}")
    a(f"s_and_b32 s{sPk+1}, s{sPk+1}, 0xffff")
    a(f"s_mov_b32 s{sPk+3}, 0x20000")

    sPB = [sR + 5, sR + 6, sR + 7]
    vPF = 214; PFD = 216
    lab = a.newlabel("L_pf")
    a(f"s_mul_i32 s{sT}, s{sIDX}, 12")
    a(f"s_mul_i32 s{sT+1}, s{sLW}, 3")
    a(f"s_add_u32 s{sT}, s{sT}, s{sT+1}")
    a(f"s_lshr_b32 s{sT+4}, s{sW}, 2")
    a(f"s_xor_b32 s{sT+4}, s{sT+4}, 1")
    a(f"s_mov_b32 s7, 0x20000")
    a(f"s_cmp_ge_u32 s{sT}, 255")
    a(f"s_cbranch_scc1 {lab}_w")
    a(f"s_mov_b32 s4, s{sX}\ns_mov_b32 s5, s{sX+1}\ns_mov_b32 s6, s{sX+2}\ns_movk_i32 s3, 256")
    a(f"v_lshrrev_b32 v{vPF}, 3, v2")
    a(f"v_mul_u32_u24 v{vPF}, 1280, v{vPF}")
    a("v_and_b32 v1, 7, v2")
    a(f"v_lshl_add_u32 v{vPF}, v1, 4, v{vPF}")
    a(f"s_lshr_b32 s{sT+1}, s{sXCD}, 2")
    a(f"s_mul_i32 s{sT+1}, s{sT+1}, {1024*1280}")
    for j in range(3):
        a(f"s_add_u32 s{sT+2}, s{sT}, {j}")
        a(f"s_lshr_b32 s{sT+3}, s{sT+2}, 1")
        a(f"s_mul_i32 s{sT+3}, s{sT+3}, {8*1280}")
        a(f"s_and_b32 s{sT+2}, s{sT+2}, 1")
        a(f"s_lshl_b32 s{sT+2}, s{sT+2}, 7")
        a(f"s_add_u32 s{sT+3}, s{sT+3}, s{sT+2}")
        a(f"s_add_u32 s{sPB[j]}, s{sT+3}, s{sT+1}")
    a(f"s_branch {lab}")
    a.label(f"{lab}_w")
    a(f"s_mov_b32 s4, s{sWq}\ns_mov_b32 s5, s{sWq+1}\ns_mov_b32 s6, s{sWq+2}\ns_mov_b32 s3, {128*3840}")
    a(f"v_lshlrev_b32 v{vPF}, 4, v2")
    a(f"s_sub_u32 s{sT}, s{sT}, 255")
    a(f"s_mul_i32 s{sT}, s{sT}, 3840")
    a(f"s_and_b32 s{sT+1}, s{sXCD}, 3")
    a(f"s_lshl_b32 s{sT+1}, s{sT+1}, 10")
    a(f"s_add_u32 s{sT}, s{sT}, s{sT+1}")
    for j in range(3): a(f"s_add_u32 s{sPB[j]}, s{sT}, {j*3840}")
    a.label(lab)
    a(f"s_mul_i32 s{sT}, s{sT+4}, s3")
    for j in range(3): a(f"s_add_u32 s{sPB[j]}, s{sPB[j]}, s{sT}")
    def pf1(cnt=None, adv=1):
        for j in range(3):
            a(f"buffer_load_dwordx4 {vr(PFD,4)}, v{vPF}, s[4:7], s{sPB[j]} offen")
            for _ in range(adv): a(f"s_add_u32 s{sPB[j]}, s{sPB[j]}, s3")
            if cnt: cnt.op()
    pf1()
    vXE, vXO = 220, 221; vGd = [222, 223, 224]
    SEL = 168
    sXo, sLd, sLdW, sF2 = sR, sR + 1, sR + 2, sR + 3
    a(f"s_lshl_b32 s{sF2}, s{sMT}, 3\ns_add_u32 s{sF2}, s{sF2}, s{sW}\ns_lshl_b32 s{sF2}, s{sF2}, 4\ns_add_u32 s{sF2}, s{sF2}, s{sNG}")
    a(f"s_lshl_b32 s{sF2}, s{sF2}, 7\ns_add_u32 s{sF2}, s{sF2}, {WS_FL2}")
    a(f"s_or_b32 s{sT}, s2, s{sW}")
    a(f"s_cmp_lg_u32 s{sT}, 0")
    a("s_cbranch_scc1 L_nonce_done")
    a(f"s_memrealtime s[{sT}:{sT+1}]")
    a("v_mov_b32 v9, 0")
    a("s_waitcnt lgkmcnt(0)")
    a(f"s_or_b32 s{sT}, s{sT}, 1")
    a(f"v_mov_b32 v10, s{sT}")
    a("s_mov_b64 exec, 1")
    a(f"global_store_dword v9, v10, s[{sDbg}:{sDbg+1}] sc1")
    a("s_mov_b64 exec, -1")
    a.label("L_nonce_done")
    a("v_lshrrev_b32 v9, 4, v2")
    a("v_lshrrev_b32 v10, 3, v2")
    a("v_mul_u32_u24 v10, 1280, v10")
    a("v_and_b32 v11, 7, v2")
    a(f"v_xor_b32 v{vXE}, v11, v9")
    a(f"v_xor_b32 v{vXO}, 4, v{vXE}")
    a(f"v_lshl_add_u32 v{vXE}, v{vXE}, 4, v10")
    a(f"v_lshl_add_u32 v{vXO}, v{vXO}, 4, v10")
    a(f"s_lshl_b32 s{sXo}, s{sMT}, 7")
    a(f"s_lshl_b32 s{sT}, s{sLW}, 5")
    a(f"s_add_u32 s{sXo}, s{sXo}, s{sT}")
    a(f"s_mul_i32 s{sXo}, s{sXo}, 1280")
    a(f"s_lshl_b32 s{sLd}, s{sLW}, 12")
    a(f"s_mul_i32 s{sLdW}, s{sLW}, 3072")
    a(f"s_cmp_ge_u32 s{sW}, 4")
    a("s_cbranch_scc1 L_B")

    vNon = 215
    def nonce_issue(cnt):
        a(f"v_mov_b32 v{vNon}, 0")
        a(f"global_load_dword v{vNon}, v{vNon}, s[{sDbg}:{sDbg+1}] sc1")
        return cnt.op()
    def nonce_get(cnt, tag):
        lab = a.newlabel("L_non")
        cnt.need(tag)
        a(f"s_mov_b32 s{sT+1}, 0")
        a.label(lab)
        a(f"v_readfirstlane_b32 s{sNon}, v{vNon}")
        a(f"s_add_u32 s{sT+1}, s{sT+1}, 1")
        a(f"s_cmp_lg_u32 s{sNon}, 0")
        a(f"s_cbranch_scc1 {lab}_ok")
        a(f"s_cmp_ge_u32 s{sT+1}, 0x20000")
        a(f"s_cbranch_scc1 {lab}_ok")
        a("s_sleep 8")
        a(f"v_mov_b32 v{vNon}, 0")
        a(f"global_load_dword v{vNon}, v{vNon}, s[{sDbg}:{sDbg+1}] sc1")
        a("s_waitcnt vmcnt(0)")
        a(f"s_branch {lab}")
        a.label(f"{lab}_ok")
    def common_late_setup():
        for t in range(3):
            a(f"v_add_u32 v10, {64*t}, v2")
            a(f"v_mul_u32_u24 v11, 5462, v10")
            a(f"v_lshrrev_b32 v11, 16, v11")
            a(f"v_mul_u32_u24 v9, 12, v11")
            a(f"v_sub_u32 v9, v10, v9")
            a(f"v_mul_u32_u24 v11, 3072, v11")
            a(f"v_lshl_add_u32 v{vGd[t]}, v9, 4, v11")
        a("v_lshrrev_b32 v9, 4, v2")
        a("v_and_b32 v9, 1, v9")
        a("v_and_b32 v10, 15, v2")
        a("v_cmp_eq_u32 vcc, v10, v9")
        a("v_mov_b32 v10, 0x3f803f80")
        a.nop(1)
        for r in range(4): a(f"v_cndmask_b32 v{SEL+r}, 0, v10, vcc")
    def issue2(st, cnt, only=None):
        base = GSLOT[st % 4]
        if only == "last":
            a(f"s_add_u32 s{sT}, s{sG2}, {st*64*3072}")
            a(f"s_add_u32 m0, s{sLdW}, {base + 16384 + 2*1024}")
            a.nop(1)
            a(f"buffer_load_dwordx4 v{vGd[2]}, {WG_}, s{sT} offen lds")
            return cnt.op(1)
        for j in range(4):
            a(f"s_add_u32 m0, s{sLd}, {base + j*1024}")
            a(f"s_add_u32 s{sT}, s{sXo}, {j*8*1280 + st*128}")
            a(f"buffer_load_dwordx4 v{vXO if j & 1 else vXE}, {X_}, s{sT} offen lds")
        for mat in range(2):
            for t in range(3):
                if only == "butlast" and mat == 0 and t == 2: continue
                a(f"s_add_u32 m0, s{sLdW}, {base + 16384 + mat*12288 + t*1024}")
                a(f"s_add_u32 s{sT}, s{sG2}, {st*64*3072}")
                a(f"buffer_load_dwordx4 v{vGd[t]}, {WU_ if mat else WG_}, s{sT} offen lds")
        return cnt.op(9 if only else 10)

    pf1(adv=0)
    if "tlb" in exp:
        G = opt("tlb", 21)
        a(f"v_lshlrev_b32 v5, {G}, v2")
        for k, (srdn, off) in enumerate(((WS_, 4032), (WG_, 0), (WU_, 0), (OUT_, 0), (PK_, 0))):
            a(f"s_cmp_lg_u32 s{sW}, {k % 4}")
            lab = a.newlabel("L_tw")
            a(f"s_cbranch_scc1 {lab}")
            a(f"buffer_load_dword v{PFD}, v5, {srdn}, 0 offen offset:{off} sc1")
            a.label(lab)
    XF = [[8, 12], [16, 20]]; WF = [[24, 28], [32, 36]]
    vXA = [[[40 + (hi * 2 + mi) * 4 + ks for ks in range(4)] for mi in range(2)] for hi in range(2)]
    vWA = [[56 + hi * 2 + ni for ni in range(2)] for hi in range(2)]
    RSD = 60
    ACC = 64
    T = list(range(128, 168))
    CSD = 172
    U = [176, 177, 178, 179]
    vPK = [185, 186, 187, 188]; vPKr = 189
    sWM, sWN, sPKc, sPKl, sPKb = sR + 4, sR + 5, sR + 6, sR + 7, sC
    common_late_setup()
    a(f"s_and_b32 s{sWM}, s{sW}, 1")
    a(f"s_lshr_b32 s{sWN}, s{sW}, 1")
    a("v_lshrrev_b32 v5, 1, v3")
    a("v_and_b32 v5, 7, v5")
    for mi in range(2):
        a(f"s_xor_b32 s{sT}, s{sWN}, {mi}")
        a(f"s_lshl_b32 s{sT+1}, s{sWM}, 1")
        a(f"s_add_u32 s{sT}, s{sT}, s{sT+1}")
        a(f"s_lshl_b32 s{sT}, s{sT}, 12")
        a(f"v_lshl_add_u32 v6, v3, 7, s{sT}")
        for ks in range(4):
            a(f"v_or_b32 v7, {2*ks}, v4")
            a(f"v_xor_b32 v7, v7, v5")
            a(f"v_lshl_add_u32 v{vXA[0][mi][ks]}, v7, 4, v6")
            a(f"v_add_u32 v{vXA[1][mi][ks]}, 0x10000, v{vXA[0][mi][ks]}")
    a("v_lshrrev_b32 v5, 2, v2")
    a("v_and_b32 v5, 3, v5")
    a("v_lshl_add_u32 v6, v4, 3, v5")
    a("v_lshlrev_b32 v6, 8, v6")
    a("v_lshrrev_b32 v7, 4, v2")
    a("v_and_b32 v7, 1, v7")
    a("v_lshl_add_u32 v6, v7, 5, v6")
    a("v_and_b32 v7, 3, v2")
    a("v_lshl_add_u32 v6, v7, 3, v6")
    a("v_add_u32 v6, 16384, v6")
    for ni in range(2):
        a(f"s_xor_b32 s{sT}, s{sWM}, {ni}")
        a(f"s_lshl_b32 s{sT+1}, s{sWN}, 1")
        a(f"s_add_u32 s{sT}, s{sT}, s{sT+1}")
        a(f"v_xor_b32 v7, s{sT}, v5")
        a(f"v_lshl_add_u32 v{vWA[0][ni]}, v7, 6, v6")
        a(f"v_add_u32 v{vWA[1][ni]}, 0x10000, v{vWA[0][ni]}")
    for r in range(64): a(f"v_mov_b32 v{ACC+r}, 0")
    for r in range(4): a(f"v_mov_b32 v{CSD+r}, 0\nv_mov_b32 v{RSD+r}, 0")
    a(f"s_mov_b32 s{sPKb}, s{sA}")
    a(f"s_mul_i32 s{sT+2}, s{sB}, 10")
    a(f"s_sub_u32 s{sT+2}, s{sA}, s{sT+2}")
    a(f"s_cmp_lt_u32 s{sB}, 20")
    a(f"s_cselect_b32 s{sT+3}, 0, 20")
    a(f"s_cselect_b64 s[{sM}:{sM+1}], -1, 0")
    a(f"s_sub_u32 s{sT+3}, s{sB}, s{sT+3}")
    a(f"s_lshl_b32 s{sT+3}, s{sT+3}, 5")
    a(f"s_lshl_b32 s{sPKc}, s{sT+2}, 7")
    a(f"s_lshl_b32 s{sPKl}, s{sW}, 12")
    a(f"s_add_u32 s{sPKl}, s{sPKl}, {PKS}")
    a("v_lshrrev_b32 v5, 3, v2")
    a("v_and_b32 v6, 7, v2")
    for t in range(4):
        a(f"v_add_u32 v7, s{sT+3}, v5")
        if t: a(f"v_add_u32 v7, {8*t}, v7")
        a(f"v_mul_u32_u24 v{U[0]}, 1639, v7")
        a(f"v_lshrrev_b32 v{U[0]}, 16, v{U[0]}")
        a(f"v_mul_u32_u24 v{U[0]}, 40, v{U[0]}")
        a(f"v_sub_u32 v{U[0]}, v7, v{U[0]}")
        a(f"v_cmp_le_u32 vcc, 24, v{U[0]}")
        a(f"v_cmp_le_u32 s[{sT+6}:{sT+7}], 20, v{U[0]}")
        a(f"v_mov_b32 v{U[1]}, 16")
        a(f"v_cndmask_b32 v{U[1]}, 0, v{U[1]}, s[{sT+6}:{sT+7}]")
        a(f"v_cndmask_b32 v{U[1]}, v{U[1]}, -4, vcc")
        a(f"v_cndmask_b32 v{U[1]}, 0, v{U[1]}, s[{sM}:{sM+1}]")
        a(f"v_add_u32 v7, v7, v{U[1]}")
        a("v_mul_u32_u24 v7, 1280, v7")
        a(f"v_lshl_add_u32 v{vPK[t]}, v6, 4, v7")
    a("v_lshrrev_b32 v5, 4, v2")
    a("v_lshrrev_b32 v6, 2, v2")
    a("v_and_b32 v6, 3, v6")
    a("v_lshl_add_u32 v5, v5, 3, v6")
    a("v_lshlrev_b32 v5, 7, v5")
    a("v_and_b32 v6, 3, v2")
    a("v_lshl_add_u32 v5, v6, 3, v5")
    a(f"v_add_u32 v{vPKr}, s{sPKl}, v5")
    def gprefetch_setup():
        a(f"s_and_b32 s{sT}, s{sW}, 1")
        a(f"s_cmp_eq_u32 s{sT}, 0")
        a(f"s_cselect_b32 s4, s{sWg}, s{sWu}")
        a(f"s_cselect_b32 s5, s{sWg+1}, s{sWu+1}")
        a(f"s_mov_b32 s6, {640*3072}")
        a(f"s_lshl_b32 s{sT}, s{sIDX}, 1")
        a(f"s_lshr_b32 s{sT+1}, s{sLW}, 1")
        a(f"s_add_u32 s{sT}, s{sT}, s{sT+1}")
        a(f"s_mul_i32 s3, s{sT}, {4*3072}")
        a(f"s_and_b32 s{sT}, s{sXCD}, 3")
        a(f"s_mul_i32 s{sT}, s{sT}, 768")
        a(f"s_add_u32 s3, s3, s{sT}")
        a(f"v_lshrrev_b32 v{vPF}, 4, v2")
        a(f"v_mul_u32_u24 v{vPF}, 3072, v{vPF}")
        a("v_and_b32 v1, 15, v2")
        a(f"v_lshl_add_u32 v{vPF}, v1, 4, v{vPF}")
    gprefetch_setup()
    CV = Cnt(a, "vmcnt", 63); tags = {}
    def gprefetch(n):
        if "nopf2" in exp: return
        a(f"s_add_u32 s{sT}, s3, {(n // 3)*256*3072}")
        a(f"buffer_load_dwordx4 {vr(PFD,4)}, v{vPF}, s[4:7], s{sT} offen offset:{(n % 3)*256}")
        CV.op()
    def pack_issue(t):
        a(f"s_add_u32 m0, s{sPKl}, {t*1024}")
        a.nop(1)
        a(f"buffer_load_dwordx4 v{vPK[t]}, {PK_}, s{sPKc} offen lds")
        tags["pack"] = CV.op()
    def pack_finish():
        lab = a.newlabel("L_pk")
        a(f"s_cmp_eq_u32 s{sW}, 3")
        a(f"s_cbranch_scc1 {lab}")
        a(f"s_cmp_ge_u32 s{sPKb}, 680")
        a(f"s_cbranch_scc1 {lab}")
        a(f"s_lshl_b32 s{sT+1}, s{sPKb}, 12")
        a(f"s_add_u32 s{sT+1}, s{sT+1}, {WS_WP}")
        a("v_lshlrev_b32 v6, 4, v2")
        a(f"s_waitcnt vmcnt({CV.issued - 1 - tags['pack']})")
        for n in range(4):
            for h in range(2):
                a(f"ds_read_b64_tr_b16 {vr(T[4*n]+2*h,2)}, v{vPKr} offset:{h*512 + n*32}")
        a("s_waitcnt lgkmcnt(0)")
        for n in range(4):
            a(f"buffer_store_dwordx4 {vr(T[4*n],4)}, v6, {WS_}, s{sT+1} offen offset:{n*1024}{SC}")
        a.label(lab)
    def rd1(st, ks, buf):
        base = (st % NST) * STG
        hi = base // 65536; b = base % 65536
        X = lambda mi: (("X", mi), f"ds_read_b128 {vr(XF[buf][mi],4)}, v{vXA[hi][mi][ks]} offset:{b}")
        W = lambda ni, h: (("W", ni), f"ds_read_b64_tr_b16 {vr(WF[buf][ni]+2*h,2)}, v{vWA[hi][ni]} offset:{b + ks*4096 + h*1024}")
        return [X(0), W(0, 0), W(0, 1), W(1, 0), W(1, 1), X(1)]
    PKI, GP0 = opt("pki", 2), opt("gp", 3)
    def p1_loop(vtype):
        CV.issued = CV.done = 0
        L1 = Cnt(a, "lgkmcnt", 15)
        tg = [{}, {}]
        def emit(lst, buf):
            for key, l in lst:
                a(l); tg[buf][key] = L1.op()
        a("s_barrier")
        ST("A", 1); ST("B", 1)
        emit(rd1(0, 0, 0), 0)
        for st in range(10):
            for ks in range(4):
                buf = (st * 4 + ks) & 1
                if ks < 3: nxt = rd1(st, ks + 1, buf ^ 1)
                elif st < 9: nxt = rd1(st + 1, 0, buf ^ 1)
                else: nxt = []
                if ks == 3 and st < 9:
                    L1.need(L1.issued - 1)
                    a("s_barrier")
                    ST("B", st + 2)
                n = 0
                for mi in range(2):
                    for ni in range(2):
                        d = ACC + (mi * 2 + ni) * 16
                        A, B = (XF[buf][mi], WF[buf][ni]) if vtype else (WF[buf][ni], XF[buf][mi])
                        L1.need(max(tg[buf][("X", mi)], tg[buf][("W", ni)]))
                        a(f"{M32} {vr(d,16)}, {vr(A,4)}, {vr(B,4)}, {vr(d,16)}")
                        emit(nxt[n * 2: n * 2 + 2], buf ^ 1)
                        if n == 3:
                            gi = (st - GP0) * 2 + (ks >> 1)
                            if 0 <= gi < 9 and (ks & 1): gprefetch(gi)
                            if 0 <= st - PKI < 4 and ks == 0: pack_issue(st - PKI)
                            if st == 7 and ks == 1: pack_finish()
                            if st == 8 and ks == 1: tags["non"] = nonce_issue(CV)
                        if n == 2: a(f"{M16} {vr(CSD,4)}, {vr(SEL,4)}, {vr(WF[buf][0],4)}, {vr(CSD,4)}")
                        n += 1
                a(f"{M16} {vr(RSD,4)}, {vr(SEL,4)}, {vr(XF[buf][0],4)}, {vr(RSD,4)}")
        ST("A", 2); ST("B", 11)
        a(f"s_lshl_b32 s{sT}, s{sWN}, 1\ns_add_u32 s{sT}, s{sT}, s{sWM}\ns_lshl_b32 s{sT}, s{sT}, 7\ns_add_u32 s{sT}, s{sT}, {ST_CS}")
        a(f"v_lshl_add_u32 v{U[0]}, v3, 2, s{sT}")
        a(f"s_lshl_b32 s{sT}, s{sWM}, 1\ns_add_u32 s{sT}, s{sT}, s{sWN}\ns_lshl_b32 s{sT}, s{sT}, 7")
        a(f"v_lshl_add_u32 v{U[1]}, v3, 2, s{sT}")
        a.nop(2)
        a("s_mov_b64 exec, 0xffff")
        a(f"ds_write_b32 v{U[0]}, v{CSD}")
        a(f"ds_write_b32 v{U[0]}, v{CSD+1} offset:64")
        a(f"ds_write_b32 v{U[1]}, v{RSD} offset:{ST_SUM}")
        a(f"ds_write_b32 v{U[1]}, v{RSD+1} offset:{ST_SUM+64}")
        a("s_mov_b64 exec, -1")
        a("s_waitcnt lgkmcnt(0)")
        a("s_barrier")
        nonce_get(CV, tags["non"])
        a(f"s_cmp_eq_u32 s{sNG}, 15")
        a("s_cbranch_scc1 L_A_dummy")
    def blk(dst, x, y, xo):
        a(f"s_xor_b32 s{dst}, s{y}, {xo}")
        a(f"s_lshl_b32 s{sT+7}, s{x}, 1")
        a(f"s_add_u32 s{dst}, s{dst}, s{sT+7}")
    sH, sQB, sKV = sA, sB, sC
    def p3_ids():
        a(f"s_lshl_b32 s{sH}, s{sXCD}, 2")
        a(f"s_and_b32 s{sT}, s{sIDX}, 3")
        a(f"s_add_u32 s{sH}, s{sH}, s{sT}")
        a(f"s_lshr_b32 s{sQB}, s{sIDX}, 2")
        a(f"s_mul_i32 s{sKV}, s{sH}, {16*CHUNK}")
    VA = Cnt(a, "vmcnt", 63); tag2 = {}
    def capture(fn):
        n0 = len(a.lines); fn(); L = a.lines[n0:]; del a.lines[n0:]
        return L
    def atoms(lines):
        out = []; cur = None
        for l in lines:
            t = l.strip()
            if t == "; {": cur = []
            elif t == "; }": out.append(cur); cur = None
            elif cur is not None: cur.append(l)
            else: out.append([l])
        return out
    def marker_prefill():
        a.c("{")
        p3_ids()
        a("v_mov_b32 v12, -1\nv_mov_b32 v13, -1\nv_mov_b32 v14, -1\nv_mov_b32 v15, -1")
        a(f"s_lshr_b32 s{sT+1}, s{sH}, 1")
        a(f"s_mul_i32 s{sT+1}, s{sT+1}, {5*256}")
        a(f"s_add_u32 s{sT+1}, s{sT+1}, {WS_O}")
        a(f"s_lshl_b32 s{sT+3}, s{sQB}, 4")
        a(f"s_lshl_b32 s{sT+4}, s{sW}, 2")
        a(f"s_add_u32 s{sT+3}, s{sT+3}, s{sT+4}")
        a(f"s_mul_i32 s{sT+3}, s{sT+3}, 20480")
        a(f"s_add_u32 s{sT+1}, s{sT+1}, s{sT+3}")
        a(f"s_and_b32 s{sT+3}, s{sH}, 1")
        a(f"s_mul_i32 s{sT+2}, s{sT+3}, {3*256}")
        a(f"s_add_u32 s{sT+2}, s{sT+2}, s{sT+1}")
        a(f"s_lshl_b32 s{sT+3}, s{sT+3}, 3")
        a(f"s_add_u32 s{sT+1}, s{sT+1}, s{sT+3}")
        a("v_lshrrev_b32 v9, 4, v2")
        a("v_mul_u32_u24 v9, 20480, v9")
        a("v_and_b32 v10, 15, v2")
        a("v_lshl_add_u32 v9, v10, 4, v9")
        a(f"buffer_store_dwordx4 v[12:15], v9, {WS_}, s{sT+2} offen{SC}")
        a(f"buffer_store_dwordx4 v[12:15], v9, {WS_}, s{sT+2} offen offset:256{SC}")
        a(f"buffer_store_dwordx2 v[12:13], v9, {WS_}, s{sT+1} offen offset:512{SC}")
        a.c("}")
    SEGF = [opt("sf", 55) / 100.0, 1.0]
    def a_segments(body, nhead):
        a.lines += body[:nhead]
        at = atoms(body[nhead:] + capture(marker_prefill))
        tot = sum(len(x) for x in at)
        VA.issued = VA.done = 0
        done = 0
        for seg in range(3):
            def dm():
                if seg == 0: issue2(3, VA, "butlast")
                elif seg == 1:
                    tag2[3] = issue2(3, VA, "last"); tag2[4] = issue2(4, VA)
                else: tag2[5] = issue2(5, VA)
            units = []; cur = []
            for x in atoms(capture(dm)):
                cur += x
                if "buffer_load" in x[0]: units.append(cur); cur = []
            mine = []
            if seg < 2:
                while at and done < SEGF[seg] * tot - 1e-9:
                    done += len(at[0]); mine.append(at.pop(0))
            per = -(-len(mine) // len(units))
            for u in units:
                for x in mine[:per]: a.lines += x
                mine = mine[per:]
                a.lines += u
            if seg == 0: a("s_waitcnt lgkmcnt(0)")
            if seg == 2: a("s_waitcnt vmcnt(10)")
            if seg < 2: a("s_barrier")
        VA.done = VA.issued - 10
        a("s_branch L_A_ld")

    a(f"s_cmp_ge_u32 s{sNT}, 10")
    a("s_cbranch_scc1 L_p1_vtype")
    p1_loop(False)
    NM = [T[0], T[1]]; RS = [T[2], T[3]]
    CSV = [[T[8] + (ni * 4 + g) * 4 for g in range(4)] for ni in range(2)]
    K16 = [8, 9]; K8 = [20, 21]; FL = [12, 13]
    a(f"s_cmp_lt_u32 s{sNT}, 5")
    a(f"s_cselect_b32 s{sB}, {f32bits(QSCALE):#x}, 1.0")
    a(f"s_cselect_b32 s{sC}, 0, 5")
    a(f"s_mov_b32 s{sT+6}, {WS_KV}")
    a(f"s_cselect_b32 s{sT+6}, {WS_Q}, s{sT+6}")
    a(f"s_sub_u32 s{sC}, s{sNT}, s{sC}")
    a(f"s_lshl_b32 s{sC}, s{sC}, 7")
    for mi in range(2):
        blk(sA, sWM, sWN, mi)
        a(f"s_lshl_b32 s{sA}, s{sA}, 5")
        a(f"v_add_u32 v11, s{sA}, v3")
        a(f"v_lshlrev_b32 v{22+mi}, 2, v11")
        a(f"v_lshlrev_b32 v{K16[mi]}, 4, v11")
        a(f"v_lshlrev_b32 v{K8[mi]}, 3, v11")
    for ni in range(2):
        blk(sA, sWN, sWM, ni)
        a(f"s_lshl_b32 s{sA}, s{sA}, 5")
        a(f"v_lshl_add_u32 v10, v4, 2, s{sA}")
        a(f"v_lshlrev_b32 v10, 2, v10")
        for g in range(4):
            a(f"ds_read_b128 {vr(CSV[ni][g],4)}, v10 offset:{ST_CS+g*32}")
        a(f"s_add_u32 s{sA}, s{sA}, s{sC}")
        a(f"v_lshl_add_u32 v{FL[ni]}, v4, 3, s{sA}")
    a(f"s_mul_i32 s{sA}, s{sMT}, {CHUNK}")
    a(f"s_add_u32 s{sA}, s{sA}, s{sT+6}")
    a(f"s_add_u32 s{sC}, s{sA}, {16*CHUNK}")
    a(f"s_mov_b32 s{sPKc}, {16*CHUNK}")
    a("s_barrier")
    ST("A", 3)
    n0 = len(a.lines)
    for mi in range(2):
        a(f"ds_read_b32 v{NM[mi]}, v{22+mi} offset:{ST_NM}")
        a(f"ds_read_b32 v{RS[mi]}, v{22+mi} offset:{ST_RS}")
    a("s_waitcnt lgkmcnt(0)")
    for mi in range(2): a(f"v_mul_f32 v{RS[mi]}, s{sB}, v{RS[mi]}")
    nhead = len(a.lines) - n0
    for ni in range(2):
        for gp in range(2):
            a(f"v_add_u32 v14, {16*gp}, v{FL[ni]}")
            a(f"v_mul_u32_u24 v15, 1639, v14")
            a(f"v_lshrrev_b32 v15, 16, v15")
            a(f"v_mul_u32_u24 v16, 40, v15")
            a(f"v_sub_u32 v16, v14, v16")
            a(f"v_lshrrev_b32 v16, 3, v16")
            a(f"v_cmp_lt_u32 vcc, 2, v16")
            a(f"v_cmp_eq_u32 s[{sM}:{sM+1}], 2, v16")
            a(f"v_lshlrev_b32 v15, 1, v15")
            a(f"v_cndmask_b32 v14, 0, 1, vcc")
            a(f"v_add_u32 v15, v15, v14")
            a(f"v_mul_u32_u24 v14, 3, v14")
            a(f"v_sub_u32 v16, v16, v14")
            a(f"v_mul_lo_u32 v15, v15, s{sPKc}")
            a(f"v_lshl_add_u32 v15, v16, 11, v15")
            for mi in range(2):
                d = ACC + (mi * 2 + ni) * 16
                for g in (2 * gp, 2 * gp + 1):
                    for e in range(4):
                        a(f"v_fmac_f32 v{d+4*g+e}, v{CSV[ni][g]+e}, v{NM[mi]}")
                q = d + 8 * gp
                for e in range(8): a(f"v_mul_f32 v{q+e}, v{q+e}, v{RS[mi]}")
                a(f"v_cvt_pk_bf16_f32 v{q}, v{q}, v{q+1}")
                a(f"v_cvt_pk_bf16_f32 v{q+1}, v{q+2}, v{q+3}")
                a(f"v_cvt_pk_bf16_f32 v{q+2}, v{q+4}, v{q+5}")
                a(f"v_cvt_pk_bf16_f32 v{q+3}, v{q+6}, v{q+7}")
                a(f"v_add_u32 v17, v15, v{K16[mi]}")
                a(f"v_add_u32 v18, v15, v{K8[mi]}")
                a(f"v_permlane32_swap_b32 v{q}, v{q+2}")
                a(f"v_permlane32_swap_b32 v{q+1}, v{q+3}")
                a.c("{")
                a(f"s_andn2_b64 exec, exec, s[{sM}:{sM+1}]")
                a(f"buffer_store_dwordx4 {vr(q,4)}, v17, {WS_}, s{sA} offen{SC}")
                a(f"s_mov_b64 exec, s[{sM}:{sM+1}]")
                lab = a.newlabel("L_qk_ns")
                a(f"s_cbranch_execz {lab}")
                a(f"buffer_store_dwordx2 {vr(q,2)}, v18, {WS_}, s{sA} offen{SC}")
                a(f"buffer_store_dwordx2 {vr(q+2,2)}, v18, {WS_}, s{sC} offen{SC}")
                a.label(lab)
                a("s_mov_b64 exec, -1")
                a.c("}")
    body = a.lines[n0:]; del a.lines[n0:]
    a_segments(body, nhead)
    a.label("L_p1_vtype")
    p1_loop(True)
    CSL = [40, 41]; VB = [42, 43]
    NMV = [[T[8] + g * 4 for g in range(4)], [8 + g * 4 for g in range(4)]]
    RSV = [[T[24] + g * 4 for g in range(4)], [24 + g * 4 for g in range(4)]]
    a(f"s_sub_u32 s{sC}, s{sNT}, 10")
    a(f"s_lshl_b32 s{sC}, s{sC}, 7")
    a(f"s_mov_b32 s{sB}, {16*CHUNK}")
    for ni in range(2):
        blk(sA, sWN, sWM, ni)
        a(f"s_lshl_b32 s{sA}, s{sA}, 5")
        a(f"v_add_u32 v44, s{sA}, v3")
        a(f"v_lshlrev_b32 v45, 2, v44")
        a(f"ds_read_b32 v{CSL[ni]}, v45 offset:{ST_CS}")
        a(f"v_add_u32 v44, s{sC}, v44")
        a(f"v_mul_u32_u24 v45, 3277, v44")
        a(f"v_lshrrev_b32 v45, 16, v45")
        a(f"v_mul_u32_u24 v46, 20, v45")
        a(f"v_sub_u32 v46, v44, v46")
        a(f"v_mul_lo_u32 v45, v45, s{sB}")
        a(f"v_lshl_add_u32 v45, v46, 4, v45")
        a(f"v_mul_u32_u24 v46, 320, v4")
        a(f"v_add_u32 v{VB[ni]}, v45, v46")
    sVo = [sB, sC]
    for mi in range(2):
        blk(sA, sWM, sWN, mi)
        a(f"s_lshl_b32 s{sT}, s{sA}, 7")
        a(f"v_lshl_add_u32 v{47+mi}, v4, 4, s{sT}")
        a(f"s_mul_i32 s{sA}, s{sA}, {4*320}")
        a(f"s_mul_i32 s{sT}, s{sMT}, {CHUNK}")
        a(f"s_add_u32 s{sA}, s{sA}, s{sT}")
        a(f"s_add_u32 s{sVo[mi]}, s{sA}, {WS_KV+5120}")
    a("s_barrier")
    ST("A", 3)
    n0 = len(a.lines)
    for mi in range(2):
        for g in range(4):
            a(f"ds_read_b128 {vr(NMV[mi][g],4)}, v{47+mi} offset:{ST_NM+g*32}")
            a(f"ds_read_b128 {vr(RSV[mi][g],4)}, v{47+mi} offset:{ST_RS+g*32}")
        if mi == 0: a("s_waitcnt lgkmcnt(7)")
    a("s_waitcnt lgkmcnt(8)")
    nhead = len(a.lines) - n0
    for mi in range(2):
        if mi == 1: a("s_waitcnt lgkmcnt(0)")
        for ni in range(2):
            d = ACC + (mi * 2 + ni) * 16
            for gp in range(2):
                for g in (2 * gp, 2 * gp + 1):
                    for e in range(4): a(f"v_fmac_f32 v{d+4*g+e}, v{NMV[mi][g]+e}, v{CSL[ni]}")
                for g in (2 * gp, 2 * gp + 1):
                    for e in range(4): a(f"v_mul_f32 v{d+4*g+e}, v{d+4*g+e}, v{RSV[mi][g]+e}")
                q = d + 8 * gp
                a(f"v_cvt_pk_bf16_f32 v{q}, v{q}, v{q+1}")
                a(f"v_cvt_pk_bf16_f32 v{q+1}, v{q+2}, v{q+3}")
                a(f"v_cvt_pk_bf16_f32 v{q+2}, v{q+4}, v{q+5}")
                a(f"v_cvt_pk_bf16_f32 v{q+3}, v{q+6}, v{q+7}")
                a.nop(2)
                a(f"v_permlane32_swap_b32 v{q}, v{q+2}")
                a(f"v_permlane32_swap_b32 v{q+1}, v{q+3}")
                a(f"buffer_store_dwordx4 {vr(q,4)}, v{VB[ni]}, {WS_}, s{sVo[mi]} offen offset:{gp*640}{SC}")
    body = a.lines[n0:]; del a.lines[n0:]
    a_segments(body, nhead)
    a.label("L_A_dummy")
    a("s_barrier")
    a_segments([], 0)
    a.label("L_A_ld")
    a("v_lshlrev_b32 v8, 4, v2")
    def kv_dma(n0):
        for j in range(10):
            a(f"s_lshl_b32 s{sT}, s{sW}, 10")
            a(f"s_add_u32 s{sT}, s{sT}, {(n0 + 4*j)*1024}")
            a(f"s_mov_b32 m0, s{sT}")
            a(f"s_add_u32 s{sT}, s{sT}, s{sKV}")
            a(f"s_add_u32 s{sT}, s{sT}, {WS_KV}")
            a(f"buffer_load_dwordx4 v8, {WS_}, s{sT} offen lds")
        VA.op(10)
    for st in range(2, 9):
        if st + 1 >= 5: VA.need(tag2[st + 1])
        a("s_barrier")
        if st == 2:
            lab = a.newlabel("L_f1add")
            a(f"s_cmp_lg_u32 s{sW}, 0")
            a(f"s_cbranch_scc1 {lab}")
            a(f"s_lshl_b32 s{sT}, s2, 7")
            a(f"s_add_u32 s{sT}, s{sT}, {WS_FL1}")
            a("v_mov_b32 v9, 0")
            a(f"v_mov_b32 v10, s{sNon}")
            a("s_mov_b64 exec, 1")
            a(f"buffer_store_dword v10, v9, {WS_}, s{sT} offen{SC}")
            a("s_mov_b64 exec, -1")
            a.label(lab)
        if st + 4 <= 9: tag2[st + 4] = issue2(st + 4, VA)
        if st == 7: kv_dma(0)
        if st == 8:
            for j in range(3):
                a(f"s_add_u32 s{sT}, s{sW}, {4*j}")
                a(f"s_min_u32 s{sT}, s{sT}, 9")
                a(f"s_lshl_b32 s{sT+1}, s{sT}, 10")
                a(f"s_add_u32 m0, s{sT+1}, {QOFF}")
                a(f"s_cmp_ge_u32 s{sT}, 5")
                a(f"s_cselect_b32 s{sT}, 5120, 0")
                a(f"s_add_u32 s{sT}, s{sT}, s{sT+1}")
                a(f"s_mul_i32 s{sT+1}, s{sQB}, {2*CHUNK}")
                a(f"s_add_u32 s{sT}, s{sT}, s{sT+1}")
                a(f"s_add_u32 s{sT}, s{sT}, s{sKV}")
                a(f"s_add_u32 s{sT}, s{sT}, {WS_Q}")
                a(f"buffer_load_dwordx4 v8, {WS_}, s{sT} offen lds")
    a("s_mov_b32 s3, 0")
    a("s_branch L_p3")

    a.label("L_B")
    for j in range(3): a(f"s_add_u32 s{sPB[j]}, s{sPB[j]}, s3\ns_add_u32 s{sPB[j]}, s{sPB[j]}, s3")
    sWo = sR + 4
    vWv = 7
    a("v_lshrrev_b32 v9, 4, v2")
    a(f"v_mul_u32_u24 v{vWv}, 3840, v9")
    a("v_lshrrev_b32 v10, 2, v2")
    a("v_and_b32 v10, 3, v10")
    a("v_xor_b32 v10, v10, v9")
    a(f"v_lshl_add_u32 v{vWv}, v10, 6, v{vWv}")
    a("v_and_b32 v10, 3, v2")
    a(f"v_lshl_add_u32 v{vWv}, v10, 4, v{vWv}")
    a(f"s_mul_i32 s{sWo}, s{sLW}, {16*3840}")
    a(f"s_lshl_b32 s{sT}, s{sNT}, 8")
    a(f"s_add_u32 s{sWo}, s{sWo}, s{sT}")
    VM = Cnt(a, "vmcnt", 63)
    def issue1(st):
        base = (st % NST) * STG
        for j in range(4):
            a(f"s_add_u32 m0, s{sLd}, {base + j*1024}")
            a(f"s_add_u32 s{sT}, s{sXo}, {j*8*1280 + st*128}")
            a(f"buffer_load_dwordx4 v{vXO if j & 1 else vXE}, {X_}, s{sT} offen lds")
            a(f"s_add_u32 m0, s{sLd}, {base + 16384 + j*1024}")
            a(f"s_add_u32 s{sT}, s{sWo}, {(st*64 + j*4)*3840}")
            a(f"buffer_load_dwordx4 v{vWv}, {WQ_}, s{sT} offen lds")
        return VM.op(8)
    tag1 = {}
    SA = [[12 + hi * 4 + j for j in range(4)] for hi in range(2)]
    SD = 20; LS = [36, 37]; LU = [40, 41, 42, 43]
    GX = [8, 12]
    GW = [[16 + (b * 6 + n) * 4 for n in range(6)] for b in range(2)]
    GACC = 64
    gXA = [[184 + sl * 4 + ks for ks in range(4)] for sl in range(4)]
    gWA = [[200 + sl * 3 + p for p in range(3)] for sl in range(4)]
    GCS = [160, 164]; NM2, RS2 = 180, 181; POLL = 225
    sCT = [sA, sB, sC]
    a("v_lshrrev_b32 v9, 1, v3")
    a("v_and_b32 v9, 7, v9")
    a(f"v_lshl_add_u32 v10, v3, 7, s{sLd}")
    for ks in range(4):
        a(f"v_or_b32 v11, {2*ks}, v4")
        a(f"v_xor_b32 v11, v11, v9")
        a(f"v_lshl_add_u32 v{gXA[3][ks]}, v11, 4, v10")
        for sl in range(3): a(f"v_add_u32 v{gXA[sl][ks]}, {GSLOT[sl]}, v{gXA[3][ks]}")
    a("v_lshlrev_b32 v11, 2, v4")
    a("v_xor_b32 v9, v9, v11")
    for j in range(4):
        a(f"v_xor_b32 v11, {j}, v9")
        a(f"v_lshl_add_u32 v{SA[0][j]}, v11, 4, v10")
        a(f"v_add_u32 v{SA[1][j]}, 0x10000, v{SA[0][j]}")
    for r in LS: a(f"v_mov_b32 v{r}, 0")
    a("s_waitcnt vmcnt(0)")
    tag1[0] = issue1(0)
    tag1[1] = issue1(1)
    common_late_setup()
    a("v_lshrrev_b32 v5, 2, v2")
    a("v_and_b32 v5, 3, v5")
    a("v_lshl_add_u32 v5, v4, 3, v5")
    a("v_mul_u32_u24 v5, 192, v5")
    a("v_lshrrev_b32 v6, 4, v2")
    a("v_and_b32 v6, 1, v6")
    a("v_lshl_add_u32 v5, v6, 5, v5")
    a("v_and_b32 v6, 3, v2")
    a("v_lshl_add_u32 v5, v6, 3, v5")
    for p in range(3):
        a(f"s_add_u32 s{sCT[p]}, s{sLW}, {p}")
        for _ in range(2):
            a(f"s_cmp_ge_u32 s{sCT[p]}, 3")
            a(f"s_cselect_b32 s{sT}, 3, 0")
            a(f"s_sub_u32 s{sCT[p]}, s{sCT[p]}, s{sT}")
        a(f"s_lshl_b32 s{sT}, s{sCT[p]}, 6")
        a(f"s_add_u32 s{sT}, s{sT}, 16384")
        a(f"v_add_u32 v{gWA[3][p]}, s{sT}, v5")
        for sl in range(3): a(f"v_add_u32 v{gWA[sl][p]}, {GSLOT[sl]}, v{gWA[3][p]}")
    for r in range(96): a(f"v_mov_b32 v{GACC+r}, 0")
    for r in range(8): a(f"v_mov_b32 v{GCS[0]+r}, 0")
    a(f"v_lshlrev_b32 v{POLL+4}, 7, v2")
    def f1_loads():
        for q in range(4):
            a(f"s_mov_b32 s{sT}, {WS_FL1 + q*8192}")
            a(f"buffer_load_dword v{POLL+q}, v{POLL+4}, {WS_}, s{sT} offen{SC}")
    def ssq_ops():
        ops = []
        for j in range(4):
            ops.append(f"s_waitcnt lgkmcnt({3-j})")
            for r in range(4):
                x = SD + 4 * j + r; u0, u1 = LU[2 * (r & 1)], LU[2 * (r & 1) + 1]
                ops += [f"v_lshlrev_b32 v{u0}, 16, v{x}", f"v_and_b32 v{u1}, 0xffff0000, v{x}",
                        f"v_fmac_f32 v{LS[0]}, v{u0}, v{u0}", f"v_fmac_f32 v{LS[1]}, v{u1}, v{u1}"]
        return ops
    VM.need(tag1[0])
    a("s_barrier")
    issued = 1
    tagB = {}
    PF34 = opt("pfc", 2)
    for st in range(10):
        base = (st % NST) * STG
        for j in range(4): a(f"ds_read_b128 {vr(SD+4*j,4)}, v{SA[base // 65536][j]} offset:{base % 65536}")
        n0 = len(a.lines)
        while issued < min(st + 3, 9):
            issued += 1; tag1[issued] = issue1(issued)
        if st == PF34: pf1(VM); pf1(VM, adv=0)
        if st == 7: tnon = nonce_issue(VM)
        if st == 8: tagB[0] = issue2(0, VM)
        dma = a.lines[n0:]; del a.lines[n0:]
        ops = ssq_ops()
        nd = sum("buffer_load" in l for l in dma)
        per = -(-len(ops) // max(nd - 1, 1)) if nd else len(ops)
        k = 0
        for l in dma:
            a.lines.append(l)
            if "buffer_load" in l:
                k += 1
                if k >= 2:
                    for o in ops[:per]: a(o)
                    ops = ops[per:]
        for o in ops: a(o)
        if st == 8: nonce_get(VM, tnon)
        if st < 9:
            VM.need(tag1[st + 1])
            a("s_barrier")
    a(f"v_add_f32 v{RS2}, v{LS[0]}, v{LS[1]}")
    a(f"v_mov_b32 v{LS[1]}, v{RS2}")
    a(f"s_lshl_b32 s{sT}, s{sLW}, 7")
    a(f"v_lshl_add_u32 v10, v3, 2, s{sT}")
    a(f"v_permlane32_swap_b32 v{RS2}, v{LS[1]}")
    a(f"v_add_f32 v{RS2}, v{RS2}, v{LS[1]}")
    tagB[1] = issue2(1, VM)
    a("s_barrier")
    a(f"ds_read_b32 v{NM2}, v10 offset:{ST_SUM}")
    a("s_waitcnt lgkmcnt(0)")
    ln_rowmath(a, NM2, RS2, LU[1], sT)
    a.nop(1)
    a(f"ds_write_b32 v10, v{NM2} offset:{ST_NM}")
    a(f"ds_write_b32 v10, v{RS2} offset:{ST_RS}")
    a(f"v_mul_f32 v{RS2}, v{RS2}, v{RS2}")
    VM.need(tagB[0])
    a("s_waitcnt lgkmcnt(0)")
    a("s_barrier")
    if "noprioB" not in exp: a("s_setprio 2")
    ST("A", 4); ST("C", 1)
    L2 = Cnt(a, "lgkmcnt", 15)
    tg2 = [{}, {}]
    def emit2(lst, buf):
        for key, l in lst:
            a(l); tg2[buf][key] = L2.op()
    def rd2(st, ks, buf):
        sl = st % 4
        L = [("X", f"ds_read_b128 {vr(GX[buf],4)}, v{gXA[sl][ks]}")]
        for n in range(6):
            mat, p = n & 1, n >> 1
            for h in range(2):
                L.append((n, f"ds_read_b64_tr_b16 {vr(GW[buf][n]+2*h,2)}, v{gWA[sl][p]} offset:{mat*12288 + (16*ks+4*h)*192}"))
        return L
    emit2(rd2(0, 0, 0), 0)
    tagB[2] = issue2(2, VM)
    for st in range(10):
        for ks in range(4):
            buf = (st * 4 + ks) & 1
            if ks < 3: nxt = rd2(st, ks + 1, buf ^ 1)
            elif st < 9: nxt = rd2(st + 1, 0, buf ^ 1)
            else: nxt = []
            if ks == 3 and st < 9:
                if st + 1 <= 2: VM.need(tagB[st + 1])
                L2.need(L2.issued - 1)
                a("s_barrier")
                ST("C", st + 2)
            if st == 6 and ks == 3:
                lab = a.newlabel("L_f1p")
                a(f"s_cmp_lg_u32 s{sW}, 4")
                a(f"s_cbranch_scc1 {lab}")
                f1_loads()
                a.label(lab)
            if st == 7 and ks == 2:
                lab = a.newlabel("L_f1")
                a(f"s_cmp_lg_u32 s{sW}, 4")
                a(f"s_cbranch_scc1 {lab}_ok")
                a(f"s_mov_b32 s{sT+1}, 0")
                a.label(lab)
                a("s_waitcnt vmcnt(0)")
                for q in range(4): a(f"v_xor_b32 v{POLL+q}, s{sNon}, v{POLL+q}")
                a(f"v_or3_b32 v{POLL}, v{POLL}, v{POLL+1}, v{POLL+2}")
                a(f"v_or_b32 v{POLL}, v{POLL}, v{POLL+3}")
                a(f"v_cmp_ne_u32 vcc, 0, v{POLL}")
                a(f"s_add_u32 s{sT+1}, s{sT+1}, 1")
                a.nop(2)
                a("s_cmp_eq_u64 vcc, 0")
                a(f"s_cbranch_scc1 {lab}_ok")
                a(f"s_cmp_ge_u32 s{sT+1}, 0x20000")
                a(f"s_cbranch_scc1 {lab}_ok")
                a("s_sleep 8")
                f1_loads()
                a(f"s_branch {lab}")
                a.label(f"{lab}_ok")
            for n in range(6):
                d = GACC + n * 16
                L2.need(tg2[buf][n])
                a(f"{M32} {vr(d,16)}, {vr(GW[buf][n],4)}, {vr(GX[buf],4)}, {vr(d,16)}")
                emit2(nxt[0:3] if n == 0 else nxt[1 + n * 2: 3 + n * 2], buf ^ 1)
                if n >= 4: a(f"{M16} {vr(GCS[n-4],4)}, {vr(SEL,4)}, {vr(GW[buf][n-4],4)}, {vr(GCS[n-4],4)}")
    ST("A", 5); ST("C", 11)
    a(f"s_lshl_b32 s{sT}, s{sCT[0]}, 7")
    a(f"s_add_u32 s{sT}, s{sT}, {CSA}")
    a(f"v_lshl_add_u32 v5, v3, 2, s{sT}")
    a(f"s_lshl_b32 s{sR+4}, s{sMT}, 2")
    a(f"s_add_u32 s{sR+4}, s{sR+4}, s{sLW}")
    a(f"s_mul_i32 s{sR+4}, s{sR+4}, {2*49152}")
    a(f"s_mul_i32 s{sT}, s{sNG}, {12*256}")
    a(f"s_add_u32 s{sR+4}, s{sR+4}, s{sT}")
    a(f"s_add_u32 s{sR+4}, s{sR+4}, {WS_H}")
    a("s_mov_b64 exec, 0xffff")
    for mat in range(2):
        a(f"ds_write_b32 v5, v{GCS[mat]} offset:{mat*384}")
        a(f"ds_write_b32 v5, v{GCS[mat]+1} offset:{mat*384+64}")
    a("s_mov_b64 exec, -1")
    a("v_lshrrev_b32 v6, 4, v3")
    a("v_mul_u32_u24 v6, 49152, v6")
    a("v_lshl_add_u32 v6, v4, 8, v6")
    a("v_and_b32 v7, 15, v3")
    a("v_lshl_add_u32 v6, v7, 4, v6")
    a("s_waitcnt lgkmcnt(0)")
    a("s_barrier")
    a("s_setprio 3")
    CB = [16, 184]
    def cs_read(p):
        a(f"s_lshl_b32 s{sT}, s{sCT[p]}, 7")
        a(f"s_add_u32 s{sT}, s{sT}, {CSA}")
        a(f"v_lshl_add_u32 v5, v4, 4, s{sT}")
        for mat in range(2):
            for g in range(4):
                a(f"ds_read_b128 {vr(CB[p&1]+(mat*4+g)*4,4)}, v5 offset:{mat*384+g*32}")
    cs_read(0); cs_read(1)
    for p in range(3):
        cb = CB[p & 1]
        a(f"s_waitcnt lgkmcnt({8 if p < 2 else 0})")
        g = GACC + (2 * p) * 16; u = GACC + (2 * p + 1) * 16
        for e in range(16):
            a(f"v_fmac_f32 v{g+e}, v{cb+e}, v{NM2}")
            a(f"v_fmac_f32 v{u+e}, v{cb+16+e}, v{NM2}")
        if p == 0: cs_read(2)
        a(f"s_lshl_b32 s{sT}, s{sCT[p]}, 10")
        a(f"s_add_u32 s{sT}, s{sT}, s{sR+4}")
        for gp in range(2):
            for e in range(8 * gp, 8 * gp + 8):
                a(f"v_max_f32 v{g+e}, 0, v{g+e}")
                a(f"v_mul_f32 v{u+e}, v{u+e}, v{RS2}")
            for e in range(8 * gp, 8 * gp + 8): a(f"v_mul_f32 v{g+e}, v{g+e}, v{u+e}")
            o = u + 8 * gp
            for q in range(4): a(f"v_cvt_pk_bf16_f32 v{o+q}, v{g+8*gp+2*q}, v{g+8*gp+2*q+1}")
            a.nop(2)
            a(f"v_permlane32_swap_b32 v{o}, v{o+2}")
            a(f"v_permlane32_swap_b32 v{o+1}, v{o+3}")
            a(f"buffer_store_dwordx4 {vr(o,4)}, v6, {WS_}, s{sT} offen offset:{gp*512}{SC}")
    p3_ids()
    a("s_mov_b32 s3, 1")

    a.label("L_p3")
    ST("A", 6)
    QA, QB = 8, 12
    S = [16, 32]; P = 48; O = 56
    KA = [72, 76]; KB = [80, 84]; V = [[88, 92], [96, 100]]
    AD = [[104 + 3 * z + y for y in range(3)] for z in range(3)]
    T0, T1, T2, T3 = 113, 114, 115, 116
    vM, vOst, vL, vFo = 117, 118, 120, 121
    DACC = 124
    DF = [164 + 28 * k for k in range(3)]
    DPOLL = 248
    NV = 250
    sDX, sDW, sFin, sLoop, sFp = sR, sR + 2, sR + 4, sR + 5, sR + 6
    a(f"v_lshlrev_b32 v{vL}, 4, v2")
    a(f"s_lshl_b32 s{sT}, s{sQB}, 8")
    a(f"s_lshl_b32 s{sT+1}, s{sW}, 5")
    a(f"s_add_u32 s{sT}, s{sT}, s{sT+1}")
    a(f"v_add_u32 v5, s{sT}, v3")
    a(f"v_lshrrev_b32 v6, 4, v5")
    a(f"v_mul_u32_u24 v{vOst}, 20480, v6")
    a(f"v_and_b32 v6, 15, v5")
    a(f"v_lshl_add_u32 v{vOst}, v6, 4, v{vOst}")
    a(f"v_lshl_add_u32 v{vOst+1}, v4, 8, v{vOst}")
    a(f"s_lshr_b32 s{sT}, s{sW}, 2")
    a(f"s_mul_i32 s{sT}, s{sT}, 5120")
    a(f"s_add_u32 s{sT}, s{sT}, {QOFF}")
    a(f"v_and_b32 v5, 127, v5")
    a(f"v_lshl_add_u32 v6, v5, 4, s{sT}")
    a(f"v_lshl_add_u32 v6, v4, 11, v6")
    a(f"v_lshl_add_u32 v7, v5, 3, s{sT}")
    a("v_and_b32 v5, 0x13, v3")
    a(f"v_and_b32 v{T0}, 4, v3")
    a(f"v_lshl_or_b32 v5, v{T0}, 1, v5")
    a(f"v_and_b32 v{T0}, 8, v3")
    a(f"v_lshrrev_b32 v{T0}, 1, v{T0}")
    a(f"v_or_b32 v5, v5, v{T0}")
    a(f"v_lshlrev_b32 v{AD[0][0]}, 4, v5")
    a(f"v_lshl_add_u32 v{AD[0][0]}, v4, 11, v{AD[0][0]}")
    a(f"v_lshlrev_b32 v{AD[0][1]}, 3, v5")
    a(f"v_add_u32 v{AD[0][1]}, 4096, v{AD[0][1]}")
    a(f"v_mul_u32_u24 v{AD[0][2]}, 320, v4")
    a(f"v_lshl_add_u32 v{AD[0][2]}, v3, 4, v{AD[0][2]}")
    a(f"v_add_u32 v{AD[0][2]}, 5120, v{AD[0][2]}")
    for z in (1, 2):
        for y in range(3): a(f"v_add_u32 v{AD[z][y]}, {6*z*CHUNK}, v{AD[0][y]}")
    for r in range(4): a(f"v_mov_b32 v{QB+r}, 0")
    for r in range(16): a(f"v_mov_b32 v{O+r}, 0")
    a("v_cmp_eq_u32 vcc, 20, v3")
    a(f"v_mov_b32 v{T0}, 0x3f803f80")
    a.nop(1)
    a(f"v_cndmask_b32 v{T1}, 0, v{T0}, vcc")
    for b in range(2):
        a(f"v_mov_b32 v{KB[b]+2}, 0x3f80")
        a(f"v_mov_b32 v{KB[b]+3}, 0")
        for j in range(2):
            for r in range(4): a(f"v_mov_b32 v{V[b][j]+r}, v{T1}")
    for r in range(8): a(f"v_mov_b32 v{P+r}, 0")
    for r in range(40): a(f"v_mov_b32 v{DACC+r}, 0")
    a(f"s_and_b32 s{sT}, s{sXCD}, 3")
    a(f"s_lshl_b32 s{sT+1}, s{sQB}, 2")
    a(f"s_add_u32 s{sT}, s{sT}, s{sT+1}")
    a(f"s_lshl_b32 s{sT+4}, s{sT}, 1")
    a(f"s_lshl_b32 s{sT}, s{sT}, 2")
    a(f"s_lshr_b32 s{sT+2}, s{sXCD}, 2")
    a(f"s_lshl_b32 s{sT+2}, s{sT+2}, 2")
    a(f"s_and_b32 s{sT+3}, s{sIDX}, 3")
    a(f"s_add_u32 s{sT+2}, s{sT+2}, s{sT+3}")
    a(f"s_mul_i32 s{sFin}, s{sT}, {16*1280}")
    a(f"s_mul_i32 s{sT+3}, s{sT+2}, 160")
    a(f"s_add_u32 s{sFin}, s{sFin}, s{sT+3}")
    a(f"s_and_b32 s{sT+3}, s{sW}, 1")
    a(f"s_add_u32 s{sT+4}, s{sT+4}, s{sT+3}")
    a(f"s_lshl_b32 s{sT+3}, s{sT+3}, 1")
    a(f"s_add_u32 s{sT}, s{sT}, s{sT+3}")
    a(f"s_lshr_b32 s{sT+3}, s{sW}, 1")
    a(f"s_lshl_b32 s{sT+5}, s{sT+3}, 10")
    a(f"s_mul_i32 s{sDX}, s{sT}, 49152")
    a(f"s_add_u32 s{sDX}, s{sDX}, s{sT+5}")
    a(f"s_add_u32 s{sDX}, s{sDX}, {WS_H}")
    a(f"s_mul_i32 s{sDX+1}, s{sT}, 20480")
    a(f"s_add_u32 s{sDX+1}, s{sDX+1}, s{sT+5}")
    a(f"s_add_u32 s{sDX+1}, s{sDX+1}, {WS_O}")
    a(f"s_mul_i32 s{sDW}, s{sT+3}, {40*1024}")
    a(f"s_mul_i32 s{sT+5}, s{sT+2}, 5120")
    a(f"s_add_u32 s{sDW}, s{sDW}, s{sT+5}")
    a(f"s_add_u32 s{sDW}, s{sDW}, {WS_WP}")
    a(f"s_lshr_b32 s{sT+5}, s{sT+4}, 2")
    a(f"s_lshl_b32 s{sT+5}, s{sT+5}, 3")
    a(f"s_and_b32 s{sT+4}, s{sT+4}, 3")
    a(f"s_add_u32 s{sT+5}, s{sT+5}, s{sT+4}")
    a(f"s_lshl_b32 s{sT+5}, s{sT+5}, 11")
    a(f"s_add_u32 s{sFp}, s{sT+5}, {WS_FL2 + 4*2048}")
    a("v_and_b32 v5, 15, v2")
    a(f"v_lshlrev_b32 v{vFo}, 7, v5")
    a("s_cmp_eq_u32 s3, 1")
    a("s_cbranch_scc1 L_p3_go")
    a("s_waitcnt vmcnt(0)")
    a("s_barrier")
    a.label("L_p3_go")
    ST("A", 7); ST("D", 1)
    LG = Cnt(a, "lgkmcnt", 15); VM = Cnt(a, "vmcnt", 63)
    a(f"ds_read_b128 {vr(QA,4)}, v6"); LG.op()
    a(f"s_mov_b64 exec, s[{sLO}:{sLO+1}]")
    a(f"ds_read_b64 {vr(QB,2)}, v7 offset:4096"); LG.op()
    a("s_mov_b64 exec, -1")
    def ad(t, y): return AD[(t // 4) // 6][y]
    def coff(t): return ((t // 4) % 6) * CHUNK
    tagK = {}; tagV0 = {}; tagV1 = {}
    def rdK(t):
        if t > 63: return
        b = t & 1
        a(f"ds_read_b128 {vr(KA[b],4)}, v{ad(t,0)} offset:{coff(t) + (t%4)*512}"); LG.op()
        a(f"ds_read_b64 {vr(KB[b],2)}, v{ad(t,1)} offset:{coff(t) + (t%4)*256}"); tagK[t] = LG.op()
    def rdV(t):
        if t > 63: return
        b = t & 1
        if "noexec" not in exp: a(f"s_mov_b64 exec, s[{sVM}:{sVM+1}]")
        a(f"ds_read_b128 {vr(V[b][0],4)}, v{ad(t,2)} offset:{coff(t) + (t%4)*1280}"); tagV0[t] = LG.op()
        a(f"ds_read_b128 {vr(V[b][1],4)}, v{ad(t,2)} offset:{coff(t) + (t%4)*1280 + 640}"); tagV1[t] = LG.op()
        if "noexec" not in exp: a("s_mov_b64 exec, -1")
    def mf(d, A, B, C): a(f"{M32} {vr(d,16)}, {vr(A,4)}, {vr(B,4)}, {C}")
    def rowmax(s, extra=None):
        a(f"v_max3_f32 v{T0}, v{s}, v{s+1}, v{s+2}")
        a(f"v_max3_f32 v{T1}, v{s+3}, v{s+4}, v{s+5}")
        a(f"v_max3_f32 v{T2}, v{s+6}, v{s+7}, v{s+8}")
        a(f"v_max3_f32 v{T3}, v{s+9}, v{s+10}, v{s+11}")
        a(f"v_max3_f32 v{T0}, v{T0}, v{s+12}, v{s+13}")
        a(f"v_max3_f32 v{T1}, v{T1}, v{s+14}, v{s+15}")
        a(f"v_max3_f32 v{T0}, v{T0}, v{T1}, v{T2}")
        a(f"v_max3_f32 v{T0}, v{T0}, v{T3}, v{extra if extra is not None else T3}")
        a(f"v_mov_b32 v{T1}, v{T0}")
        a.nop(2)
        a(f"v_permlane32_swap_b32 v{T0}, v{T1}")
        a(f"v_max_f32 v{T0}, v{T0}, v{T1}")
    rdK(0); rdK(1); rdV(0)
    LG.need(tagK[0])
    mf(S[0], KA[0], QA, "0")
    mf(S[0], KB[0], QB, vr(S[0], 16))
    a.nop(12)
    rowmax(S[0])
    a(f"v_xor_b32 v{T0}, 0x80000000, v{T0}")
    a(f"v_lshrrev_b32 v{T0}, 16, v{T0}")
    a(f"v_cndmask_b32 v{QB+2}, 0, v{T0}, s[{sLO}:{sLO+1}]")
    a.nop(2)
    mf(S[0], KA[0], QA, "0")
    mf(S[0], KB[0], QB, vr(S[0], 16))
    a.nop(12)
    def kvdma(j):
        a(f"s_add_u32 s{sT}, s{sW}, {40 + 8*j}")
        a(f"s_lshl_b32 s{sT}, s{sT}, 10")
        a(f"s_mov_b32 m0, s{sT}")
        a(f"s_add_u32 s{sT}, s{sT}, s{sKV}")
        a(f"s_add_u32 s{sT}, s{sT}, {WS_KV}")
        a(f"buffer_load_dwordx4 v{vL}, {WS_}, s{sT} offen lds")
        return VM.op()
    tagD = {}
    def d_issue(j, part):
        f = DF[j % 3]
        wstep = 5 + j
        if part < 2:
            a(f"s_add_u32 s{sT}, s{sDW}, {wstep*4*40*1024}")
            for n in range(2 * part, 2 * part + 2): a(f"buffer_load_dwordx4 {vr(f+8+4*n,4)}, v{vL}, {WS_}, s{sT} offen offset:{n*1024}"); VM.op()
        elif part == 2:
            a(f"s_add_u32 s{sT}, s{sDW}, {wstep*4*40*1024 + 4096}")
            a(f"buffer_load_dwordx4 {vr(f+24,4)}, v{vL}, {WS_}, s{sT} offen"); VM.op()
            a(f"s_add_u32 s{sT}, s{sDX}, {j*4096}")
            a(f"buffer_load_dwordx4 {vr(f,4)}, v{vL}, {WS_}, s{sT} offen"); VM.op()
        else:
            a(f"s_add_u32 s{sT}, s{sDX}, {j*4096 + 49152}")
            a(f"buffer_load_dwordx4 {vr(f+4,4)}, v{vL}, {WS_}, s{sT} offen"); tagD[j] = VM.op()
    def d_mfma(j, q):
        f = DF[j % 3]; m, n = q & 1, q >> 1
        acc = DACC + (m * 5 + n) * 4
        a(f"{M16} {vr(acc,4)}, {vr(f+8+4*n,4)}, {vr(f+4*m,4)}, {vr(acc,4)}")
    useD = "noD" not in exp
    DT0 = opt("dt", 20); ND3 = opt("nd", 9)
    dsched = {t: [] for t in range(64)}; lsched = {t: [] for t in range(64)}; dfirst = {}
    for j in range(ND3):
        for q in range(10):
            t = DT0 + (10 * j + q) * (64 - DT0) // (10 * ND3)
            dsched[t].append((j, q)); dfirst.setdefault(j, t)
    for j in range(ND3, min(ND3 + 2, 12)): dfirst[j] = 64 + 2 * (j - ND3)
    for j in range(min(ND3 + 2, 12)):
        lw = dfirst[j] - 8; lx = max(dfirst[j] - 6, DT0 - 5 + (1 if j else 0))
        if j >= 3:
            last_prev = max(t for t in range(64) for (jj, q) in dsched[t] if jj == j - 3)
            lw = max(lw, last_prev + 1); lx = max(lx, lw + 2)
            assert lx + 1 < 64
        lsched[lw].append((j, 0)); lsched[lw + 1].append((j, 1)); lsched[lx].append((j, 2)); lsched[lx + 1].append((j, 3))
        assert lx + 1 < dfirst[j] - 1, (j, lx, dfirst[j])
    TF2 = DT0 - 5
    assert max(len(v) for v in dsched.values()) <= 3
    def tile(t):
        cur = t & 1; nxt = cur ^ 1
        s = S[cur]; sn = S[nxt]
        ex = lambda r: a(f"v_exp_f32 v{s+r}, v{s+r}")
        cv = lambda p: a(f"v_cvt_pk_bf16_f32 v{P+p}, v{s+2*p}, v{s+2*p+1}")
        dq = dsched[t] if useD else []
        def dm(k):
            if k < len(dq):
                j, q = dq[k]
                if q == 0: VM.need(tagD[j])
                d_mfma(j, q)
        if "noprio" not in exp: a(f"s_setprio {3 - (t % 4)}")
        if t < 63:
            LG.need(tagK[t + 1])
            mf(sn, KA[nxt], QA, "0")
        ex(0); ex(1); dm(0); ex(2); ex(3)
        if t < 63: mf(sn, KB[nxt], QB, vr(sn, 16))
        rdK(t + 2)
        ex(4); ex(5); dm(1); ex(6); ex(7)
        cv(0); cv(1)
        if t > 0:
            LG.need(tagV1[t - 1])
            mf(O, V[nxt][1], P + 4, vr(O, 16))
        rdV(t + 1)
        cv(2); cv(3)
        ex(8); ex(9); dm(2); ex(10); ex(11)
        LG.need(tagV0[t])
        mf(O, V[cur][0], P, vr(O, 16))
        if useD:
            for (j, part) in lsched[t]: d_issue(j, part)
        for r in range(12, 16): ex(r)
        cv(4); cv(5); cv(6); cv(7)
    sWOb = sKV
    def wodma(j):
        a(f"s_add_u32 s{sT}, s{sW}, {8*j}")
        a(f"s_min_u32 s{sT}, s{sT}, 99")
        a(f"s_mul_i32 s{sT+1}, s{sT}, 205")
        a(f"s_lshr_b32 s{sT+1}, s{sT+1}, 10")
        a(f"s_mul_i32 s{sT+1}, s{sT+1}, {40960 - 5*1024}")
        a(f"s_lshl_b32 s{sT}, s{sT}, 10")
        a(f"s_mov_b32 m0, s{sT}")
        a(f"s_add_u32 s{sT}, s{sT}, s{sT+1}")
        a(f"s_add_u32 s{sT}, s{sT}, s{sWOb}")
        a(f"buffer_load_dwordx4 v{vL}, {WS_}, s{sT} offen lds")
        return VM.op()
    nd = 0; nwo = 0
    TB1 = 12; tkvs = {}
    for t in range(64):
        if t == 2:
            a(f"s_waitcnt vmcnt({VM.issued})")
            a(f"v_mov_b32 v{T0}, 0")
            a(f"v_mov_b32 v{T1}, s{sNon}")
            a("s_mov_b64 exec, 1")
            a(f"buffer_store_dword v{T1}, v{T0}, {WS_}, s{sF2} offen{SC}"); VM.op()
            a("s_mov_b64 exec, -1")
        if t == TB1:
            VM.need(tkvs[4])
            a("s_barrier")
        if useD and t == TF2 - 2:
            a(f"buffer_load_dword v{DPOLL}, v{vFo}, {WS_}, s{sFp} offen{SC}"); tpoll = VM.op()
        if useD and t == TF2:
            VM.need(tpoll)
            lab = a.newlabel("L_f2")
            a(f"s_mov_b32 s{sT+1}, 0")
            a.label(lab)
            a(f"v_cmp_ne_u32 vcc, s{sNon}, v{DPOLL}")
            a(f"s_add_u32 s{sT+1}, s{sT+1}, 1")
            a.nop(2)
            a("s_cmp_eq_u64 vcc, 0")
            a(f"s_cbranch_scc1 {lab}_ok")
            a(f"s_cmp_ge_u32 s{sT+1}, 0x20000")
            a(f"s_cbranch_scc1 {lab}_ok")
            a("s_sleep 4")
            a(f"buffer_load_dword v{DPOLL}, v{vFo}, {WS_}, s{sFp} offen{SC}")
            a("s_waitcnt vmcnt(0)")
            a(f"s_branch {lab}")
            a.label(f"{lab}_ok")
        if t == 28:
            VM.need(tkv)
            a("s_barrier")
        if t == 42:
            a("s_barrier")
            a(f"s_lshr_b32 s{sT}, s{sW}, 1")
            a(f"s_mul_i32 s{sT}, s{sT}, {40*1024}")
            a(f"s_sub_u32 s{sWOb}, s{sDW}, s{sT}")
        if t % 8 == 0 and t: ST("D", 1 + t // 8)
        tile(t)
        if nd < 15 and (nd < 10 or t >= TB1):
            tkv = tkvs[nd] = kvdma(nd); nd += 1
        if t >= 42 and nwo < 13:
            wodma(nwo); nwo += 1
    LG.need(tagV1[63])
    mf(O, V[1][1], P + 4, vr(O, 16))
    ST("A", 8); ST("D", 9)
    a("s_setprio 0")
    a("v_and_b32 v5, 15, v2")
    a("v_lshrrev_b32 v6, 4, v2")
    a("v_mul_u32_u24 v5, 1280, v5")
    a("v_lshl_add_u32 v5, v6, 3, v5")
    a(f"s_lshl_b32 s{sT}, s{sW}, 5")
    a(f"s_add_u32 s{sFin}, s{sFin}, s{sT}")
    a(f"s_lshr_b32 s{sT}, s{sW}, 1")
    a(f"s_mul_i32 s{sT}, s{sT}, 5120")
    a(f"v_add_u32 v7, s{sT}, v{vL}")
    a(f"v_add_u32 v6, {3*20480}, v7")
    a("v_lshrrev_b32 v16, 1, v3")
    a(f"v_mul_u32_u24 v16, {5*256}, v16")
    a("v_and_b32 v17, 1, v3")
    a("v_lshl_add_u32 v16, v17, 3, v16")
    a(f"v_mul_u32_u24 v17, {2*20480}, v4")
    a("v_add_u32 v16, v16, v17")
    a(f"v_mov_b32 v{T0}, v{O+8}")
    a(f"v_mov_b32 v{T1}, v{O+8}")
    a(f"v_mov_b32 v{T2}, 0")
    a.nop(1)
    a(f"v_permlane32_swap_b32 v{T0}, v{T1}")
    for r in range(12): a(f"v_fma_f32 v{T2}, v{O+r}, 0, v{T2}")
    a(f"s_mov_b32 s{sT}, 0x71800000")
    a(f"v_add_f32 v{T2}, v{T2}, v{T1}")
    a(f"v_cmp_ngt_f32 vcc, s{sT}, v{T2}")
    a.nop(4)
    a("s_cmp_lg_u64 vcc, 0")
    a("s_cbranch_scc1 L_slow")
    a.label("L_fin")
    a(f"v_rcp_f32 v{T1}, v{T1}")
    a(f"s_lshr_b32 s{sT}, s{sH}, 1")
    a(f"s_mul_i32 s{sT}, s{sT}, {5*256}")
    a(f"s_add_u32 s{sT}, s{sT}, {WS_O}")
    a(f"s_and_b32 s{sT+1}, s{sH}, 1")
    a(f"s_mul_i32 s{sT+2}, s{sT+1}, {3*256}")
    a(f"s_add_u32 s{sT+2}, s{sT+2}, s{sT}")
    a(f"s_lshl_b32 s{sT+1}, s{sT+1}, 3")
    a(f"s_add_u32 s{sT+1}, s{sT+1}, s{sT}")
    for r in range(12): a(f"v_mul_f32 v{O+r}, v{O+r}, v{T1}")
    for p in range(6): a(f"v_cvt_pk_bf16_f32 v{P+p}, v{O+2*p}, v{O+2*p+1}")
    a(f"v_permlane32_swap_b32 v{P}, v{P+2}")
    a(f"v_permlane32_swap_b32 v{P+1}, v{P+3}")
    a(f"buffer_store_dwordx4 {vr(P,4)}, v{vOst+1}, {WS_}, s{sT+2} offen{SC}")
    a(f"s_mov_b64 exec, s[{sLO}:{sLO+1}]")
    a(f"buffer_store_dwordx2 {vr(P+4,2)}, v{vOst}, {WS_}, s{sT+1} offen offset:512{SC}")
    a("s_mov_b64 exec, -1")
    for m in range(4):
        a(f"s_add_u32 s{sT}, s{sFin}, {m*16*1280}")
        a(f"buffer_load_dwordx2 {vr(20+2*m,2)}, v5, {X_}, s{sT} offen")
    VM.op(6)
    ST("A", 9); ST("D", 10)
    if useD:
        for j in range(ND3, 12):
            if j + 2 < 12 and j + 2 not in tagD:
                for part in range(4): d_issue(j + 2, part)
            VM.need(tagD[j])
            for q in range(10): d_mfma(j, q)
    a(f"s_cmp_lg_u32 s{sW}, 0")
    a("s_cbranch_scc1 L_f3_wait")
    a(f"s_add_u32 s{sT+2}, s{sDX+1}, 512")
    a(f"s_mov_b32 s{sT+1}, 0")
    a.label("L_f3")
    a(f"buffer_load_dword v{T1}, v16, {WS_}, s{sT+2} offen{SC}")
    a(f"s_add_u32 s{sT+1}, s{sT+1}, 1")
    a("s_waitcnt vmcnt(0)")
    a(f"v_cmp_eq_u32 vcc, -1, v{T1}")
    a.nop(4)
    a("s_cmp_eq_u64 vcc, 0")
    a("s_cbranch_scc1 L_f3_wait")
    a(f"s_cmp_ge_u32 s{sT+1}, 0x20000")
    a("s_cbranch_scc1 L_f3_wait")
    a("s_sleep 1")
    a("s_branch L_f3")
    a.label("L_f3_wait")
    a("s_waitcnt vmcnt(0)")
    a("s_barrier")
    ST("A", 10); ST("D", 11)
    XOF = [72 + 8 * k for k in range(4)] + [36]
    WOF = [164 + 20 * k for k in range(4)] + [44]
    a(f"s_mov_b32 s{sT+1}, 0")
    a.label("L_xo")
    for k in range(5):
        for m in range(2):
            a(f"s_add_u32 s{sT}, s{sDX+1}, {k*4096 + m*20480}")
            a(f"buffer_load_dwordx4 {vr(XOF[k]+4*m,4)}, v{vL}, {WS_}, s{sT} offen{SC}")
    for k in range(5):
        for n in range(5):
            off = k * 20480 + n * 1024
            a(f"ds_read_b128 {vr(WOF[k]+4*n,4)}, v{7 if k < 3 else 6} offset:{off if k < 3 else off - 3*20480}")
    for k in range(5):
        a(f"s_waitcnt vmcnt({8-2*k})")
        x = XOF[k]
        a(f"v_max3_u32 v{28+k}, v{x}, v{x+1}, v{x+2}")
        a(f"v_max3_u32 v{28+k}, v{28+k}, v{x+3}, v{x+4}")
        a(f"v_max3_u32 v{28+k}, v{28+k}, v{x+5}, v{x+6}")
        a(f"v_max_u32 v{28+k}, v{28+k}, v{x+7}")
    a("v_max3_u32 v28, v28, v29, v30")
    a("v_max3_u32 v28, v28, v31, v32")
    a("v_cmp_eq_u32 vcc, -1, v28")
    a(f"s_add_u32 s{sT+1}, s{sT+1}, 1")
    a("s_waitcnt lgkmcnt(0)")
    a.nop(2)
    a("s_cmp_eq_u64 vcc, 0")
    a("s_cbranch_scc1 L_xo_ok")
    a(f"s_cmp_lt_u32 s{sT+1}, 0x20000")
    a("s_cbranch_scc1 L_xo")
    a.label("L_xo_ok")
    a("s_barrier")
    for k in range(5):
        for n in range(5):
            for m in range(2):
                acc = DACC + (m * 5 + n) * 4
                a(f"{M16} {vr(acc,4)}, {vr(WOF[k]+4*n,4)}, {vr(XOF[k]+4*m,4)}, {vr(acc,4)}")
    ST("A", 11)
    a(f"s_and_b32 s{sT}, s{sW}, 1")
    a(f"s_lshl_b32 s{sT}, s{sT}, 3")
    a(f"s_lshr_b32 s{sT+1}, s{sW}, 1")
    a(f"s_add_u32 s{sT}, s{sT}, s{sT+1}")
    a(f"s_lshl_b32 s{sT}, s{sT}, 10")
    a(f"v_add_u32 v6, s{sT}, v{vL}")
    a(f"v_add_u32 v7, 0x10000, v6")
    a.nop(2)
    for n in range(5):
        for m in range(2):
            off = (n * 16 + m * 4) * 1024
            a(f"ds_write_b128 v{6 if off < 65536 else 7}, {vr(DACC+(m*5+n)*4,4)} offset:{off % 65536}")
    a(f"s_lshl_b32 s{sT}, s{sW}, 14")
    a(f"v_add_u32 v6, s{sT}, v{vL}")
    for m in range(4):
        for p in range(2):
            a(f"v_lshlrev_b32 v{72+4*m+2*p}, 16, v{20+2*m+p}")
            a(f"v_and_b32 v{72+4*m+2*p+1}, 0xffff0000, v{20+2*m+p}")
    a("s_waitcnt lgkmcnt(0)")
    a("s_barrier")
    a(f"s_cmp_ge_u32 s{sW}, 5")
    a("s_cbranch_scc1 L_done")
    RB = 124
    for q in range(16): a(f"ds_read_b128 {vr(RB+4*q,4)}, v6 offset:{q*1024}")
    for m in range(4):
        a(f"s_waitcnt lgkmcnt({12-4*m})")
        acc = 72 + 4 * m
        for p in range(2):
            for k in range(4):
                a(f"v_pk_add_f32 {vr(acc+2*p,2)}, {vr(acc+2*p,2)}, {vr(RB+(m*4+k)*4+2*p,2)}")
            a(f"v_cvt_pk_bf16_f32 v{acc+p}, v{acc+2*p}, v{acc+2*p+1}")
        a(f"s_add_u32 s{sT}, s{sFin}, {m*16*1280}")
        a(f"buffer_store_dwordx2 {vr(acc,2)}, v5, {OUT_}, s{sT} offen")
    a.label("L_done")
    if "dbgst" in exp:
        a("s_waitcnt vmcnt(0) lgkmcnt(0)")
        a("s_memrealtime s[96:97]")
        a("s_waitcnt lgkmcnt(0)")
        a(f"s_lshl_b32 s{sT}, s2, 3")
        a(f"s_add_u32 s{sT}, s{sT}, s{sW}")
        a(f"s_cmp_lg_u32 s{sT}, {opt('dbgst', 0)}")
        a("s_cbranch_scc1 L_end")
        a("s_mov_b64 exec, 1")
        a("v_mov_b32 v1, 0")
        for i in range(1, 13):
            a(f"s_sub_u32 s{sT}, s{72+2*i}, s72")
            a(f"v_mov_b32 v2, s{sT}")
            a(f"global_store_dword v1, v2, s[{sDbg}:{sDbg+1}] offset:{4*i}")
        a("s_endpgm")
    ST.dump(WS_, sW, sT)
    a.label("L_end")
    a("s_endpgm")

    a.label("L_slow")
    vKa, vKb, vV = AD[0]
    a(f"v_mov_b32 v{QB+2}, 0")
    a(f"v_mov_b32 v{vM}, 0xff800000")
    for r in range(16): a(f"v_mov_b32 v{O+r}, 0")
    a(f"s_mov_b32 s{sLoop}, 0")
    a(f"s_mul_i32 s{sT+3}, s{sH}, {16*CHUNK}")
    a(f"s_add_u32 s{sT+3}, s{sT+3}, {WS_KV}")
    a.label("L_slow_loop")
    a(f"buffer_load_dwordx4 {vr(KA[0],4)}, v{vKa}, {WS_}, s{sT+3} offen")
    a(f"buffer_load_dwordx2 {vr(KB[0],2)}, v{vKb}, {WS_}, s{sT+3} offen")
    a(f"s_mov_b64 exec, s[{sVM}:{sVM+1}]")
    a(f"buffer_load_dwordx4 {vr(V[0][0],4)}, v{vV}, {WS_}, s{sT+3} offen")
    a(f"buffer_load_dwordx4 {vr(V[0][1],4)}, v{vV}, {WS_}, s{sT+3} offen offset:640")
    a("s_mov_b64 exec, -1")
    a("s_waitcnt vmcnt(0)")
    s = S[1]
    mf(s, KA[0], QA, "0")
    mf(s, KB[0], QB, vr(s, 16))
    a.nop(12)
    rowmax(s, vM)
    a(f"v_sub_f32 v{T1}, v{vM}, v{T0}")
    a(f"v_exp_f32 v{T1}, v{T1}")
    a(f"v_mov_b32 v{vM}, v{T0}")
    for r in range(16): a(f"v_sub_f32 v{s+r}, v{s+r}, v{T0}")
    for r in range(16): a(f"v_mul_f32 v{O+r}, v{O+r}, v{T1}")
    for r in range(16): a(f"v_exp_f32 v{s+r}, v{s+r}")
    a.nop(1)
    for p in range(8): a(f"v_cvt_pk_bf16_f32 v{P+p}, v{s+2*p}, v{s+2*p+1}")
    a.nop(2)
    mf(O, V[0][0], P, vr(O, 16))
    mf(O, V[0][1], P + 4, vr(O, 16))
    a(f"s_add_u32 s{sLoop}, s{sLoop}, 1")
    a(f"s_and_b32 s{sT}, s{sLoop}, 3")
    a(f"s_cmp_eq_u32 s{sT}, 0")
    a(f"s_movk_i32 s{sT}, 512")
    a(f"s_movk_i32 s{sT+1}, 256")
    a(f"s_movk_i32 s{sT+2}, 1280")
    a(f"s_cselect_b32 s{sT}, {CHUNK-3*512}, s{sT}")
    a(f"s_cselect_b32 s{sT+1}, {CHUNK-3*256}, s{sT+1}")
    a(f"s_cselect_b32 s{sT+2}, {CHUNK-3*1280}, s{sT+2}")
    a(f"v_add_u32 v{vKa}, s{sT}, v{vKa}")
    a(f"v_add_u32 v{vKb}, s{sT+1}, v{vKb}")
    a(f"v_add_u32 v{vV}, s{sT+2}, v{vV}")
    a.nop(8)
    a(f"s_cmp_lt_u32 s{sLoop}, 64")
    a("s_cbranch_scc1 L_slow_loop")
    a.nop(4)
    a(f"v_mov_b32 v{T0}, v{O+8}")
    a(f"v_mov_b32 v{T1}, v{O+8}")
    a.nop(2)
    a(f"v_permlane32_swap_b32 v{T0}, v{T1}")
    a("s_branch L_fin")
    a.label("L_code_end")
    return kernel_header(NAME) + a.text(), kernel_desc(NAME, NV, 102 if stamp else 72)

if __name__ == "__main__":
    import sys
    stamp = sys.argv[2] if len(sys.argv) > 2 and sys.argv[2] != "none" else False
    ex = sys.argv[3] if len(sys.argv) > 3 else ""
    body, desc = gen(stamp, ex)
    hdr = open("parallel_sum__softmax_full_mha__glu_gated_reglu__prompt.s.ref").read().split("; Override launch")[0]
    s = hdr + f"; @launch grid=(256,1,1) block=(512,1,1) lds={LDS_M1}\n"
    s += '.amdgcn_target "amdgcn-amd-amdhsa--gfx950"\n.text\n' + body + '.section .rodata,"a"\n' + desc
    open(sys.argv[1], "w").write(s)
```

```python
from asmlib import *
from k_qkv import ln_rowmath
NAME = "parallel_sum__softmax_full_mha__glu_gated_reglu__prompt_kernel"
LDS_M1 = 163840
M32 = "v_mfma_f32_32x32x16_bf16"; M16 = "v_mfma_f32_16x16x32_bf16"

def gen(stamp=False, exp=""):
    a = Asm()
    ST = Stamps2(a, stamp)
    opt = lambda key, dflt: int(exp.split(key)[1].split("_")[0]) if key in exp else dflt
    sX, sWq, sWS, sWg, sWu, sOut, sPk = 8, 12, 16, 20, 24, 28, 32
    sDbg = 36
    sW, sMT, sNT, sIDX, sXCD, sNG = 38, 39, 40, 41, 42, 43
    sLO, sVM, sM = 44, 46, 48
    sT = 50
    sNon = 58
    sLW = 59
    sA, sB, sC = 60, 61, 62
    sG2 = 63
    sR = 64
    R_ = lambda b: f"s[{b}:{b+3}]"
    X_, WQ_, WS_, WG_, WU_, OUT_, PK_ = map(R_, (sX, sWq, sWS, sWg, sWu, sOut, sPk))
    SC = " sc1"
    NST, STG, PKS = 4, 32768, 40960
    ST_NM, ST_RS, ST_CS, ST_SUM = 18432, 18944, 21504, 22016
    GSLOT = [122880, 81920, 40960, 0]
    CSA = 122880
    QOFF = 15 * CHUNK

    a("s_cmp_ge_u32 s2, 256")
    a("s_cbranch_scc1 L_end")
    ST.start()
    if "cpf" in exp:
        a("s_getpc_b64 s[4:5]")
        a.label("L_pc")
        a("s_lshr_b32 s3, s2, 3")
        a("s_lshl_b32 s3, s3, 11")
        a("v_lshlrev_b32 v1, 2, v0")
        a("v_add_u32 v1, s3, v1")
        a(f"v_min_u32 v1, L_code_end - L_pc - 4, v1")
        a("global_load_dword v230, v1, s[4:5]")
    a(f"s_load_dwordx4 s[4:7], s[0:1], 0")
    a(f"s_load_dwordx2 s[{sT}:{sT+1}], s[0:1], 16")
    a(f"s_load_dwordx4 s[{sT+2}:{sT+5}], s[0:1], 32")
    a(f"s_load_dwordx4 s[{sR}:{sR+3}], s[0:1], 48")
    a(f"s_load_dwordx4 s[{sR+4}:{sR+7}], s[0:1], 64")
    a("v_lshrrev_b32 v1, 6, v0")
    a("v_and_b32 v2, 63, v0")
    a(f"v_readfirstlane_b32 s{sW}, v1")
    a(f"s_and_b32 s{sXCD}, s2, 7")
    a(f"s_lshr_b32 s{sIDX}, s2, 3")
    a(f"s_lshr_b32 s{sMT}, s{sXCD}, 2")
    a(f"s_lshl_b32 s{sMT}, s{sMT}, 3")
    a(f"s_and_b32 s3, s{sIDX}, 7")
    a(f"s_add_u32 s{sMT}, s{sMT}, s3")
    a(f"s_and_b32 s{sNG}, s{sXCD}, 3")
    a(f"s_lshl_b32 s{sNG}, s{sNG}, 2")
    a(f"s_lshr_b32 s3, s{sIDX}, 3")
    a(f"s_add_u32 s{sNG}, s{sNG}, s3")
    a(f"s_min_u32 s{sNT}, s{sNG}, 14")
    a(f"s_and_b32 s{sLW}, s{sW}, 3")
    a(f"s_mov_b32 s{sLO}, -1\ns_mov_b32 s{sLO+1}, 0\ns_mov_b32 s{sVM}, 0xfffff\ns_mov_b32 s{sVM+1}, 0xfffff")
    a("v_and_b32 v3, 31, v2")
    a("v_lshrrev_b32 v4, 5, v2")
    a(f"s_lshl_b32 s{sA}, s{sMT}, 4")
    a(f"s_add_u32 s{sA}, s{sA}, s{sNG}")
    a(f"s_mul_i32 s{sA}, s{sA}, 3")
    a(f"s_add_u32 s{sA}, s{sA}, s{sW}")
    a(f"s_mul_i32 s{sB}, s{sA}, 6554")
    a(f"s_lshr_b32 s{sB}, s{sB}, 16")
    a(f"s_mul_i32 s{sG2}, s{sLW}, {16*3072}")
    a(f"s_mul_i32 s3, s{sNG}, 192")
    a(f"s_add_u32 s{sG2}, s{sG2}, s3")
    a("s_waitcnt lgkmcnt(0)")
    ST("E", 1)
    def srd(b, lo, hi, n): a(f"s_mov_b32 s{b}, s{lo}\ns_and_b32 s{b+1}, s{hi}, 0xffff\ns_mov_b32 s{b+2}, {n}\ns_mov_b32 s{b+3}, 0x20000")
    srd(sX, 4, 5, 2048 * 1280); srd(sWq, 6, 7, 640 * 3840); srd(sWS, sR + 6, sR + 7, WS_END)
    srd(sWg, sT + 2, sT + 3, 640 * 3072); srd(sWu, sT + 4, sT + 5, 640 * 3072); srd(sOut, sR + 2, sR + 3, 2048 * 1280)
    a(f"s_mov_b64 s[{sDbg}:{sDbg+1}], s[{sR+4}:{sR+5}]")
    a(f"s_cmp_lt_u32 s{sB}, 20")
    a(f"s_cselect_b32 s{sPk}, s{sT}, s{sR}")
    a(f"s_cselect_b32 s{sPk+1}, s{sT+1}, s{sR+1}")
    a(f"s_mov_b32 s{sPk+2}, {1536*1280}")
    a(f"s_cselect_b32 s{sPk+2}, {640*1280}, s{sPk+2}")
    a(f"s_and_b32 s{sPk+1}, s{sPk+1}, 0xffff")
    a(f"s_mov_b32 s{sPk+3}, 0x20000")

    sPB = [sR + 5, sR + 6, sR + 7]
    vPF = 214; PFD = 216
    lab = a.newlabel("L_pf")
    a(f"s_mul_i32 s{sT}, s{sIDX}, 12")
    a(f"s_mul_i32 s{sT+1}, s{sLW}, 3")
    a(f"s_add_u32 s{sT}, s{sT}, s{sT+1}")
    a(f"s_lshr_b32 s{sT+4}, s{sW}, 2")
    a(f"s_xor_b32 s{sT+4}, s{sT+4}, 1")
    a(f"s_mov_b32 s7, 0x20000")
    a(f"s_cmp_ge_u32 s{sT}, 255")
    a(f"s_cbranch_scc1 {lab}_w")
    a(f"s_mov_b32 s4, s{sX}\ns_mov_b32 s5, s{sX+1}\ns_mov_b32 s6, s{sX+2}\ns_movk_i32 s3, 256")
    a(f"v_lshrrev_b32 v{vPF}, 3, v2")
    a(f"v_mul_u32_u24 v{vPF}, 1280, v{vPF}")
    a("v_and_b32 v1, 7, v2")
    a(f"v_lshl_add_u32 v{vPF}, v1, 4, v{vPF}")
    a(f"s_lshr_b32 s{sT+1}, s{sXCD}, 2")
    a(f"s_mul_i32 s{sT+1}, s{sT+1}, {1024*1280}")
    for j in range(3):
        a(f"s_add_u32 s{sT+2}, s{sT}, {j}")
        a(f"s_lshr_b32 s{sT+3}, s{sT+2}, 1")
        a(f"s_mul_i32 s{sT+3}, s{sT+3}, {8*1280}")
        a(f"s_and_b32 s{sT+2}, s{sT+2}, 1")
        a(f"s_lshl_b32 s{sT+2}, s{sT+2}, 7")
        a(f"s_add_u32 s{sT+3}, s{sT+3}, s{sT+2}")
        a(f"s_add_u32 s{sPB[j]}, s{sT+3}, s{sT+1}")
    a(f"s_branch {lab}")
    a.label(f"{lab}_w")
    a(f"s_mov_b32 s4, s{sWq}\ns_mov_b32 s5, s{sWq+1}\ns_mov_b32 s6, s{sWq+2}\ns_mov_b32 s3, {128*3840}")
    a(f"v_lshlrev_b32 v{vPF}, 4, v2")
    a(f"s_sub_u32 s{sT}, s{sT}, 255")
    a(f"s_mul_i32 s{sT}, s{sT}, 3840")
    a(f"s_and_b32 s{sT+1}, s{sXCD}, 3")
    a(f"s_lshl_b32 s{sT+1}, s{sT+1}, 10")
    a(f"s_add_u32 s{sT}, s{sT}, s{sT+1}")
    for j in range(3): a(f"s_add_u32 s{sPB[j]}, s{sT}, {j*3840}")
    a.label(lab)
    a(f"s_mul_i32 s{sT}, s{sT+4}, s3")
    for j in range(3): a(f"s_add_u32 s{sPB[j]}, s{sPB[j]}, s{sT}")
    def pf1(cnt=None, adv=1):
        for j in range(3):
            a(f"buffer_load_dwordx4 {vr(PFD,4)}, v{vPF}, s[4:7], s{sPB[j]} offen")
            for _ in range(adv): a(f"s_add_u32 s{sPB[j]}, s{sPB[j]}, s3")
            if cnt: cnt.op()
    ST("E", 2)
    pf1()
    ST("E", 3)
    vXE, vXO = 220, 221; vGd = [222, 223, 224]
    SEL = 168
    sXo, sLd, sLdW, sF2 = sR, sR + 1, sR + 2, sR + 3
    a(f"s_lshl_b32 s{sF2}, s{sMT}, 3\ns_add_u32 s{sF2}, s{sF2}, s{sW}\ns_lshl_b32 s{sF2}, s{sF2}, 4\ns_add_u32 s{sF2}, s{sF2}, s{sNG}")
    a(f"s_lshl_b32 s{sF2}, s{sF2}, 7\ns_add_u32 s{sF2}, s{sF2}, {WS_FL2}")
    a(f"s_or_b32 s{sT}, s2, s{sW}")
    a(f"s_cmp_lg_u32 s{sT}, 0")
    a("s_cbranch_scc1 L_nonce_done")
    a(f"s_memrealtime s[{sT}:{sT+1}]")
    a("v_mov_b32 v9, 0")
    a("s_waitcnt lgkmcnt(0)")
    a(f"s_or_b32 s{sT}, s{sT}, 1")
    a(f"v_mov_b32 v10, s{sT}")
    a("s_mov_b64 exec, 1")
    a(f"global_store_dword v9, v10, s[{sDbg}:{sDbg+1}] sc1")
    a("s_mov_b64 exec, -1")
    a.label("L_nonce_done")
    a("v_lshrrev_b32 v9, 4, v2")
    a("v_lshrrev_b32 v10, 3, v2")
    a("v_mul_u32_u24 v10, 1280, v10")
    a("v_and_b32 v11, 7, v2")
    a(f"v_xor_b32 v{vXE}, v11, v9")
    a(f"v_xor_b32 v{vXO}, 4, v{vXE}")
    a(f"v_lshl_add_u32 v{vXE}, v{vXE}, 4, v10")
    a(f"v_lshl_add_u32 v{vXO}, v{vXO}, 4, v10")
    a(f"s_lshl_b32 s{sXo}, s{sMT}, 7")
    a(f"s_lshl_b32 s{sT}, s{sLW}, 5")
    a(f"s_add_u32 s{sXo}, s{sXo}, s{sT}")
    a(f"s_mul_i32 s{sXo}, s{sXo}, 1280")
    a(f"s_lshl_b32 s{sLd}, s{sLW}, 12")
    a(f"s_mul_i32 s{sLdW}, s{sLW}, 3072")
    a(f"s_cmp_ge_u32 s{sW}, 4")
    a("s_cbranch_scc1 L_B")

    vNon = 215
    def nonce_issue(cnt):
        a(f"v_mov_b32 v{vNon}, 0")
        a(f"global_load_dword v{vNon}, v{vNon}, s[{sDbg}:{sDbg+1}] sc1")
        return cnt.op()
    def nonce_get(cnt, tag):
        lab = a.newlabel("L_non")
        cnt.need(tag)
        a(f"s_mov_b32 s{sT+1}, 0")
        a.label(lab)
        a(f"v_readfirstlane_b32 s{sNon}, v{vNon}")
        a(f"s_add_u32 s{sT+1}, s{sT+1}, 1")
        a(f"s_cmp_lg_u32 s{sNon}, 0")
        a(f"s_cbranch_scc1 {lab}_ok")
        a(f"s_cmp_ge_u32 s{sT+1}, 0x20000")
        a(f"s_cbranch_scc1 {lab}_ok")
        a("s_sleep 8")
        a(f"v_mov_b32 v{vNon}, 0")
        a(f"global_load_dword v{vNon}, v{vNon}, s[{sDbg}:{sDbg+1}] sc1")
        a("s_waitcnt vmcnt(0)")
        a(f"s_branch {lab}")
        a.label(f"{lab}_ok")
    def common_late_setup():
        for t in range(3):
            a(f"v_add_u32 v10, {64*t}, v2")
            a(f"v_mul_u32_u24 v11, 5462, v10")
            a(f"v_lshrrev_b32 v11, 16, v11")
            a(f"v_mul_u32_u24 v9, 12, v11")
            a(f"v_sub_u32 v9, v10, v9")
            a(f"v_mul_u32_u24 v11, 3072, v11")
            a(f"v_lshl_add_u32 v{vGd[t]}, v9, 4, v11")
        a("v_lshrrev_b32 v9, 4, v2")
        a("v_and_b32 v9, 1, v9")
        a("v_and_b32 v10, 15, v2")
        a("v_cmp_eq_u32 vcc, v10, v9")
        a("v_mov_b32 v10, 0x3f803f80")
        a.nop(1)
        for r in range(4): a(f"v_cndmask_b32 v{SEL+r}, 0, v10, vcc")
    def issue2(st, cnt, only=None):
        base = GSLOT[st % 4]
        if only == "last":
            a(f"s_add_u32 s{sT}, s{sG2}, {st*64*3072}")
            a(f"s_add_u32 m0, s{sLdW}, {base + 16384 + 2*1024}")
            a.nop(1)
            a(f"buffer_load_dwordx4 v{vGd[2]}, {WG_}, s{sT} offen lds")
            return cnt.op(1)
        for j in range(4):
            a(f"s_add_u32 m0, s{sLd}, {base + j*1024}")
            a(f"s_add_u32 s{sT}, s{sXo}, {j*8*1280 + st*128}")
            a(f"buffer_load_dwordx4 v{vXO if j & 1 else vXE}, {X_}, s{sT} offen lds")
        for mat in range(2):
            for t in range(3):
                if only == "butlast" and mat == 0 and t == 2: continue
                a(f"s_add_u32 m0, s{sLdW}, {base + 16384 + mat*12288 + t*1024}")
                a(f"s_add_u32 s{sT}, s{sG2}, {st*64*3072}")
                a(f"buffer_load_dwordx4 v{vGd[t]}, {WU_ if mat else WG_}, s{sT} offen lds")
        return cnt.op(9 if only else 10)

    if "pfall" in exp:
        pf1(); pf1(); pf1(adv=0)
    elif "pf3" in exp:
        pf1(); pf1(adv=0)
    else:
        pf1(adv=0)
    if "tlb" in exp:
        G = opt("tlb", 21)
        a(f"v_lshlrev_b32 v5, {G}, v2")
        for k, (srdn, off) in enumerate(((WS_, 4032), (WG_, 0), (WU_, 0), (OUT_, 0), (PK_, 0))):
            a(f"s_cmp_lg_u32 s{sW}, {k % 4}")
            lab = a.newlabel("L_tw")
            a(f"s_cbranch_scc1 {lab}")
            a(f"buffer_load_dword v{PFD}, v5, {srdn}, 0 offen offset:{off} sc1")
            a.label(lab)
    XF = [[8, 12], [16, 20]]; WF = [[24, 28], [32, 36]]
    vXA = [[[40 + (hi * 2 + mi) * 4 + ks for ks in range(4)] for mi in range(2)] for hi in range(2)]
    vWA = [[56 + hi * 2 + ni for ni in range(2)] for hi in range(2)]
    RSD = 60
    ACC = 64
    T = list(range(128, 168))
    CSD = 172
    U = [176, 177, 178, 179]
    vPK = [230, 231, 232, 233]; vPKr = 234
    sWM, sWN, sPKc, sPKl, sPKb = sR + 4, sR + 5, sR + 6, sR + 7, 3
    common_late_setup()
    a(f"s_and_b32 s{sWM}, s{sW}, 1")
    a(f"s_lshr_b32 s{sWN}, s{sW}, 1")
    a("v_lshrrev_b32 v5, 1, v3")
    a("v_and_b32 v5, 7, v5")
    for mi in range(2):
        a(f"s_xor_b32 s{sT}, s{sWN}, {mi}")
        a(f"s_lshl_b32 s{sT+1}, s{sWM}, 1")
        a(f"s_add_u32 s{sT}, s{sT}, s{sT+1}")
        a(f"s_lshl_b32 s{sT}, s{sT}, 12")
        a(f"v_lshl_add_u32 v6, v3, 7, s{sT}")
        for ks in range(4):
            a(f"v_or_b32 v7, {2*ks}, v4")
            a(f"v_xor_b32 v7, v7, v5")
            a(f"v_lshl_add_u32 v{vXA[0][mi][ks]}, v7, 4, v6")
            a(f"v_add_u32 v{vXA[1][mi][ks]}, 0x10000, v{vXA[0][mi][ks]}")
    a("v_lshrrev_b32 v5, 2, v2")
    a("v_and_b32 v5, 3, v5")
    a("v_lshl_add_u32 v6, v4, 3, v5")
    a("v_lshlrev_b32 v6, 8, v6")
    a("v_lshrrev_b32 v7, 4, v2")
    a("v_and_b32 v7, 1, v7")
    a("v_lshl_add_u32 v6, v7, 5, v6")
    a("v_and_b32 v7, 3, v2")
    a("v_lshl_add_u32 v6, v7, 3, v6")
    a("v_add_u32 v6, 16384, v6")
    for ni in range(2):
        a(f"s_xor_b32 s{sT}, s{sWM}, {ni}")
        a(f"s_lshl_b32 s{sT+1}, s{sWN}, 1")
        a(f"s_add_u32 s{sT}, s{sT}, s{sT+1}")
        a(f"v_xor_b32 v7, s{sT}, v5")
        a(f"v_lshl_add_u32 v{vWA[0][ni]}, v7, 6, v6")
        a(f"v_add_u32 v{vWA[1][ni]}, 0x10000, v{vWA[0][ni]}")
    for r in range(64): a(f"v_mov_b32 v{ACC+r}, 0")
    for r in range(4): a(f"v_mov_b32 v{CSD+r}, 0\nv_mov_b32 v{RSD+r}, 0")
    a(f"s_mul_i32 s{sT+2}, s{sB}, 10")
    a(f"s_sub_u32 s{sT+2}, s{sA}, s{sT+2}")
    a(f"s_cmp_lt_u32 s{sB}, 20")
    a(f"s_cselect_b32 s{sT+3}, 0, 20")
    a(f"s_cselect_b64 s[{sM}:{sM+1}], -1, 0")
    a(f"s_sub_u32 s{sT+3}, s{sB}, s{sT+3}")
    a(f"s_lshl_b32 s{sT+3}, s{sT+3}, 5")
    a(f"s_lshl_b32 s{sPKc}, s{sT+2}, 7")
    a(f"s_lshl_b32 s{sPKl}, s{sW}, 12")
    a(f"s_add_u32 s{sPKl}, s{sPKl}, {PKS}")
    a("v_lshrrev_b32 v5, 3, v2")
    a("v_and_b32 v6, 7, v2")
    for t in range(4):
        a(f"v_add_u32 v7, s{sT+3}, v5")
        if t: a(f"v_add_u32 v7, {8*t}, v7")
        a(f"v_mul_u32_u24 v{U[0]}, 1639, v7")
        a(f"v_lshrrev_b32 v{U[0]}, 16, v{U[0]}")
        a(f"v_mul_u32_u24 v{U[0]}, 40, v{U[0]}")
        a(f"v_sub_u32 v{U[0]}, v7, v{U[0]}")
        a(f"v_cmp_le_u32 vcc, 24, v{U[0]}")
        a(f"v_cmp_le_u32 s[{sT+6}:{sT+7}], 20, v{U[0]}")
        a(f"v_mov_b32 v{U[1]}, 16")
        a.nop(1)
        a(f"v_cndmask_b32 v{U[1]}, 0, v{U[1]}, s[{sT+6}:{sT+7}]")
        a(f"v_cndmask_b32 v{U[1]}, v{U[1]}, -4, vcc")
        a(f"v_cndmask_b32 v{U[1]}, 0, v{U[1]}, s[{sM}:{sM+1}]")
        a(f"v_add_u32 v7, v7, v{U[1]}")
        a("v_mul_u32_u24 v7, 1280, v7")
        a(f"v_lshl_add_u32 v{vPK[t]}, v6, 4, v7")
        a(f"v_add_u32 v{vPK[t]}, s{sPKc}, v{vPK[t]}")
    a("v_lshrrev_b32 v5, 4, v2")
    a("v_lshrrev_b32 v6, 2, v2")
    a("v_and_b32 v6, 3, v6")
    a("v_lshl_add_u32 v5, v5, 3, v6")
    a("v_lshlrev_b32 v5, 7, v5")
    a("v_and_b32 v6, 3, v2")
    a("v_lshl_add_u32 v5, v6, 3, v5")
    a(f"v_add_u32 v{vPKr}, s{sPKl}, v5")
    def gprefetch_setup():
        a(f"s_and_b32 s{sT}, s{sW}, 1")
        a(f"s_cmp_eq_u32 s{sT}, 0")
        a(f"s_cselect_b32 s4, s{sWg}, s{sWu}")
        a(f"s_cselect_b32 s5, s{sWg+1}, s{sWu+1}")
        a(f"s_mov_b32 s6, {640*3072}")
        a(f"s_lshl_b32 s{sT}, s{sIDX}, 1")
        a(f"s_lshr_b32 s{sT+1}, s{sLW}, 1")
        a(f"s_add_u32 s{sT}, s{sT}, s{sT+1}")
        a(f"s_mul_i32 s3, s{sT}, {4*3072}")
        a(f"s_and_b32 s{sT}, s{sXCD}, 3")
        a(f"s_mul_i32 s{sT}, s{sT}, 768")
        a(f"s_add_u32 s3, s3, s{sT}")
        a(f"v_lshrrev_b32 v{vPF}, 4, v2")
        a(f"v_mul_u32_u24 v{vPF}, 3072, v{vPF}")
        a("v_and_b32 v1, 15, v2")
        a(f"v_lshl_add_u32 v{vPF}, v1, 4, v{vPF}")
    gprefetch_setup()
    CV = Cnt(a, "vmcnt", 63); tags = {}
    def gprefetch(n):
        if "nopf2" in exp: return
        a(f"s_add_u32 s{sT}, s3, {(n // 3)*256*3072}")
        a(f"buffer_load_dwordx4 {vr(PFD,4)}, v{vPF}, s[4:7], s{sT} offen offset:{(n % 3)*256}")
        CV.op()
    def pack_ids():
        a(f"s_lshl_b32 s3, s{sMT}, 4")
        a(f"s_add_u32 s3, s3, s{sNG}")
        a(f"s_mul_i32 s3, s3, 3")
        a(f"s_add_u32 s3, s3, s{sW}")
        a(f"s_lshl_b32 s{sPKl}, s{sW}, 12")
        a(f"s_add_u32 s{sPKl}, s{sPKl}, {PKS}")
    def pack_issue(cnt):
        for t in range(4):
            a(f"s_add_u32 m0, s{sPKl}, {t*1024}")
            a.nop(1)
            a(f"buffer_load_dwordx4 v{vPK[t]}, {PK_}, 0 offen lds")
        return cnt.op(4)
    def pack_finish(cnt, tag):
        a(f"s_lshl_b32 s{sT+1}, s3, 12")
        a(f"s_add_u32 s{sT+1}, s{sT+1}, {WS_WP}")
        a(f"s_cmp_eq_u32 s{sW}, 3")
        a(f"s_cselect_b32 s{sT+1}, {WS_END}, s{sT+1}")
        a(f"s_cmp_ge_u32 s3, 680")
        a(f"s_cselect_b32 s{sT+1}, {WS_END}, s{sT+1}")
        cnt.need(tag)
        for n in range(4):
            for h in range(2):
                a(f"ds_read_b64_tr_b16 {vr(16+4*n+2*h,2)}, v{vPKr} offset:{h*512 + n*32}")
        a("s_waitcnt lgkmcnt(0)")
        for n in range(4):
            a(f"buffer_store_dwordx4 {vr(16+4*n,4)}, v8, {WS_}, s{sT+1} offen offset:{n*1024}{SC}")
        return cnt.op(4)
    def rd1(st, ks, buf):
        base = (st % NST) * STG
        hi = base // 65536; b = base % 65536
        X = lambda mi: (("X", mi), f"ds_read_b128 {vr(XF[buf][mi],4)}, v{vXA[hi][mi][ks]} offset:{b}")
        W = lambda ni, h: (("W", ni), f"ds_read_b64_tr_b16 {vr(WF[buf][ni]+2*h,2)}, v{vWA[hi][ni]} offset:{b + ks*4096 + h*1024}")
        return [X(0), W(0, 0), W(0, 1), W(1, 0), W(1, 1), X(1)]
    PKI, GP0 = opt("pki", 2), opt("gp", 3)
    def p1_loop(vtype):
        CV.issued = CV.done = 0
        L1 = Cnt(a, "lgkmcnt", 15)
        tg = [{}, {}]
        def emit(lst, buf):
            for key, l in lst:
                a(l); tg[buf][key] = L1.op()
        a("s_barrier")
        ST("A", 1); ST("B", 1)
        emit(rd1(0, 0, 0), 0)
        for st in range(10):
            for ks in range(4):
                buf = (st * 4 + ks) & 1
                if ks < 3: nxt = rd1(st, ks + 1, buf ^ 1)
                elif st < 9: nxt = rd1(st + 1, 0, buf ^ 1)
                else: nxt = []
                if ks == 3 and st < 9:
                    L1.need(L1.issued - 1)
                    if 4 <= st < 9: ST("G", 2 * (st - 4) + 1)
                    a("s_barrier")
                    if 4 <= st < 9: ST("G", 2 * (st - 4) + 2)
                    ST("B", st + 2)
                n = 0
                for mi in range(2):
                    for ni in range(2):
                        d = ACC + (mi * 2 + ni) * 16
                        A, B = (XF[buf][mi], WF[buf][ni]) if vtype else (WF[buf][ni], XF[buf][mi])
                        L1.need(max(tg[buf][("X", mi)], tg[buf][("W", ni)]))
                        a(f"{M32} {vr(d,16)}, {vr(A,4)}, {vr(B,4)}, {vr(d,16)}")
                        emit(nxt[n * 2: n * 2 + 2], buf ^ 1)
                        if n == 3:
                            gi = (st - GP0) * 2 + (ks >> 1)
                            if 0 <= gi < 9 and (ks & 1): gprefetch(gi)
                            if st == 8 and ks == 1: tags["non"] = nonce_issue(CV)
                        if n == 2: a(f"{M16} {vr(CSD,4)}, {vr(SEL,4)}, {vr(WF[buf][0],4)}, {vr(CSD,4)}")
                        n += 1
                if "norsd" not in exp: a(f"{M16} {vr(RSD,4)}, {vr(SEL,4)}, {vr(XF[buf][0],4)}, {vr(RSD,4)}")
        ST("A", 2); ST("B", 11)
        a(f"s_lshl_b32 s{sT}, s{sWN}, 1\ns_add_u32 s{sT}, s{sT}, s{sWM}\ns_lshl_b32 s{sT}, s{sT}, 7\ns_add_u32 s{sT}, s{sT}, {ST_CS}")
        a(f"v_lshl_add_u32 v{U[0]}, v3, 2, s{sT}")
        a(f"s_lshl_b32 s{sT}, s{sWM}, 1\ns_add_u32 s{sT}, s{sT}, s{sWN}\ns_lshl_b32 s{sT}, s{sT}, 7")
        a(f"v_lshl_add_u32 v{U[1]}, v3, 2, s{sT}")
        a.nop(2)
        a("s_mov_b64 exec, 0xffff")
        a(f"ds_write_b32 v{U[0]}, v{CSD}")
        a(f"ds_write_b32 v{U[0]}, v{CSD+1} offset:64")
        a(f"ds_write_b32 v{U[1]}, v{RSD} offset:{ST_SUM}")
        a(f"ds_write_b32 v{U[1]}, v{RSD+1} offset:{ST_SUM+64}")
        a("s_mov_b64 exec, -1")
        a("s_waitcnt lgkmcnt(0)")
        a("s_barrier")
        nonce_get(CV, tags["non"])
        a(f"s_cmp_eq_u32 s{sNG}, 15")
        a("s_cbranch_scc1 L_A_dummy")
    def blk(dst, x, y, xo):
        a(f"s_xor_b32 s{dst}, s{y}, {xo}")
        a(f"s_lshl_b32 s{sT+7}, s{x}, 1")
        a(f"s_add_u32 s{dst}, s{dst}, s{sT+7}")
    sH, sQB, sKV = sA, sB, sC
    def p3_ids():
        a(f"s_lshl_b32 s{sH}, s{sXCD}, 2")
        a(f"s_and_b32 s{sT}, s{sIDX}, 3")
        a(f"s_add_u32 s{sH}, s{sH}, s{sT}")
        a(f"s_lshr_b32 s{sQB}, s{sIDX}, 2")
        a(f"s_mul_i32 s{sKV}, s{sH}, {16*CHUNK}")
    VA = Cnt(a, "vmcnt", 63); tag2 = {}
    def capture(fn):
        n0 = len(a.lines); fn(); L = a.lines[n0:]; del a.lines[n0:]
        return L
    def atoms(lines):
        out = []; cur = None
        for l in lines:
            t = l.strip()
            if t == "; {": cur = []
            elif t == "; }": out.append(cur); cur = None
            elif cur is not None: cur.append(l)
            else: out.append([l])
        return out
    def marker_prefill():
        a.c("{")
        p3_ids()
        a("v_mov_b32 v12, -1\nv_mov_b32 v13, -1\nv_mov_b32 v14, -1\nv_mov_b32 v15, -1")
        a(f"s_lshr_b32 s{sT+1}, s{sH}, 1")
        a(f"s_mul_i32 s{sT+1}, s{sT+1}, {5*256}")
        a(f"s_add_u32 s{sT+1}, s{sT+1}, {WS_O}")
        a(f"s_lshl_b32 s{sT+3}, s{sQB}, 4")
        a(f"s_lshl_b32 s{sT+4}, s{sW}, 2")
        a(f"s_add_u32 s{sT+3}, s{sT+3}, s{sT+4}")
        a(f"s_mul_i32 s{sT+3}, s{sT+3}, 20480")
        a(f"s_add_u32 s{sT+1}, s{sT+1}, s{sT+3}")
        a(f"s_and_b32 s{sT+3}, s{sH}, 1")
        a(f"s_mul_i32 s{sT+2}, s{sT+3}, {3*256}")
        a(f"s_add_u32 s{sT+2}, s{sT+2}, s{sT+1}")
        a(f"s_lshl_b32 s{sT+3}, s{sT+3}, 3")
        a(f"s_add_u32 s{sT+1}, s{sT+1}, s{sT+3}")
        a("v_lshrrev_b32 v9, 4, v2")
        a("v_mul_u32_u24 v9, 20480, v9")
        a("v_and_b32 v10, 15, v2")
        a("v_lshl_add_u32 v9, v10, 4, v9")
        a(f"buffer_store_dwordx4 v[12:15], v9, {WS_}, s{sT+2} offen{SC}")
        a(f"buffer_store_dwordx4 v[12:15], v9, {WS_}, s{sT+2} offen offset:256{SC}")
        a(f"buffer_store_dwordx2 v[12:13], v9, {WS_}, s{sT+1} offen offset:512{SC}")
        a.c("}")
    NSEG = opt("ns", 2)
    def a_segments(body, nhead):
        a.lines += body[:nhead]
        at = atoms(body[nhead:] + capture(marker_prefill))
        tot = sum(len(x) for x in at)
        VA.issued = VA.done = 0
        done = 0
        for seg in range(NSEG + 1):
            def dm():
                if seg == 0: issue2(3, VA, "butlast")
                else:
                    if seg == 1: tag2[3] = issue2(3, VA, "last")
                    tag2[seg + 3] = issue2(seg + 3, VA)
            units = []; cur = []
            for x in atoms(capture(dm)):
                cur += x
                if "buffer_load" in x[0]: units.append(cur); cur = []
            mine = []
            if seg < NSEG:
                while at and done < (seg + 1) / NSEG * tot - 1e-9:
                    done += len(at[0]); mine.append(at.pop(0))
            per = -(-len(mine) // len(units))
            for u in units:
                for x in mine[:per]: a.lines += x
                mine = mine[per:]
                a.lines += u
            if seg == 0: a("s_waitcnt lgkmcnt(0)")
            ST("F", 1 + 3 * seg)
            if seg >= 2: VA.need(tag2[seg + 1])
            ST("F", 2 + 3 * seg)
            if seg < NSEG:
                a("s_barrier")
                ST("F", 3 + 3 * seg)
        tag2["stores"] = VA.issued - 11
        a("s_branch L_A_ld")

    a(f"s_cmp_ge_u32 s{sNT}, 10")
    a("s_cbranch_scc1 L_p1_vtype")
    p1_loop(False)
    NM = [T[0], T[1]]; RS = [T[2], T[3]]
    CSV = [[T[8] + (ni * 4 + g) * 4 for g in range(4)] for ni in range(2)]
    K16 = [8, 9]; K8 = [20, 21]; FL = [12, 13]
    a(f"s_cmp_lt_u32 s{sNT}, 5")
    a(f"s_cselect_b32 s{sB}, {f32bits(QSCALE):#x}, 1.0")
    a(f"s_cselect_b32 s{sC}, 0, 5")
    a(f"s_mov_b32 s{sT+6}, {WS_KV}")
    a(f"s_cselect_b32 s{sT+6}, {WS_Q}, s{sT+6}")
    a(f"s_sub_u32 s{sC}, s{sNT}, s{sC}")
    a(f"s_lshl_b32 s{sC}, s{sC}, 7")
    for mi in range(2):
        blk(sA, sWM, sWN, mi)
        a(f"s_lshl_b32 s{sA}, s{sA}, 5")
        a(f"v_add_u32 v11, s{sA}, v3")
        a(f"v_lshlrev_b32 v{22+mi}, 2, v11")
        a(f"v_lshlrev_b32 v{K16[mi]}, 4, v11")
        a(f"v_lshlrev_b32 v{K8[mi]}, 3, v11")
    for ni in range(2):
        blk(sA, sWN, sWM, ni)
        a(f"s_lshl_b32 s{sA}, s{sA}, 5")
        a(f"v_lshl_add_u32 v10, v4, 2, s{sA}")
        a(f"v_lshlrev_b32 v10, 2, v10")
        for g in range(4):
            a(f"ds_read_b128 {vr(CSV[ni][g],4)}, v10 offset:{ST_CS+g*32}")
        a(f"s_add_u32 s{sA}, s{sA}, s{sC}")
        a(f"v_lshl_add_u32 v{FL[ni]}, v4, 3, s{sA}")
    a(f"s_mul_i32 s{sA}, s{sMT}, {CHUNK}")
    a(f"s_add_u32 s{sA}, s{sA}, s{sT+6}")
    a(f"s_add_u32 s{sC}, s{sA}, {16*CHUNK}")
    a(f"s_mov_b32 s{sPKc}, {16*CHUNK}")
    a("s_barrier")
    ST("A", 3)
    n0 = len(a.lines)
    for mi in range(2):
        a(f"ds_read_b32 v{NM[mi]}, v{22+mi} offset:{ST_NM}")
        a(f"ds_read_b32 v{RS[mi]}, v{22+mi} offset:{ST_RS}")
    a("s_waitcnt lgkmcnt(0)")
    for mi in range(2): a(f"v_mul_f32 v{RS[mi]}, s{sB}, v{RS[mi]}")
    nhead = len(a.lines) - n0
    for ni in range(2):
        for gp in range(2):
            a(f"v_add_u32 v14, {16*gp}, v{FL[ni]}")
            a(f"v_mul_u32_u24 v15, 1639, v14")
            a(f"v_lshrrev_b32 v15, 16, v15")
            a(f"v_mul_u32_u24 v16, 40, v15")
            a(f"v_sub_u32 v16, v14, v16")
            a(f"v_lshrrev_b32 v16, 3, v16")
            a(f"v_cmp_lt_u32 vcc, 2, v16")
            a(f"v_cmp_eq_u32 s[{sM}:{sM+1}], 2, v16")
            a(f"v_lshlrev_b32 v15, 1, v15")
            a(f"v_cndmask_b32 v14, 0, 1, vcc")
            a(f"v_add_u32 v15, v15, v14")
            a(f"v_mul_u32_u24 v14, 3, v14")
            a(f"v_sub_u32 v16, v16, v14")
            a(f"v_mul_lo_u32 v15, v15, s{sPKc}")
            a(f"v_lshl_add_u32 v15, v16, 11, v15")
            for mi in range(2):
                d = ACC + (mi * 2 + ni) * 16
                for g in (2 * gp, 2 * gp + 1):
                    for e in range(4):
                        a(f"v_fmac_f32 v{d+4*g+e}, v{CSV[ni][g]+e}, v{NM[mi]}")
                q = d + 8 * gp
                for e in range(8): a(f"v_mul_f32 v{q+e}, v{q+e}, v{RS[mi]}")
                a(f"v_cvt_pk_bf16_f32 v{q}, v{q}, v{q+1}")
                a(f"v_cvt_pk_bf16_f32 v{q+1}, v{q+2}, v{q+3}")
                a(f"v_cvt_pk_bf16_f32 v{q+2}, v{q+4}, v{q+5}")
                a(f"v_cvt_pk_bf16_f32 v{q+3}, v{q+6}, v{q+7}")
                a(f"v_add_u32 v17, v15, v{K16[mi]}")
                a(f"v_add_u32 v18, v15, v{K8[mi]}")
                a(f"v_permlane32_swap_b32 v{q}, v{q+2}")
                a(f"v_permlane32_swap_b32 v{q+1}, v{q+3}")
                a.c("{")
                a(f"s_andn2_b64 exec, exec, s[{sM}:{sM+1}]")
                a(f"buffer_store_dwordx4 {vr(q,4)}, v17, {WS_}, s{sA} offen{SC}")
                a(f"s_mov_b64 exec, s[{sM}:{sM+1}]")
                lab = a.newlabel("L_qk_ns")
                a(f"s_cbranch_execz {lab}")
                a(f"buffer_store_dwordx2 {vr(q,2)}, v18, {WS_}, s{sA} offen{SC}")
                a(f"buffer_store_dwordx2 {vr(q+2,2)}, v18, {WS_}, s{sC} offen{SC}")
                a.label(lab)
                a("s_mov_b64 exec, -1")
                a.c("}")
    body = a.lines[n0:]; del a.lines[n0:]
    a_segments(body, nhead)
    a.label("L_p1_vtype")
    p1_loop(True)
    CSL = [40, 41]; VB = [42, 43]
    NMV = [[T[8] + g * 4 for g in range(4)], [8 + g * 4 for g in range(4)]]
    RSV = [[T[24] + g * 4 for g in range(4)], [24 + g * 4 for g in range(4)]]
    a(f"s_sub_u32 s{sC}, s{sNT}, 10")
    a(f"s_lshl_b32 s{sC}, s{sC}, 7")
    a(f"s_mov_b32 s{sB}, {16*CHUNK}")
    for ni in range(2):
        blk(sA, sWN, sWM, ni)
        a(f"s_lshl_b32 s{sA}, s{sA}, 5")
        a(f"v_add_u32 v44, s{sA}, v3")
        a(f"v_lshlrev_b32 v45, 2, v44")
        a(f"ds_read_b32 v{CSL[ni]}, v45 offset:{ST_CS}")
        a(f"v_add_u32 v44, s{sC}, v44")
        a(f"v_mul_u32_u24 v45, 3277, v44")
        a(f"v_lshrrev_b32 v45, 16, v45")
        a(f"v_mul_u32_u24 v46, 20, v45")
        a(f"v_sub_u32 v46, v44, v46")
        a(f"v_mul_lo_u32 v45, v45, s{sB}")
        a(f"v_lshl_add_u32 v45, v46, 4, v45")
        a(f"v_mul_u32_u24 v46, 320, v4")
        a(f"v_add_u32 v{VB[ni]}, v45, v46")
    sVo = [sB, sC]
    for mi in range(2):
        blk(sA, sWM, sWN, mi)
        a(f"s_lshl_b32 s{sT}, s{sA}, 7")
        a(f"v_lshl_add_u32 v{47+mi}, v4, 4, s{sT}")
        a(f"s_mul_i32 s{sA}, s{sA}, {4*320}")
        a(f"s_mul_i32 s{sT}, s{sMT}, {CHUNK}")
        a(f"s_add_u32 s{sA}, s{sA}, s{sT}")
        a(f"s_add_u32 s{sVo[mi]}, s{sA}, {WS_KV+5120}")
    a("s_barrier")
    ST("A", 3)
    n0 = len(a.lines)
    for mi in range(2):
        for g in range(4):
            a(f"ds_read_b128 {vr(NMV[mi][g],4)}, v{47+mi} offset:{ST_NM+g*32}")
            a(f"ds_read_b128 {vr(RSV[mi][g],4)}, v{47+mi} offset:{ST_RS+g*32}")
        if mi == 0: a("s_waitcnt lgkmcnt(7)")
    a("s_waitcnt lgkmcnt(8)")
    nhead = len(a.lines) - n0
    for mi in range(2):
        if mi == 1: a("s_waitcnt lgkmcnt(0)")
        for ni in range(2):
            d = ACC + (mi * 2 + ni) * 16
            for gp in range(2):
                for g in (2 * gp, 2 * gp + 1):
                    for e in range(4): a(f"v_fmac_f32 v{d+4*g+e}, v{NMV[mi][g]+e}, v{CSL[ni]}")
                for g in (2 * gp, 2 * gp + 1):
                    for e in range(4): a(f"v_mul_f32 v{d+4*g+e}, v{d+4*g+e}, v{RSV[mi][g]+e}")
                q = d + 8 * gp
                a(f"v_cvt_pk_bf16_f32 v{q}, v{q}, v{q+1}")
                a(f"v_cvt_pk_bf16_f32 v{q+1}, v{q+2}, v{q+3}")
                a(f"v_cvt_pk_bf16_f32 v{q+2}, v{q+4}, v{q+5}")
                a(f"v_cvt_pk_bf16_f32 v{q+3}, v{q+6}, v{q+7}")
                a.nop(2)
                a(f"v_permlane32_swap_b32 v{q}, v{q+2}")
                a(f"v_permlane32_swap_b32 v{q+1}, v{q+3}")
                a(f"buffer_store_dwordx4 {vr(q,4)}, v{VB[ni]}, {WS_}, s{sVo[mi]} offen offset:{gp*640}{SC}")
    body = a.lines[n0:]; del a.lines[n0:]
    a_segments(body, nhead)
    a.label("L_A_dummy")
    a("s_barrier")
    a_segments([], 0)
    a.label("L_A_ld")
    a("v_lshlrev_b32 v8, 4, v2")
    def kv_dma(n0, js=range(10)):
        for j in js:
            a(f"s_lshl_b32 s{sT}, s{sW}, 10")
            a(f"s_add_u32 s{sT}, s{sT}, {(n0 + 4*j)*1024}")
            a(f"s_mov_b32 m0, s{sT}")
            a(f"s_add_u32 s{sT}, s{sT}, s{sKV}")
            a(f"s_add_u32 s{sT}, s{sT}, {WS_KV}")
            a(f"buffer_load_dwordx4 v8, {WS_}, s{sT} offen lds")
        VA.op(len(js))
    for st in range(NSEG, 9):
        if st > NSEG: VA.need(max(tag2[st + 1], tag2["stores"]))
        a("s_barrier")
        if st == NSEG + 1:
            lab = a.newlabel("L_f1add")
            a(f"s_cmp_lg_u32 s{sW}, 0")
            a(f"s_cbranch_scc1 {lab}")
            a(f"s_lshl_b32 s{sT}, s2, 7")
            a(f"s_add_u32 s{sT}, s{sT}, {WS_FL1}")
            a("v_mov_b32 v9, 0")
            a(f"v_mov_b32 v10, s{sNon}")
            a("s_mov_b64 exec, 1")
            a(f"buffer_store_dword v10, v9, {WS_}, s{sT} offen{SC}")
            a("s_mov_b64 exec, -1")
            a.label(lab)
        if st + 4 <= 9: tag2[st + 4] = issue2(st + 4, VA)
        PP0 = opt("ppf", 2)
        for t in range(4):
            if st == PP0 + t // 2:
                a(f"buffer_load_dwordx4 {vr(PFD,4)}, v{vPK[t]}, {PK_}, 0 offen"); VA.op()
        if st == 6:
            pack_ids(); tpk = pack_issue(VA)
        KS = opt("ks", 10)
        if st == 7: kv_dma(0, range(KS))
        if st == 8 and KS < 10: kv_dma(0, range(KS, 10))
        if st == 8:
            for j in range(3):
                a(f"s_add_u32 s{sT}, s{sW}, {4*j}")
                a(f"s_min_u32 s{sT}, s{sT}, 9")
                a(f"s_lshl_b32 s{sT+1}, s{sT}, 10")
                a(f"s_add_u32 m0, s{sT+1}, {QOFF}")
                a(f"s_cmp_ge_u32 s{sT}, 5")
                a(f"s_cselect_b32 s{sT}, 5120, 0")
                a(f"s_add_u32 s{sT}, s{sT}, s{sT+1}")
                a(f"s_mul_i32 s{sT+1}, s{sQB}, {2*CHUNK}")
                a(f"s_add_u32 s{sT}, s{sT}, s{sT+1}")
                a(f"s_add_u32 s{sT}, s{sT}, s{sKV}")
                a(f"s_add_u32 s{sT}, s{sT}, {WS_Q}")
                a(f"buffer_load_dwordx4 v8, {WS_}, s{sT} offen lds")
    VA.op(3)
    pack_finish(VA, tpk)
    a(f"s_lshl_b32 s{sF2}, s3, 7")
    a(f"s_add_u32 s{sF2}, s{sF2}, {WS_FLP}")
    a(f"s_cmp_eq_u32 s{sW}, 3")
    a(f"s_cselect_b32 s{sF2}, {WS_END}, s{sF2}")
    a("s_mov_b32 s3, 0")
    a("s_branch L_p3")

    a.label("L_B")
    for j in range(3): a(f"s_add_u32 s{sPB[j]}, s{sPB[j]}, s3\ns_add_u32 s{sPB[j]}, s{sPB[j]}, s3")
    sWo = sR + 4
    vWv = 7
    a("v_lshrrev_b32 v9, 4, v2")
    a(f"v_mul_u32_u24 v{vWv}, 3840, v9")
    a("v_lshrrev_b32 v10, 2, v2")
    a("v_and_b32 v10, 3, v10")
    a("v_xor_b32 v10, v10, v9")
    a(f"v_lshl_add_u32 v{vWv}, v10, 6, v{vWv}")
    a("v_and_b32 v10, 3, v2")
    a(f"v_lshl_add_u32 v{vWv}, v10, 4, v{vWv}")
    a(f"s_mul_i32 s{sWo}, s{sLW}, {16*3840}")
    a(f"s_lshl_b32 s{sT}, s{sNT}, 8")
    a(f"s_add_u32 s{sWo}, s{sWo}, s{sT}")
    VM = Cnt(a, "vmcnt", 63)
    def issue1(st):
        base = (st % NST) * STG
        for j in range(4):
            a(f"s_add_u32 m0, s{sLd}, {base + j*1024}")
            a(f"s_add_u32 s{sT}, s{sXo}, {j*8*1280 + st*128}")
            a(f"buffer_load_dwordx4 v{vXO if j & 1 else vXE}, {X_}, s{sT} offen lds")
            a(f"s_add_u32 m0, s{sLd}, {base + 16384 + j*1024}")
            a(f"s_add_u32 s{sT}, s{sWo}, {(st*64 + j*4)*3840}")
            a(f"buffer_load_dwordx4 v{vWv}, {WQ_}, s{sT} offen lds")
        return VM.op(8)
    tag1 = {}
    SA = [[12 + hi * 4 + j for j in range(4)] for hi in range(2)]
    SD = 20; LS = [36, 37]; LU = [40, 41, 42, 43]
    GX = [8, 12]
    GW = [[16 + (b * 6 + n) * 4 for n in range(6)] for b in range(2)]
    GACC = 64
    gXA = [[184 + sl * 4 + ks for ks in range(4)] for sl in range(4)]
    gWA = [[200 + sl * 3 + p for p in range(3)] for sl in range(4)]
    GCS = [160, 164]; NM2, RS2 = 180, 181; POLL = 225
    sCT = [sA, sB, sC]
    a("v_lshrrev_b32 v9, 1, v3")
    a("v_and_b32 v9, 7, v9")
    a(f"v_lshl_add_u32 v10, v3, 7, s{sLd}")
    for ks in range(4):
        a(f"v_or_b32 v11, {2*ks}, v4")
        a(f"v_xor_b32 v11, v11, v9")
        a(f"v_lshl_add_u32 v{gXA[3][ks]}, v11, 4, v10")
        for sl in range(3): a(f"v_add_u32 v{gXA[sl][ks]}, {GSLOT[sl]}, v{gXA[3][ks]}")
    a("v_lshlrev_b32 v11, 2, v4")
    a("v_xor_b32 v9, v9, v11")
    for j in range(4):
        a(f"v_xor_b32 v11, {j}, v9")
        a(f"v_lshl_add_u32 v{SA[0][j]}, v11, 4, v10")
        a(f"v_add_u32 v{SA[1][j]}, 0x10000, v{SA[0][j]}")
    for r in LS: a(f"v_mov_b32 v{r}, 0")
    common_late_setup()
    a("v_lshrrev_b32 v5, 2, v2")
    a("v_and_b32 v5, 3, v5")
    a("v_lshl_add_u32 v5, v4, 3, v5")
    a("v_mul_u32_u24 v5, 192, v5")
    a("v_lshrrev_b32 v6, 4, v2")
    a("v_and_b32 v6, 1, v6")
    a("v_lshl_add_u32 v5, v6, 5, v5")
    a("v_and_b32 v6, 3, v2")
    a("v_lshl_add_u32 v5, v6, 3, v5")
    for p in range(3):
        a(f"s_add_u32 s{sCT[p]}, s{sLW}, {p}")
        for _ in range(2):
            a(f"s_cmp_ge_u32 s{sCT[p]}, 3")
            a(f"s_cselect_b32 s{sT}, 3, 0")
            a(f"s_sub_u32 s{sCT[p]}, s{sCT[p]}, s{sT}")
        a(f"s_lshl_b32 s{sT}, s{sCT[p]}, 6")
        a(f"s_add_u32 s{sT}, s{sT}, 16384")
        a(f"v_add_u32 v{gWA[3][p]}, s{sT}, v5")
        for sl in range(3): a(f"v_add_u32 v{gWA[sl][p]}, {GSLOT[sl]}, v{gWA[3][p]}")
    for r in range(96): a(f"v_mov_b32 v{GACC+r}, 0")
    for r in range(8): a(f"v_mov_b32 v{GCS[0]+r}, 0")
    a(f"v_lshlrev_b32 v{POLL+4}, 7, v2")
    def f1_loads():
        for q in range(4):
            a(f"s_mov_b32 s{sT}, {WS_FL1 + q*8192}")
            a(f"buffer_load_dword v{POLL+q}, v{POLL+4}, {WS_}, s{sT} offen{SC}")
    def ssq_ops():
        ops = []
        for j in range(4):
            ops.append(f"s_waitcnt lgkmcnt({3-j})")
            for r in range(4):
                x = SD + 4 * j + r; u0, u1 = LU[2 * (r & 1)], LU[2 * (r & 1) + 1]
                ops += [f"v_lshlrev_b32 v{u0}, 16, v{x}", f"v_and_b32 v{u1}, 0xffff0000, v{x}",
                        f"v_fmac_f32 v{LS[0]}, v{u0}, v{u0}", f"v_fmac_f32 v{LS[1]}, v{u1}, v{u1}"]
        return ops
    if "early" not in exp: a("s_waitcnt vmcnt(0)")
    ST("E", 4)
    tag1[0] = issue1(0)
    ST("E", 5)
    tag1[1] = issue1(1)
    ST("E", 6)
    ST("E", 7)
    VM.need(tag1[0])
    ST("E", 8)
    a("s_barrier")
    ST("E", 9)
    if "prB" in exp: a(f"s_setprio {opt('prB', 1)}")
    issued = 1
    tagB = {}
    PF34 = opt("pfc", 2)
    for st in range(10):
        base = (st % NST) * STG
        for j in range(4): a(f"ds_read_b128 {vr(SD+4*j,4)}, v{SA[base // 65536][j]} offset:{base % 65536}")
        n0 = len(a.lines)
        while issued < min(st + 3, 9):
            issued += 1; tag1[issued] = issue1(issued)
        if st == PF34 and "pfall" not in exp:
            if "pf3" in exp:
                for j in range(3): a(f"s_add_u32 s{sPB[j]}, s{sPB[j]}, s3")
            else: pf1(VM)
            pf1(VM, adv=0)
        if st == 7: tnon = nonce_issue(VM)
        if st == 8: tagB[0] = issue2(0, VM)
        dma = a.lines[n0:]; del a.lines[n0:]
        ops = ssq_ops() if "nossq" not in exp else []
        nd = sum("buffer_load" in l for l in dma)
        per = -(-len(ops) // max(nd - 1, 1)) if nd else len(ops)
        k = 0
        for l in dma:
            a.lines.append(l)
            if "buffer_load" in l:
                k += 1
                if k >= 2:
                    for o in ops[:per]: a(o)
                    ops = ops[per:]
        for o in ops: a(o)
        if st == 8: nonce_get(VM, tnon)
        if st < 9:
            if 4 <= st < 9: ST("G", 2 * (st - 4) + 1)
            VM.need(tag1[st + 1])
            if 4 <= st < 9: ST("G", 2 * (st - 4) + 2)
            a("s_barrier")
    a(f"v_add_f32 v{RS2}, v{LS[0]}, v{LS[1]}")
    a(f"v_mov_b32 v{LS[1]}, v{RS2}")
    a(f"s_lshl_b32 s{sT}, s{sLW}, 7")
    a(f"v_lshl_add_u32 v10, v3, 2, s{sT}")
    a(f"v_permlane32_swap_b32 v{RS2}, v{LS[1]}")
    a(f"v_add_f32 v{RS2}, v{RS2}, v{LS[1]}")
    tagB[1] = issue2(1, VM)
    a("s_barrier")
    a(f"ds_read_b32 v{NM2}, v10 offset:{ST_SUM}")
    a("s_waitcnt lgkmcnt(0)")
    ln_rowmath(a, NM2, RS2, LU[1], sT)
    a.nop(1)
    a(f"ds_write_b32 v10, v{NM2} offset:{ST_NM}")
    a(f"ds_write_b32 v10, v{RS2} offset:{ST_RS}")
    a(f"v_mul_f32 v{RS2}, v{RS2}, v{RS2}")
    VM.need(tagB[0])
    a("s_waitcnt lgkmcnt(0)")
    a("s_barrier")
    if "noprioB" not in exp: a("s_setprio 2")
    ST("F", 10)
    ST("A", 4); ST("C", 1)
    L2 = Cnt(a, "lgkmcnt", 15)
    tg2 = [{}, {}]
    def emit2(lst, buf):
        for key, l in lst:
            a(l); tg2[buf][key] = L2.op()
    def rd2(st, ks, buf):
        sl = st % 4
        L = [("X", f"ds_read_b128 {vr(GX[buf],4)}, v{gXA[sl][ks]}")]
        for n in range(6):
            mat, p = n & 1, n >> 1
            for h in range(2):
                L.append((n, f"ds_read_b64_tr_b16 {vr(GW[buf][n]+2*h,2)}, v{gWA[sl][p]} offset:{mat*12288 + (16*ks+4*h)*192}"))
        return L
    emit2(rd2(0, 0, 0), 0)
    tagB[2] = issue2(2, VM)
    for st in range(10):
        for ks in range(4):
            buf = (st * 4 + ks) & 1
            if ks < 3: nxt = rd2(st, ks + 1, buf ^ 1)
            elif st < 9: nxt = rd2(st + 1, 0, buf ^ 1)
            else: nxt = []
            if ks == 3 and st < 9:
                if st < 3: ST("F", 1 + 3 * st)
                if st + 1 <= 2: VM.need(tagB[st + 1])
                L2.need(L2.issued - 1)
                if st < 3: ST("F", 2 + 3 * st)
                a("s_barrier")
                if st < 3: ST("F", 3 + 3 * st)
                ST("C", st + 2)
            if st == 6 and ks == 3:
                lab = a.newlabel("L_f1p")
                a(f"s_cmp_lg_u32 s{sW}, 4")
                a(f"s_cbranch_scc1 {lab}")
                f1_loads()
                a.label(lab)
            if st == 7 and ks == 2:
                lab = a.newlabel("L_f1")
                a(f"s_cmp_lg_u32 s{sW}, 4")
                a(f"s_cbranch_scc1 {lab}_ok")
                a(f"s_mov_b32 s{sT+1}, 0")
                a.label(lab)
                a("s_waitcnt vmcnt(0)")
                for q in range(4): a(f"v_xor_b32 v{POLL+q}, s{sNon}, v{POLL+q}")
                a(f"v_or3_b32 v{POLL}, v{POLL}, v{POLL+1}, v{POLL+2}")
                a(f"v_or_b32 v{POLL}, v{POLL}, v{POLL+3}")
                a(f"v_cmp_ne_u32 vcc, 0, v{POLL}")
                a(f"s_add_u32 s{sT+1}, s{sT+1}, 1")
                a.nop(2)
                a("s_cmp_eq_u64 vcc, 0")
                a(f"s_cbranch_scc1 {lab}_ok")
                a(f"s_cmp_ge_u32 s{sT+1}, 0x20000")
                a(f"s_cbranch_scc1 {lab}_ok")
                a("s_sleep 8")
                f1_loads()
                a(f"s_branch {lab}")
                a.label(f"{lab}_ok")
            for n in range(6):
                d = GACC + n * 16
                L2.need(tg2[buf][n])
                a(f"{M32} {vr(d,16)}, {vr(GW[buf][n],4)}, {vr(GX[buf],4)}, {vr(d,16)}")
                emit2(nxt[0:3] if n == 0 else nxt[1 + n * 2: 3 + n * 2], buf ^ 1)
                if n >= 4: a(f"{M16} {vr(GCS[n-4],4)}, {vr(SEL,4)}, {vr(GW[buf][n-4],4)}, {vr(GCS[n-4],4)}")
    ST("A", 5); ST("C", 11)
    a(f"s_lshl_b32 s{sT}, s{sCT[0]}, 7")
    a(f"s_add_u32 s{sT}, s{sT}, {CSA}")
    a(f"v_lshl_add_u32 v5, v3, 2, s{sT}")
    a(f"s_lshl_b32 s{sR+4}, s{sMT}, 2")
    a(f"s_add_u32 s{sR+4}, s{sR+4}, s{sLW}")
    a(f"s_mul_i32 s{sR+4}, s{sR+4}, {2*49152}")
    a(f"s_mul_i32 s{sT}, s{sNG}, {12*256}")
    a(f"s_add_u32 s{sR+4}, s{sR+4}, s{sT}")
    a(f"s_add_u32 s{sR+4}, s{sR+4}, {WS_H}")
    a("s_mov_b64 exec, 0xffff")
    for mat in range(2):
        a(f"ds_write_b32 v5, v{GCS[mat]} offset:{mat*384}")
        a(f"ds_write_b32 v5, v{GCS[mat]+1} offset:{mat*384+64}")
    a("s_mov_b64 exec, -1")
    a("v_lshrrev_b32 v6, 4, v3")
    a("v_mul_u32_u24 v6, 49152, v6")
    a("v_lshl_add_u32 v6, v4, 8, v6")
    a("v_and_b32 v7, 15, v3")
    a("v_lshl_add_u32 v6, v7, 4, v6")
    a("s_waitcnt lgkmcnt(0)")
    a("s_barrier")
    a("s_setprio 3")
    CB = [16, 184]
    def cs_read(p):
        a(f"s_lshl_b32 s{sT}, s{sCT[p]}, 7")
        a(f"s_add_u32 s{sT}, s{sT}, {CSA}")
        a(f"v_lshl_add_u32 v5, v4, 4, s{sT}")
        for mat in range(2):
            for g in range(4):
                a(f"ds_read_b128 {vr(CB[p&1]+(mat*4+g)*4,4)}, v5 offset:{mat*384+g*32}")
    cs_read(0); cs_read(1)
    for p in range(3):
        cb = CB[p & 1]
        a(f"s_waitcnt lgkmcnt({8 if p < 2 else 0})")
        g = GACC + (2 * p) * 16; u = GACC + (2 * p + 1) * 16
        for e in range(16):
            a(f"v_fmac_f32 v{g+e}, v{cb+e}, v{NM2}")
            a(f"v_fmac_f32 v{u+e}, v{cb+16+e}, v{NM2}")
        if p == 0: cs_read(2)
        a(f"s_lshl_b32 s{sT}, s{sCT[p]}, 10")
        a(f"s_add_u32 s{sT}, s{sT}, s{sR+4}")
        for gp in range(2):
            for e in range(8 * gp, 8 * gp + 8):
                a(f"v_max_f32 v{g+e}, 0, v{g+e}")
                a(f"v_mul_f32 v{u+e}, v{u+e}, v{RS2}")
            for e in range(8 * gp, 8 * gp + 8): a(f"v_mul_f32 v{g+e}, v{g+e}, v{u+e}")
            o = u + 8 * gp
            for q in range(4): a(f"v_cvt_pk_bf16_f32 v{o+q}, v{g+8*gp+2*q}, v{g+8*gp+2*q+1}")
            a.nop(2)
            a(f"v_permlane32_swap_b32 v{o}, v{o+2}")
            a(f"v_permlane32_swap_b32 v{o+1}, v{o+3}")
            a(f"buffer_store_dwordx4 {vr(o,4)}, v6, {WS_}, s{sT} offen offset:{gp*512}{SC}")
    p3_ids()
    a("s_mov_b32 s3, 1")

    a.label("L_p3")
    ST("A", 6)
    QA, QB = 8, 12
    S = [16, 32]; P = 48; O = 56
    KA = [72, 76]; KB = [80, 84]; V = [[88, 92], [96, 100]]
    AD = [[104 + 3 * z + y for y in range(3)] for z in range(3)]
    T0, T1, T2, T3 = 113, 114, 115, 116
    vM, vOst, vL, vFo, vPP = 117, 118, 120, 121, 122
    PPD = 249
    DACC = 124
    DF = [164 + 28 * k for k in range(3)]
    DPOLL = 248
    NV = 252
    sDX, sDW, sFin, sLoop, sFp = sR, sR + 2, sR + 4, sR + 5, sR + 6
    a(f"v_lshlrev_b32 v{vL}, 4, v2")
    a(f"s_lshl_b32 s{sT}, s{sQB}, 8")
    a(f"s_lshl_b32 s{sT+1}, s{sW}, 5")
    a(f"s_add_u32 s{sT}, s{sT}, s{sT+1}")
    a(f"v_add_u32 v5, s{sT}, v3")
    a(f"v_lshrrev_b32 v6, 4, v5")
    a(f"v_mul_u32_u24 v{vOst}, 20480, v6")
    a(f"v_and_b32 v6, 15, v5")
    a(f"v_lshl_add_u32 v{vOst}, v6, 4, v{vOst}")
    a(f"v_lshl_add_u32 v{vOst+1}, v4, 8, v{vOst}")
    a(f"s_lshr_b32 s{sT}, s{sW}, 2")
    a(f"s_mul_i32 s{sT}, s{sT}, 5120")
    a(f"s_add_u32 s{sT}, s{sT}, {QOFF}")
    a(f"v_and_b32 v5, 127, v5")
    a(f"v_lshl_add_u32 v6, v5, 4, s{sT}")
    a(f"v_lshl_add_u32 v6, v4, 11, v6")
    a(f"v_lshl_add_u32 v7, v5, 3, s{sT}")
    a("v_and_b32 v5, 0x13, v3")
    a(f"v_and_b32 v{T0}, 4, v3")
    a(f"v_lshl_or_b32 v5, v{T0}, 1, v5")
    a(f"v_and_b32 v{T0}, 8, v3")
    a(f"v_lshrrev_b32 v{T0}, 1, v{T0}")
    a(f"v_or_b32 v5, v5, v{T0}")
    a(f"v_lshlrev_b32 v{AD[0][0]}, 4, v5")
    a(f"v_lshl_add_u32 v{AD[0][0]}, v4, 11, v{AD[0][0]}")
    a(f"v_lshlrev_b32 v{AD[0][1]}, 3, v5")
    a(f"v_add_u32 v{AD[0][1]}, 4096, v{AD[0][1]}")
    a(f"v_mul_u32_u24 v{AD[0][2]}, 320, v4")
    a(f"v_lshl_add_u32 v{AD[0][2]}, v3, 4, v{AD[0][2]}")
    a(f"v_add_u32 v{AD[0][2]}, 5120, v{AD[0][2]}")
    for z in (1, 2):
        for y in range(3): a(f"v_add_u32 v{AD[z][y]}, {6*z*CHUNK}, v{AD[0][y]}")
    for r in range(4): a(f"v_mov_b32 v{QB+r}, 0")
    for r in range(16): a(f"v_mov_b32 v{O+r}, 0")
    a("v_cmp_eq_u32 vcc, 20, v3")
    a(f"v_mov_b32 v{T0}, 0x3f803f80")
    a.nop(1)
    a(f"v_cndmask_b32 v{T1}, 0, v{T0}, vcc")
    for b in range(2):
        a(f"v_mov_b32 v{KB[b]+2}, 0x3f80")
        a(f"v_mov_b32 v{KB[b]+3}, 0")
        for j in range(2):
            for r in range(4): a(f"v_mov_b32 v{V[b][j]+r}, v{T1}")
    for r in range(8): a(f"v_mov_b32 v{P+r}, 0")
    for r in range(40): a(f"v_mov_b32 v{DACC+r}, 0")
    a(f"s_and_b32 s{sT}, s{sXCD}, 3")
    a(f"s_lshl_b32 s{sT+1}, s{sQB}, 2")
    a(f"s_add_u32 s{sT}, s{sT}, s{sT+1}")
    a(f"s_lshl_b32 s{sT+4}, s{sT}, 1")
    a(f"s_lshl_b32 s{sT}, s{sT}, 2")
    a(f"s_lshr_b32 s{sT+2}, s{sXCD}, 2")
    a(f"s_lshl_b32 s{sT+2}, s{sT+2}, 2")
    a(f"s_and_b32 s{sT+3}, s{sIDX}, 3")
    a(f"s_add_u32 s{sT+2}, s{sT+2}, s{sT+3}")
    a(f"s_mul_i32 s{sFin}, s{sT}, {16*1280}")
    a(f"s_mul_i32 s{sT+3}, s{sT+2}, 160")
    a(f"s_add_u32 s{sFin}, s{sFin}, s{sT+3}")
    a(f"s_and_b32 s{sT+3}, s{sW}, 1")
    a(f"s_add_u32 s{sT+4}, s{sT+4}, s{sT+3}")
    a(f"s_lshl_b32 s{sT+3}, s{sT+3}, 1")
    a(f"s_add_u32 s{sT}, s{sT}, s{sT+3}")
    a(f"s_lshr_b32 s{sT+3}, s{sW}, 1")
    a(f"s_lshl_b32 s{sT+5}, s{sT+3}, 10")
    a(f"s_mul_i32 s{sDX}, s{sT}, 49152")
    a(f"s_add_u32 s{sDX}, s{sDX}, s{sT+5}")
    a(f"s_add_u32 s{sDX}, s{sDX}, {WS_H}")
    a(f"s_mul_i32 s{sDX+1}, s{sT}, 20480")
    a(f"s_add_u32 s{sDX+1}, s{sDX+1}, s{sT+5}")
    a(f"s_add_u32 s{sDX+1}, s{sDX+1}, {WS_O}")
    a(f"s_mul_i32 s{sDW}, s{sT+3}, {40*1024}")
    a(f"s_mul_i32 s{sT+5}, s{sT+2}, 5120")
    a(f"s_add_u32 s{sDW}, s{sDW}, s{sT+5}")
    a(f"s_add_u32 s{sDW}, s{sDW}, {WS_WP}")
    a(f"s_lshr_b32 s{sT+5}, s{sT+4}, 2")
    a(f"s_lshl_b32 s{sT+5}, s{sT+5}, 3")
    a(f"s_and_b32 s{sT+4}, s{sT+4}, 3")
    a(f"s_add_u32 s{sT+5}, s{sT+5}, s{sT+4}")
    a(f"s_lshl_b32 s{sT+5}, s{sT+5}, 11")
    a(f"s_add_u32 s{sFp}, s{sT+5}, {WS_FL2 + 4*2048}")
    a("v_and_b32 v5, 15, v2")
    a(f"v_lshlrev_b32 v{vFo}, 7, v5")
    a(f"s_mul_i32 s{sT+5}, s{sT+2}, 5")
    a(f"s_lshr_b32 s{sT+5}, s{sT+5}, 2")
    a("v_lshrrev_b32 v5, 1, v2")
    a("v_mul_u32_u24 v5, 10, v5")
    a(f"v_and_b32 v{vPP}, 1, v2")
    a(f"v_add3_u32 v{vPP}, v{vPP}, v5, s{sT+5}")
    a(f"v_lshlrev_b32 v{vPP}, 7, v{vPP}")
    a("s_cmp_eq_u32 s3, 1")
    a("s_cbranch_scc1 L_p3_go")
    a("s_waitcnt vmcnt(4)")
    a("s_barrier")
    a.label("L_p3_go")
    ST("A", 7); ST("D", 1)
    LG = Cnt(a, "lgkmcnt", 15); VM = Cnt(a, "vmcnt", 63)
    a(f"ds_read_b128 {vr(QA,4)}, v6"); LG.op()
    a(f"s_mov_b64 exec, s[{sLO}:{sLO+1}]")
    a(f"ds_read_b64 {vr(QB,2)}, v7 offset:4096"); LG.op()
    a("s_mov_b64 exec, -1")
    def ad(t, y): return AD[(t // 4) // 6][y]
    def coff(t): return ((t // 4) % 6) * CHUNK
    tagK = {}; tagV0 = {}; tagV1 = {}
    def rdK(t):
        if t > 63: return
        if "halfLDS" in exp and t > 3 and (t & 2):
            tagK[t] = 0; return
        b = t & 1
        a(f"ds_read_b128 {vr(KA[b],4)}, v{ad(t,0)} offset:{coff(t) + (t%4)*512}"); LG.op()
        a(f"ds_read_b64 {vr(KB[b],2)}, v{ad(t,1)} offset:{coff(t) + (t%4)*256}"); tagK[t] = LG.op()
    def rdV(t):
        if t > 63: return
        if "halfLDS" in exp and t > 3 and (t & 2):
            tagV0[t] = tagV1[t] = 0; return
        b = t & 1
        if "noexec" not in exp: a(f"s_mov_b64 exec, s[{sVM}:{sVM+1}]")
        a(f"ds_read_b128 {vr(V[b][0],4)}, v{ad(t,2)} offset:{coff(t) + (t%4)*1280}"); tagV0[t] = LG.op()
        a(f"ds_read_b128 {vr(V[b][1],4)}, v{ad(t,2)} offset:{coff(t) + (t%4)*1280 + 640}"); tagV1[t] = LG.op()
        if "noexec" not in exp: a("s_mov_b64 exec, -1")
    def mf(d, A, B, C): a(f"{M32} {vr(d,16)}, {vr(A,4)}, {vr(B,4)}, {C}")
    def rowmax(s, extra=None):
        a(f"v_max3_f32 v{T0}, v{s}, v{s+1}, v{s+2}")
        a(f"v_max3_f32 v{T1}, v{s+3}, v{s+4}, v{s+5}")
        a(f"v_max3_f32 v{T2}, v{s+6}, v{s+7}, v{s+8}")
        a(f"v_max3_f32 v{T3}, v{s+9}, v{s+10}, v{s+11}")
        a(f"v_max3_f32 v{T0}, v{T0}, v{s+12}, v{s+13}")
        a(f"v_max3_f32 v{T1}, v{T1}, v{s+14}, v{s+15}")
        a(f"v_max3_f32 v{T0}, v{T0}, v{T1}, v{T2}")
        a(f"v_max3_f32 v{T0}, v{T0}, v{T3}, v{extra if extra is not None else T3}")
        a(f"v_mov_b32 v{T1}, v{T0}")
        a.nop(2)
        a(f"v_permlane32_swap_b32 v{T0}, v{T1}")
        a(f"v_max_f32 v{T0}, v{T0}, v{T1}")
    rdK(0); rdK(1); rdV(0)
    LG.need(tagK[0])
    mf(S[0], KA[0], QA, "0")
    mf(S[0], KB[0], QB, vr(S[0], 16))
    a.nop(12)
    rowmax(S[0])
    a(f"v_xor_b32 v{T0}, 0x80000000, v{T0}")
    a(f"v_lshrrev_b32 v{T0}, 16, v{T0}")
    a(f"v_cndmask_b32 v{QB+2}, 0, v{T0}, s[{sLO}:{sLO+1}]")
    a.nop(2)
    mf(S[0], KA[0], QA, "0")
    mf(S[0], KB[0], QB, vr(S[0], 16))
    a.nop(12)
    def kvdma(j):
        a(f"s_add_u32 s{sT}, s{sW}, {40 + 8*j}")
        a(f"s_lshl_b32 s{sT}, s{sT}, 10")
        a(f"s_mov_b32 m0, s{sT}")
        a(f"s_add_u32 s{sT}, s{sT}, s{sKV}")
        a(f"s_add_u32 s{sT}, s{sT}, {WS_KV}")
        a(f"buffer_load_dwordx4 v{vL}, {WS_}, s{sT} offen lds")
        return VM.op()
    tagD = {}
    def d_issue(j, part):
        f = DF[j % 3]
        wstep = 5 + j
        if part < 2:
            a(f"s_add_u32 s{sT}, s{sDW}, {wstep*4*40*1024}")
            for n in range(2 * part, 2 * part + 2): a(f"buffer_load_dwordx4 {vr(f+8+4*n,4)}, v{vL}, {WS_}, s{sT} offen offset:{n*1024}"); VM.op()
        elif part == 2:
            a(f"s_add_u32 s{sT}, s{sDW}, {wstep*4*40*1024 + 4096}")
            a(f"buffer_load_dwordx4 {vr(f+24,4)}, v{vL}, {WS_}, s{sT} offen"); VM.op()
            a(f"s_add_u32 s{sT}, s{sDX}, {j*4096}")
            a(f"buffer_load_dwordx4 {vr(f,4)}, v{vL}, {WS_}, s{sT} offen"); VM.op()
        else:
            a(f"s_add_u32 s{sT}, s{sDX}, {j*4096 + 49152}")
            a(f"buffer_load_dwordx4 {vr(f+4,4)}, v{vL}, {WS_}, s{sT} offen"); tagD[j] = VM.op()
    def d_mfma(j, q):
        f = DF[j % 3]; m, n = q & 1, q >> 1
        acc = DACC + (m * 5 + n) * 4
        a(f"{M16} {vr(acc,4)}, {vr(f+8+4*n,4)}, {vr(f+4*m,4)}, {vr(acc,4)}")
    useD = "noD" not in exp
    DT0 = opt("dt", 20); ND3 = opt("nd", 9)
    dsched = {t: [] for t in range(64)}; lsched = {t: [] for t in range(64)}; dfirst = {}
    for j in range(ND3):
        for q in range(10):
            t = DT0 + (10 * j + q) * (64 - DT0) // (10 * ND3)
            dsched[t].append((j, q)); dfirst.setdefault(j, t)
    for j in range(ND3, min(ND3 + 2, 12)): dfirst[j] = 64 + 2 * (j - ND3)
    for j in range(min(ND3 + 2, 12)):
        lw = dfirst[j] - 8; lx = max(dfirst[j] - 6, DT0 - 5 + (1 if j else 0))
        if j >= 3:
            last_prev = max(t for t in range(64) for (jj, q) in dsched[t] if jj == j - 3)
            lw = max(lw, last_prev + 1); lx = max(lx, lw + 2)
            assert lx + 1 < 64
        assert lw >= 12
        lsched[lw].append((j, 0)); lsched[lw + 1].append((j, 1)); lsched[lx].append((j, 2)); lsched[lx + 1].append((j, 3))
        assert lx + 1 < dfirst[j] - 1, (j, lx, dfirst[j])
    TF2 = DT0 - 5
    assert max(len(v) for v in dsched.values()) <= 3
    def tile(t):
        cur = t & 1; nxt = cur ^ 1
        s = S[cur]; sn = S[nxt]
        ex = lambda r: a(f"v_exp_f32 v{s+r}, v{s+r}")
        cv = lambda p: a(f"v_cvt_pk_bf16_f32 v{P+p}, v{s+2*p}, v{s+2*p+1}")
        dq = dsched[t] if useD else []
        def dm(k):
            if k < len(dq):
                j, q = dq[k]
                if q == 0: VM.need(tagD[j])
                d_mfma(j, q)
        if "noprio" not in exp: a(f"s_setprio {3 - (t % 4)}")
        if t < 63:
            LG.need(tagK[t + 1])
            mf(sn, KA[nxt], QA, "0")
        ex(0); ex(1); dm(0); ex(2); ex(3)
        if t < 63 and not ("noQK2" in exp and (t & 1)): mf(sn, KB[nxt], QB, vr(sn, 16))
        rdK(t + 2)
        ex(4); ex(5); dm(1); ex(6); ex(7)
        cv(0); cv(1)
        if t > 0:
            LG.need(tagV1[t - 1])
            mf(O, V[nxt][1], P + 4, vr(O, 16))
        rdV(t + 1)
        cv(2); cv(3)
        ex(8); ex(9); dm(2); ex(10); ex(11)
        LG.need(tagV0[t])
        mf(O, V[cur][0], P, vr(O, 16))
        if useD:
            for (j, part) in lsched[t]: d_issue(j, part)
        for r in range(12, 16): ex(r)
        cv(4); cv(5); cv(6); cv(7)
    sWOb = sKV
    def wodma(j):
        a(f"s_add_u32 s{sT}, s{sW}, {8*j}")
        a(f"s_min_u32 s{sT}, s{sT}, 99")
        a(f"s_mul_i32 s{sT+1}, s{sT}, 205")
        a(f"s_lshr_b32 s{sT+1}, s{sT+1}, 10")
        a(f"s_mul_i32 s{sT+1}, s{sT+1}, {40960 - 5*1024}")
        a(f"s_lshl_b32 s{sT}, s{sT}, 10")
        a(f"s_mov_b32 m0, s{sT}")
        a(f"s_add_u32 s{sT}, s{sT}, s{sT+1}")
        a(f"s_add_u32 s{sT}, s{sT}, s{sWOb}")
        a(f"buffer_load_dwordx4 v{vL}, {WS_}, s{sT} offen lds")
        return VM.op()
    nd = 0; nwo = 0
    TB1 = 12; tkvs = {}
    for t in range(64):
        if t == 2:
            a(f"s_waitcnt vmcnt({VM.issued})")
            a(f"v_mov_b32 v{T0}, 0")
            a(f"v_mov_b32 v{T1}, s{sNon}")
            a("s_mov_b64 exec, 1")
            a(f"buffer_store_dword v{T1}, v{T0}, {WS_}, s{sF2} offen{SC}"); VM.op()
            a("s_mov_b64 exec, -1")
        def pp_loads():
            for q in range(3):
                if q == 2: a("s_mov_b64 exec, 0xff")
                a(f"s_mov_b32 s{sT}, {WS_FLP + q*320*128}")
                a(f"buffer_load_dword v{PPD+q}, v{vPP}, {WS_}, s{sT} offen{SC}")
            a("s_mov_b64 exec, -1")
        if t == TB1 - 3:
            npp = VM.issued
            lab = a.newlabel("L_pp")
            a(f"s_cmp_lg_u32 s{sW}, 0")
            a(f"s_cbranch_scc1 {lab}")
            a(f"v_mov_b32 v{PPD+2}, s{sNon}")
            pp_loads()
            a.label(lab)
        if t == TB1:
            lab = a.newlabel("L_ppc")
            a(f"s_cmp_lg_u32 s{sW}, 0")
            a(f"s_cbranch_scc1 {lab}_ok")
            a(f"s_mov_b32 s{sT+1}, 0")
            a(f"s_waitcnt vmcnt({VM.issued - npp})")
            a.label(lab)
            for q in range(3): a(f"v_xor_b32 v{T0+q}, s{sNon}, v{PPD+q}")
            a(f"v_or3_b32 v{T0}, v{T0}, v{T1}, v{T2}")
            a(f"v_cmp_ne_u32 vcc, 0, v{T0}")
            a(f"s_add_u32 s{sT+1}, s{sT+1}, 1")
            a.nop(2)
            a("s_cmp_eq_u64 vcc, 0")
            a(f"s_cbranch_scc1 {lab}_ok")
            a(f"s_cmp_ge_u32 s{sT+1}, 0x20000")
            a(f"s_cbranch_scc1 {lab}_ok")
            a("s_sleep 8")
            pp_loads()
            a("s_waitcnt vmcnt(0)")
            a(f"s_branch {lab}")
            a.label(f"{lab}_ok")
            VM.need(tkvs[4])
            a("s_barrier")
        if useD and t == TF2 - 2:
            a(f"buffer_load_dword v{DPOLL}, v{vFo}, {WS_}, s{sFp} offen{SC}"); tpoll = VM.op()
        if useD and t == TF2:
            VM.need(tpoll)
            lab = a.newlabel("L_f2")
            a(f"s_mov_b32 s{sT+1}, 0")
            a.label(lab)
            a(f"v_cmp_ne_u32 vcc, s{sNon}, v{DPOLL}")
            a(f"s_add_u32 s{sT+1}, s{sT+1}, 1")
            a.nop(2)
            a("s_cmp_eq_u64 vcc, 0")
            a(f"s_cbranch_scc1 {lab}_ok")
            a(f"s_cmp_ge_u32 s{sT+1}, 0x20000")
            a(f"s_cbranch_scc1 {lab}_ok")
            a("s_sleep 4")
            a(f"buffer_load_dword v{DPOLL}, v{vFo}, {WS_}, s{sFp} offen{SC}")
            a("s_waitcnt vmcnt(0)")
            a(f"s_branch {lab}")
            a.label(f"{lab}_ok")
        if t == 28:
            VM.need(tkv)
            a("s_barrier")
        if t == 42:
            a("s_barrier")
            a(f"s_lshr_b32 s{sT}, s{sW}, 1")
            a(f"s_mul_i32 s{sT}, s{sT}, {40*1024}")
            a(f"s_sub_u32 s{sWOb}, s{sDW}, s{sT}")
        if t % 8 == 0 and t: ST("D", 1 + t // 8)
        tile(t)
        if nd < 15 and (nd < 10 or t >= TB1):
            tkv = tkvs[nd] = kvdma(nd); nd += 1
        if t >= 42 and nwo < 13:
            wodma(nwo); nwo += 1
    LG.need(tagV1[63])
    a.nop(2)
    mf(O, V[1][1], P + 4, vr(O, 16))
    ST("A", 8); ST("D", 9)
    a("s_setprio 0")
    a("v_and_b32 v5, 15, v2")
    a("v_lshrrev_b32 v6, 4, v2")
    a("v_mul_u32_u24 v5, 1280, v5")
    a("v_lshl_add_u32 v5, v6, 3, v5")
    a(f"s_lshl_b32 s{sT}, s{sW}, 5")
    a(f"s_add_u32 s{sFin}, s{sFin}, s{sT}")
    a(f"s_lshr_b32 s{sT}, s{sW}, 1")
    a(f"s_mul_i32 s{sT}, s{sT}, 5120")
    a(f"v_add_u32 v7, s{sT}, v{vL}")
    a(f"v_add_u32 v6, {3*20480}, v7")
    a("v_lshrrev_b32 v16, 1, v3")
    a(f"v_mul_u32_u24 v16, {5*256}, v16")
    a("v_and_b32 v17, 1, v3")
    a("v_lshl_add_u32 v16, v17, 3, v16")
    a(f"v_mul_u32_u24 v17, {2*20480}, v4")
    a("v_add_u32 v16, v16, v17")
    a(f"v_mov_b32 v{T0}, v{O+8}")
    a(f"v_mov_b32 v{T1}, v{O+8}")
    a(f"v_mov_b32 v{T2}, 0")
    a.nop(1)
    a(f"v_permlane32_swap_b32 v{T0}, v{T1}")
    for r in range(12): a(f"v_fma_f32 v{T2}, v{O+r}, 0, v{T2}")
    a(f"s_mov_b32 s{sT}, 0x71800000")
    a(f"v_add_f32 v{T2}, v{T2}, v{T1}")
    a(f"v_cmp_ngt_f32 vcc, s{sT}, v{T2}")
    a.nop(4)
    a("s_cmp_lg_u64 vcc, 0")
    a("s_cbranch_scc1 L_slow")
    a.label("L_fin")
    a(f"v_rcp_f32 v{T1}, v{T1}")
    a(f"s_lshr_b32 s{sT}, s{sH}, 1")
    a(f"s_mul_i32 s{sT}, s{sT}, {5*256}")
    a(f"s_add_u32 s{sT}, s{sT}, {WS_O}")
    a(f"s_and_b32 s{sT+1}, s{sH}, 1")
    a(f"s_mul_i32 s{sT+2}, s{sT+1}, {3*256}")
    a(f"s_add_u32 s{sT+2}, s{sT+2}, s{sT}")
    a(f"s_lshl_b32 s{sT+1}, s{sT+1}, 3")
    a(f"s_add_u32 s{sT+1}, s{sT+1}, s{sT}")
    for r in range(12): a(f"v_mul_f32 v{O+r}, v{O+r}, v{T1}")
    for p in range(6): a(f"v_cvt_pk_bf16_f32 v{P+p}, v{O+2*p}, v{O+2*p+1}")
    a(f"v_permlane32_swap_b32 v{P}, v{P+2}")
    a(f"v_permlane32_swap_b32 v{P+1}, v{P+3}")
    a(f"buffer_store_dwordx4 {vr(P,4)}, v{vOst+1}, {WS_}, s{sT+2} offen{SC}")
    a(f"s_mov_b64 exec, s[{sLO}:{sLO+1}]")
    a(f"buffer_store_dwordx2 {vr(P+4,2)}, v{vOst}, {WS_}, s{sT+1} offen offset:512{SC}")
    a("s_mov_b64 exec, -1")
    for m in range(4):
        a(f"s_add_u32 s{sT}, s{sFin}, {m*16*1280}")
        a(f"buffer_load_dwordx2 {vr(20+2*m,2)}, v5, {X_}, s{sT} offen")
    VM.op(6)
    ST("A", 9); ST("D", 10)
    if useD:
        for j in range(ND3, 12):
            if j + 2 < 12 and j + 2 not in tagD:
                for part in range(4): d_issue(j + 2, part)
            VM.need(tagD[j])
            for q in range(10): d_mfma(j, q)
    a(f"s_cmp_lg_u32 s{sW}, 0")
    a("s_cbranch_scc1 L_f3_wait")
    a(f"s_add_u32 s{sT+2}, s{sDX+1}, 512")
    a(f"s_mov_b32 s{sT+1}, 0")
    a.label("L_f3")
    a(f"buffer_load_dword v{T1}, v16, {WS_}, s{sT+2} offen{SC}")
    a(f"s_add_u32 s{sT+1}, s{sT+1}, 1")
    a("s_waitcnt vmcnt(0)")
    a(f"v_cmp_eq_u32 vcc, -1, v{T1}")
    a.nop(4)
    a("s_cmp_eq_u64 vcc, 0")
    a("s_cbranch_scc1 L_f3_wait")
    a(f"s_cmp_ge_u32 s{sT+1}, 0x20000")
    a("s_cbranch_scc1 L_f3_wait")
    a("s_sleep 1")
    a("s_branch L_f3")
    a.label("L_f3_wait")
    a("s_waitcnt vmcnt(0)")
    a("s_barrier")
    ST("A", 10); ST("D", 11)
    XOF = [72 + 8 * k for k in range(4)] + [36]
    WOF = [164 + 20 * k for k in range(4)] + [44]
    a(f"s_mov_b32 s{sT+1}, 0")
    a.label("L_xo")
    for k in range(5):
        for m in range(2):
            a(f"s_add_u32 s{sT}, s{sDX+1}, {k*4096 + m*20480}")
            a(f"buffer_load_dwordx4 {vr(XOF[k]+4*m,4)}, v{vL}, {WS_}, s{sT} offen{SC}")
    for k in range(5):
        for n in range(5):
            off = k * 20480 + n * 1024
            a(f"ds_read_b128 {vr(WOF[k]+4*n,4)}, v{7 if k < 3 else 6} offset:{off if k < 3 else off - 3*20480}")
    for k in range(5):
        a(f"s_waitcnt vmcnt({8-2*k})")
        x = XOF[k]
        a(f"v_max3_u32 v{28+k}, v{x}, v{x+1}, v{x+2}")
        a(f"v_max3_u32 v{28+k}, v{28+k}, v{x+3}, v{x+4}")
        a(f"v_max3_u32 v{28+k}, v{28+k}, v{x+5}, v{x+6}")
        a(f"v_max_u32 v{28+k}, v{28+k}, v{x+7}")
    a("v_max3_u32 v28, v28, v29, v30")
    a("v_max3_u32 v28, v28, v31, v32")
    a("v_cmp_eq_u32 vcc, -1, v28")
    a(f"s_add_u32 s{sT+1}, s{sT+1}, 1")
    a("s_waitcnt lgkmcnt(0)")
    a.nop(2)
    a("s_cmp_eq_u64 vcc, 0")
    a("s_cbranch_scc1 L_xo_ok")
    a(f"s_cmp_lt_u32 s{sT+1}, 0x20000")
    a("s_cbranch_scc1 L_xo")
    a.label("L_xo_ok")
    a("s_barrier")
    for k in range(5):
        for n in range(5):
            for m in range(2):
                acc = DACC + (m * 5 + n) * 4
                a(f"{M16} {vr(acc,4)}, {vr(WOF[k]+4*n,4)}, {vr(XOF[k]+4*m,4)}, {vr(acc,4)}")
    ST("A", 11)
    a(f"s_and_b32 s{sT}, s{sW}, 1")
    a(f"s_lshl_b32 s{sT}, s{sT}, 3")
    a(f"s_lshr_b32 s{sT+1}, s{sW}, 1")
    a(f"s_add_u32 s{sT}, s{sT}, s{sT+1}")
    a(f"s_lshl_b32 s{sT}, s{sT}, 10")
    a(f"v_add_u32 v6, s{sT}, v{vL}")
    a(f"v_add_u32 v7, 0x10000, v6")
    a.nop(2)
    for n in range(5):
        for m in range(2):
            off = (n * 16 + m * 4) * 1024
            a(f"ds_write_b128 v{6 if off < 65536 else 7}, {vr(DACC+(m*5+n)*4,4)} offset:{off % 65536}")
    a(f"s_lshl_b32 s{sT}, s{sW}, 14")
    a(f"v_add_u32 v6, s{sT}, v{vL}")
    for m in range(4):
        for p in range(2):
            a(f"v_lshlrev_b32 v{72+4*m+2*p}, 16, v{20+2*m+p}")
            a(f"v_and_b32 v{72+4*m+2*p+1}, 0xffff0000, v{20+2*m+p}")
    a("s_waitcnt lgkmcnt(0)")
    a("s_barrier")
    a(f"s_cmp_ge_u32 s{sW}, 5")
    a("s_cbranch_scc1 L_done")
    RB = 124
    for q in range(16): a(f"ds_read_b128 {vr(RB+4*q,4)}, v6 offset:{q*1024}")
    for m in range(4):
        a(f"s_waitcnt lgkmcnt({12-4*m})")
        acc = 72 + 4 * m
        for p in range(2):
            for k in range(4):
                a(f"v_pk_add_f32 {vr(acc+2*p,2)}, {vr(acc+2*p,2)}, {vr(RB+(m*4+k)*4+2*p,2)}")
            a(f"v_cvt_pk_bf16_f32 v{acc+p}, v{acc+2*p}, v{acc+2*p+1}")
        a(f"s_add_u32 s{sT}, s{sFin}, {m*16*1280}")
        a(f"buffer_store_dwordx2 {vr(acc,2)}, v5, {OUT_}, s{sT} offen")
    a.label("L_done")
    if "dbgst" in exp:
        a("s_waitcnt vmcnt(0) lgkmcnt(0)")
        a("s_memrealtime s[96:97]")
        a("s_waitcnt lgkmcnt(0)")
        a(f"s_lshl_b32 s{sT}, s2, 3")
        a(f"s_add_u32 s{sT}, s{sT}, s{sW}")
        a(f"s_cmp_lg_u32 s{sT}, {opt('dbgst', 0)}")
        a("s_cbranch_scc1 L_end")
        a("s_mov_b64 exec, 1")
        a("v_mov_b32 v1, 0")
        for i in range(1, 13):
            a(f"s_sub_u32 s{sT}, s{72+2*i}, s72")
            a(f"v_mov_b32 v2, s{sT}")
            a(f"global_store_dword v1, v2, s[{sDbg}:{sDbg+1}] offset:{4*i}")
        a("s_endpgm")
    ST.dump(WS_, sW, sT)
    a.label("L_end")
    a("s_endpgm")

    a.label("L_slow")
    vKa, vKb, vV = AD[0]
    a(f"v_mov_b32 v{QB+2}, 0")
    a(f"v_mov_b32 v{vM}, 0xff800000")
    for r in range(16): a(f"v_mov_b32 v{O+r}, 0")
    a(f"s_mov_b32 s{sLoop}, 0")
    a(f"s_mul_i32 s{sT+3}, s{sH}, {16*CHUNK}")
    a(f"s_add_u32 s{sT+3}, s{sT+3}, {WS_KV}")
    a.label("L_slow_loop")
    a(f"buffer_load_dwordx4 {vr(KA[0],4)}, v{vKa}, {WS_}, s{sT+3} offen")
    a(f"buffer_load_dwordx2 {vr(KB[0],2)}, v{vKb}, {WS_}, s{sT+3} offen")
    a(f"s_mov_b64 exec, s[{sVM}:{sVM+1}]")
    a(f"buffer_load_dwordx4 {vr(V[0][0],4)}, v{vV}, {WS_}, s{sT+3} offen")
    a(f"buffer_load_dwordx4 {vr(V[0][1],4)}, v{vV}, {WS_}, s{sT+3} offen offset:640")
    a("s_mov_b64 exec, -1")
    a("s_waitcnt vmcnt(0)")
    s = S[1]
    mf(s, KA[0], QA, "0")
    mf(s, KB[0], QB, vr(s, 16))
    a.nop(12)
    rowmax(s, vM)
    a(f"v_sub_f32 v{T1}, v{vM}, v{T0}")
    a(f"v_exp_f32 v{T1}, v{T1}")
    a(f"v_mov_b32 v{vM}, v{T0}")
    for r in range(16): a(f"v_sub_f32 v{s+r}, v{s+r}, v{T0}")
    for r in range(16): a(f"v_mul_f32 v{O+r}, v{O+r}, v{T1}")
    for r in range(16): a(f"v_exp_f32 v{s+r}, v{s+r}")
    a.nop(1)
    for p in range(8): a(f"v_cvt_pk_bf16_f32 v{P+p}, v{s+2*p}, v{s+2*p+1}")
    a.nop(2)
    mf(O, V[0][0], P, vr(O, 16))
    mf(O, V[0][1], P + 4, vr(O, 16))
    a(f"s_add_u32 s{sLoop}, s{sLoop}, 1")
    a(f"s_and_b32 s{sT}, s{sLoop}, 3")
    a(f"s_cmp_eq_u32 s{sT}, 0")
    a(f"s_movk_i32 s{sT}, 512")
    a(f"s_movk_i32 s{sT+1}, 256")
    a(f"s_movk_i32 s{sT+2}, 1280")
    a(f"s_cselect_b32 s{sT}, {CHUNK-3*512}, s{sT}")
    a(f"s_cselect_b32 s{sT+1}, {CHUNK-3*256}, s{sT+1}")
    a(f"s_cselect_b32 s{sT+2}, {CHUNK-3*1280}, s{sT+2}")
    a(f"v_add_u32 v{vKa}, s{sT}, v{vKa}")
    a(f"v_add_u32 v{vKb}, s{sT+1}, v{vKb}")
    a(f"v_add_u32 v{vV}, s{sT+2}, v{vV}")
    a.nop(8)
    a(f"s_cmp_lt_u32 s{sLoop}, 64")
    a("s_cbranch_scc1 L_slow_loop")
    a.nop(4)
    a(f"v_mov_b32 v{T0}, v{O+8}")
    a(f"v_mov_b32 v{T1}, v{O+8}")
    a.nop(2)
    a(f"v_permlane32_swap_b32 v{T0}, v{T1}")
    a("s_branch L_fin")
    a.label("L_code_end")
    return kernel_header(NAME) + a.text(), kernel_desc(NAME, NV, 102 if stamp else 72)

if __name__ == "__main__":
    import sys
    stamp = sys.argv[2] if len(sys.argv) > 2 and sys.argv[2] != "none" else False
    ex = sys.argv[3] if len(sys.argv) > 3 else ""
    body, desc = gen(stamp, ex)
    hdr = open("parallel_sum__softmax_full_mha__glu_gated_reglu__prompt.s.ref").read().split("; Override launch")[0]
    s = hdr + f"; @launch grid=(256,1,1) block=(512,1,1) lds={LDS_M1}\n"
    s += '.amdgcn_target "amdgcn-amd-amdhsa--gfx950"\n.text\n' + body + '.section .rodata,"a"\n' + desc
    open(sys.argv[1], "w").write(s)
```

```python
from asmlib import *
from k_qkv import ln_rowmath
NAME = "parallel_sum__softmax_full_mha__glu_gated_reglu__prompt_kernel"
LDS_M1 = 163840
M32 = "v_mfma_f32_32x32x16_bf16"; M16 = "v_mfma_f32_16x16x32_bf16"

def gen(stamp=False, exp=""):
    a = Asm()
    ST = Stamps2(a, stamp)
    opt = lambda key, dflt: int(exp.split(key)[1].split("_")[0]) if key in exp else dflt
    sX, sWq, sWS, sWg, sWu, sOut, sPk = 8, 12, 16, 20, 24, 28, 32
    sDbg = 36
    sW, sMT, sNT, sIDX, sXCD, sNG = 38, 39, 40, 41, 42, 43
    sLO, sVM, sM = 44, 46, 48
    sT = 50
    sNon = 58
    sLW = 59
    sA, sB, sC = 60, 61, 62
    sG2 = 63
    sR = 64
    R_ = lambda b: f"s[{b}:{b+3}]"
    X_, WQ_, WS_, WG_, WU_, OUT_, PK_ = map(R_, (sX, sWq, sWS, sWg, sWu, sOut, sPk))
    SC = " sc1"
    NST, STG, PKS = 4, 32768, 40960
    ST_NM, ST_RS, ST_CS, ST_SUM = 18432, 18944, 21504, 22016
    GSLOT = [122880, 81920, 40960, 0]
    CSA = 122880
    QOFF = 15 * CHUNK

    a("s_cmp_ge_u32 s2, 256")
    a("s_cbranch_scc1 L_end")
    ST.start()
    if "cpf" in exp:
        a("s_getpc_b64 s[4:5]")
        a.label("L_pc")
        a("s_lshr_b32 s3, s2, 3")
        a("s_lshl_b32 s3, s3, 11")
        a("v_lshlrev_b32 v1, 2, v0")
        a("v_add_u32 v1, s3, v1")
        a(f"v_min_u32 v1, L_code_end - L_pc - 4, v1")
        a("global_load_dword v230, v1, s[4:5]")
    a(f"s_load_dwordx4 s[4:7], s[0:1], 0")
    a(f"s_load_dwordx2 s[{sT}:{sT+1}], s[0:1], 16")
    a(f"s_load_dwordx4 s[{sT+2}:{sT+5}], s[0:1], 32")
    a(f"s_load_dwordx4 s[{sR}:{sR+3}], s[0:1], 48")
    a(f"s_load_dwordx4 s[{sR+4}:{sR+7}], s[0:1], 64")
    a("v_lshrrev_b32 v1, 6, v0")
    a("v_and_b32 v2, 63, v0")
    a(f"v_readfirstlane_b32 s{sW}, v1")
    a(f"s_and_b32 s{sXCD}, s2, 7")
    a(f"s_lshr_b32 s{sIDX}, s2, 3")
    a(f"s_lshr_b32 s{sMT}, s{sXCD}, 2")
    a(f"s_lshl_b32 s{sMT}, s{sMT}, 3")
    a(f"s_and_b32 s3, s{sIDX}, 7")
    a(f"s_add_u32 s{sMT}, s{sMT}, s3")
    a(f"s_and_b32 s{sNG}, s{sXCD}, 3")
    a(f"s_lshl_b32 s{sNG}, s{sNG}, 2")
    a(f"s_lshr_b32 s3, s{sIDX}, 3")
    a(f"s_add_u32 s{sNG}, s{sNG}, s3")
    a(f"s_min_u32 s{sNT}, s{sNG}, 14")
    a(f"s_and_b32 s{sLW}, s{sW}, 3")
    a(f"s_mov_b32 s{sLO}, -1\ns_mov_b32 s{sLO+1}, 0\ns_mov_b32 s{sVM}, 0xfffff\ns_mov_b32 s{sVM+1}, 0xfffff")
    a("v_and_b32 v3, 31, v2")
    a("v_lshrrev_b32 v4, 5, v2")
    a(f"s_lshl_b32 s{sA}, s{sMT}, 4")
    a(f"s_add_u32 s{sA}, s{sA}, s{sNG}")
    a(f"s_mul_i32 s{sA}, s{sA}, 3")
    a(f"s_add_u32 s{sA}, s{sA}, s{sW}")
    a(f"s_mul_i32 s{sB}, s{sA}, 6554")
    a(f"s_lshr_b32 s{sB}, s{sB}, 16")
    a(f"s_mul_i32 s{sG2}, s{sLW}, {16*3072}")
    a(f"s_mul_i32 s3, s{sNG}, 192")
    a(f"s_add_u32 s{sG2}, s{sG2}, s3")
    a("s_waitcnt lgkmcnt(0)")
    ST("E", 1)
    def delay(tag):
        if f"dly{tag}" in exp:
            lab = a.newlabel("L_dly")
            a(f"s_mov_b32 s{sT+7}, 280")
            a.label(lab)
            a(f"s_sub_u32 s{sT+7}, s{sT+7}, 1")
            a(f"s_cmp_lg_u32 s{sT+7}, 0")
            a(f"s_cbranch_scc1 {lab}")
    delay("A")
    def srd(b, lo, hi, n): a(f"s_mov_b32 s{b}, s{lo}\ns_and_b32 s{b+1}, s{hi}, 0xffff\ns_mov_b32 s{b+2}, {n}\ns_mov_b32 s{b+3}, 0x20000")
    srd(sX, 4, 5, 2048 * 1280); srd(sWq, 6, 7, 640 * 3840); srd(sWS, sR + 6, sR + 7, WS_END)
    srd(sWg, sT + 2, sT + 3, 640 * 3072); srd(sWu, sT + 4, sT + 5, 640 * 3072); srd(sOut, sR + 2, sR + 3, 2048 * 1280)
    a(f"s_mov_b64 s[{sDbg}:{sDbg+1}], s[{sR+4}:{sR+5}]")
    a(f"s_cmp_lt_u32 s{sB}, 20")
    a(f"s_cselect_b32 s{sPk}, s{sT}, s{sR}")
    a(f"s_cselect_b32 s{sPk+1}, s{sT+1}, s{sR+1}")
    a(f"s_mov_b32 s{sPk+2}, {1536*1280}")
    a(f"s_cselect_b32 s{sPk+2}, {640*1280}, s{sPk+2}")
    a(f"s_and_b32 s{sPk+1}, s{sPk+1}, 0xffff")
    a(f"s_mov_b32 s{sPk+3}, 0x20000")

    sPB = [sR + 5, sR + 6, sR + 7]
    vPF = 214; PFD = 216
    lab = a.newlabel("L_pf")
    a(f"s_mul_i32 s{sT}, s{sIDX}, 12")
    a(f"s_mul_i32 s{sT+1}, s{sLW}, 3")
    a(f"s_add_u32 s{sT}, s{sT}, s{sT+1}")
    a(f"s_lshr_b32 s{sT+4}, s{sW}, 2")
    a(f"s_xor_b32 s{sT+4}, s{sT+4}, 1")
    a(f"s_mov_b32 s7, 0x20000")
    a(f"s_cmp_ge_u32 s{sT}, 255")
    a(f"s_cbranch_scc1 {lab}_w")
    a(f"s_mov_b32 s4, s{sX}\ns_mov_b32 s5, s{sX+1}\ns_mov_b32 s6, s{sX+2}\ns_movk_i32 s3, 256")
    a(f"v_lshrrev_b32 v{vPF}, 3, v2")
    a(f"v_mul_u32_u24 v{vPF}, 1280, v{vPF}")
    a("v_and_b32 v1, 7, v2")
    a(f"v_lshl_add_u32 v{vPF}, v1, 4, v{vPF}")
    a(f"s_lshr_b32 s{sT+1}, s{sXCD}, 2")
    a(f"s_mul_i32 s{sT+1}, s{sT+1}, {1024*1280}")
    for j in range(3):
        a(f"s_add_u32 s{sT+2}, s{sT}, {j}")
        a(f"s_lshr_b32 s{sT+3}, s{sT+2}, 1")
        a(f"s_mul_i32 s{sT+3}, s{sT+3}, {8*1280}")
        a(f"s_and_b32 s{sT+2}, s{sT+2}, 1")
        a(f"s_lshl_b32 s{sT+2}, s{sT+2}, 7")
        a(f"s_add_u32 s{sT+3}, s{sT+3}, s{sT+2}")
        a(f"s_add_u32 s{sPB[j]}, s{sT+3}, s{sT+1}")
    a(f"s_branch {lab}")
    a.label(f"{lab}_w")
    a(f"s_mov_b32 s4, s{sWq}\ns_mov_b32 s5, s{sWq+1}\ns_mov_b32 s6, s{sWq+2}\ns_mov_b32 s3, {128*3840}")
    a(f"v_lshlrev_b32 v{vPF}, 4, v2")
    a(f"s_sub_u32 s{sT}, s{sT}, 255")
    a(f"s_mul_i32 s{sT}, s{sT}, 3840")
    a(f"s_and_b32 s{sT+1}, s{sXCD}, 3")
    a(f"s_lshl_b32 s{sT+1}, s{sT+1}, 10")
    a(f"s_add_u32 s{sT}, s{sT}, s{sT+1}")
    for j in range(3): a(f"s_add_u32 s{sPB[j]}, s{sT}, {j*3840}")
    a.label(lab)
    a(f"s_mul_i32 s{sT}, s{sT+4}, s3")
    for j in range(3): a(f"s_add_u32 s{sPB[j]}, s{sPB[j]}, s{sT}")
    def pf1(cnt=None, adv=1):
        for j in range(3):
            a(f"buffer_load_dwordx4 {vr(PFD,4)}, v{vPF}, s[4:7], s{sPB[j]} offen")
            for _ in range(adv): a(f"s_add_u32 s{sPB[j]}, s{sPB[j]}, s3")
            if cnt: cnt.op()
    ST("E", 2)
    pf1()
    ST("E", 3)
    vXE, vXO = 220, 221; vGd = [222, 223, 224]
    SEL = 168
    sXo, sLd, sLdW, sF2 = sR, sR + 1, sR + 2, sR + 3
    a(f"s_lshl_b32 s{sF2}, s{sMT}, 3\ns_add_u32 s{sF2}, s{sF2}, s{sW}\ns_lshl_b32 s{sF2}, s{sF2}, 4\ns_add_u32 s{sF2}, s{sF2}, s{sNG}")
    a(f"s_lshl_b32 s{sF2}, s{sF2}, 7\ns_add_u32 s{sF2}, s{sF2}, {WS_FL2}")
    a(f"s_or_b32 s{sT}, s2, s{sW}")
    a(f"s_cmp_lg_u32 s{sT}, 0")
    a("s_cbranch_scc1 L_nonce_done")
    a(f"s_memrealtime s[{sT}:{sT+1}]")
    a("v_mov_b32 v9, 0")
    a("s_waitcnt lgkmcnt(0)")
    a(f"s_or_b32 s{sT}, s{sT}, 1")
    a(f"v_mov_b32 v10, s{sT}")
    a("s_mov_b64 exec, 1")
    a(f"global_store_dword v9, v10, s[{sDbg}:{sDbg+1}] sc1")
    a("s_mov_b64 exec, -1")
    a.label("L_nonce_done")
    a("v_lshrrev_b32 v9, 4, v2")
    a("v_lshrrev_b32 v10, 3, v2")
    a("v_mul_u32_u24 v10, 1280, v10")
    a("v_and_b32 v11, 7, v2")
    a(f"v_xor_b32 v{vXE}, v11, v9")
    a(f"v_xor_b32 v{vXO}, 4, v{vXE}")
    a(f"v_lshl_add_u32 v{vXE}, v{vXE}, 4, v10")
    a(f"v_lshl_add_u32 v{vXO}, v{vXO}, 4, v10")
    a(f"s_lshl_b32 s{sXo}, s{sMT}, 7")
    a(f"s_lshl_b32 s{sT}, s{sLW}, 5")
    a(f"s_add_u32 s{sXo}, s{sXo}, s{sT}")
    a(f"s_mul_i32 s{sXo}, s{sXo}, 1280")
    a(f"s_lshl_b32 s{sLd}, s{sLW}, 12")
    a(f"s_mul_i32 s{sLdW}, s{sLW}, 3072")
    a(f"s_cmp_ge_u32 s{sW}, 4")
    a("s_cbranch_scc1 L_B")

    vNon = 215
    def nonce_issue(cnt):
        a(f"v_mov_b32 v{vNon}, 0")
        a(f"global_load_dword v{vNon}, v{vNon}, s[{sDbg}:{sDbg+1}] sc1")
        return cnt.op()
    def nonce_get(cnt, tag):
        lab = a.newlabel("L_non")
        cnt.need(tag)
        a(f"s_mov_b32 s{sT+1}, 0")
        a.label(lab)
        a(f"v_readfirstlane_b32 s{sNon}, v{vNon}")
        a(f"s_add_u32 s{sT+1}, s{sT+1}, 1")
        a(f"s_cmp_lg_u32 s{sNon}, 0")
        a(f"s_cbranch_scc1 {lab}_ok")
        a(f"s_cmp_ge_u32 s{sT+1}, 0x20000")
        a(f"s_cbranch_scc1 {lab}_ok")
        a("s_sleep 8")
        a(f"v_mov_b32 v{vNon}, 0")
        a(f"global_load_dword v{vNon}, v{vNon}, s[{sDbg}:{sDbg+1}] sc1")
        a("s_waitcnt vmcnt(0)")
        a(f"s_branch {lab}")
        a.label(f"{lab}_ok")
    def common_late_setup():
        for t in range(3):
            a(f"v_add_u32 v10, {64*t}, v2")
            a(f"v_mul_u32_u24 v11, 5462, v10")
            a(f"v_lshrrev_b32 v11, 16, v11")
            a(f"v_mul_u32_u24 v9, 12, v11")
            a(f"v_sub_u32 v9, v10, v9")
            a(f"v_mul_u32_u24 v11, 3072, v11")
            a(f"v_lshl_add_u32 v{vGd[t]}, v9, 4, v11")
        a("v_lshrrev_b32 v9, 4, v2")
        a("v_and_b32 v9, 1, v9")
        a("v_and_b32 v10, 15, v2")
        a("v_cmp_eq_u32 vcc, v10, v9")
        a("v_mov_b32 v10, 0x3f803f80")
        a.nop(1)
        for r in range(4): a(f"v_cndmask_b32 v{SEL+r}, 0, v10, vcc")
    def issue2(st, cnt, only=None):
        base = GSLOT[st % 4]
        if only == "last":
            a(f"s_add_u32 s{sT}, s{sG2}, {st*64*3072}")
            a(f"s_add_u32 m0, s{sLdW}, {base + 16384 + 2*1024}")
            a.nop(1)
            a(f"buffer_load_dwordx4 v{vGd[2]}, {WG_}, s{sT} offen lds")
            return cnt.op(1)
        for j in range(4):
            a(f"s_add_u32 m0, s{sLd}, {base + j*1024}")
            a(f"s_add_u32 s{sT}, s{sXo}, {j*8*1280 + st*128}")
            a(f"buffer_load_dwordx4 v{vXO if j & 1 else vXE}, {X_}, s{sT} offen lds")
        for mat in range(2):
            for t in range(3):
                if only == "butlast" and mat == 0 and t == 2: continue
                a(f"s_add_u32 m0, s{sLdW}, {base + 16384 + mat*12288 + t*1024}")
                a(f"s_add_u32 s{sT}, s{sG2}, {st*64*3072}")
                a(f"buffer_load_dwordx4 v{vGd[t]}, {WU_ if mat else WG_}, s{sT} offen lds")
        return cnt.op(9 if only else 10)

    if "pfall" in exp:
        pf1(); pf1(); pf1(adv=0)
    elif "pf3" in exp:
        pf1(); pf1(adv=0)
    else:
        pf1(adv=0)
    if "tlb" in exp:
        G = opt("tlb", 21)
        a(f"v_lshlrev_b32 v5, {G}, v2")
        for k, (srdn, off) in enumerate(((WS_, 4032), (WG_, 0), (WU_, 0), (OUT_, 0), (PK_, 0))):
            a(f"s_cmp_lg_u32 s{sW}, {k % 4}")
            lab = a.newlabel("L_tw")
            a(f"s_cbranch_scc1 {lab}")
            a(f"buffer_load_dword v{PFD}, v5, {srdn}, 0 offen offset:{off} sc1")
            a.label(lab)
    XF = [[8, 12], [16, 20]]; WF = [[24, 28], [32, 36]]
    vXA = [[[40 + (hi * 2 + mi) * 4 + ks for ks in range(4)] for mi in range(2)] for hi in range(2)]
    vWA = [[56 + hi * 2 + ni for ni in range(2)] for hi in range(2)]
    RSD = 60
    ACC = 64
    T = list(range(128, 168))
    CSD = 172
    U = [176, 177, 178, 179]
    vPK = [230, 231, 232, 233]; vPKr = 234
    sWM, sWN, sPKc, sPKl, sPKb = sR + 4, sR + 5, sR + 6, sR + 7, 3
    common_late_setup()
    a(f"s_and_b32 s{sWM}, s{sW}, 1")
    a(f"s_lshr_b32 s{sWN}, s{sW}, 1")
    a("v_lshrrev_b32 v5, 1, v3")
    a("v_and_b32 v5, 7, v5")
    for mi in range(2):
        a(f"s_xor_b32 s{sT}, s{sWN}, {mi}")
        a(f"s_lshl_b32 s{sT+1}, s{sWM}, 1")
        a(f"s_add_u32 s{sT}, s{sT}, s{sT+1}")
        a(f"s_lshl_b32 s{sT}, s{sT}, 12")
        a(f"v_lshl_add_u32 v6, v3, 7, s{sT}")
        for ks in range(4):
            a(f"v_or_b32 v7, {2*ks}, v4")
            a(f"v_xor_b32 v7, v7, v5")
            a(f"v_lshl_add_u32 v{vXA[0][mi][ks]}, v7, 4, v6")
            a(f"v_add_u32 v{vXA[1][mi][ks]}, 0x10000, v{vXA[0][mi][ks]}")
    a("v_lshrrev_b32 v5, 2, v2")
    a("v_and_b32 v5, 3, v5")
    a("v_lshl_add_u32 v6, v4, 3, v5")
    a("v_lshlrev_b32 v6, 8, v6")
    a("v_lshrrev_b32 v7, 4, v2")
    a("v_and_b32 v7, 1, v7")
    a("v_lshl_add_u32 v6, v7, 5, v6")
    a("v_and_b32 v7, 3, v2")
    a("v_lshl_add_u32 v6, v7, 3, v6")
    a("v_add_u32 v6, 16384, v6")
    for ni in range(2):
        a(f"s_xor_b32 s{sT}, s{sWM}, {ni}")
        a(f"s_lshl_b32 s{sT+1}, s{sWN}, 1")
        a(f"s_add_u32 s{sT}, s{sT}, s{sT+1}")
        a(f"v_xor_b32 v7, s{sT}, v5")
        a(f"v_lshl_add_u32 v{vWA[0][ni]}, v7, 6, v6")
        a(f"v_add_u32 v{vWA[1][ni]}, 0x10000, v{vWA[0][ni]}")
    for r in range(64): a(f"v_mov_b32 v{ACC+r}, 0")
    for r in range(4): a(f"v_mov_b32 v{CSD+r}, 0\nv_mov_b32 v{RSD+r}, 0")
    a(f"s_mul_i32 s{sT+2}, s{sB}, 10")
    a(f"s_sub_u32 s{sT+2}, s{sA}, s{sT+2}")
    a(f"s_cmp_lt_u32 s{sB}, 20")
    a(f"s_cselect_b32 s{sT+3}, 0, 20")
    a(f"s_cselect_b64 s[{sM}:{sM+1}], -1, 0")
    a(f"s_sub_u32 s{sT+3}, s{sB}, s{sT+3}")
    a(f"s_lshl_b32 s{sT+3}, s{sT+3}, 5")
    a(f"s_lshl_b32 s{sPKc}, s{sT+2}, 7")
    a(f"s_lshl_b32 s{sPKl}, s{sW}, 12")
    a(f"s_add_u32 s{sPKl}, s{sPKl}, {PKS}")
    a("v_lshrrev_b32 v5, 3, v2")
    a("v_and_b32 v6, 7, v2")
    for t in range(4):
        a(f"v_add_u32 v7, s{sT+3}, v5")
        if t: a(f"v_add_u32 v7, {8*t}, v7")
        a(f"v_mul_u32_u24 v{U[0]}, 1639, v7")
        a(f"v_lshrrev_b32 v{U[0]}, 16, v{U[0]}")
        a(f"v_mul_u32_u24 v{U[0]}, 40, v{U[0]}")
        a(f"v_sub_u32 v{U[0]}, v7, v{U[0]}")
        a(f"v_cmp_le_u32 vcc, 24, v{U[0]}")
        a(f"v_cmp_le_u32 s[{sT+6}:{sT+7}], 20, v{U[0]}")
        a(f"v_mov_b32 v{U[1]}, 16")
        a.nop(1)
        a(f"v_cndmask_b32 v{U[1]}, 0, v{U[1]}, s[{sT+6}:{sT+7}]")
        a(f"v_cndmask_b32 v{U[1]}, v{U[1]}, -4, vcc")
        a(f"v_cndmask_b32 v{U[1]}, 0, v{U[1]}, s[{sM}:{sM+1}]")
        a(f"v_add_u32 v7, v7, v{U[1]}")
        a("v_mul_u32_u24 v7, 1280, v7")
        a(f"v_lshl_add_u32 v{vPK[t]}, v6, 4, v7")
        a(f"v_add_u32 v{vPK[t]}, s{sPKc}, v{vPK[t]}")
    a("v_lshrrev_b32 v5, 4, v2")
    a("v_lshrrev_b32 v6, 2, v2")
    a("v_and_b32 v6, 3, v6")
    a("v_lshl_add_u32 v5, v5, 3, v6")
    a("v_lshlrev_b32 v5, 7, v5")
    a("v_and_b32 v6, 3, v2")
    a("v_lshl_add_u32 v5, v6, 3, v5")
    a(f"v_add_u32 v{vPKr}, s{sPKl}, v5")
    def gprefetch_setup():
        a(f"s_and_b32 s{sT}, s{sW}, 1")
        a(f"s_cmp_eq_u32 s{sT}, 0")
        a(f"s_cselect_b32 s4, s{sWg}, s{sWu}")
        a(f"s_cselect_b32 s5, s{sWg+1}, s{sWu+1}")
        a(f"s_mov_b32 s6, {640*3072}")
        a(f"s_lshl_b32 s{sT}, s{sIDX}, 1")
        a(f"s_lshr_b32 s{sT+1}, s{sLW}, 1")
        a(f"s_add_u32 s{sT}, s{sT}, s{sT+1}")
        a(f"s_mul_i32 s3, s{sT}, {4*3072}")
        a(f"s_and_b32 s{sT}, s{sXCD}, 3")
        a(f"s_mul_i32 s{sT}, s{sT}, 768")
        a(f"s_add_u32 s3, s3, s{sT}")
        a(f"v_lshrrev_b32 v{vPF}, 4, v2")
        a(f"v_mul_u32_u24 v{vPF}, 3072, v{vPF}")
        a("v_and_b32 v1, 15, v2")
        a(f"v_lshl_add_u32 v{vPF}, v1, 4, v{vPF}")
    gprefetch_setup()
    CV = Cnt(a, "vmcnt", 63); tags = {}
    def gprefetch(n):
        if "nopf2" in exp: return
        a(f"s_add_u32 s{sT}, s3, {(n // 3)*256*3072}")
        a(f"buffer_load_dwordx4 {vr(PFD,4)}, v{vPF}, s[4:7], s{sT} offen offset:{(n % 3)*256}")
        CV.op()
    def pack_ids():
        a(f"s_lshl_b32 s3, s{sMT}, 4")
        a(f"s_add_u32 s3, s3, s{sNG}")
        a(f"s_mul_i32 s3, s3, 3")
        a(f"s_add_u32 s3, s3, s{sW}")
        a(f"s_lshl_b32 s{sPKl}, s{sW}, 12")
        a(f"s_add_u32 s{sPKl}, s{sPKl}, {PKS}")
    def pack_issue(cnt):
        for t in range(4):
            a(f"s_add_u32 m0, s{sPKl}, {t*1024}")
            a.nop(1)
            a(f"buffer_load_dwordx4 v{vPK[t]}, {PK_}, 0 offen lds")
        return cnt.op(4)
    def pack_finish(cnt, tag):
        a(f"s_lshl_b32 s{sT+1}, s3, 12")
        a(f"s_add_u32 s{sT+1}, s{sT+1}, {WS_WP}")
        a(f"s_cmp_eq_u32 s{sW}, 3")
        a(f"s_cselect_b32 s{sT+1}, {WS_END}, s{sT+1}")
        a(f"s_cmp_ge_u32 s3, 680")
        a(f"s_cselect_b32 s{sT+1}, {WS_END}, s{sT+1}")
        cnt.need(tag)
        for n in range(4):
            for h in range(2):
                a(f"ds_read_b64_tr_b16 {vr(16+4*n+2*h,2)}, v{vPKr} offset:{h*512 + n*32}")
        a("s_waitcnt lgkmcnt(0)")
        for n in range(4):
            a(f"buffer_store_dwordx4 {vr(16+4*n,4)}, v8, {WS_}, s{sT+1} offen offset:{n*1024}{SC}")
        return cnt.op(4)
    def rd1(st, ks, buf):
        base = (st % NST) * STG
        hi = base // 65536; b = base % 65536
        X = lambda mi: (("X", mi), f"ds_read_b128 {vr(XF[buf][mi],4)}, v{vXA[hi][mi][ks]} offset:{b}")
        W = lambda ni, h: (("W", ni), f"ds_read_b64_tr_b16 {vr(WF[buf][ni]+2*h,2)}, v{vWA[hi][ni]} offset:{b + ks*4096 + h*1024}")
        return [X(0), W(0, 0), W(0, 1), W(1, 0), W(1, 1), X(1)]
    PKI, GP0 = opt("pki", 2), opt("gp", 3)
    def p1_loop(vtype):
        CV.issued = CV.done = 0
        L1 = Cnt(a, "lgkmcnt", 15)
        tg = [{}, {}]
        def emit(lst, buf):
            for key, l in lst:
                a(l); tg[buf][key] = L1.op()
        a("s_barrier")
        ST("A", 1); ST("B", 1)
        emit(rd1(0, 0, 0), 0)
        for st in range(10):
            for ks in range(4):
                buf = (st * 4 + ks) & 1
                if ks < 3: nxt = rd1(st, ks + 1, buf ^ 1)
                elif st < 9: nxt = rd1(st + 1, 0, buf ^ 1)
                else: nxt = []
                if ks == 3 and st < 9:
                    L1.need(L1.issued - 1)
                    if 4 <= st < 9: ST("G", 2 * (st - 4) + 1)
                    a("s_barrier")
                    if 4 <= st < 9: ST("G", 2 * (st - 4) + 2)
                    ST("B", st + 2)
                n = 0
                for mi in range(2):
                    for ni in range(2):
                        d = ACC + (mi * 2 + ni) * 16
                        A, B = (XF[buf][mi], WF[buf][ni]) if vtype else (WF[buf][ni], XF[buf][mi])
                        L1.need(max(tg[buf][("X", mi)], tg[buf][("W", ni)]))
                        a(f"{M32} {vr(d,16)}, {vr(A,4)}, {vr(B,4)}, {vr(d,16)}")
                        emit(nxt[n * 2: n * 2 + 2], buf ^ 1)
                        if n == 3:
                            gi = (st - GP0) * 2 + (ks >> 1)
                            if 0 <= gi < 9 and (ks & 1): gprefetch(gi)
                            if st == 8 and ks == 1: tags["non"] = nonce_issue(CV)
                        if n == 2: a(f"{M16} {vr(CSD,4)}, {vr(SEL,4)}, {vr(WF[buf][0],4)}, {vr(CSD,4)}")
                        n += 1
                if "norsd" not in exp: a(f"{M16} {vr(RSD,4)}, {vr(SEL,4)}, {vr(XF[buf][0],4)}, {vr(RSD,4)}")
        ST("A", 2); ST("B", 11)
        a(f"s_lshl_b32 s{sT}, s{sWN}, 1\ns_add_u32 s{sT}, s{sT}, s{sWM}\ns_lshl_b32 s{sT}, s{sT}, 7\ns_add_u32 s{sT}, s{sT}, {ST_CS}")
        a(f"v_lshl_add_u32 v{U[0]}, v3, 2, s{sT}")
        a(f"s_lshl_b32 s{sT}, s{sWM}, 1\ns_add_u32 s{sT}, s{sT}, s{sWN}\ns_lshl_b32 s{sT}, s{sT}, 7")
        a(f"v_lshl_add_u32 v{U[1]}, v3, 2, s{sT}")
        a.nop(2)
        a("s_mov_b64 exec, 0xffff")
        a(f"ds_write_b32 v{U[0]}, v{CSD}")
        a(f"ds_write_b32 v{U[0]}, v{CSD+1} offset:64")
        a(f"ds_write_b32 v{U[1]}, v{RSD} offset:{ST_SUM}")
        a(f"ds_write_b32 v{U[1]}, v{RSD+1} offset:{ST_SUM+64}")
        a("s_mov_b64 exec, -1")
        a("s_waitcnt lgkmcnt(0)")
        a("s_barrier")
        nonce_get(CV, tags["non"])
        a(f"s_cmp_eq_u32 s{sNG}, 15")
        a("s_cbranch_scc1 L_A_dummy")
    def blk(dst, x, y, xo):
        a(f"s_xor_b32 s{dst}, s{y}, {xo}")
        a(f"s_lshl_b32 s{sT+7}, s{x}, 1")
        a(f"s_add_u32 s{dst}, s{dst}, s{sT+7}")
    sH, sQB, sKV = sA, sB, sC
    def p3_ids():
        a(f"s_lshl_b32 s{sH}, s{sXCD}, 2")
        a(f"s_and_b32 s{sT}, s{sIDX}, 3")
        a(f"s_add_u32 s{sH}, s{sH}, s{sT}")
        a(f"s_lshr_b32 s{sQB}, s{sIDX}, 2")
        a(f"s_mul_i32 s{sKV}, s{sH}, {16*CHUNK}")
    VA = Cnt(a, "vmcnt", 63); tag2 = {}
    def capture(fn):
        n0 = len(a.lines); fn(); L = a.lines[n0:]; del a.lines[n0:]
        return L
    def atoms(lines):
        out = []; cur = None
        for l in lines:
            t = l.strip()
            if t == "; {": cur = []
            elif t == "; }": out.append(cur); cur = None
            elif cur is not None: cur.append(l)
            else: out.append([l])
        return out
    def marker_prefill():
        a.c("{")
        p3_ids()
        a("v_mov_b32 v12, -1\nv_mov_b32 v13, -1\nv_mov_b32 v14, -1\nv_mov_b32 v15, -1")
        a(f"s_lshr_b32 s{sT+1}, s{sH}, 1")
        a(f"s_mul_i32 s{sT+1}, s{sT+1}, {5*256}")
        a(f"s_add_u32 s{sT+1}, s{sT+1}, {WS_O}")
        a(f"s_lshl_b32 s{sT+3}, s{sQB}, 4")
        a(f"s_lshl_b32 s{sT+4}, s{sW}, 2")
        a(f"s_add_u32 s{sT+3}, s{sT+3}, s{sT+4}")
        a(f"s_mul_i32 s{sT+3}, s{sT+3}, 20480")
        a(f"s_add_u32 s{sT+1}, s{sT+1}, s{sT+3}")
        a(f"s_and_b32 s{sT+3}, s{sH}, 1")
        a(f"s_mul_i32 s{sT+2}, s{sT+3}, {3*256}")
        a(f"s_add_u32 s{sT+2}, s{sT+2}, s{sT+1}")
        a(f"s_lshl_b32 s{sT+3}, s{sT+3}, 3")
        a(f"s_add_u32 s{sT+1}, s{sT+1}, s{sT+3}")
        a("v_lshrrev_b32 v9, 4, v2")
        a("v_mul_u32_u24 v9, 20480, v9")
        a("v_and_b32 v10, 15, v2")
        a("v_lshl_add_u32 v9, v10, 4, v9")
        a(f"buffer_store_dwordx4 v[12:15], v9, {WS_}, s{sT+2} offen{SC}")
        a(f"buffer_store_dwordx4 v[12:15], v9, {WS_}, s{sT+2} offen offset:256{SC}")
        a(f"buffer_store_dwordx2 v[12:13], v9, {WS_}, s{sT+1} offen offset:512{SC}")
        a.c("}")
    NSEG = opt("ns", 2)
    def a_segments(body, nhead):
        a.lines += body[:nhead]
        at = atoms(body[nhead:] + capture(marker_prefill))
        tot = sum(len(x) for x in at)
        VA.issued = VA.done = 0
        done = 0
        for seg in range(NSEG + 1):
            def dm():
                if seg == 0: issue2(3, VA, "butlast")
                else:
                    if seg == 1: tag2[3] = issue2(3, VA, "last")
                    tag2[seg + 3] = issue2(seg + 3, VA)
            units = []; cur = []
            for x in atoms(capture(dm)):
                cur += x
                if "buffer_load" in x[0]: units.append(cur); cur = []
            mine = []
            if seg < NSEG:
                while at and done < (seg + 1) / NSEG * tot - 1e-9:
                    done += len(at[0]); mine.append(at.pop(0))
            per = -(-len(mine) // len(units))
            for u in units:
                for x in mine[:per]: a.lines += x
                mine = mine[per:]
                a.lines += u
            if seg == 0: a("s_waitcnt lgkmcnt(0)")
            ST("F", 1 + 3 * seg)
            if seg >= 2: VA.need(tag2[seg + 1])
            ST("F", 2 + 3 * seg)
            if seg < NSEG:
                a("s_barrier")
                ST("F", 3 + 3 * seg)
        tag2["stores"] = VA.issued - 11
        a("s_branch L_A_ld")

    a(f"s_cmp_ge_u32 s{sNT}, 10")
    a("s_cbranch_scc1 L_p1_vtype")
    p1_loop(False)
    NM = [T[0], T[1]]; RS = [T[2], T[3]]
    CSV = [[T[8] + (ni * 4 + g) * 4 for g in range(4)] for ni in range(2)]
    K16 = [8, 9]; K8 = [20, 21]; FL = [12, 13]
    a(f"s_cmp_lt_u32 s{sNT}, 5")
    a(f"s_cselect_b32 s{sB}, {f32bits(QSCALE):#x}, 1.0")
    a(f"s_cselect_b32 s{sC}, 0, 5")
    a(f"s_mov_b32 s{sT+6}, {WS_KV}")
    a(f"s_cselect_b32 s{sT+6}, {WS_Q}, s{sT+6}")
    a(f"s_sub_u32 s{sC}, s{sNT}, s{sC}")
    a(f"s_lshl_b32 s{sC}, s{sC}, 7")
    for mi in range(2):
        blk(sA, sWM, sWN, mi)
        a(f"s_lshl_b32 s{sA}, s{sA}, 5")
        a(f"v_add_u32 v11, s{sA}, v3")
        a(f"v_lshlrev_b32 v{22+mi}, 2, v11")
        a(f"v_lshlrev_b32 v{K16[mi]}, 4, v11")
        a(f"v_lshlrev_b32 v{K8[mi]}, 3, v11")
    for ni in range(2):
        blk(sA, sWN, sWM, ni)
        a(f"s_lshl_b32 s{sA}, s{sA}, 5")
        a(f"v_lshl_add_u32 v10, v4, 2, s{sA}")
        a(f"v_lshlrev_b32 v10, 2, v10")
        for g in range(4):
            a(f"ds_read_b128 {vr(CSV[ni][g],4)}, v10 offset:{ST_CS+g*32}")
        a(f"s_add_u32 s{sA}, s{sA}, s{sC}")
        a(f"v_lshl_add_u32 v{FL[ni]}, v4, 3, s{sA}")
    a(f"s_mul_i32 s{sA}, s{sMT}, {CHUNK}")
    a(f"s_add_u32 s{sA}, s{sA}, s{sT+6}")
    a(f"s_add_u32 s{sC}, s{sA}, {16*CHUNK}")
    a(f"s_mov_b32 s{sPKc}, {16*CHUNK}")
    a("s_barrier")
    ST("A", 3)
    n0 = len(a.lines)
    for mi in range(2):
        a(f"ds_read_b32 v{NM[mi]}, v{22+mi} offset:{ST_NM}")
        a(f"ds_read_b32 v{RS[mi]}, v{22+mi} offset:{ST_RS}")
    a("s_waitcnt lgkmcnt(0)")
    for mi in range(2): a(f"v_mul_f32 v{RS[mi]}, s{sB}, v{RS[mi]}")
    nhead = len(a.lines) - n0
    for ni in range(2):
        for gp in range(2):
            a(f"v_add_u32 v14, {16*gp}, v{FL[ni]}")
            a(f"v_mul_u32_u24 v15, 1639, v14")
            a(f"v_lshrrev_b32 v15, 16, v15")
            a(f"v_mul_u32_u24 v16, 40, v15")
            a(f"v_sub_u32 v16, v14, v16")
            a(f"v_lshrrev_b32 v16, 3, v16")
            a(f"v_cmp_lt_u32 vcc, 2, v16")
            a(f"v_cmp_eq_u32 s[{sM}:{sM+1}], 2, v16")
            a(f"v_lshlrev_b32 v15, 1, v15")
            a(f"v_cndmask_b32 v14, 0, 1, vcc")
            a(f"v_add_u32 v15, v15, v14")
            a(f"v_mul_u32_u24 v14, 3, v14")
            a(f"v_sub_u32 v16, v16, v14")
            a(f"v_mul_lo_u32 v15, v15, s{sPKc}")
            a(f"v_lshl_add_u32 v15, v16, 11, v15")
            for mi in range(2):
                d = ACC + (mi * 2 + ni) * 16
                for g in (2 * gp, 2 * gp + 1):
                    for e in range(4):
                        a(f"v_fmac_f32 v{d+4*g+e}, v{CSV[ni][g]+e}, v{NM[mi]}")
                q = d + 8 * gp
                for e in range(8): a(f"v_mul_f32 v{q+e}, v{q+e}, v{RS[mi]}")
                a(f"v_cvt_pk_bf16_f32 v{q}, v{q}, v{q+1}")
                a(f"v_cvt_pk_bf16_f32 v{q+1}, v{q+2}, v{q+3}")
                a(f"v_cvt_pk_bf16_f32 v{q+2}, v{q+4}, v{q+5}")
                a(f"v_cvt_pk_bf16_f32 v{q+3}, v{q+6}, v{q+7}")
                a(f"v_add_u32 v17, v15, v{K16[mi]}")
                a(f"v_add_u32 v18, v15, v{K8[mi]}")
                a(f"v_permlane32_swap_b32 v{q}, v{q+2}")
                a(f"v_permlane32_swap_b32 v{q+1}, v{q+3}")
                a.c("{")
                a(f"s_andn2_b64 exec, exec, s[{sM}:{sM+1}]")
                a(f"buffer_store_dwordx4 {vr(q,4)}, v17, {WS_}, s{sA} offen{SC}")
                a(f"s_mov_b64 exec, s[{sM}:{sM+1}]")
                lab = a.newlabel("L_qk_ns")
                a(f"s_cbranch_execz {lab}")
                a(f"buffer_store_dwordx2 {vr(q,2)}, v18, {WS_}, s{sA} offen{SC}")
                a(f"buffer_store_dwordx2 {vr(q+2,2)}, v18, {WS_}, s{sC} offen{SC}")
                a.label(lab)
                a("s_mov_b64 exec, -1")
                a.c("}")
    body = a.lines[n0:]; del a.lines[n0:]
    a_segments(body, nhead)
    a.label("L_p1_vtype")
    p1_loop(True)
    CSL = [40, 41]; VB = [42, 43]
    NMV = [[T[8] + g * 4 for g in range(4)], [8 + g * 4 for g in range(4)]]
    RSV = [[T[24] + g * 4 for g in range(4)], [24 + g * 4 for g in range(4)]]
    a(f"s_sub_u32 s{sC}, s{sNT}, 10")
    a(f"s_lshl_b32 s{sC}, s{sC}, 7")
    a(f"s_mov_b32 s{sB}, {16*CHUNK}")
    for ni in range(2):
        blk(sA, sWN, sWM, ni)
        a(f"s_lshl_b32 s{sA}, s{sA}, 5")
        a(f"v_add_u32 v44, s{sA}, v3")
        a(f"v_lshlrev_b32 v45, 2, v44")
        a(f"ds_read_b32 v{CSL[ni]}, v45 offset:{ST_CS}")
        a(f"v_add_u32 v44, s{sC}, v44")
        a(f"v_mul_u32_u24 v45, 3277, v44")
        a(f"v_lshrrev_b32 v45, 16, v45")
        a(f"v_mul_u32_u24 v46, 20, v45")
        a(f"v_sub_u32 v46, v44, v46")
        a(f"v_mul_lo_u32 v45, v45, s{sB}")
        a(f"v_lshl_add_u32 v45, v46, 4, v45")
        a(f"v_mul_u32_u24 v46, 320, v4")
        a(f"v_add_u32 v{VB[ni]}, v45, v46")
    sVo = [sB, sC]
    for mi in range(2):
        blk(sA, sWM, sWN, mi)
        a(f"s_lshl_b32 s{sT}, s{sA}, 7")
        a(f"v_lshl_add_u32 v{47+mi}, v4, 4, s{sT}")
        a(f"s_mul_i32 s{sA}, s{sA}, {4*320}")
        a(f"s_mul_i32 s{sT}, s{sMT}, {CHUNK}")
        a(f"s_add_u32 s{sA}, s{sA}, s{sT}")
        a(f"s_add_u32 s{sVo[mi]}, s{sA}, {WS_KV+5120}")
    a("s_barrier")
    ST("A", 3)
    n0 = len(a.lines)
    for mi in range(2):
        for g in range(4):
            a(f"ds_read_b128 {vr(NMV[mi][g],4)}, v{47+mi} offset:{ST_NM+g*32}")
            a(f"ds_read_b128 {vr(RSV[mi][g],4)}, v{47+mi} offset:{ST_RS+g*32}")
        if mi == 0: a("s_waitcnt lgkmcnt(7)")
    a("s_waitcnt lgkmcnt(8)")
    nhead = len(a.lines) - n0
    for mi in range(2):
        if mi == 1: a("s_waitcnt lgkmcnt(0)")
        for ni in range(2):
            d = ACC + (mi * 2 + ni) * 16
            for gp in range(2):
                for g in (2 * gp, 2 * gp + 1):
                    for e in range(4): a(f"v_fmac_f32 v{d+4*g+e}, v{NMV[mi][g]+e}, v{CSL[ni]}")
                for g in (2 * gp, 2 * gp + 1):
                    for e in range(4): a(f"v_mul_f32 v{d+4*g+e}, v{d+4*g+e}, v{RSV[mi][g]+e}")
                q = d + 8 * gp
                a(f"v_cvt_pk_bf16_f32 v{q}, v{q}, v{q+1}")
                a(f"v_cvt_pk_bf16_f32 v{q+1}, v{q+2}, v{q+3}")
                a(f"v_cvt_pk_bf16_f32 v{q+2}, v{q+4}, v{q+5}")
                a(f"v_cvt_pk_bf16_f32 v{q+3}, v{q+6}, v{q+7}")
                a.nop(2)
                a(f"v_permlane32_swap_b32 v{q}, v{q+2}")
                a(f"v_permlane32_swap_b32 v{q+1}, v{q+3}")
                a(f"buffer_store_dwordx4 {vr(q,4)}, v{VB[ni]}, {WS_}, s{sVo[mi]} offen offset:{gp*640}{SC}")
    body = a.lines[n0:]; del a.lines[n0:]
    a_segments(body, nhead)
    a.label("L_A_dummy")
    a("s_barrier")
    a_segments([], 0)
    a.label("L_A_ld")
    a("v_lshlrev_b32 v8, 4, v2")
    def kv_dma(n0, js=range(10)):
        for j in js:
            a(f"s_lshl_b32 s{sT}, s{sW}, 10")
            a(f"s_add_u32 s{sT}, s{sT}, {(n0 + 4*j)*1024}")
            a(f"s_mov_b32 m0, s{sT}")
            a(f"s_add_u32 s{sT}, s{sT}, s{sKV}")
            a(f"s_add_u32 s{sT}, s{sT}, {WS_KV}")
            a(f"buffer_load_dwordx4 v8, {WS_}, s{sT} offen lds")
        VA.op(len(js))
    for st in range(NSEG, 9):
        if st > NSEG: VA.need(max(tag2[st + 1], tag2["stores"]))
        a("s_barrier")
        if st == NSEG + 1:
            lab = a.newlabel("L_f1add")
            a(f"s_cmp_lg_u32 s{sW}, 0")
            a(f"s_cbranch_scc1 {lab}")
            a(f"s_lshl_b32 s{sT}, s2, 7")
            a(f"s_add_u32 s{sT}, s{sT}, {WS_FL1}")
            a("v_mov_b32 v9, 0")
            a(f"v_mov_b32 v10, s{sNon}")
            a("s_mov_b64 exec, 1")
            a(f"buffer_store_dword v10, v9, {WS_}, s{sT} offen{SC}")
            a("s_mov_b64 exec, -1")
            a.label(lab)
        if st + 4 <= 9: tag2[st + 4] = issue2(st + 4, VA)
        PP0 = opt("ppf", 2)
        for t in range(4):
            if st == PP0 + t // 2:
                a(f"buffer_load_dwordx4 {vr(PFD,4)}, v{vPK[t]}, {PK_}, 0 offen"); VA.op()
        if st == 6:
            pack_ids(); tpk = pack_issue(VA)
        KS = opt("ks", 10)
        if st == 7: kv_dma(0, range(KS))
        if st == 8 and KS < 10: kv_dma(0, range(KS, 10))
        if st == 8:
            for j in range(3):
                a(f"s_add_u32 s{sT}, s{sW}, {4*j}")
                a(f"s_min_u32 s{sT}, s{sT}, 9")
                a(f"s_lshl_b32 s{sT+1}, s{sT}, 10")
                a(f"s_add_u32 m0, s{sT+1}, {QOFF}")
                a(f"s_cmp_ge_u32 s{sT}, 5")
                a(f"s_cselect_b32 s{sT}, 5120, 0")
                a(f"s_add_u32 s{sT}, s{sT}, s{sT+1}")
                a(f"s_mul_i32 s{sT+1}, s{sQB}, {2*CHUNK}")
                a(f"s_add_u32 s{sT}, s{sT}, s{sT+1}")
                a(f"s_add_u32 s{sT}, s{sT}, s{sKV}")
                a(f"s_add_u32 s{sT}, s{sT}, {WS_Q}")
                a(f"buffer_load_dwordx4 v8, {WS_}, s{sT} offen lds")
    VA.op(3)
    pack_finish(VA, tpk)
    a(f"s_lshl_b32 s{sF2}, s3, 7")
    a(f"s_add_u32 s{sF2}, s{sF2}, {WS_FLP}")
    a(f"s_cmp_eq_u32 s{sW}, 3")
    a(f"s_cselect_b32 s{sF2}, {WS_END}, s{sF2}")
    a("s_mov_b32 s3, 0")
    a("s_branch L_p3")

    a.label("L_B")
    for j in range(3): a(f"s_add_u32 s{sPB[j]}, s{sPB[j]}, s3\ns_add_u32 s{sPB[j]}, s{sPB[j]}, s3")
    sWo = sR + 4
    vWv = 7
    a("v_lshrrev_b32 v9, 4, v2")
    a(f"v_mul_u32_u24 v{vWv}, 3840, v9")
    a("v_lshrrev_b32 v10, 2, v2")
    a("v_and_b32 v10, 3, v10")
    a("v_xor_b32 v10, v10, v9")
    a(f"v_lshl_add_u32 v{vWv}, v10, 6, v{vWv}")
    a("v_and_b32 v10, 3, v2")
    a(f"v_lshl_add_u32 v{vWv}, v10, 4, v{vWv}")
    a(f"s_mul_i32 s{sWo}, s{sLW}, {16*3840}")
    a(f"s_lshl_b32 s{sT}, s{sNT}, 8")
    a(f"s_add_u32 s{sWo}, s{sWo}, s{sT}")
    VM = Cnt(a, "vmcnt", 63)
    def issue1(st):
        base = (st % NST) * STG
        for j in range(4):
            a(f"s_add_u32 m0, s{sLd}, {base + j*1024}")
            a(f"s_add_u32 s{sT}, s{sXo}, {j*8*1280 + st*128}")
            a(f"buffer_load_dwordx4 v{vXO if j & 1 else vXE}, {X_}, s{sT} offen lds")
            a(f"s_add_u32 m0, s{sLd}, {base + 16384 + j*1024}")
            a(f"s_add_u32 s{sT}, s{sWo}, {(st*64 + j*4)*3840}")
            a(f"buffer_load_dwordx4 v{vWv}, {WQ_}, s{sT} offen lds")
        return VM.op(8)
    tag1 = {}
    SA = [[12 + hi * 4 + j for j in range(4)] for hi in range(2)]
    SD = 20; LS = [36, 37]; LU = [40, 41, 42, 43]
    GX = [8, 12]
    GW = [[16 + (b * 6 + n) * 4 for n in range(6)] for b in range(2)]
    GACC = 64
    gXA = [[184 + sl * 4 + ks for ks in range(4)] for sl in range(4)]
    gWA = [[200 + sl * 3 + p for p in range(3)] for sl in range(4)]
    GCS = [160, 164]; NM2, RS2 = 180, 181; POLL = 225
    sCT = [sA, sB, sC]
    a("v_lshrrev_b32 v9, 1, v3")
    a("v_and_b32 v9, 7, v9")
    a(f"v_lshl_add_u32 v10, v3, 7, s{sLd}")
    for ks in range(4):
        a(f"v_or_b32 v11, {2*ks}, v4")
        a(f"v_xor_b32 v11, v11, v9")
        a(f"v_lshl_add_u32 v{gXA[3][ks]}, v11, 4, v10")
        for sl in range(3): a(f"v_add_u32 v{gXA[sl][ks]}, {GSLOT[sl]}, v{gXA[3][ks]}")
    a("v_lshlrev_b32 v11, 2, v4")
    a("v_xor_b32 v9, v9, v11")
    for j in range(4):
        a(f"v_xor_b32 v11, {j}, v9")
        a(f"v_lshl_add_u32 v{SA[0][j]}, v11, 4, v10")
        a(f"v_add_u32 v{SA[1][j]}, 0x10000, v{SA[0][j]}")
    for r in LS: a(f"v_mov_b32 v{r}, 0")
    common_late_setup()
    a("v_lshrrev_b32 v5, 2, v2")
    a("v_and_b32 v5, 3, v5")
    a("v_lshl_add_u32 v5, v4, 3, v5")
    a("v_mul_u32_u24 v5, 192, v5")
    a("v_lshrrev_b32 v6, 4, v2")
    a("v_and_b32 v6, 1, v6")
    a("v_lshl_add_u32 v5, v6, 5, v5")
    a("v_and_b32 v6, 3, v2")
    a("v_lshl_add_u32 v5, v6, 3, v5")
    for p in range(3):
        a(f"s_add_u32 s{sCT[p]}, s{sLW}, {p}")
        for _ in range(2):
            a(f"s_cmp_ge_u32 s{sCT[p]}, 3")
            a(f"s_cselect_b32 s{sT}, 3, 0")
            a(f"s_sub_u32 s{sCT[p]}, s{sCT[p]}, s{sT}")
        a(f"s_lshl_b32 s{sT}, s{sCT[p]}, 6")
        a(f"s_add_u32 s{sT}, s{sT}, 16384")
        a(f"v_add_u32 v{gWA[3][p]}, s{sT}, v5")
        for sl in range(3): a(f"v_add_u32 v{gWA[sl][p]}, {GSLOT[sl]}, v{gWA[3][p]}")
    for r in range(96): a(f"v_mov_b32 v{GACC+r}, 0")
    for r in range(8): a(f"v_mov_b32 v{GCS[0]+r}, 0")
    a(f"v_lshlrev_b32 v{POLL+4}, 7, v2")
    def f1_loads():
        for q in range(4):
            a(f"s_mov_b32 s{sT}, {WS_FL1 + q*8192}")
            a(f"buffer_load_dword v{POLL+q}, v{POLL+4}, {WS_}, s{sT} offen{SC}")
    def ssq_ops():
        ops = []
        for j in range(4):
            ops.append(f"s_waitcnt lgkmcnt({3-j})")
            for r in range(4):
                x = SD + 4 * j + r; u0, u1 = LU[2 * (r & 1)], LU[2 * (r & 1) + 1]
                ops += [f"v_lshlrev_b32 v{u0}, 16, v{x}", f"v_and_b32 v{u1}, 0xffff0000, v{x}",
                        f"v_fmac_f32 v{LS[0]}, v{u0}, v{u0}", f"v_fmac_f32 v{LS[1]}, v{u1}, v{u1}"]
        return ops
    if "early" not in exp: a("s_waitcnt vmcnt(0)")
    ST("E", 4)
    tag1[0] = issue1(0)
    ST("E", 5)
    tag1[1] = issue1(1)
    ST("E", 6)
    ST("E", 7)
    VM.need(tag1[0])
    ST("E", 8)
    a("s_barrier")
    ST("E", 9)
    if "prB" in exp: a(f"s_setprio {opt('prB', 1)}")
    issued = 1
    tagB = {}
    PF34 = opt("pfc", 2)
    for st in range(10):
        base = (st % NST) * STG
        for j in range(4): a(f"ds_read_b128 {vr(SD+4*j,4)}, v{SA[base // 65536][j]} offset:{base % 65536}")
        n0 = len(a.lines)
        while issued < min(st + 3, 9):
            issued += 1; tag1[issued] = issue1(issued)
        if st == PF34 and "pfall" not in exp:
            if "pf3" in exp:
                for j in range(3): a(f"s_add_u32 s{sPB[j]}, s{sPB[j]}, s3")
            else: pf1(VM)
            pf1(VM, adv=0)
        if st == 7: tnon = nonce_issue(VM)
        if st == 8: tagB[0] = issue2(0, VM)
        dma = a.lines[n0:]; del a.lines[n0:]
        ops = ssq_ops() if "nossq" not in exp else []
        nd = sum("buffer_load" in l for l in dma)
        per = -(-len(ops) // max(nd - 1, 1)) if nd else len(ops)
        k = 0
        for l in dma:
            a.lines.append(l)
            if "buffer_load" in l:
                k += 1
                if k >= 2:
                    for o in ops[:per]: a(o)
                    ops = ops[per:]
        for o in ops: a(o)
        if st == 8: nonce_get(VM, tnon)
        if st < 9:
            if 4 <= st < 9: ST("G", 2 * (st - 4) + 1)
            VM.need(tag1[st + 1])
            if 4 <= st < 9: ST("G", 2 * (st - 4) + 2)
            a("s_barrier")
    a(f"v_add_f32 v{RS2}, v{LS[0]}, v{LS[1]}")
    a(f"v_mov_b32 v{LS[1]}, v{RS2}")
    a(f"s_lshl_b32 s{sT}, s{sLW}, 7")
    a(f"v_lshl_add_u32 v10, v3, 2, s{sT}")
    a(f"v_permlane32_swap_b32 v{RS2}, v{LS[1]}")
    a(f"v_add_f32 v{RS2}, v{RS2}, v{LS[1]}")
    tagB[1] = issue2(1, VM)
    a("s_barrier")
    a(f"ds_read_b32 v{NM2}, v10 offset:{ST_SUM}")
    a("s_waitcnt lgkmcnt(0)")
    ln_rowmath(a, NM2, RS2, LU[1], sT)
    a.nop(1)
    a(f"ds_write_b32 v10, v{NM2} offset:{ST_NM}")
    a(f"ds_write_b32 v10, v{RS2} offset:{ST_RS}")
    a(f"v_mul_f32 v{RS2}, v{RS2}, v{RS2}")
    VM.need(tagB[0])
    a("s_waitcnt lgkmcnt(0)")
    a("s_barrier")
    if "noprioB" not in exp: a("s_setprio 2")
    delay("B")
    ST("F", 10)
    ST("A", 4); ST("C", 1)
    L2 = Cnt(a, "lgkmcnt", 15)
    tg2 = [{}, {}]
    def emit2(lst, buf):
        for key, l in lst:
            a(l); tg2[buf][key] = L2.op()
    def rd2(st, ks, buf):
        sl = st % 4
        L = [("X", f"ds_read_b128 {vr(GX[buf],4)}, v{gXA[sl][ks]}")]
        for n in range(6):
            mat, p = n & 1, n >> 1
            for h in range(2):
                L.append((n, f"ds_read_b64_tr_b16 {vr(GW[buf][n]+2*h,2)}, v{gWA[sl][p]} offset:{mat*12288 + (16*ks+4*h)*192}"))
        return L
    emit2(rd2(0, 0, 0), 0)
    tagB[2] = issue2(2, VM)
    for st in range(10):
        for ks in range(4):
            buf = (st * 4 + ks) & 1
            if ks < 3: nxt = rd2(st, ks + 1, buf ^ 1)
            elif st < 9: nxt = rd2(st + 1, 0, buf ^ 1)
            else: nxt = []
            if ks == 3 and st < 9:
                if st < 3: ST("F", 1 + 3 * st)
                if st + 1 <= 2: VM.need(tagB[st + 1])
                L2.need(L2.issued - 1)
                if st < 3: ST("F", 2 + 3 * st)
                a("s_barrier")
                if st < 3: ST("F", 3 + 3 * st)
                ST("C", st + 2)
            if st == 6 and ks == 3:
                lab = a.newlabel("L_f1p")
                a(f"s_cmp_lg_u32 s{sW}, 4")
                a(f"s_cbranch_scc1 {lab}")
                f1_loads()
                a.label(lab)
            if st == 7 and ks == 2:
                lab = a.newlabel("L_f1")
                a(f"s_cmp_lg_u32 s{sW}, 4")
                a(f"s_cbranch_scc1 {lab}_ok")
                a(f"s_mov_b32 s{sT+1}, 0")
                a.label(lab)
                a("s_waitcnt vmcnt(0)")
                for q in range(4): a(f"v_xor_b32 v{POLL+q}, s{sNon}, v{POLL+q}")
                a(f"v_or3_b32 v{POLL}, v{POLL}, v{POLL+1}, v{POLL+2}")
                a(f"v_or_b32 v{POLL}, v{POLL}, v{POLL+3}")
                a(f"v_cmp_ne_u32 vcc, 0, v{POLL}")
                a(f"s_add_u32 s{sT+1}, s{sT+1}, 1")
                a.nop(2)
                a("s_cmp_eq_u64 vcc, 0")
                a(f"s_cbranch_scc1 {lab}_ok")
                a(f"s_cmp_ge_u32 s{sT+1}, 0x20000")
                a(f"s_cbranch_scc1 {lab}_ok")
                a("s_sleep 8")
                f1_loads()
                a(f"s_branch {lab}")
                a.label(f"{lab}_ok")
            for n in range(6):
                d = GACC + n * 16
                L2.need(tg2[buf][n])
                a(f"{M32} {vr(d,16)}, {vr(GW[buf][n],4)}, {vr(GX[buf],4)}, {vr(d,16)}")
                emit2(nxt[0:3] if n == 0 else nxt[1 + n * 2: 3 + n * 2], buf ^ 1)
                if n >= 4: a(f"{M16} {vr(GCS[n-4],4)}, {vr(SEL,4)}, {vr(GW[buf][n-4],4)}, {vr(GCS[n-4],4)}")
    ST("A", 5); ST("C", 11)
    a(f"s_lshl_b32 s{sT}, s{sCT[0]}, 7")
    a(f"s_add_u32 s{sT}, s{sT}, {CSA}")
    a(f"v_lshl_add_u32 v5, v3, 2, s{sT}")
    a(f"s_lshl_b32 s{sR+4}, s{sMT}, 2")
    a(f"s_add_u32 s{sR+4}, s{sR+4}, s{sLW}")
    a(f"s_mul_i32 s{sR+4}, s{sR+4}, {2*49152}")
    a(f"s_mul_i32 s{sT}, s{sNG}, {12*256}")
    a(f"s_add_u32 s{sR+4}, s{sR+4}, s{sT}")
    a(f"s_add_u32 s{sR+4}, s{sR+4}, {WS_H}")
    a("s_mov_b64 exec, 0xffff")
    for mat in range(2):
        a(f"ds_write_b32 v5, v{GCS[mat]} offset:{mat*384}")
        a(f"ds_write_b32 v5, v{GCS[mat]+1} offset:{mat*384+64}")
    a("s_mov_b64 exec, -1")
    a("v_lshrrev_b32 v6, 4, v3")
    a("v_mul_u32_u24 v6, 49152, v6")
    a("v_lshl_add_u32 v6, v4, 8, v6")
    a("v_and_b32 v7, 15, v3")
    a("v_lshl_add_u32 v6, v7, 4, v6")
    a("s_waitcnt lgkmcnt(0)")
    a("s_barrier")
    a("s_setprio 3")
    CB = [16, 184]
    def cs_read(p):
        a(f"s_lshl_b32 s{sT}, s{sCT[p]}, 7")
        a(f"s_add_u32 s{sT}, s{sT}, {CSA}")
        a(f"v_lshl_add_u32 v5, v4, 4, s{sT}")
        for mat in range(2):
            for g in range(4):
                a(f"ds_read_b128 {vr(CB[p&1]+(mat*4+g)*4,4)}, v5 offset:{mat*384+g*32}")
    cs_read(0); cs_read(1)
    for p in range(3):
        cb = CB[p & 1]
        a(f"s_waitcnt lgkmcnt({8 if p < 2 else 0})")
        g = GACC + (2 * p) * 16; u = GACC + (2 * p + 1) * 16
        for e in range(16):
            a(f"v_fmac_f32 v{g+e}, v{cb+e}, v{NM2}")
            a(f"v_fmac_f32 v{u+e}, v{cb+16+e}, v{NM2}")
        if p == 0: cs_read(2)
        a(f"s_lshl_b32 s{sT}, s{sCT[p]}, 10")
        a(f"s_add_u32 s{sT}, s{sT}, s{sR+4}")
        for gp in range(2):
            for e in range(8 * gp, 8 * gp + 8):
                a(f"v_max_f32 v{g+e}, 0, v{g+e}")
                a(f"v_mul_f32 v{u+e}, v{u+e}, v{RS2}")
            for e in range(8 * gp, 8 * gp + 8): a(f"v_mul_f32 v{g+e}, v{g+e}, v{u+e}")
            o = u + 8 * gp
            for q in range(4): a(f"v_cvt_pk_bf16_f32 v{o+q}, v{g+8*gp+2*q}, v{g+8*gp+2*q+1}")
            a.nop(2)
            a(f"v_permlane32_swap_b32 v{o}, v{o+2}")
            a(f"v_permlane32_swap_b32 v{o+1}, v{o+3}")
            a(f"buffer_store_dwordx4 {vr(o,4)}, v6, {WS_}, s{sT} offen offset:{gp*512}{SC}")
    p3_ids()
    a("s_mov_b32 s3, 1")

    a.label("L_p3")
    ST("A", 6)
    QA, QB = 8, 12
    S = [16, 32]; P = 48; O = 56
    KA = [72, 76]; KB = [80, 84]; V = [[88, 92], [96, 100]]
    AD = [[104 + 3 * z + y for y in range(3)] for z in range(3)]
    T0, T1, T2, T3 = 113, 114, 115, 116
    vM, vOst, vL, vFo, vPP = 117, 118, 120, 121, 122
    PPD = 249
    DACC = 124
    DF = [164 + 28 * k for k in range(3)]
    DPOLL = 248
    NV = 252
    sDX, sDW, sFin, sLoop, sFp = sR, sR + 2, sR + 4, sR + 5, sR + 6
    a(f"v_lshlrev_b32 v{vL}, 4, v2")
    a(f"s_lshl_b32 s{sT}, s{sQB}, 8")
    a(f"s_lshl_b32 s{sT+1}, s{sW}, 5")
    a(f"s_add_u32 s{sT}, s{sT}, s{sT+1}")
    a(f"v_add_u32 v5, s{sT}, v3")
    a(f"v_lshrrev_b32 v6, 4, v5")
    a(f"v_mul_u32_u24 v{vOst}, 20480, v6")
    a(f"v_and_b32 v6, 15, v5")
    a(f"v_lshl_add_u32 v{vOst}, v6, 4, v{vOst}")
    a(f"v_lshl_add_u32 v{vOst+1}, v4, 8, v{vOst}")
    a(f"s_lshr_b32 s{sT}, s{sW}, 2")
    a(f"s_mul_i32 s{sT}, s{sT}, 5120")
    a(f"s_add_u32 s{sT}, s{sT}, {QOFF}")
    a(f"v_and_b32 v5, 127, v5")
    a(f"v_lshl_add_u32 v6, v5, 4, s{sT}")
    a(f"v_lshl_add_u32 v6, v4, 11, v6")
    a(f"v_lshl_add_u32 v7, v5, 3, s{sT}")
    a("v_and_b32 v5, 0x13, v3")
    a(f"v_and_b32 v{T0}, 4, v3")
    a(f"v_lshl_or_b32 v5, v{T0}, 1, v5")
    a(f"v_and_b32 v{T0}, 8, v3")
    a(f"v_lshrrev_b32 v{T0}, 1, v{T0}")
    a(f"v_or_b32 v5, v5, v{T0}")
    a(f"v_lshlrev_b32 v{AD[0][0]}, 4, v5")
    a(f"v_lshl_add_u32 v{AD[0][0]}, v4, 11, v{AD[0][0]}")
    a(f"v_lshlrev_b32 v{AD[0][1]}, 3, v5")
    a(f"v_add_u32 v{AD[0][1]}, 4096, v{AD[0][1]}")
    a(f"v_mul_u32_u24 v{AD[0][2]}, 320, v4")
    a(f"v_lshl_add_u32 v{AD[0][2]}, v3, 4, v{AD[0][2]}")
    a(f"v_add_u32 v{AD[0][2]}, 5120, v{AD[0][2]}")
    for z in (1, 2):
        for y in range(3): a(f"v_add_u32 v{AD[z][y]}, {6*z*CHUNK}, v{AD[0][y]}")
    for r in range(4): a(f"v_mov_b32 v{QB+r}, 0")
    for r in range(16): a(f"v_mov_b32 v{O+r}, 0")
    a("v_cmp_eq_u32 vcc, 20, v3")
    a(f"v_mov_b32 v{T0}, 0x3f803f80")
    a.nop(1)
    a(f"v_cndmask_b32 v{T1}, 0, v{T0}, vcc")
    for b in range(2):
        a(f"v_mov_b32 v{KB[b]+2}, 0x3f80")
        a(f"v_mov_b32 v{KB[b]+3}, 0")
        for j in range(2):
            for r in range(4): a(f"v_mov_b32 v{V[b][j]+r}, v{T1}")
    for r in range(8): a(f"v_mov_b32 v{P+r}, 0")
    for r in range(40): a(f"v_mov_b32 v{DACC+r}, 0")
    a(f"s_and_b32 s{sT}, s{sXCD}, 3")
    a(f"s_lshl_b32 s{sT+1}, s{sQB}, 2")
    a(f"s_add_u32 s{sT}, s{sT}, s{sT+1}")
    a(f"s_lshl_b32 s{sT+4}, s{sT}, 1")
    a(f"s_lshl_b32 s{sT}, s{sT}, 2")
    a(f"s_lshr_b32 s{sT+2}, s{sXCD}, 2")
    a(f"s_lshl_b32 s{sT+2}, s{sT+2}, 2")
    a(f"s_and_b32 s{sT+3}, s{sIDX}, 3")
    a(f"s_add_u32 s{sT+2}, s{sT+2}, s{sT+3}")
    a(f"s_mul_i32 s{sFin}, s{sT}, {16*1280}")
    a(f"s_mul_i32 s{sT+3}, s{sT+2}, 160")
    a(f"s_add_u32 s{sFin}, s{sFin}, s{sT+3}")
    a(f"s_and_b32 s{sT+3}, s{sW}, 1")
    a(f"s_add_u32 s{sT+4}, s{sT+4}, s{sT+3}")
    a(f"s_lshl_b32 s{sT+3}, s{sT+3}, 1")
    a(f"s_add_u32 s{sT}, s{sT}, s{sT+3}")
    a(f"s_lshr_b32 s{sT+3}, s{sW}, 1")
    a(f"s_lshl_b32 s{sT+5}, s{sT+3}, 10")
    a(f"s_mul_i32 s{sDX}, s{sT}, 49152")
    a(f"s_add_u32 s{sDX}, s{sDX}, s{sT+5}")
    a(f"s_add_u32 s{sDX}, s{sDX}, {WS_H}")
    a(f"s_mul_i32 s{sDX+1}, s{sT}, 20480")
    a(f"s_add_u32 s{sDX+1}, s{sDX+1}, s{sT+5}")
    a(f"s_add_u32 s{sDX+1}, s{sDX+1}, {WS_O}")
    a(f"s_mul_i32 s{sDW}, s{sT+3}, {40*1024}")
    a(f"s_mul_i32 s{sT+5}, s{sT+2}, 5120")
    a(f"s_add_u32 s{sDW}, s{sDW}, s{sT+5}")
    a(f"s_add_u32 s{sDW}, s{sDW}, {WS_WP}")
    a(f"s_lshr_b32 s{sT+5}, s{sT+4}, 2")
    a(f"s_lshl_b32 s{sT+5}, s{sT+5}, 3")
    a(f"s_and_b32 s{sT+4}, s{sT+4}, 3")
    a(f"s_add_u32 s{sT+5}, s{sT+5}, s{sT+4}")
    a(f"s_lshl_b32 s{sT+5}, s{sT+5}, 11")
    a(f"s_add_u32 s{sFp}, s{sT+5}, {WS_FL2 + 4*2048}")
    a("v_and_b32 v5, 15, v2")
    a(f"v_lshlrev_b32 v{vFo}, 7, v5")
    a(f"s_mul_i32 s{sT+5}, s{sT+2}, 5")
    a(f"s_lshr_b32 s{sT+5}, s{sT+5}, 2")
    a("v_lshrrev_b32 v5, 1, v2")
    a("v_mul_u32_u24 v5, 10, v5")
    a(f"v_and_b32 v{vPP}, 1, v2")
    a(f"v_add3_u32 v{vPP}, v{vPP}, v5, s{sT+5}")
    a(f"v_lshlrev_b32 v{vPP}, 7, v{vPP}")
    a("s_cmp_eq_u32 s3, 1")
    a("s_cbranch_scc1 L_p3_go")
    a("s_waitcnt vmcnt(4)")
    a("s_barrier")
    a.label("L_p3_go")
    delay("C")
    ST("A", 7); ST("D", 1)
    LG = Cnt(a, "lgkmcnt", 15); VM = Cnt(a, "vmcnt", 63)
    a(f"ds_read_b128 {vr(QA,4)}, v6"); LG.op()
    a(f"s_mov_b64 exec, s[{sLO}:{sLO+1}]")
    a(f"ds_read_b64 {vr(QB,2)}, v7 offset:4096"); LG.op()
    a("s_mov_b64 exec, -1")
    def ad(t, y): return AD[(t // 4) // 6][y]
    def coff(t): return ((t // 4) % 6) * CHUNK
    tagK = {}; tagV0 = {}; tagV1 = {}
    def rdK(t):
        if t > 63: return
        if "halfLDS" in exp and t > 3 and (t & 2):
            tagK[t] = 0; return
        b = t & 1
        a(f"ds_read_b128 {vr(KA[b],4)}, v{ad(t,0)} offset:{coff(t) + (t%4)*512}"); LG.op()
        a(f"ds_read_b64 {vr(KB[b],2)}, v{ad(t,1)} offset:{coff(t) + (t%4)*256}"); tagK[t] = LG.op()
    def rdV(t):
        if t > 63: return
        if "halfLDS" in exp and t > 3 and (t & 2):
            tagV0[t] = tagV1[t] = 0; return
        b = t & 1
        if "noexec" not in exp: a(f"s_mov_b64 exec, s[{sVM}:{sVM+1}]")
        a(f"ds_read_b128 {vr(V[b][0],4)}, v{ad(t,2)} offset:{coff(t) + (t%4)*1280}"); tagV0[t] = LG.op()
        a(f"ds_read_b128 {vr(V[b][1],4)}, v{ad(t,2)} offset:{coff(t) + (t%4)*1280 + 640}"); tagV1[t] = LG.op()
        if "noexec" not in exp: a("s_mov_b64 exec, -1")
    def mf(d, A, B, C): a(f"{M32} {vr(d,16)}, {vr(A,4)}, {vr(B,4)}, {C}")
    def rowmax(s, extra=None):
        a(f"v_max3_f32 v{T0}, v{s}, v{s+1}, v{s+2}")
        a(f"v_max3_f32 v{T1}, v{s+3}, v{s+4}, v{s+5}")
        a(f"v_max3_f32 v{T2}, v{s+6}, v{s+7}, v{s+8}")
        a(f"v_max3_f32 v{T3}, v{s+9}, v{s+10}, v{s+11}")
        a(f"v_max3_f32 v{T0}, v{T0}, v{s+12}, v{s+13}")
        a(f"v_max3_f32 v{T1}, v{T1}, v{s+14}, v{s+15}")
        a(f"v_max3_f32 v{T0}, v{T0}, v{T1}, v{T2}")
        a(f"v_max3_f32 v{T0}, v{T0}, v{T3}, v{extra if extra is not None else T3}")
        a(f"v_mov_b32 v{T1}, v{T0}")
        a.nop(2)
        a(f"v_permlane32_swap_b32 v{T0}, v{T1}")
        a(f"v_max_f32 v{T0}, v{T0}, v{T1}")
    rdK(0); rdK(1); rdV(0)
    LG.need(tagK[0])
    mf(S[0], KA[0], QA, "0")
    mf(S[0], KB[0], QB, vr(S[0], 16))
    a.nop(12)
    rowmax(S[0])
    a(f"v_xor_b32 v{T0}, 0x80000000, v{T0}")
    a(f"v_lshrrev_b32 v{T0}, 16, v{T0}")
    a(f"v_cndmask_b32 v{QB+2}, 0, v{T0}, s[{sLO}:{sLO+1}]")
    a.nop(2)
    mf(S[0], KA[0], QA, "0")
    mf(S[0], KB[0], QB, vr(S[0], 16))
    a.nop(12)
    def kvdma(j):
        a(f"s_add_u32 s{sT}, s{sW}, {40 + 8*j}")
        a(f"s_lshl_b32 s{sT}, s{sT}, 10")
        a(f"s_mov_b32 m0, s{sT}")
        a(f"s_add_u32 s{sT}, s{sT}, s{sKV}")
        a(f"s_add_u32 s{sT}, s{sT}, {WS_KV}")
        a(f"buffer_load_dwordx4 v{vL}, {WS_}, s{sT} offen lds")
        return VM.op()
    tagD = {}
    def d_issue(j, part):
        f = DF[j % 3]
        wstep = 5 + j
        if part < 2:
            a(f"s_add_u32 s{sT}, s{sDW}, {wstep*4*40*1024}")
            for n in range(2 * part, 2 * part + 2): a(f"buffer_load_dwordx4 {vr(f+8+4*n,4)}, v{vL}, {WS_}, s{sT} offen offset:{n*1024}"); VM.op()
        elif part == 2:
            a(f"s_add_u32 s{sT}, s{sDW}, {wstep*4*40*1024 + 4096}")
            a(f"buffer_load_dwordx4 {vr(f+24,4)}, v{vL}, {WS_}, s{sT} offen"); VM.op()
            a(f"s_add_u32 s{sT}, s{sDX}, {j*4096}")
            a(f"buffer_load_dwordx4 {vr(f,4)}, v{vL}, {WS_}, s{sT} offen"); VM.op()
        else:
            a(f"s_add_u32 s{sT}, s{sDX}, {j*4096 + 49152}")
            a(f"buffer_load_dwordx4 {vr(f+4,4)}, v{vL}, {WS_}, s{sT} offen"); tagD[j] = VM.op()
    def d_mfma(j, q):
        f = DF[j % 3]; m, n = q & 1, q >> 1
        acc = DACC + (m * 5 + n) * 4
        a(f"{M16} {vr(acc,4)}, {vr(f+8+4*n,4)}, {vr(f+4*m,4)}, {vr(acc,4)}")
    useD = "noD" not in exp
    DT0 = opt("dt", 20); ND3 = opt("nd", 9)
    dsched = {t: [] for t in range(64)}; lsched = {t: [] for t in range(64)}; dfirst = {}
    for j in range(ND3):
        for q in range(10):
            t = DT0 + (10 * j + q) * (64 - DT0) // (10 * ND3)
            dsched[t].append((j, q)); dfirst.setdefault(j, t)
    for j in range(ND3, min(ND3 + 2, 12)): dfirst[j] = 64 + 2 * (j - ND3)
    for j in range(min(ND3 + 2, 12)):
        lw = dfirst[j] - 8; lx = max(dfirst[j] - 6, DT0 - 5 + (1 if j else 0))
        if j >= 3:
            last_prev = max(t for t in range(64) for (jj, q) in dsched[t] if jj == j - 3)
            lw = max(lw, last_prev + 1); lx = max(lx, lw + 2)
            assert lx + 1 < 64
        assert lw >= 12
        lsched[lw].append((j, 0)); lsched[lw + 1].append((j, 1)); lsched[lx].append((j, 2)); lsched[lx + 1].append((j, 3))
        assert lx + 1 < dfirst[j] - 1, (j, lx, dfirst[j])
    TF2 = DT0 - 5
    assert max(len(v) for v in dsched.values()) <= 3
    def tile(t):
        cur = t & 1; nxt = cur ^ 1
        s = S[cur]; sn = S[nxt]
        ex = lambda r: a(f"v_exp_f32 v{s+r}, v{s+r}")
        cv = lambda p: a(f"v_cvt_pk_bf16_f32 v{P+p}, v{s+2*p}, v{s+2*p+1}")
        dq = dsched[t] if useD else []
        def dm(k):
            if k < len(dq):
                j, q = dq[k]
                if q == 0: VM.need(tagD[j])
                d_mfma(j, q)
        if "noprio" not in exp: a(f"s_setprio {3 - (t % 4)}")
        if t < 63:
            LG.need(tagK[t + 1])
            mf(sn, KA[nxt], QA, "0")
        ex(0); ex(1); dm(0); ex(2); ex(3)
        if t < 63 and not ("noQK2" in exp and (t & 1)): mf(sn, KB[nxt], QB, vr(sn, 16))
        rdK(t + 2)
        ex(4); ex(5); dm(1); ex(6); ex(7)
        cv(0); cv(1)
        if t > 0:
            LG.need(tagV1[t - 1])
            mf(O, V[nxt][1], P + 4, vr(O, 16))
        rdV(t + 1)
        cv(2); cv(3)
        ex(8); ex(9); dm(2); ex(10); ex(11)
        LG.need(tagV0[t])
        mf(O, V[cur][0], P, vr(O, 16))
        if useD:
            for (j, part) in lsched[t]: d_issue(j, part)
        for r in range(12, 16): ex(r)
        cv(4); cv(5); cv(6); cv(7)
    sWOb = sKV
    def wodma(j):
        a(f"s_add_u32 s{sT}, s{sW}, {8*j}")
        a(f"s_min_u32 s{sT}, s{sT}, 99")
        a(f"s_mul_i32 s{sT+1}, s{sT}, 205")
        a(f"s_lshr_b32 s{sT+1}, s{sT+1}, 10")
        a(f"s_mul_i32 s{sT+1}, s{sT+1}, {40960 - 5*1024}")
        a(f"s_lshl_b32 s{sT}, s{sT}, 10")
        a(f"s_mov_b32 m0, s{sT}")
        a(f"s_add_u32 s{sT}, s{sT}, s{sT+1}")
        a(f"s_add_u32 s{sT}, s{sT}, s{sWOb}")
        a(f"buffer_load_dwordx4 v{vL}, {WS_}, s{sT} offen lds")
        return VM.op()
    nd = 0; nwo = 0
    TB1 = 12; tkvs = {}
    for t in range(64):
        if t == 2:
            a(f"s_waitcnt vmcnt({VM.issued})")
            a(f"v_mov_b32 v{T0}, 0")
            a(f"v_mov_b32 v{T1}, s{sNon}")
            a("s_mov_b64 exec, 1")
            a(f"buffer_store_dword v{T1}, v{T0}, {WS_}, s{sF2} offen{SC}"); VM.op()
            a("s_mov_b64 exec, -1")
        def pp_loads():
            for q in range(3):
                if q == 2: a("s_mov_b64 exec, 0xff")
                a(f"s_mov_b32 s{sT}, {WS_FLP + q*320*128}")
                a(f"buffer_load_dword v{PPD+q}, v{vPP}, {WS_}, s{sT} offen{SC}")
            a("s_mov_b64 exec, -1")
        if t == TB1 - 3:
            npp = VM.issued
            lab = a.newlabel("L_pp")
            a(f"s_cmp_lg_u32 s{sW}, 0")
            a(f"s_cbranch_scc1 {lab}")
            a(f"v_mov_b32 v{PPD+2}, s{sNon}")
            pp_loads()
            a.label(lab)
        if t == TB1:
            lab = a.newlabel("L_ppc")
            a(f"s_cmp_lg_u32 s{sW}, 0")
            a(f"s_cbranch_scc1 {lab}_ok")
            a(f"s_mov_b32 s{sT+1}, 0")
            a(f"s_waitcnt vmcnt({VM.issued - npp})")
            a.label(lab)
            for q in range(3): a(f"v_xor_b32 v{T0+q}, s{sNon}, v{PPD+q}")
            a(f"v_or3_b32 v{T0}, v{T0}, v{T1}, v{T2}")
            a(f"v_cmp_ne_u32 vcc, 0, v{T0}")
            a(f"s_add_u32 s{sT+1}, s{sT+1}, 1")
            a.nop(2)
            a("s_cmp_eq_u64 vcc, 0")
            a(f"s_cbranch_scc1 {lab}_ok")
            a(f"s_cmp_ge_u32 s{sT+1}, 0x20000")
            a(f"s_cbranch_scc1 {lab}_ok")
            a("s_sleep 8")
            pp_loads()
            a("s_waitcnt vmcnt(0)")
            a(f"s_branch {lab}")
            a.label(f"{lab}_ok")
            VM.need(tkvs[4])
            a("s_barrier")
        if useD and t == TF2 - 2:
            a(f"buffer_load_dword v{DPOLL}, v{vFo}, {WS_}, s{sFp} offen{SC}"); tpoll = VM.op()
        if useD and t == TF2:
            VM.need(tpoll)
            lab = a.newlabel("L_f2")
            a(f"s_mov_b32 s{sT+1}, 0")
            a.label(lab)
            a(f"v_cmp_ne_u32 vcc, s{sNon}, v{DPOLL}")
            a(f"s_add_u32 s{sT+1}, s{sT+1}, 1")
            a.nop(2)
            a("s_cmp_eq_u64 vcc, 0")
            a(f"s_cbranch_scc1 {lab}_ok")
            a(f"s_cmp_ge_u32 s{sT+1}, 0x20000")
            a(f"s_cbranch_scc1 {lab}_ok")
            a("s_sleep 4")
            a(f"buffer_load_dword v{DPOLL}, v{vFo}, {WS_}, s{sFp} offen{SC}")
            a("s_waitcnt vmcnt(0)")
            a(f"s_branch {lab}")
            a.label(f"{lab}_ok")
        if t == 28:
            VM.need(tkv)
            a("s_barrier")
        if t == 42:
            a("s_barrier")
            a(f"s_lshr_b32 s{sT}, s{sW}, 1")
            a(f"s_mul_i32 s{sT}, s{sT}, {40*1024}")
            a(f"s_sub_u32 s{sWOb}, s{sDW}, s{sT}")
        if t % 8 == 0 and t: ST("D", 1 + t // 8)
        tile(t)
        if nd < 15 and (nd < 10 or t >= TB1):
            tkv = tkvs[nd] = kvdma(nd); nd += 1
        if t >= 42 and nwo < 13:
            wodma(nwo); nwo += 1
    LG.need(tagV1[63])
    a.nop(2)
    mf(O, V[1][1], P + 4, vr(O, 16))
    ST("A", 8); ST("D", 9)
    a("s_setprio 0")
    a("v_and_b32 v5, 15, v2")
    a("v_lshrrev_b32 v6, 4, v2")
    a("v_mul_u32_u24 v5, 1280, v5")
    a("v_lshl_add_u32 v5, v6, 3, v5")
    a(f"s_lshl_b32 s{sT}, s{sW}, 5")
    a(f"s_add_u32 s{sFin}, s{sFin}, s{sT}")
    a(f"s_lshr_b32 s{sT}, s{sW}, 1")
    a(f"s_mul_i32 s{sT}, s{sT}, 5120")
    a(f"v_add_u32 v7, s{sT}, v{vL}")
    a(f"v_add_u32 v6, {3*20480}, v7")
    a("v_lshrrev_b32 v16, 1, v3")
    a(f"v_mul_u32_u24 v16, {5*256}, v16")
    a("v_and_b32 v17, 1, v3")
    a("v_lshl_add_u32 v16, v17, 3, v16")
    a(f"v_mul_u32_u24 v17, {2*20480}, v4")
    a("v_add_u32 v16, v16, v17")
    a(f"v_mov_b32 v{T0}, v{O+8}")
    a(f"v_mov_b32 v{T1}, v{O+8}")
    a(f"v_mov_b32 v{T2}, 0")
    a.nop(1)
    a(f"v_permlane32_swap_b32 v{T0}, v{T1}")
    for r in range(12): a(f"v_fma_f32 v{T2}, v{O+r}, 0, v{T2}")
    a(f"s_mov_b32 s{sT}, 0x71800000")
    a(f"v_add_f32 v{T2}, v{T2}, v{T1}")
    a(f"v_cmp_ngt_f32 vcc, s{sT}, v{T2}")
    a.nop(4)
    a("s_cmp_lg_u64 vcc, 0")
    a("s_cbranch_scc1 L_slow")
    a.label("L_fin")
    a(f"v_rcp_f32 v{T1}, v{T1}")
    a(f"s_lshr_b32 s{sT}, s{sH}, 1")
    a(f"s_mul_i32 s{sT}, s{sT}, {5*256}")
    a(f"s_add_u32 s{sT}, s{sT}, {WS_O}")
    a(f"s_and_b32 s{sT+1}, s{sH}, 1")
    a(f"s_mul_i32 s{sT+2}, s{sT+1}, {3*256}")
    a(f"s_add_u32 s{sT+2}, s{sT+2}, s{sT}")
    a(f"s_lshl_b32 s{sT+1}, s{sT+1}, 3")
    a(f"s_add_u32 s{sT+1}, s{sT+1}, s{sT}")
    for r in range(12): a(f"v_mul_f32 v{O+r}, v{O+r}, v{T1}")
    for p in range(6): a(f"v_cvt_pk_bf16_f32 v{P+p}, v{O+2*p}, v{O+2*p+1}")
    a(f"v_permlane32_swap_b32 v{P}, v{P+2}")
    a(f"v_permlane32_swap_b32 v{P+1}, v{P+3}")
    a(f"buffer_store_dwordx4 {vr(P,4)}, v{vOst+1}, {WS_}, s{sT+2} offen{SC}")
    a(f"s_mov_b64 exec, s[{sLO}:{sLO+1}]")
    a(f"buffer_store_dwordx2 {vr(P+4,2)}, v{vOst}, {WS_}, s{sT+1} offen offset:512{SC}")
    a("s_mov_b64 exec, -1")
    for m in range(4):
        a(f"s_add_u32 s{sT}, s{sFin}, {m*16*1280}")
        a(f"buffer_load_dwordx2 {vr(20+2*m,2)}, v5, {X_}, s{sT} offen")
    VM.op(6)
    ST("A", 9); ST("D", 10)
    if useD:
        for j in range(ND3, 12):
            if j + 2 < 12 and j + 2 not in tagD:
                for part in range(4): d_issue(j + 2, part)
            VM.need(tagD[j])
            for q in range(10): d_mfma(j, q)
    a(f"s_cmp_lg_u32 s{sW}, 0")
    a("s_cbranch_scc1 L_f3_wait")
    a(f"s_add_u32 s{sT+2}, s{sDX+1}, 512")
    a(f"s_mov_b32 s{sT+1}, 0")
    a.label("L_f3")
    a(f"buffer_load_dword v{T1}, v16, {WS_}, s{sT+2} offen{SC}")
    a(f"s_add_u32 s{sT+1}, s{sT+1}, 1")
    a("s_waitcnt vmcnt(0)")
    a(f"v_cmp_eq_u32 vcc, -1, v{T1}")
    a.nop(4)
    a("s_cmp_eq_u64 vcc, 0")
    a("s_cbranch_scc1 L_f3_wait")
    a(f"s_cmp_ge_u32 s{sT+1}, 0x20000")
    a("s_cbranch_scc1 L_f3_wait")
    a("s_sleep 1")
    a("s_branch L_f3")
    a.label("L_f3_wait")
    a("s_waitcnt vmcnt(0)")
    a("s_barrier")
    ST("A", 10); ST("D", 11)
    XOF = [72 + 8 * k for k in range(4)] + [36]
    WOF = [164 + 20 * k for k in range(4)] + [44]
    a(f"s_mov_b32 s{sT+1}, 0")
    a.label("L_xo")
    for k in range(5):
        for m in range(2):
            a(f"s_add_u32 s{sT}, s{sDX+1}, {k*4096 + m*20480}")
            a(f"buffer_load_dwordx4 {vr(XOF[k]+4*m,4)}, v{vL}, {WS_}, s{sT} offen{SC}")
    for k in range(5):
        for n in range(5):
            off = k * 20480 + n * 1024
            a(f"ds_read_b128 {vr(WOF[k]+4*n,4)}, v{7 if k < 3 else 6} offset:{off if k < 3 else off - 3*20480}")
    for k in range(5):
        a(f"s_waitcnt vmcnt({8-2*k})")
        x = XOF[k]
        a(f"v_max3_u32 v{28+k}, v{x}, v{x+1}, v{x+2}")
        a(f"v_max3_u32 v{28+k}, v{28+k}, v{x+3}, v{x+4}")
        a(f"v_max3_u32 v{28+k}, v{28+k}, v{x+5}, v{x+6}")
        a(f"v_max_u32 v{28+k}, v{28+k}, v{x+7}")
    a("v_max3_u32 v28, v28, v29, v30")
    a("v_max3_u32 v28, v28, v31, v32")
    a("v_cmp_eq_u32 vcc, -1, v28")
    a(f"s_add_u32 s{sT+1}, s{sT+1}, 1")
    a("s_waitcnt lgkmcnt(0)")
    a.nop(2)
    a("s_cmp_eq_u64 vcc, 0")
    a("s_cbranch_scc1 L_xo_ok")
    a(f"s_cmp_lt_u32 s{sT+1}, 0x20000")
    a("s_cbranch_scc1 L_xo")
    a.label("L_xo_ok")
    delay("D")
    a("s_barrier")
    for k in range(5):
        for n in range(5):
            for m in range(2):
                acc = DACC + (m * 5 + n) * 4
                a(f"{M16} {vr(acc,4)}, {vr(WOF[k]+4*n,4)}, {vr(XOF[k]+4*m,4)}, {vr(acc,4)}")
    ST("A", 11)
    a(f"s_and_b32 s{sT}, s{sW}, 1")
    a(f"s_lshl_b32 s{sT}, s{sT}, 3")
    a(f"s_lshr_b32 s{sT+1}, s{sW}, 1")
    a(f"s_add_u32 s{sT}, s{sT}, s{sT+1}")
    a(f"s_lshl_b32 s{sT}, s{sT}, 10")
    a(f"v_add_u32 v6, s{sT}, v{vL}")
    a(f"v_add_u32 v7, 0x10000, v6")
    a.nop(2)
    for n in range(5):
        for m in range(2):
            off = (n * 16 + m * 4) * 1024
            a(f"ds_write_b128 v{6 if off < 65536 else 7}, {vr(DACC+(m*5+n)*4,4)} offset:{off % 65536}")
    a(f"s_lshl_b32 s{sT}, s{sW}, 14")
    a(f"v_add_u32 v6, s{sT}, v{vL}")
    for m in range(4):
        for p in range(2):
            a(f"v_lshlrev_b32 v{72+4*m+2*p}, 16, v{20+2*m+p}")
            a(f"v_and_b32 v{72+4*m+2*p+1}, 0xffff0000, v{20+2*m+p}")
    a("s_waitcnt lgkmcnt(0)")
    a("s_barrier")
    a(f"s_cmp_ge_u32 s{sW}, 5")
    a("s_cbranch_scc1 L_done")
    RB = 124
    for q in range(16): a(f"ds_read_b128 {vr(RB+4*q,4)}, v6 offset:{q*1024}")
    for m in range(4):
        a(f"s_waitcnt lgkmcnt({12-4*m})")
        acc = 72 + 4 * m
        for p in range(2):
            for k in range(4):
                a(f"v_pk_add_f32 {vr(acc+2*p,2)}, {vr(acc+2*p,2)}, {vr(RB+(m*4+k)*4+2*p,2)}")
            a(f"v_cvt_pk_bf16_f32 v{acc+p}, v{acc+2*p}, v{acc+2*p+1}")
        a(f"s_add_u32 s{sT}, s{sFin}, {m*16*1280}")
        a(f"buffer_store_dwordx2 {vr(acc,2)}, v5, {OUT_}, s{sT} offen")
    a.label("L_done")
    if "dbgst" in exp:
        a("s_waitcnt vmcnt(0) lgkmcnt(0)")
        a("s_memrealtime s[96:97]")
        a("s_waitcnt lgkmcnt(0)")
        a(f"s_lshl_b32 s{sT}, s2, 3")
        a(f"s_add_u32 s{sT}, s{sT}, s{sW}")
        a(f"s_cmp_lg_u32 s{sT}, {opt('dbgst', 0)}")
        a("s_cbranch_scc1 L_end")
        a("s_mov_b64 exec, 1")
        a("v_mov_b32 v1, 0")
        for i in range(1, 13):
            a(f"s_sub_u32 s{sT}, s{72+2*i}, s72")
            a(f"v_mov_b32 v2, s{sT}")
            a(f"global_store_dword v1, v2, s[{sDbg}:{sDbg+1}] offset:{4*i}")
        a("s_endpgm")
    ST.dump(WS_, sW, sT)
    a.label("L_end")
    a("s_endpgm")

    a.label("L_slow")
    vKa, vKb, vV = AD[0]
    a(f"v_mov_b32 v{QB+2}, 0")
    a(f"v_mov_b32 v{vM}, 0xff800000")
    for r in range(16): a(f"v_mov_b32 v{O+r}, 0")
    a(f"s_mov_b32 s{sLoop}, 0")
    a(f"s_mul_i32 s{sT+3}, s{sH}, {16*CHUNK}")
    a(f"s_add_u32 s{sT+3}, s{sT+3}, {WS_KV}")
    a.label("L_slow_loop")
    a(f"buffer_load_dwordx4 {vr(KA[0],4)}, v{vKa}, {WS_}, s{sT+3} offen")
    a(f"buffer_load_dwordx2 {vr(KB[0],2)}, v{vKb}, {WS_}, s{sT+3} offen")
    a(f"s_mov_b64 exec, s[{sVM}:{sVM+1}]")
    a(f"buffer_load_dwordx4 {vr(V[0][0],4)}, v{vV}, {WS_}, s{sT+3} offen")
    a(f"buffer_load_dwordx4 {vr(V[0][1],4)}, v{vV}, {WS_}, s{sT+3} offen offset:640")
    a("s_mov_b64 exec, -1")
    a("s_waitcnt vmcnt(0)")
    s = S[1]
    mf(s, KA[0], QA, "0")
    mf(s, KB[0], QB, vr(s, 16))
    a.nop(12)
    rowmax(s, vM)
    a(f"v_sub_f32 v{T1}, v{vM}, v{T0}")
    a(f"v_exp_f32 v{T1}, v{T1}")
    a(f"v_mov_b32 v{vM}, v{T0}")
    for r in range(16): a(f"v_sub_f32 v{s+r}, v{s+r}, v{T0}")
    for r in range(16): a(f"v_mul_f32 v{O+r}, v{O+r}, v{T1}")
    for r in range(16): a(f"v_exp_f32 v{s+r}, v{s+r}")
    a.nop(1)
    for p in range(8): a(f"v_cvt_pk_bf16_f32 v{P+p}, v{s+2*p}, v{s+2*p+1}")
    a.nop(2)
    mf(O, V[0][0], P, vr(O, 16))
    mf(O, V[0][1], P + 4, vr(O, 16))
    a(f"s_add_u32 s{sLoop}, s{sLoop}, 1")
    a(f"s_and_b32 s{sT}, s{sLoop}, 3")
    a(f"s_cmp_eq_u32 s{sT}, 0")
    a(f"s_movk_i32 s{sT}, 512")
    a(f"s_movk_i32 s{sT+1}, 256")
    a(f"s_movk_i32 s{sT+2}, 1280")
    a(f"s_cselect_b32 s{sT}, {CHUNK-3*512}, s{sT}")
    a(f"s_cselect_b32 s{sT+1}, {CHUNK-3*256}, s{sT+1}")
    a(f"s_cselect_b32 s{sT+2}, {CHUNK-3*1280}, s{sT+2}")
    a(f"v_add_u32 v{vKa}, s{sT}, v{vKa}")
    a(f"v_add_u32 v{vKb}, s{sT+1}, v{vKb}")
    a(f"v_add_u32 v{vV}, s{sT+2}, v{vV}")
    a.nop(8)
    a(f"s_cmp_lt_u32 s{sLoop}, 64")
    a("s_cbranch_scc1 L_slow_loop")
    a.nop(4)
    a(f"v_mov_b32 v{T0}, v{O+8}")
    a(f"v_mov_b32 v{T1}, v{O+8}")
    a.nop(2)
    a(f"v_permlane32_swap_b32 v{T0}, v{T1}")
    a("s_branch L_fin")
    a.label("L_code_end")
    return kernel_header(NAME) + a.text(), kernel_desc(NAME, NV, 102 if stamp else 72)

if __name__ == "__main__":
    import sys
    stamp = sys.argv[2] if len(sys.argv) > 2 and sys.argv[2] != "none" else False
    ex = sys.argv[3] if len(sys.argv) > 3 else ""
    body, desc = gen(stamp, ex)
    hdr = open("parallel_sum__softmax_full_mha__glu_gated_reglu__prompt.s.ref").read().split("; Override launch")[0]
    s = hdr + f"; @launch grid=(256,1,1) block=(512,1,1) lds={LDS_M1}\n"
    s += '.amdgcn_target "amdgcn-amd-amdhsa--gfx950"\n.text\n' + body + '.section .rodata,"a"\n' + desc
    open(sys.argv[1], "w").write(s)
```

```python
from asmlib import *
from k_qkv import ln_rowmath
NAME = "parallel_sum__softmax_full_mha__glu_gated_reglu__prompt_kernel"
LDS_M1 = 163840
M32 = "v_mfma_f32_32x32x16_bf16"; M16 = "v_mfma_f32_16x16x32_bf16"

def gen(stamp=False, exp=""):
    a = Asm()
    ST = Stamps2(a, stamp)
    opt = lambda key, dflt: int(exp.split(key)[1].split("_")[0]) if key in exp else dflt
    sX, sWq, sWS, sWg, sWu, sOut, sPk = 8, 12, 16, 20, 24, 28, 32
    sDbg = 36
    sW, sMT, sNT, sIDX, sXCD, sNG = 38, 39, 40, 41, 42, 43
    sLO, sVM, sM = 44, 46, 48
    sT = 50
    sNon = 58
    sLW = 59
    sA, sB, sC = 60, 61, 62
    sG2 = 63
    sR = 64
    R_ = lambda b: f"s[{b}:{b+3}]"
    X_, WQ_, WS_, WG_, WU_, OUT_, PK_ = map(R_, (sX, sWq, sWS, sWg, sWu, sOut, sPk))
    SC = " sc1"
    PKS = 90112
    XS = [16384, 0, 49152, 32768]
    WA = [139264, 114688, 90112, 65536]
    ST_NM, ST_RS, ST_CS, ST_SUM = 2048, 2560, 5120, 5632
    STB = 65536
    CSA = 143360
    ROT = 4
    WOB = ROT * CHUNK
    QOFF = 15 * CHUNK

    a("s_cmp_ge_u32 s2, 256")
    a("s_cbranch_scc1 L_end")
    ST.start()
    if "cpf" in exp:
        a("s_getpc_b64 s[4:5]")
        a.label("L_pc")
        a("s_lshr_b32 s3, s2, 3")
        a("s_lshl_b32 s3, s3, 11")
        a("v_lshlrev_b32 v1, 2, v0")
        a("v_add_u32 v1, s3, v1")
        a(f"v_min_u32 v1, L_code_end - L_pc - 4, v1")
        a("global_load_dword v230, v1, s[4:5]")
    a(f"s_load_dwordx4 s[4:7], s[0:1], 0")
    a(f"s_load_dwordx2 s[{sT}:{sT+1}], s[0:1], 16")
    a(f"s_load_dwordx4 s[{sT+2}:{sT+5}], s[0:1], 32")
    a(f"s_load_dwordx4 s[{sR}:{sR+3}], s[0:1], 48")
    a(f"s_load_dwordx4 s[{sR+4}:{sR+7}], s[0:1], 64")
    a("v_lshrrev_b32 v1, 6, v0")
    a("v_and_b32 v2, 63, v0")
    a(f"v_readfirstlane_b32 s{sW}, v1")
    a(f"s_and_b32 s{sXCD}, s2, 7")
    a(f"s_lshr_b32 s{sIDX}, s2, 3")
    a(f"s_lshr_b32 s{sMT}, s{sXCD}, 2")
    a(f"s_lshl_b32 s{sMT}, s{sMT}, 3")
    a(f"s_and_b32 s3, s{sIDX}, 7")
    a(f"s_add_u32 s{sMT}, s{sMT}, s3")
    a(f"s_and_b32 s{sNG}, s{sXCD}, 3")
    a(f"s_lshl_b32 s{sNG}, s{sNG}, 2")
    a(f"s_lshr_b32 s3, s{sIDX}, 3")
    a(f"s_add_u32 s{sNG}, s{sNG}, s3")
    a(f"s_min_u32 s{sNT}, s{sNG}, 14")
    a(f"s_and_b32 s{sLW}, s{sW}, 3")
    a(f"s_mov_b32 s{sLO}, -1\ns_mov_b32 s{sLO+1}, 0\ns_mov_b32 s{sVM}, 0xfffff\ns_mov_b32 s{sVM+1}, 0xfffff")
    a("v_and_b32 v3, 31, v2")
    a("v_lshrrev_b32 v4, 5, v2")
    a(f"s_lshl_b32 s{sA}, s{sMT}, 4")
    a(f"s_add_u32 s{sA}, s{sA}, s{sNG}")
    a(f"s_mul_i32 s{sA}, s{sA}, 3")
    a(f"s_add_u32 s{sA}, s{sA}, s{sW}")
    a(f"s_mul_i32 s{sB}, s{sA}, 6554")
    a(f"s_lshr_b32 s{sB}, s{sB}, 16")
    a(f"s_mul_i32 s{sG2}, s{sLW}, {16*3072}")
    a(f"s_mul_i32 s3, s{sNG}, 192")
    a(f"s_add_u32 s{sG2}, s{sG2}, s3")
    a("s_waitcnt lgkmcnt(0)")
    ST("E", 1)
    def delay(tag):
        if f"dly{tag}" in exp:
            lab = a.newlabel("L_dly")
            a(f"s_mov_b32 s{sT+7}, 280")
            a.label(lab)
            a(f"s_sub_u32 s{sT+7}, s{sT+7}, 1")
            a(f"s_cmp_lg_u32 s{sT+7}, 0")
            a(f"s_cbranch_scc1 {lab}")
    delay("A")
    def srd(b, lo, hi, n): a(f"s_mov_b32 s{b}, s{lo}\ns_and_b32 s{b+1}, s{hi}, 0xffff\ns_mov_b32 s{b+2}, {n}\ns_mov_b32 s{b+3}, 0x20000")
    srd(sX, 4, 5, 2048 * 1280); srd(sWq, 6, 7, 640 * 3840); srd(sWS, sR + 6, sR + 7, WS_END)
    srd(sWg, sT + 2, sT + 3, 640 * 3072); srd(sWu, sT + 4, sT + 5, 640 * 3072); srd(sOut, sR + 2, sR + 3, 2048 * 1280)
    a(f"s_mov_b64 s[{sDbg}:{sDbg+1}], s[{sR+4}:{sR+5}]")
    a(f"s_cmp_lt_u32 s{sB}, 20")
    a(f"s_cselect_b32 s{sPk}, s{sT}, s{sR}")
    a(f"s_cselect_b32 s{sPk+1}, s{sT+1}, s{sR+1}")
    a(f"s_mov_b32 s{sPk+2}, {1536*1280}")
    a(f"s_cselect_b32 s{sPk+2}, {640*1280}, s{sPk+2}")
    a(f"s_and_b32 s{sPk+1}, s{sPk+1}, 0xffff")
    a(f"s_mov_b32 s{sPk+3}, 0x20000")

    sPB = [sR + 5, sR + 6, sR + 7]
    vPF = 214; PFD = 216
    lab = a.newlabel("L_pf")
    a(f"s_mul_i32 s{sT}, s{sIDX}, 12")
    a(f"s_mul_i32 s{sT+1}, s{sLW}, 3")
    a(f"s_add_u32 s{sT}, s{sT}, s{sT+1}")
    a(f"s_lshr_b32 s{sT+4}, s{sW}, 2")
    a(f"s_xor_b32 s{sT+4}, s{sT+4}, 1")
    a(f"s_mov_b32 s7, 0x20000")
    a(f"s_cmp_ge_u32 s{sT}, 255")
    a(f"s_cbranch_scc1 {lab}_w")
    a(f"s_mov_b32 s4, s{sX}\ns_mov_b32 s5, s{sX+1}\ns_mov_b32 s6, s{sX+2}\ns_movk_i32 s3, 256")
    a(f"v_lshrrev_b32 v{vPF}, 3, v2")
    a(f"v_mul_u32_u24 v{vPF}, 1280, v{vPF}")
    a("v_and_b32 v1, 7, v2")
    a(f"v_lshl_add_u32 v{vPF}, v1, 4, v{vPF}")
    a(f"s_lshr_b32 s{sT+1}, s{sXCD}, 2")
    a(f"s_mul_i32 s{sT+1}, s{sT+1}, {1024*1280}")
    for j in range(3):
        a(f"s_add_u32 s{sT+2}, s{sT}, {j}")
        a(f"s_lshr_b32 s{sT+3}, s{sT+2}, 1")
        a(f"s_mul_i32 s{sT+3}, s{sT+3}, {8*1280}")
        a(f"s_and_b32 s{sT+2}, s{sT+2}, 1")
        a(f"s_lshl_b32 s{sT+2}, s{sT+2}, 7")
        a(f"s_add_u32 s{sT+3}, s{sT+3}, s{sT+2}")
        a(f"s_add_u32 s{sPB[j]}, s{sT+3}, s{sT+1}")
    a(f"s_branch {lab}")
    a.label(f"{lab}_w")
    a(f"s_mov_b32 s4, s{sWq}\ns_mov_b32 s5, s{sWq+1}\ns_mov_b32 s6, s{sWq+2}\ns_mov_b32 s3, {128*3840}")
    a(f"v_lshlrev_b32 v{vPF}, 4, v2")
    a(f"s_sub_u32 s{sT}, s{sT}, 255")
    a(f"s_mul_i32 s{sT}, s{sT}, 3840")
    a(f"s_and_b32 s{sT+1}, s{sXCD}, 3")
    a(f"s_lshl_b32 s{sT+1}, s{sT+1}, 10")
    a(f"s_add_u32 s{sT}, s{sT}, s{sT+1}")
    for j in range(3): a(f"s_add_u32 s{sPB[j]}, s{sT}, {j*3840}")
    a.label(lab)
    a(f"s_mul_i32 s{sT}, s{sT+4}, s3")
    for j in range(3): a(f"s_add_u32 s{sPB[j]}, s{sPB[j]}, s{sT}")
    def pf1(cnt=None, adv=1):
        for j in range(3):
            a(f"buffer_load_dwordx4 {vr(PFD,4)}, v{vPF}, s[4:7], s{sPB[j]} offen")
            for _ in range(adv): a(f"s_add_u32 s{sPB[j]}, s{sPB[j]}, s3")
            if cnt: cnt.op()
    ST("E", 2)
    pf1()
    ST("E", 3)
    vXE, vXO = 220, 221; vGd = [222, 223, 224]
    SEL = 168
    sXo, sLd, sLdW, sF2 = sR, sR + 1, sR + 2, sR + 3
    a(f"s_lshl_b32 s{sF2}, s{sMT}, 3\ns_add_u32 s{sF2}, s{sF2}, s{sW}\ns_lshl_b32 s{sF2}, s{sF2}, 4\ns_add_u32 s{sF2}, s{sF2}, s{sNG}")
    a(f"s_lshl_b32 s{sF2}, s{sF2}, 7\ns_add_u32 s{sF2}, s{sF2}, {WS_FL2}")
    a(f"s_or_b32 s{sT}, s2, s{sW}")
    a(f"s_cmp_lg_u32 s{sT}, 0")
    a("s_cbranch_scc1 L_nonce_done")
    a(f"s_memrealtime s[{sT}:{sT+1}]")
    a("v_mov_b32 v9, 0")
    a("s_waitcnt lgkmcnt(0)")
    a(f"s_or_b32 s{sT}, s{sT}, 1")
    a(f"v_mov_b32 v10, s{sT}")
    a("s_mov_b64 exec, 1")
    a(f"global_store_dword v9, v10, s[{sDbg}:{sDbg+1}] sc1")
    a("s_mov_b64 exec, -1")
    a.label("L_nonce_done")
    a("v_lshrrev_b32 v9, 4, v2")
    a("v_lshrrev_b32 v10, 3, v2")
    a("v_mul_u32_u24 v10, 1280, v10")
    a("v_and_b32 v11, 7, v2")
    a(f"v_xor_b32 v{vXE}, v11, v9")
    a(f"v_xor_b32 v{vXO}, 4, v{vXE}")
    a(f"v_lshl_add_u32 v{vXE}, v{vXE}, 4, v10")
    a(f"v_lshl_add_u32 v{vXO}, v{vXO}, 4, v10")
    a(f"s_lshl_b32 s{sXo}, s{sMT}, 7")
    a(f"s_lshl_b32 s{sT}, s{sLW}, 5")
    a(f"s_add_u32 s{sXo}, s{sXo}, s{sT}")
    a(f"s_mul_i32 s{sXo}, s{sXo}, 1280")
    a(f"s_lshl_b32 s{sLd}, s{sLW}, 12")
    a(f"s_mul_i32 s{sLdW}, s{sLW}, 3072")
    a(f"s_cmp_ge_u32 s{sW}, 4")
    a("s_cbranch_scc1 L_B")

    vNon = 215
    def nonce_issue(cnt):
        a(f"v_mov_b32 v{vNon}, 0")
        a(f"global_load_dword v{vNon}, v{vNon}, s[{sDbg}:{sDbg+1}] sc1")
        return cnt.op()
    def nonce_get(cnt, tag):
        lab = a.newlabel("L_non")
        cnt.need(tag)
        a(f"s_mov_b32 s{sT+1}, 0")
        a.label(lab)
        a(f"v_readfirstlane_b32 s{sNon}, v{vNon}")
        a(f"s_add_u32 s{sT+1}, s{sT+1}, 1")
        a(f"s_cmp_lg_u32 s{sNon}, 0")
        a(f"s_cbranch_scc1 {lab}_ok")
        a(f"s_cmp_ge_u32 s{sT+1}, 0x20000")
        a(f"s_cbranch_scc1 {lab}_ok")
        a("s_sleep 8")
        a(f"v_mov_b32 v{vNon}, 0")
        a(f"global_load_dword v{vNon}, v{vNon}, s[{sDbg}:{sDbg+1}] sc1")
        a("s_waitcnt vmcnt(0)")
        a(f"s_branch {lab}")
        a.label(f"{lab}_ok")
    def common_late_setup():
        for t in range(3):
            a(f"v_add_u32 v10, {64*t}, v2")
            a(f"v_mul_u32_u24 v11, 5462, v10")
            a(f"v_lshrrev_b32 v11, 16, v11")
            a(f"v_mul_u32_u24 v9, 12, v11")
            a(f"v_sub_u32 v9, v10, v9")
            a(f"v_mul_u32_u24 v11, 3072, v11")
            a(f"v_lshl_add_u32 v{vGd[t]}, v9, 4, v11")
        a("v_lshrrev_b32 v9, 4, v2")
        a("v_and_b32 v9, 1, v9")
        a("v_and_b32 v10, 15, v2")
        a("v_cmp_eq_u32 vcc, v10, v9")
        a("v_mov_b32 v10, 0x3f803f80")
        a.nop(1)
        for r in range(4): a(f"v_cndmask_b32 v{SEL+r}, 0, v10, vcc")
    def issue2(u, cnt, only=None):
        st = 9 - u; wa = WA[u % 4]; n = 0
        if only == "last":
            a(f"s_add_u32 m0, s{sLdW}, {wa + 2*1024}")
            a(f"s_add_u32 s{sT}, s{sG2}, {st*64*3072}")
            a(f"buffer_load_dwordx4 v{vGd[2]}, {WG_}, s{sT} offen lds")
            return cnt.op(1)
        if u >= 4:
            for j in range(4):
                a(f"s_add_u32 m0, s{sLd}, {XS[u % 4] + j*1024}")
                a(f"s_add_u32 s{sT}, s{sXo}, {j*8*1280 + st*128}")
                a(f"buffer_load_dwordx4 v{vXO if j & 1 else vXE}, {X_}, s{sT} offen lds"); n += 1
        for mat in range(2):
            for t in range(3):
                if only == "butlast" and mat == 0 and t == 2: continue
                a(f"s_add_u32 m0, s{sLdW}, {wa + mat*12288 + t*1024}")
                a(f"s_add_u32 s{sT}, s{sG2}, {st*64*3072}")
                a(f"buffer_load_dwordx4 v{vGd[t]}, {WU_ if mat else WG_}, s{sT} offen lds"); n += 1
        return cnt.op(n)

    if "pfall" in exp:
        pf1(); pf1(); pf1(adv=0)
    elif "pf3" in exp:
        pf1(); pf1(adv=0)
    else:
        pf1(adv=0)
    if "tlb" in exp:
        G = opt("tlb", 21)
        a(f"v_lshlrev_b32 v5, {G}, v2")
        for k, (srdn, off) in enumerate(((WS_, 4032), (WG_, 0), (WU_, 0), (OUT_, 0), (PK_, 0))):
            a(f"s_cmp_lg_u32 s{sW}, {k % 4}")
            lab = a.newlabel("L_tw")
            a(f"s_cbranch_scc1 {lab}")
            a(f"buffer_load_dword v{PFD}, v5, {srdn}, 0 offen offset:{off} sc1")
            a.label(lab)
    XF = [[8, 12], [16, 20]]; WF = [[24, 28], [32, 36]]
    vXA = [[40 + mi * 4 + ks for ks in range(4)] for mi in range(2)]
    vWA = [56, 57]
    RSD = 60
    ACC = 64
    T = list(range(128, 168))
    CSD = 172
    U = [176, 177, 178, 179]
    vPK = [230, 231, 232, 233]; vPKr = 234
    sWM, sWN, sPKc, sPKl, sPKb = sR + 4, sR + 5, sR + 6, sR + 7, 3
    common_late_setup()
    a(f"s_and_b32 s{sWM}, s{sW}, 1")
    a(f"s_lshr_b32 s{sWN}, s{sW}, 1")
    a("v_lshrrev_b32 v5, 1, v3")
    a("v_and_b32 v5, 7, v5")
    for mi in range(2):
        a(f"s_xor_b32 s{sT}, s{sWN}, {mi}")
        a(f"s_lshl_b32 s{sT+1}, s{sWM}, 1")
        a(f"s_add_u32 s{sT}, s{sT}, s{sT+1}")
        a(f"s_lshl_b32 s{sT}, s{sT}, 12")
        a(f"v_lshl_add_u32 v6, v3, 7, s{sT}")
        for ks in range(4):
            a(f"v_or_b32 v7, {2*ks}, v4")
            a(f"v_xor_b32 v7, v7, v5")
            a(f"v_lshl_add_u32 v{vXA[mi][ks]}, v7, 4, v6")
    a("v_lshrrev_b32 v5, 2, v2")
    a("v_and_b32 v5, 3, v5")
    a("v_lshl_add_u32 v6, v4, 3, v5")
    a("v_lshlrev_b32 v6, 8, v6")
    a("v_lshrrev_b32 v7, 4, v2")
    a("v_and_b32 v7, 1, v7")
    a("v_lshl_add_u32 v6, v7, 5, v6")
    a("v_and_b32 v7, 3, v2")
    a("v_lshl_add_u32 v6, v7, 3, v6")
    a("v_add_u32 v6, 0x10000, v6")
    for ni in range(2):
        a(f"s_xor_b32 s{sT}, s{sWM}, {ni}")
        a(f"s_lshl_b32 s{sT+1}, s{sWN}, 1")
        a(f"s_add_u32 s{sT}, s{sT}, s{sT+1}")
        a(f"v_xor_b32 v7, s{sT}, v5")
        a(f"v_lshl_add_u32 v{vWA[ni]}, v7, 6, v6")
    for r in range(64): a(f"v_mov_b32 v{ACC+r}, 0")
    for r in range(4): a(f"v_mov_b32 v{CSD+r}, 0\nv_mov_b32 v{RSD+r}, 0")
    a(f"s_mul_i32 s{sT+2}, s{sB}, 10")
    a(f"s_sub_u32 s{sT+2}, s{sA}, s{sT+2}")
    a(f"s_cmp_lt_u32 s{sB}, 20")
    a(f"s_cselect_b32 s{sT+3}, 0, 20")
    a(f"s_cselect_b64 s[{sM}:{sM+1}], -1, 0")
    a(f"s_sub_u32 s{sT+3}, s{sB}, s{sT+3}")
    a(f"s_lshl_b32 s{sT+3}, s{sT+3}, 5")
    a(f"s_lshl_b32 s{sPKc}, s{sT+2}, 7")
    a(f"s_lshl_b32 s{sPKl}, s{sW}, 12")
    a(f"s_add_u32 s{sPKl}, s{sPKl}, {PKS}")
    a("v_lshrrev_b32 v5, 3, v2")
    a("v_and_b32 v6, 7, v2")
    for t in range(4):
        a(f"v_add_u32 v7, s{sT+3}, v5")
        if t: a(f"v_add_u32 v7, {8*t}, v7")
        a(f"v_mul_u32_u24 v{U[0]}, 1639, v7")
        a(f"v_lshrrev_b32 v{U[0]}, 16, v{U[0]}")
        a(f"v_mul_u32_u24 v{U[0]}, 40, v{U[0]}")
        a(f"v_sub_u32 v{U[0]}, v7, v{U[0]}")
        a(f"v_cmp_le_u32 vcc, 24, v{U[0]}")
        a(f"v_cmp_le_u32 s[{sT+6}:{sT+7}], 20, v{U[0]}")
        a(f"v_mov_b32 v{U[1]}, 16")
        a.nop(1)
        a(f"v_cndmask_b32 v{U[1]}, 0, v{U[1]}, s[{sT+6}:{sT+7}]")
        a(f"v_cndmask_b32 v{U[1]}, v{U[1]}, -4, vcc")
        a(f"v_cndmask_b32 v{U[1]}, 0, v{U[1]}, s[{sM}:{sM+1}]")
        a(f"v_add_u32 v7, v7, v{U[1]}")
        a("v_mul_u32_u24 v7, 1280, v7")
        a(f"v_lshl_add_u32 v{vPK[t]}, v6, 4, v7")
        a(f"v_add_u32 v{vPK[t]}, s{sPKc}, v{vPK[t]}")
    a("v_lshrrev_b32 v5, 4, v2")
    a("v_lshrrev_b32 v6, 2, v2")
    a("v_and_b32 v6, 3, v6")
    a("v_lshl_add_u32 v5, v5, 3, v6")
    a("v_lshlrev_b32 v5, 7, v5")
    a("v_and_b32 v6, 3, v2")
    a("v_lshl_add_u32 v5, v6, 3, v5")
    a(f"v_add_u32 v{vPKr}, s{sPKl}, v5")
    def gprefetch_setup():
        a(f"s_and_b32 s{sT}, s{sW}, 1")
        a(f"s_cmp_eq_u32 s{sT}, 0")
        a(f"s_cselect_b32 s4, s{sWg}, s{sWu}")
        a(f"s_cselect_b32 s5, s{sWg+1}, s{sWu+1}")
        a(f"s_mov_b32 s6, {640*3072}")
        a(f"s_lshl_b32 s{sT}, s{sIDX}, 1")
        a(f"s_lshr_b32 s{sT+1}, s{sLW}, 1")
        a(f"s_add_u32 s{sT}, s{sT}, s{sT+1}")
        a(f"s_mul_i32 s3, s{sT}, {4*3072}")
        a(f"s_and_b32 s{sT}, s{sXCD}, 3")
        a(f"s_mul_i32 s{sT}, s{sT}, 768")
        a(f"s_add_u32 s3, s3, s{sT}")
        a(f"v_lshrrev_b32 v{vPF}, 4, v2")
        a(f"v_mul_u32_u24 v{vPF}, 3072, v{vPF}")
        a("v_and_b32 v1, 15, v2")
        a(f"v_lshl_add_u32 v{vPF}, v1, 4, v{vPF}")
    gprefetch_setup()
    CV = Cnt(a, "vmcnt", 63); tags = {}
    def gprefetch(n):
        if "nopf2" in exp: return
        a(f"s_add_u32 s{sT}, s3, {(2 - n // 3)*256*3072}")
        a(f"buffer_load_dwordx4 {vr(PFD,4)}, v{vPF}, s[4:7], s{sT} offen offset:{(n % 3)*256}")
        CV.op()
    def pack_ids():
        a(f"s_lshl_b32 s3, s{sMT}, 4")
        a(f"s_add_u32 s3, s3, s{sNG}")
        a(f"s_mul_i32 s3, s3, 3")
        a(f"s_add_u32 s3, s3, s{sW}")
        a(f"s_lshl_b32 s{sPKl}, s{sW}, 12")
        a(f"s_add_u32 s{sPKl}, s{sPKl}, {PKS}")
    def pack_issue(cnt):
        for t in range(4):
            a(f"s_add_u32 m0, s{sPKl}, {t*1024}")
            a.nop(1)
            a(f"buffer_load_dwordx4 v{vPK[t]}, {PK_}, 0 offen lds")
        return cnt.op(4)
    def pack_finish(cnt, tag):
        a(f"s_lshl_b32 s{sT+1}, s3, 12")
        a(f"s_add_u32 s{sT+1}, s{sT+1}, {WS_WP}")
        a(f"s_cmp_eq_u32 s{sW}, 3")
        a(f"s_cselect_b32 s{sT+1}, {WS_END}, s{sT+1}")
        a(f"s_cmp_ge_u32 s3, 680")
        a(f"s_cselect_b32 s{sT+1}, {WS_END}, s{sT+1}")
        cnt.need(tag)
        for n in range(4):
            for h in range(2):
                a(f"ds_read_b64_tr_b16 {vr(16+4*n+2*h,2)}, v{vPKr} offset:{h*512 + n*32}")
        a("s_waitcnt lgkmcnt(0)")
        for n in range(4):
            a(f"buffer_store_dwordx4 {vr(16+4*n,4)}, v8, {WS_}, s{sT+1} offen offset:{n*1024}{SC}")
        return cnt.op(4)
    def rd1(st, ks, buf):
        b = (st % 4) * 16384
        X = lambda mi: (("X", mi), f"ds_read_b128 {vr(XF[buf][mi],4)}, v{vXA[mi][ks]} offset:{b}")
        W = lambda ni, h: (("W", ni), f"ds_read_b64_tr_b16 {vr(WF[buf][ni]+2*h,2)}, v{vWA[ni]} offset:{b + ks*4096 + h*1024}")
        return [X(0), W(0, 0), W(0, 1), W(1, 0), W(1, 1), X(1)]
    PKI, GP0 = opt("pki", 2), opt("gp", 3)
    def p1_loop(vtype):
        CV.issued = CV.done = 0
        L1 = Cnt(a, "lgkmcnt", 15)
        tg = [{}, {}]
        def emit(lst, buf):
            for key, l in lst:
                a(l); tg[buf][key] = L1.op()
        a("s_barrier")
        ST("A", 1); ST("B", 1)
        emit(rd1(0, 0, 0), 0)
        for st in range(10):
            for ks in range(4):
                buf = (st * 4 + ks) & 1
                if ks < 3: nxt = rd1(st, ks + 1, buf ^ 1)
                elif st < 9: nxt = rd1(st + 1, 0, buf ^ 1)
                else: nxt = []
                if ks == 3 and st < 9:
                    L1.need(L1.issued - 1)
                    if 4 <= st < 9: ST("G", 2 * (st - 4) + 1)
                    a("s_barrier")
                    if 4 <= st < 9: ST("G", 2 * (st - 4) + 2)
                    ST("B", st + 2)
                n = 0
                for mi in range(2):
                    for ni in range(2):
                        d = ACC + (mi * 2 + ni) * 16
                        A, B = (XF[buf][mi], WF[buf][ni]) if vtype else (WF[buf][ni], XF[buf][mi])
                        L1.need(max(tg[buf][("X", mi)], tg[buf][("W", ni)]))
                        a(f"{M32} {vr(d,16)}, {vr(A,4)}, {vr(B,4)}, {vr(d,16)}")
                        emit(nxt[n * 2: n * 2 + 2], buf ^ 1)
                        if n == 3:
                            gi = (st - GP0) * 2 + (ks >> 1)
                            if 0 <= gi < 9 and (ks & 1): gprefetch(gi)
                            if st == 8 and ks == 1: tags["non"] = nonce_issue(CV)
                        if n == 2: a(f"{M16} {vr(CSD,4)}, {vr(SEL,4)}, {vr(WF[buf][0],4)}, {vr(CSD,4)}")
                        n += 1
                if "norsd" not in exp: a(f"{M16} {vr(RSD,4)}, {vr(SEL,4)}, {vr(XF[buf][0],4)}, {vr(RSD,4)}")
        ST("A", 2); ST("B", 11)
        a(f"s_lshl_b32 s{sT}, s{sWN}, 1\ns_add_u32 s{sT}, s{sT}, s{sWM}\ns_lshl_b32 s{sT}, s{sT}, 7\ns_add_u32 s{sT}, s{sT}, {STB+ST_CS}")
        a(f"v_lshl_add_u32 v{U[0]}, v3, 2, s{sT}")
        a(f"s_lshl_b32 s{sT}, s{sWM}, 1\ns_add_u32 s{sT}, s{sT}, s{sWN}\ns_lshl_b32 s{sT}, s{sT}, 7\ns_add_u32 s{sT}, s{sT}, {STB}")
        a(f"v_lshl_add_u32 v{U[1]}, v3, 2, s{sT}")
        a.nop(2)
        a("s_mov_b64 exec, 0xffff")
        a(f"ds_write_b32 v{U[0]}, v{CSD}")
        a(f"ds_write_b32 v{U[0]}, v{CSD+1} offset:64")
        a(f"ds_write_b32 v{U[1]}, v{RSD} offset:{ST_SUM}")
        a(f"ds_write_b32 v{U[1]}, v{RSD+1} offset:{ST_SUM+64}")
        a("s_mov_b64 exec, -1")
        a("s_waitcnt lgkmcnt(0)")
        a("s_barrier")
        nonce_get(CV, tags["non"])
        a(f"s_cmp_eq_u32 s{sNG}, 15")
        a("s_cbranch_scc1 L_A_dummy")
    def blk(dst, x, y, xo):
        a(f"s_xor_b32 s{dst}, s{y}, {xo}")
        a(f"s_lshl_b32 s{sT+7}, s{x}, 1")
        a(f"s_add_u32 s{dst}, s{dst}, s{sT+7}")
    sH, sQB, sKV = sA, sB, sC
    def p3_ids():
        a(f"s_lshl_b32 s{sH}, s{sXCD}, 2")
        a(f"s_and_b32 s{sT}, s{sIDX}, 3")
        a(f"s_add_u32 s{sH}, s{sH}, s{sT}")
        a(f"s_lshr_b32 s{sQB}, s{sIDX}, 2")
        a(f"s_mul_i32 s{sKV}, s{sH}, {16*CHUNK}")
    VA = Cnt(a, "vmcnt", 63); tag2 = {}
    def capture(fn):
        n0 = len(a.lines); fn(); L = a.lines[n0:]; del a.lines[n0:]
        return L
    def atoms(lines):
        out = []; cur = None
        for l in lines:
            t = l.strip()
            if t == "; {": cur = []
            elif t == "; }": out.append(cur); cur = None
            elif cur is not None: cur.append(l)
            else: out.append([l])
        return out
    def marker_prefill():
        a.c("{")
        p3_ids()
        a("v_mov_b32 v12, -1\nv_mov_b32 v13, -1\nv_mov_b32 v14, -1\nv_mov_b32 v15, -1")
        a(f"s_lshr_b32 s{sT+1}, s{sH}, 1")
        a(f"s_mul_i32 s{sT+1}, s{sT+1}, {5*256}")
        a(f"s_add_u32 s{sT+1}, s{sT+1}, {WS_O}")
        a(f"s_lshl_b32 s{sT+3}, s{sQB}, 4")
        a(f"s_lshl_b32 s{sT+4}, s{sW}, 2")
        a(f"s_add_u32 s{sT+3}, s{sT+3}, s{sT+4}")
        a(f"s_mul_i32 s{sT+3}, s{sT+3}, 20480")
        a(f"s_add_u32 s{sT+1}, s{sT+1}, s{sT+3}")
        a(f"s_and_b32 s{sT+3}, s{sH}, 1")
        a(f"s_mul_i32 s{sT+2}, s{sT+3}, {3*256}")
        a(f"s_add_u32 s{sT+2}, s{sT+2}, s{sT+1}")
        a(f"s_lshl_b32 s{sT+3}, s{sT+3}, 3")
        a(f"s_add_u32 s{sT+1}, s{sT+1}, s{sT+3}")
        a("v_lshrrev_b32 v9, 4, v2")
        a("v_mul_u32_u24 v9, 20480, v9")
        a("v_and_b32 v10, 15, v2")
        a("v_lshl_add_u32 v9, v10, 4, v9")
        a(f"buffer_store_dwordx4 v[12:15], v9, {WS_}, s{sT+2} offen{SC}")
        a(f"buffer_store_dwordx4 v[12:15], v9, {WS_}, s{sT+2} offen offset:256{SC}")
        a(f"buffer_store_dwordx2 v[12:13], v9, {WS_}, s{sT+1} offen offset:512{SC}")
        a.c("}")
    NSEG = 2
    BD = 5
    def a_segments(body, nhead):
        a.lines += body[:nhead]
        at = atoms(body[nhead:] + capture(marker_prefill))
        tot = sum(len(x) for x in at)
        done = 0
        for seg in range(NSEG):
            while at and done < (opt("sf", 50) / 100.0 if seg == 0 else 1.0) * tot - 1e-9:
                done += len(at[0]); a.lines += at.pop(0)
            if seg == 0: a("s_waitcnt lgkmcnt(0)")
            ST("F", 1 + 3 * seg)
            a("s_barrier")
            ST("F", 3 + 3 * seg)
        a("s_branch L_A_ld")

    a(f"s_cmp_ge_u32 s{sNT}, 10")
    a("s_cbranch_scc1 L_p1_vtype")
    p1_loop(False)
    NM = [T[0], T[1]]; RS = [T[2], T[3]]
    CSV = [[T[8] + (ni * 4 + g) * 4 for g in range(4)] for ni in range(2)]
    K16 = [8, 9]; K8 = [20, 21]; FL = [12, 13]
    a(f"s_cmp_lt_u32 s{sNT}, 5")
    a(f"s_cselect_b32 s{sB}, {f32bits(QSCALE):#x}, 1.0")
    a(f"s_cselect_b32 s{sC}, 0, 5")
    a(f"s_mov_b32 s{sT+6}, {WS_KV}")
    a(f"s_cselect_b32 s{sT+6}, {WS_Q}, s{sT+6}")
    a(f"s_sub_u32 s{sC}, s{sNT}, s{sC}")
    a(f"s_lshl_b32 s{sC}, s{sC}, 7")
    for mi in range(2):
        blk(sA, sWM, sWN, mi)
        a(f"s_lshl_b32 s{sA}, s{sA}, 5")
        a(f"v_add_u32 v11, s{sA}, v3")
        a(f"v_lshlrev_b32 v{22+mi}, 2, v11")
        a(f"v_add_u32 v{22+mi}, {STB}, v{22+mi}")
        a(f"v_lshlrev_b32 v{K16[mi]}, 4, v11")
        a(f"v_lshlrev_b32 v{K8[mi]}, 3, v11")
    for ni in range(2):
        blk(sA, sWN, sWM, ni)
        a(f"s_lshl_b32 s{sA}, s{sA}, 5")
        a(f"v_lshl_add_u32 v10, v4, 2, s{sA}")
        a(f"v_lshlrev_b32 v10, 2, v10")
        a(f"v_add_u32 v10, {STB}, v10")
        for g in range(4):
            a(f"ds_read_b128 {vr(CSV[ni][g],4)}, v10 offset:{ST_CS+g*32}")
        a(f"s_add_u32 s{sA}, s{sA}, s{sC}")
        a(f"v_lshl_add_u32 v{FL[ni]}, v4, 3, s{sA}")
    a(f"s_mul_i32 s{sA}, s{sMT}, {CHUNK}")
    a(f"s_add_u32 s{sA}, s{sA}, s{sT+6}")
    a(f"s_add_u32 s{sC}, s{sA}, {16*CHUNK}")
    a(f"s_mov_b32 s{sPKc}, {16*CHUNK}")
    a("s_barrier")
    ST("A", 3)
    n0 = len(a.lines)
    for mi in range(2):
        a(f"ds_read_b32 v{NM[mi]}, v{22+mi} offset:{ST_NM}")
        a(f"ds_read_b32 v{RS[mi]}, v{22+mi} offset:{ST_RS}")
    a("s_waitcnt lgkmcnt(0)")
    for mi in range(2): a(f"v_mul_f32 v{RS[mi]}, s{sB}, v{RS[mi]}")
    nhead = len(a.lines) - n0
    for ni in range(2):
        for gp in range(2):
            a(f"v_add_u32 v14, {16*gp}, v{FL[ni]}")
            a(f"v_mul_u32_u24 v15, 1639, v14")
            a(f"v_lshrrev_b32 v15, 16, v15")
            a(f"v_mul_u32_u24 v16, 40, v15")
            a(f"v_sub_u32 v16, v14, v16")
            a(f"v_lshrrev_b32 v16, 3, v16")
            a(f"v_cmp_lt_u32 vcc, 2, v16")
            a(f"v_cmp_eq_u32 s[{sM}:{sM+1}], 2, v16")
            a(f"v_lshlrev_b32 v15, 1, v15")
            a(f"v_cndmask_b32 v14, 0, 1, vcc")
            a(f"v_add_u32 v15, v15, v14")
            a(f"v_mul_u32_u24 v14, 3, v14")
            a(f"v_sub_u32 v16, v16, v14")
            a(f"v_mul_lo_u32 v15, v15, s{sPKc}")
            a(f"v_lshl_add_u32 v15, v16, 11, v15")
            for mi in range(2):
                d = ACC + (mi * 2 + ni) * 16
                for g in (2 * gp, 2 * gp + 1):
                    for e in range(4):
                        a(f"v_fmac_f32 v{d+4*g+e}, v{CSV[ni][g]+e}, v{NM[mi]}")
                q = d + 8 * gp
                for e in range(8): a(f"v_mul_f32 v{q+e}, v{q+e}, v{RS[mi]}")
                a(f"v_cvt_pk_bf16_f32 v{q}, v{q}, v{q+1}")
                a(f"v_cvt_pk_bf16_f32 v{q+1}, v{q+2}, v{q+3}")
                a(f"v_cvt_pk_bf16_f32 v{q+2}, v{q+4}, v{q+5}")
                a(f"v_cvt_pk_bf16_f32 v{q+3}, v{q+6}, v{q+7}")
                a(f"v_add_u32 v17, v15, v{K16[mi]}")
                a(f"v_add_u32 v18, v15, v{K8[mi]}")
                a(f"v_permlane32_swap_b32 v{q}, v{q+2}")
                a(f"v_permlane32_swap_b32 v{q+1}, v{q+3}")
                a.c("{")
                a(f"s_andn2_b64 exec, exec, s[{sM}:{sM+1}]")
                a(f"buffer_store_dwordx4 {vr(q,4)}, v17, {WS_}, s{sA} offen{SC}")
                a(f"s_mov_b64 exec, s[{sM}:{sM+1}]")
                lab = a.newlabel("L_qk_ns")
                a(f"s_cbranch_execz {lab}")
                a(f"buffer_store_dwordx2 {vr(q,2)}, v18, {WS_}, s{sA} offen{SC}")
                a(f"buffer_store_dwordx2 {vr(q+2,2)}, v18, {WS_}, s{sC} offen{SC}")
                a.label(lab)
                a("s_mov_b64 exec, -1")
                a.c("}")
    body = a.lines[n0:]; del a.lines[n0:]
    a_segments(body, nhead)
    a.label("L_p1_vtype")
    p1_loop(True)
    CSL = [40, 41]; VB = [42, 43]
    NMV = [[T[8] + g * 4 for g in range(4)], [8 + g * 4 for g in range(4)]]
    RSV = [[T[24] + g * 4 for g in range(4)], [24 + g * 4 for g in range(4)]]
    a(f"s_sub_u32 s{sC}, s{sNT}, 10")
    a(f"s_lshl_b32 s{sC}, s{sC}, 7")
    a(f"s_mov_b32 s{sB}, {16*CHUNK}")
    for ni in range(2):
        blk(sA, sWN, sWM, ni)
        a(f"s_lshl_b32 s{sA}, s{sA}, 5")
        a(f"v_add_u32 v44, s{sA}, v3")
        a(f"v_lshlrev_b32 v45, 2, v44")
        a(f"v_add_u32 v45, {STB}, v45")
        a(f"ds_read_b32 v{CSL[ni]}, v45 offset:{ST_CS}")
        a(f"v_add_u32 v44, s{sC}, v44")
        a(f"v_mul_u32_u24 v45, 3277, v44")
        a(f"v_lshrrev_b32 v45, 16, v45")
        a(f"v_mul_u32_u24 v46, 20, v45")
        a(f"v_sub_u32 v46, v44, v46")
        a(f"v_mul_lo_u32 v45, v45, s{sB}")
        a(f"v_lshl_add_u32 v45, v46, 4, v45")
        a(f"v_mul_u32_u24 v46, 320, v4")
        a(f"v_add_u32 v{VB[ni]}, v45, v46")
    sVo = [sB, sC]
    for mi in range(2):
        blk(sA, sWM, sWN, mi)
        a(f"s_lshl_b32 s{sT}, s{sA}, 7")
        a(f"s_add_u32 s{sT}, s{sT}, {STB}")
        a(f"v_lshl_add_u32 v{47+mi}, v4, 4, s{sT}")
        a(f"s_mul_i32 s{sA}, s{sA}, {4*320}")
        a(f"s_mul_i32 s{sT}, s{sMT}, {CHUNK}")
        a(f"s_add_u32 s{sA}, s{sA}, s{sT}")
        a(f"s_add_u32 s{sVo[mi]}, s{sA}, {WS_KV+5120}")
    a("s_barrier")
    ST("A", 3)
    n0 = len(a.lines)
    for mi in range(2):
        for g in range(4):
            a(f"ds_read_b128 {vr(NMV[mi][g],4)}, v{47+mi} offset:{ST_NM+g*32}")
            a(f"ds_read_b128 {vr(RSV[mi][g],4)}, v{47+mi} offset:{ST_RS+g*32}")
        if mi == 0: a("s_waitcnt lgkmcnt(7)")
    a("s_waitcnt lgkmcnt(8)")
    nhead = len(a.lines) - n0
    for mi in range(2):
        if mi == 1: a("s_waitcnt lgkmcnt(0)")
        for ni in range(2):
            d = ACC + (mi * 2 + ni) * 16
            for gp in range(2):
                for g in (2 * gp, 2 * gp + 1):
                    for e in range(4): a(f"v_fmac_f32 v{d+4*g+e}, v{NMV[mi][g]+e}, v{CSL[ni]}")
                for g in (2 * gp, 2 * gp + 1):
                    for e in range(4): a(f"v_mul_f32 v{d+4*g+e}, v{d+4*g+e}, v{RSV[mi][g]+e}")
                q = d + 8 * gp
                a(f"v_cvt_pk_bf16_f32 v{q}, v{q}, v{q+1}")
                a(f"v_cvt_pk_bf16_f32 v{q+1}, v{q+2}, v{q+3}")
                a(f"v_cvt_pk_bf16_f32 v{q+2}, v{q+4}, v{q+5}")
                a(f"v_cvt_pk_bf16_f32 v{q+3}, v{q+6}, v{q+7}")
                a.nop(2)
                a(f"v_permlane32_swap_b32 v{q}, v{q+2}")
                a(f"v_permlane32_swap_b32 v{q+1}, v{q+3}")
                a(f"buffer_store_dwordx4 {vr(q,4)}, v{VB[ni]}, {WS_}, s{sVo[mi]} offen offset:{gp*640}{SC}")
    body = a.lines[n0:]; del a.lines[n0:]
    a_segments(body, nhead)
    a.label("L_A_dummy")
    a("s_barrier")
    a_segments([], 0)
    a.label("L_A_ld")
    a("v_lshlrev_b32 v8, 4, v2")
    def kv_dma(n0, js=range(10)):
        for j in js:
            a(f"s_lshl_b32 s{sT}, s{sW}, 10")
            a(f"s_add_u32 s{sT}, s{sT}, {(n0 + 4*j)*1024}")
            a(f"s_add_u32 m0, s{sT}, {ROT*CHUNK}")
            a(f"s_add_u32 s{sT}, s{sT}, s{sKV}")
            a(f"s_add_u32 s{sT}, s{sT}, {WS_KV}")
            a(f"buffer_load_dwordx4 v8, {WS_}, s{sT} offen lds")
        VA.op(len(js))
    VA.issued = VA.done = 0
    for st in range(NSEG, 9):
        FST = NSEG + opt("fd", 1)
        if st == FST: a(f"s_waitcnt vmcnt({VA.issued})")
        if st + 1 > BD: VA.need(tag2[st + 1])
        a("s_barrier")
        if st == FST:
            lab = a.newlabel("L_f1add")
            a(f"s_cmp_lg_u32 s{sW}, 0")
            a(f"s_cbranch_scc1 {lab}")
            a(f"s_lshl_b32 s{sT}, s2, 7")
            a(f"s_add_u32 s{sT}, s{sT}, {WS_FL1}")
            a("v_mov_b32 v9, 0")
            a(f"v_mov_b32 v10, s{sNon}")
            a("s_mov_b64 exec, 1")
            a(f"buffer_store_dword v10, v9, {WS_}, s{sT} offen{SC}")
            a("s_mov_b64 exec, -1")
            a.label(lab)
        if BD < st + 4 <= 9: tag2[st + 4] = issue2(st + 4, VA)
        PP0 = opt("ppf", 2)
        for t in range(4):
            if st == PP0 + t // 2:
                a(f"buffer_load_dwordx4 {vr(PFD,4)}, v{vPK[t]}, {PK_}, 0 offen"); VA.op()
        if st == 6:
            pack_ids(); tpk = pack_issue(VA)
        KS = opt("ks", 10)
        if st == 7: kv_dma(0, range(KS))
        if st == 8 and KS < 10: kv_dma(0, range(KS, 10))
        if st == 8:
            for j in range(3):
                a(f"s_add_u32 s{sT}, s{sW}, {4*j}")
                a(f"s_min_u32 s{sT}, s{sT}, 9")
                a(f"s_lshl_b32 s{sT+1}, s{sT}, 10")
                a(f"s_add_u32 m0, s{sT+1}, {QOFF}")
                a(f"s_cmp_ge_u32 s{sT}, 5")
                a(f"s_cselect_b32 s{sT}, 5120, 0")
                a(f"s_add_u32 s{sT}, s{sT}, s{sT+1}")
                a(f"s_mul_i32 s{sT+1}, s{sQB}, {2*CHUNK}")
                a(f"s_add_u32 s{sT}, s{sT}, s{sT+1}")
                a(f"s_add_u32 s{sT}, s{sT}, s{sKV}")
                a(f"s_add_u32 s{sT}, s{sT}, {WS_Q}")
                a(f"buffer_load_dwordx4 v8, {WS_}, s{sT} offen lds")
    VA.op(3)
    pack_finish(VA, tpk)
    a(f"s_lshl_b32 s{sF2}, s3, 7")
    a(f"s_add_u32 s{sF2}, s{sF2}, {WS_FLP}")
    a(f"s_cmp_eq_u32 s{sW}, 3")
    a(f"s_cselect_b32 s{sF2}, {WS_END}, s{sF2}")
    a("s_mov_b32 s3, 0")
    a("s_branch L_p3")

    a.label("L_B")
    for j in range(3): a(f"s_add_u32 s{sPB[j]}, s{sPB[j]}, s3\ns_add_u32 s{sPB[j]}, s{sPB[j]}, s3")
    sWo = sR + 4
    vWv = 7
    a("v_lshrrev_b32 v9, 4, v2")
    a(f"v_mul_u32_u24 v{vWv}, 3840, v9")
    a("v_lshrrev_b32 v10, 2, v2")
    a("v_and_b32 v10, 3, v10")
    a("v_xor_b32 v10, v10, v9")
    a(f"v_lshl_add_u32 v{vWv}, v10, 6, v{vWv}")
    a("v_and_b32 v10, 3, v2")
    a(f"v_lshl_add_u32 v{vWv}, v10, 4, v{vWv}")
    a(f"s_mul_i32 s{sWo}, s{sLW}, {16*3840}")
    a(f"s_lshl_b32 s{sT}, s{sNT}, 8")
    a(f"s_add_u32 s{sWo}, s{sWo}, s{sT}")
    VM = Cnt(a, "vmcnt", 63)
    def issue1(st):
        base = (st % 4) * 16384
        for j in range(4):
            a(f"s_add_u32 m0, s{sLd}, {base + j*1024}")
            a(f"s_add_u32 s{sT}, s{sXo}, {j*8*1280 + st*128}")
            a(f"buffer_load_dwordx4 v{vXO if j & 1 else vXE}, {X_}, s{sT} offen lds")
            a(f"s_add_u32 m0, s{sLd}, {base + 65536 + j*1024}")
            a(f"s_add_u32 s{sT}, s{sWo}, {(st*64 + j*4)*3840}")
            a(f"buffer_load_dwordx4 v{vWv}, {WQ_}, s{sT} offen lds")
        return VM.op(8)
    tag1 = {}
    SA = [12 + j for j in range(4)]
    SD = 20; LS = [36, 37]; LU = [40, 41, 42, 43]
    GX = [8, 12]
    GW = [[16 + (b * 6 + n) * 4 for n in range(6)] for b in range(2)]
    GACC = 64
    gXA = [184 + ks for ks in range(4)]
    gWA = [[200 + z * 3 + p for p in range(3)] for z in range(2)]
    GCS = [160, 164]; NM2, RS2 = 180, 181; POLL = 225
    sCT = [sA, sB, sC]
    a("v_lshrrev_b32 v9, 1, v3")
    a("v_and_b32 v9, 7, v9")
    a(f"v_lshl_add_u32 v10, v3, 7, s{sLd}")
    for ks in range(4):
        a(f"v_or_b32 v11, {2*ks}, v4")
        a(f"v_xor_b32 v11, v11, v9")
        a(f"v_lshl_add_u32 v{gXA[ks]}, v11, 4, v10")
    a("v_lshlrev_b32 v11, 2, v4")
    a("v_xor_b32 v9, v9, v11")
    for j in range(4):
        a(f"v_xor_b32 v11, {j}, v9")
        a(f"v_lshl_add_u32 v{SA[j]}, v11, 4, v10")
    for r in LS: a(f"v_mov_b32 v{r}, 0")
    common_late_setup()
    a("v_lshrrev_b32 v5, 2, v2")
    a("v_and_b32 v5, 3, v5")
    a("v_lshl_add_u32 v5, v4, 3, v5")
    a("v_mul_u32_u24 v5, 192, v5")
    a("v_lshrrev_b32 v6, 4, v2")
    a("v_and_b32 v6, 1, v6")
    a("v_lshl_add_u32 v5, v6, 5, v5")
    a("v_and_b32 v6, 3, v2")
    a("v_lshl_add_u32 v5, v6, 3, v5")
    for p in range(3):
        a(f"s_add_u32 s{sCT[p]}, s{sLW}, {p}")
        for _ in range(2):
            a(f"s_cmp_ge_u32 s{sCT[p]}, 3")
            a(f"s_cselect_b32 s{sT}, 3, 0")
            a(f"s_sub_u32 s{sCT[p]}, s{sCT[p]}, s{sT}")
        a(f"s_lshl_b32 s{sT}, s{sCT[p]}, 6")
        a(f"s_add_u32 s{sT}, s{sT}, 65536")
        a(f"v_add_u32 v{gWA[0][p]}, s{sT}, v5")
        a(f"v_add_u32 v{gWA[1][p]}, {114688 - 65536}, v{gWA[0][p]}")
    for r in range(96): a(f"v_mov_b32 v{GACC+r}, 0")
    for r in range(8): a(f"v_mov_b32 v{GCS[0]+r}, 0")
    a(f"v_lshlrev_b32 v{POLL+4}, 7, v2")
    def f1_loads():
        for q in range(4):
            a(f"s_mov_b32 s{sT}, {WS_FL1 + q*8192}")
            a(f"buffer_load_dword v{POLL+q}, v{POLL+4}, {WS_}, s{sT} offen{SC}")
    def ssq_ops():
        ops = []
        for j in range(4):
            ops.append(f"s_waitcnt lgkmcnt({3-j})")
            for r in range(4):
                x = SD + 4 * j + r; u0, u1 = LU[2 * (r & 1)], LU[2 * (r & 1) + 1]
                ops += [f"v_lshlrev_b32 v{u0}, 16, v{x}", f"v_and_b32 v{u1}, 0xffff0000, v{x}",
                        f"v_fmac_f32 v{LS[0]}, v{u0}, v{u0}", f"v_fmac_f32 v{LS[1]}, v{u1}, v{u1}"]
        return ops
    if "early" not in exp: a("s_waitcnt vmcnt(0)")
    ST("E", 4)
    tag1[0] = issue1(0)
    ST("E", 5)
    tag1[1] = issue1(1)
    ST("E", 6)
    ST("E", 7)
    VM.need(tag1[0])
    ST("E", 8)
    a("s_barrier")
    ST("E", 9)
    if "prB" in exp: a(f"s_setprio {opt('prB', 1)}")
    issued = 1
    tagB = {}
    PF34 = opt("pfc", 2)
    for st in range(10):
        for j in range(4): a(f"ds_read_b128 {vr(SD+4*j,4)}, v{SA[j]} offset:{(st % 4) * 16384}")
        n0 = len(a.lines)
        while issued < min(st + 3, 9):
            issued += 1; tag1[issued] = issue1(issued)
        if st == PF34 and "pfall" not in exp:
            if "pf3" in exp:
                for j in range(3): a(f"s_add_u32 s{sPB[j]}, s{sPB[j]}, s3")
            else: pf1(VM)
            pf1(VM, adv=0)
        if st == 7: tnon = nonce_issue(VM)
        if st == 7: tagB[0] = issue2(0, VM)
        if st == 8: tagB[1] = issue2(1, VM)
        dma = a.lines[n0:]; del a.lines[n0:]
        ops = ssq_ops() if "nossq" not in exp else []
        nd = sum("buffer_load" in l for l in dma)
        per = -(-len(ops) // max(nd - 1, 1)) if nd else len(ops)
        k = 0
        for l in dma:
            a.lines.append(l)
            if "buffer_load" in l:
                k += 1
                if k >= 2:
                    for o in ops[:per]: a(o)
                    ops = ops[per:]
        for o in ops: a(o)
        if st == 8: nonce_get(VM, tnon)
        if st < 9:
            if 4 <= st < 9: ST("G", 2 * (st - 4) + 1)
            VM.need(tag1[st + 1])
            if 4 <= st < 9: ST("G", 2 * (st - 4) + 2)
            a("s_barrier")
    a(f"v_add_f32 v{RS2}, v{LS[0]}, v{LS[1]}")
    a(f"v_mov_b32 v{LS[1]}, v{RS2}")
    a(f"s_lshl_b32 s{sT}, s{sLW}, 7")
    a(f"s_add_u32 s{sT}, s{sT}, {STB}")
    a(f"v_lshl_add_u32 v10, v3, 2, s{sT}")
    a(f"v_permlane32_swap_b32 v{RS2}, v{LS[1]}")
    a(f"v_add_f32 v{RS2}, v{RS2}, v{LS[1]}")
    a("s_barrier")
    a(f"ds_read_b32 v{NM2}, v10 offset:{ST_SUM}")
    a("s_waitcnt lgkmcnt(0)")
    ln_rowmath(a, NM2, RS2, LU[1], sT)
    a.nop(1)
    a(f"ds_write_b32 v10, v{NM2} offset:{ST_NM}")
    a(f"ds_write_b32 v10, v{RS2} offset:{ST_RS}")
    a(f"v_mul_f32 v{RS2}, v{RS2}, v{RS2}")
    tagB[2] = issue2(2, VM)
    VM.need(tagB[0])
    a("s_waitcnt lgkmcnt(0)")
    a("s_barrier")
    if "noprioB" not in exp: a("s_setprio 2")
    delay("B")
    ST("F", 10)
    ST("A", 4); ST("C", 1)
    L2 = Cnt(a, "lgkmcnt", 15)
    tg2 = [{}, {}]
    def emit2(lst, buf):
        for key, l in lst:
            a(l); tg2[buf][key] = L2.op()
    def rd2(st, ks, buf):
        wa = WA[st % 4]; z = 1 if wa >= 114688 else 0; wb = wa - (114688 if z else 65536)
        L = [("X", f"ds_read_b128 {vr(GX[buf],4)}, v{gXA[ks]} offset:{XS[st % 4]}")]
        for n in range(6):
            mat, p = n & 1, n >> 1
            for h in range(2):
                L.append((n, f"ds_read_b64_tr_b16 {vr(GW[buf][n]+2*h,2)}, v{gWA[z][p]} offset:{wb + mat*12288 + (16*ks+4*h)*192}"))
        return L
    emit2(rd2(0, 0, 0), 0)
    def units_of(fn):
        out = []; cur = []
        for l in capture(fn):
            cur.append(l)
            if "buffer_load" in l: out.append(cur); cur = []
        return out
    pend = units_of(lambda: issue2(3, VM, "butlast"))
    for st in range(10):
        for ks in range(4):
            buf = (st * 4 + ks) & 1
            if ks < 3: nxt = rd2(st, ks + 1, buf ^ 1)
            elif st < 9: nxt = rd2(st + 1, 0, buf ^ 1)
            else: nxt = []
            if ks == 3 and st < 9:
                if st < 3: ST("F", 1 + 3 * st)
                assert not pend
                if st + 1 <= BD: VM.need(tagB[st + 1])
                L2.need(L2.issued - 1)
                if st < 3: ST("F", 2 + 3 * st)
                a("s_barrier")
                if st < 3: ST("F", 3 + 3 * st)
                ST("C", st + 2)
                if st + 4 <= BD:
                    def dm():
                        if st == 0: tagB[3] = issue2(3, VM, "last")
                        tagB[st + 4] = issue2(st + 4, VM)
                    pend = units_of(dm)
            if st == 6 and ks == 3:
                lab = a.newlabel("L_f1p")
                a(f"s_cmp_lg_u32 s{sW}, 4")
                a(f"s_cbranch_scc1 {lab}")
                f1_loads()
                a.label(lab)
            if st == 7 and ks == 2:
                lab = a.newlabel("L_f1")
                a(f"s_cmp_lg_u32 s{sW}, 4")
                a(f"s_cbranch_scc1 {lab}_ok")
                a(f"s_mov_b32 s{sT+1}, 0")
                a.label(lab)
                a("s_waitcnt vmcnt(0)")
                for q in range(4): a(f"v_xor_b32 v{POLL+q}, s{sNon}, v{POLL+q}")
                a(f"v_or3_b32 v{POLL}, v{POLL}, v{POLL+1}, v{POLL+2}")
                a(f"v_or_b32 v{POLL}, v{POLL}, v{POLL+3}")
                a(f"v_cmp_ne_u32 vcc, 0, v{POLL}")
                a(f"s_add_u32 s{sT+1}, s{sT+1}, 1")
                a.nop(2)
                a("s_cmp_eq_u64 vcc, 0")
                a(f"s_cbranch_scc1 {lab}_ok")
                a(f"s_cmp_ge_u32 s{sT+1}, 0x20000")
                a(f"s_cbranch_scc1 {lab}_ok")
                a("s_sleep 8")
                f1_loads()
                a(f"s_branch {lab}")
                a.label(f"{lab}_ok")
            for n in range(6):
                d = GACC + n * 16
                L2.need(tg2[buf][n])
                a(f"{M32} {vr(d,16)}, {vr(GW[buf][n],4)}, {vr(GX[buf],4)}, {vr(d,16)}")
                emit2(nxt[0:3] if n == 0 else nxt[1 + n * 2: 3 + n * 2], buf ^ 1)
                if pend and n in (1, 3, 5): a.lines += pend.pop(0)
                if n >= 4: a(f"{M16} {vr(GCS[n-4],4)}, {vr(SEL,4)}, {vr(GW[buf][n-4],4)}, {vr(GCS[n-4],4)}")
    ST("A", 5); ST("C", 11)
    a(f"s_lshl_b32 s{sT}, s{sCT[0]}, 7")
    a(f"s_add_u32 s{sT}, s{sT}, {CSA}")
    a(f"v_lshl_add_u32 v5, v3, 2, s{sT}")
    a(f"s_lshl_b32 s{sR+4}, s{sMT}, 2")
    a(f"s_add_u32 s{sR+4}, s{sR+4}, s{sLW}")
    a(f"s_mul_i32 s{sR+4}, s{sR+4}, {2*49152}")
    a(f"s_mul_i32 s{sT}, s{sNG}, {12*256}")
    a(f"s_add_u32 s{sR+4}, s{sR+4}, s{sT}")
    a(f"s_add_u32 s{sR+4}, s{sR+4}, {WS_H}")
    a("s_mov_b64 exec, 0xffff")
    for mat in range(2):
        a(f"ds_write_b32 v5, v{GCS[mat]} offset:{mat*384}")
        a(f"ds_write_b32 v5, v{GCS[mat]+1} offset:{mat*384+64}")
    a("s_mov_b64 exec, -1")
    a("v_lshrrev_b32 v6, 4, v3")
    a("v_mul_u32_u24 v6, 49152, v6")
    a("v_lshl_add_u32 v6, v4, 8, v6")
    a("v_and_b32 v7, 15, v3")
    a("v_lshl_add_u32 v6, v7, 4, v6")
    a("s_waitcnt lgkmcnt(0)")
    a("s_barrier")
    a("s_setprio 3")
    CB = [16, 184]
    def cs_read(p):
        a(f"s_lshl_b32 s{sT}, s{sCT[p]}, 7")
        a(f"s_add_u32 s{sT}, s{sT}, {CSA}")
        a(f"v_lshl_add_u32 v5, v4, 4, s{sT}")
        for mat in range(2):
            for g in range(4):
                a(f"ds_read_b128 {vr(CB[p&1]+(mat*4+g)*4,4)}, v5 offset:{mat*384+g*32}")
    cs_read(0); cs_read(1)
    for p in range(3):
        cb = CB[p & 1]
        a(f"s_waitcnt lgkmcnt({8 if p < 2 else 0})")
        g = GACC + (2 * p) * 16; u = GACC + (2 * p + 1) * 16
        for e in range(16):
            a(f"v_fmac_f32 v{g+e}, v{cb+e}, v{NM2}")
            a(f"v_fmac_f32 v{u+e}, v{cb+16+e}, v{NM2}")
        if p == 0: cs_read(2)
        a(f"s_lshl_b32 s{sT}, s{sCT[p]}, 10")
        a(f"s_add_u32 s{sT}, s{sT}, s{sR+4}")
        for gp in range(2):
            for e in range(8 * gp, 8 * gp + 8):
                a(f"v_max_f32 v{g+e}, 0, v{g+e}")
                a(f"v_mul_f32 v{u+e}, v{u+e}, v{RS2}")
            for e in range(8 * gp, 8 * gp + 8): a(f"v_mul_f32 v{g+e}, v{g+e}, v{u+e}")
            o = u + 8 * gp
            for q in range(4): a(f"v_cvt_pk_bf16_f32 v{o+q}, v{g+8*gp+2*q}, v{g+8*gp+2*q+1}")
            a.nop(2)
            a(f"v_permlane32_swap_b32 v{o}, v{o+2}")
            a(f"v_permlane32_swap_b32 v{o+1}, v{o+3}")
            a(f"buffer_store_dwordx4 {vr(o,4)}, v6, {WS_}, s{sT} offen offset:{gp*512}{SC}")
    p3_ids()
    a("s_mov_b32 s3, 1")

    a.label("L_p3")
    ST("A", 6)
    QA, QB = 8, 12
    S = [16, 32]; P = 48; O = 56
    KA = [72, 76]; KB = [80, 84]; V = [[88, 92], [96, 100]]
    AD = [[104 + 3 * z + y for y in range(3)] for z in range(3)]
    T0, T1, T2, T3 = 113, 114, 115, 116
    vM, vOst, vL, vFo, vPP = 117, 118, 120, 121, 122
    PPD = 249
    DACC = 124
    DF = [164 + 28 * k for k in range(3)]
    DPOLL = 248
    NV = 252
    sDX, sDW, sFin, sLoop, sFp = sR, sR + 2, sR + 4, sR + 5, sR + 6
    a(f"v_lshlrev_b32 v{vL}, 4, v2")
    a(f"s_lshl_b32 s{sT}, s{sQB}, 8")
    a(f"s_lshl_b32 s{sT+1}, s{sW}, 5")
    a(f"s_add_u32 s{sT}, s{sT}, s{sT+1}")
    a(f"v_add_u32 v5, s{sT}, v3")
    a(f"v_lshrrev_b32 v6, 4, v5")
    a(f"v_mul_u32_u24 v{vOst}, 20480, v6")
    a(f"v_and_b32 v6, 15, v5")
    a(f"v_lshl_add_u32 v{vOst}, v6, 4, v{vOst}")
    a(f"v_lshl_add_u32 v{vOst+1}, v4, 8, v{vOst}")
    a(f"s_lshr_b32 s{sT}, s{sW}, 2")
    a(f"s_mul_i32 s{sT}, s{sT}, 5120")
    a(f"s_add_u32 s{sT}, s{sT}, {QOFF}")
    a(f"v_and_b32 v5, 127, v5")
    a(f"v_lshl_add_u32 v6, v5, 4, s{sT}")
    a(f"v_lshl_add_u32 v6, v4, 11, v6")
    a(f"v_lshl_add_u32 v7, v5, 3, s{sT}")
    a("v_and_b32 v5, 0x13, v3")
    a(f"v_and_b32 v{T0}, 4, v3")
    a(f"v_lshl_or_b32 v5, v{T0}, 1, v5")
    a(f"v_and_b32 v{T0}, 8, v3")
    a(f"v_lshrrev_b32 v{T0}, 1, v{T0}")
    a(f"v_or_b32 v5, v5, v{T0}")
    a(f"v_lshlrev_b32 v{AD[0][0]}, 4, v5")
    a(f"v_lshl_add_u32 v{AD[0][0]}, v4, 11, v{AD[0][0]}")
    a(f"v_lshlrev_b32 v{AD[0][1]}, 3, v5")
    a(f"v_add_u32 v{AD[0][1]}, 4096, v{AD[0][1]}")
    a(f"v_mul_u32_u24 v{AD[0][2]}, 320, v4")
    a(f"v_lshl_add_u32 v{AD[0][2]}, v3, 4, v{AD[0][2]}")
    a(f"v_add_u32 v{AD[0][2]}, 5120, v{AD[0][2]}")
    for z in (1, 2):
        for y in range(3): a(f"v_add_u32 v{AD[z][y]}, {6*z*CHUNK}, v{AD[0][y]}")
    for r in range(4): a(f"v_mov_b32 v{QB+r}, 0")
    for r in range(16): a(f"v_mov_b32 v{O+r}, 0")
    a("v_cmp_eq_u32 vcc, 20, v3")
    a(f"v_mov_b32 v{T0}, 0x3f803f80")
    a.nop(1)
    a(f"v_cndmask_b32 v{T1}, 0, v{T0}, vcc")
    for b in range(2):
        a(f"v_mov_b32 v{KB[b]+2}, 0x3f80")
        a(f"v_mov_b32 v{KB[b]+3}, 0")
        for j in range(2):
            for r in range(4): a(f"v_mov_b32 v{V[b][j]+r}, v{T1}")
    for r in range(8): a(f"v_mov_b32 v{P+r}, 0")
    for r in range(40): a(f"v_mov_b32 v{DACC+r}, 0")
    a(f"s_and_b32 s{sT}, s{sXCD}, 3")
    a(f"s_lshl_b32 s{sT+1}, s{sQB}, 2")
    a(f"s_add_u32 s{sT}, s{sT}, s{sT+1}")
    a(f"s_lshl_b32 s{sT+4}, s{sT}, 1")
    a(f"s_lshl_b32 s{sT}, s{sT}, 2")
    a(f"s_lshr_b32 s{sT+2}, s{sXCD}, 2")
    a(f"s_lshl_b32 s{sT+2}, s{sT+2}, 2")
    a(f"s_and_b32 s{sT+3}, s{sIDX}, 3")
    a(f"s_add_u32 s{sT+2}, s{sT+2}, s{sT+3}")
    a(f"s_mul_i32 s{sFin}, s{sT}, {16*1280}")
    a(f"s_mul_i32 s{sT+3}, s{sT+2}, 160")
    a(f"s_add_u32 s{sFin}, s{sFin}, s{sT+3}")
    a(f"s_and_b32 s{sT+3}, s{sW}, 1")
    a(f"s_add_u32 s{sT+4}, s{sT+4}, s{sT+3}")
    a(f"s_lshl_b32 s{sT+3}, s{sT+3}, 1")
    a(f"s_add_u32 s{sT}, s{sT}, s{sT+3}")
    a(f"s_lshr_b32 s{sT+3}, s{sW}, 1")
    a(f"s_lshl_b32 s{sT+5}, s{sT+3}, 10")
    a(f"s_mul_i32 s{sDX}, s{sT}, 49152")
    a(f"s_add_u32 s{sDX}, s{sDX}, s{sT+5}")
    a(f"s_add_u32 s{sDX}, s{sDX}, {WS_H}")
    a(f"s_mul_i32 s{sDX+1}, s{sT}, 20480")
    a(f"s_add_u32 s{sDX+1}, s{sDX+1}, s{sT+5}")
    a(f"s_add_u32 s{sDX+1}, s{sDX+1}, {WS_O}")
    a(f"s_mul_i32 s{sDW}, s{sT+3}, {40*1024}")
    a(f"s_mul_i32 s{sT+5}, s{sT+2}, 5120")
    a(f"s_add_u32 s{sDW}, s{sDW}, s{sT+5}")
    a(f"s_add_u32 s{sDW}, s{sDW}, {WS_WP}")
    a(f"s_lshr_b32 s{sT+5}, s{sT+4}, 2")
    a(f"s_lshl_b32 s{sT+5}, s{sT+5}, 3")
    a(f"s_and_b32 s{sT+4}, s{sT+4}, 3")
    a(f"s_add_u32 s{sT+5}, s{sT+5}, s{sT+4}")
    a(f"s_lshl_b32 s{sT+5}, s{sT+5}, 11")
    a(f"s_add_u32 s{sFp}, s{sT+5}, {WS_FL2 + 4*2048}")
    a("v_and_b32 v5, 15, v2")
    a(f"v_lshlrev_b32 v{vFo}, 7, v5")
    a(f"s_mul_i32 s{sT+5}, s{sT+2}, 5")
    a(f"s_lshr_b32 s{sT+5}, s{sT+5}, 2")
    a("v_lshrrev_b32 v5, 1, v2")
    a("v_mul_u32_u24 v5, 10, v5")
    a(f"v_and_b32 v{vPP}, 1, v2")
    a(f"v_add3_u32 v{vPP}, v{vPP}, v5, s{sT+5}")
    a(f"v_lshlrev_b32 v{vPP}, 7, v{vPP}")
    a("s_cmp_eq_u32 s3, 1")
    a("s_cbranch_scc1 L_p3_go")
    a("s_waitcnt vmcnt(4)")
    a("s_barrier")
    a.label("L_p3_go")
    delay("C")
    ST("A", 7); ST("D", 1)
    LG = Cnt(a, "lgkmcnt", 15); VM = Cnt(a, "vmcnt", 63)
    a(f"ds_read_b128 {vr(QA,4)}, v6"); LG.op()
    a(f"s_mov_b64 exec, s[{sLO}:{sLO+1}]")
    a(f"ds_read_b64 {vr(QB,2)}, v7 offset:4096"); LG.op()
    a("s_mov_b64 exec, -1")
    def ad(t, y): return AD[((t // 4 + ROT) % 16) // 6][y]
    def coff(t): return (((t // 4 + ROT) % 16) % 6) * CHUNK
    tagK = {}; tagV0 = {}; tagV1 = {}
    def rdK(t):
        if t > 63: return
        if "halfLDS" in exp and t > 3 and (t & 2):
            tagK[t] = 0; return
        b = t & 1
        a(f"ds_read_b128 {vr(KA[b],4)}, v{ad(t,0)} offset:{coff(t) + (t%4)*512}"); LG.op()
        a(f"ds_read_b64 {vr(KB[b],2)}, v{ad(t,1)} offset:{coff(t) + (t%4)*256}"); tagK[t] = LG.op()
    def rdV(t):
        if t > 63: return
        if "halfLDS" in exp and t > 3 and (t & 2):
            tagV0[t] = tagV1[t] = 0; return
        b = t & 1
        if "noexec" not in exp: a(f"s_mov_b64 exec, s[{sVM}:{sVM+1}]")
        a(f"ds_read_b128 {vr(V[b][0],4)}, v{ad(t,2)} offset:{coff(t) + (t%4)*1280}"); tagV0[t] = LG.op()
        a(f"ds_read_b128 {vr(V[b][1],4)}, v{ad(t,2)} offset:{coff(t) + (t%4)*1280 + 640}"); tagV1[t] = LG.op()
        if "noexec" not in exp: a("s_mov_b64 exec, -1")
    def mf(d, A, B, C): a(f"{M32} {vr(d,16)}, {vr(A,4)}, {vr(B,4)}, {C}")
    def rowmax(s, extra=None):
        a(f"v_max3_f32 v{T0}, v{s}, v{s+1}, v{s+2}")
        a(f"v_max3_f32 v{T1}, v{s+3}, v{s+4}, v{s+5}")
        a(f"v_max3_f32 v{T2}, v{s+6}, v{s+7}, v{s+8}")
        a(f"v_max3_f32 v{T3}, v{s+9}, v{s+10}, v{s+11}")
        a(f"v_max3_f32 v{T0}, v{T0}, v{s+12}, v{s+13}")
        a(f"v_max3_f32 v{T1}, v{T1}, v{s+14}, v{s+15}")
        a(f"v_max3_f32 v{T0}, v{T0}, v{T1}, v{T2}")
        a(f"v_max3_f32 v{T0}, v{T0}, v{T3}, v{extra if extra is not None else T3}")
        a(f"v_mov_b32 v{T1}, v{T0}")
        a.nop(2)
        a(f"v_permlane32_swap_b32 v{T0}, v{T1}")
        a(f"v_max_f32 v{T0}, v{T0}, v{T1}")
    rdK(0); rdK(1); rdV(0)
    LG.need(tagK[0])
    mf(S[0], KA[0], QA, "0")
    mf(S[0], KB[0], QB, vr(S[0], 16))
    a.nop(12)
    rowmax(S[0])
    a(f"v_xor_b32 v{T0}, 0x80000000, v{T0}")
    a(f"v_lshrrev_b32 v{T0}, 16, v{T0}")
    a(f"v_cndmask_b32 v{QB+2}, 0, v{T0}, s[{sLO}:{sLO+1}]")
    a.nop(2)
    mf(S[0], KA[0], QA, "0")
    mf(S[0], KB[0], QB, vr(S[0], 16))
    a.nop(12)
    def kvdma(j):
        fg = lambda i: 40 + i if i < 60 else 60 + i if i < 80 else 20 + i if i < 100 else 40 + i
        fl = lambda i: (fg(i) + 10 * ROT) % 160
        lo, hi = 8 * j, 8 * j + 7
        brk = next((i for i in range(lo, hi + 1) if fg(i) - fg(lo) != i - lo or fl(i) - fl(lo) != i - lo), None)
        a(f"s_lshl_b32 s{sT+2}, s{sW}, 10")
        a(f"s_add_u32 s{sT}, s{sT+2}, {fg(lo)*1024 + WS_KV}")
        a(f"s_add_u32 s{sT+1}, s{sT+2}, {fl(lo)*1024}")
        if brk is not None:
            a(f"s_add_u32 s{sT+3}, s{sT+2}, {(fg(brk) - (brk - lo))*1024 + WS_KV}")
            a(f"s_add_u32 s{sT+2}, s{sT+2}, {((fl(brk) - (brk - lo))*1024) & 0xffffffff}")
            a(f"s_cmp_ge_u32 s{sW}, {brk - lo}")
            a(f"s_cselect_b32 s{sT}, s{sT+3}, s{sT}")
            a(f"s_cselect_b32 s{sT+1}, s{sT+2}, s{sT+1}")
        a(f"s_mov_b32 m0, s{sT+1}")
        a(f"s_add_u32 s{sT}, s{sT}, s{sKV}")
        a(f"buffer_load_dwordx4 v{vL}, {WS_}, s{sT} offen lds")
        return VM.op()
    tagD = {}
    def d_issue(j, part):
        f = DF[j % 3]
        wstep = 5 + j
        if part < 2:
            a(f"s_add_u32 s{sT}, s{sDW}, {wstep*4*40*1024}")
            for n in range(2 * part, 2 * part + 2): a(f"buffer_load_dwordx4 {vr(f+8+4*n,4)}, v{vL}, {WS_}, s{sT} offen offset:{n*1024}"); VM.op()
        elif part == 2:
            a(f"s_add_u32 s{sT}, s{sDW}, {wstep*4*40*1024 + 4096}")
            a(f"buffer_load_dwordx4 {vr(f+24,4)}, v{vL}, {WS_}, s{sT} offen"); VM.op()
            a(f"s_add_u32 s{sT}, s{sDX}, {j*4096}")
            a(f"buffer_load_dwordx4 {vr(f,4)}, v{vL}, {WS_}, s{sT} offen"); VM.op()
        else:
            a(f"s_add_u32 s{sT}, s{sDX}, {j*4096 + 49152}")
            a(f"buffer_load_dwordx4 {vr(f+4,4)}, v{vL}, {WS_}, s{sT} offen"); tagD[j] = VM.op()
    def d_mfma(j, q):
        f = DF[j % 3]; m, n = q & 1, q >> 1
        acc = DACC + (m * 5 + n) * 4
        a(f"{M16} {vr(acc,4)}, {vr(f+8+4*n,4)}, {vr(f+4*m,4)}, {vr(acc,4)}")
    useD = "noD" not in exp
    DT0 = opt("dt", 20); ND3 = opt("nd", 10)
    dsched = {t: [] for t in range(64)}; lsched = {t: [] for t in range(64)}; dfirst = {}
    for j in range(ND3):
        for q in range(10):
            t = DT0 + (10 * j + q) * (64 - DT0) // (10 * ND3)
            dsched[t].append((j, q)); dfirst.setdefault(j, t)
    for j in range(ND3, min(ND3 + 2, 12)): dfirst[j] = 64 + 2 * (j - ND3)
    for j in range(min(ND3 + 2, 12)):
        lw = dfirst[j] - 8; lx = max(dfirst[j] - 6, DT0 - 5 + (1 if j else 0))
        if j >= 3:
            last_prev = max(t for t in range(64) for (jj, q) in dsched[t] if jj == j - 3)
            lw = max(lw, last_prev + 1); lx = max(lx, lw + 2)
            assert lx + 1 < 64
        assert lw >= 12
        lsched[lw].append((j, 0)); lsched[lw + 1].append((j, 1)); lsched[lx].append((j, 2)); lsched[lx + 1].append((j, 3))
        assert lx + 1 < dfirst[j] - 1, (j, lx, dfirst[j])
    TF2 = DT0 - 5
    assert max(len(v) for v in dsched.values()) <= 3
    def tile(t):
        cur = t & 1; nxt = cur ^ 1
        s = S[cur]; sn = S[nxt]
        ex = lambda r: a(f"v_exp_f32 v{s+r}, v{s+r}")
        cv = lambda p: a(f"v_cvt_pk_bf16_f32 v{P+p}, v{s+2*p}, v{s+2*p+1}")
        dq = dsched[t] if useD else []
        def dm(k):
            if k < len(dq):
                j, q = dq[k]
                if q == 0: VM.need(tagD[j])
                d_mfma(j, q)
        if "noprio" not in exp: a(f"s_setprio {3 - (t % 4)}")
        if t < 63:
            LG.need(tagK[t + 1])
            mf(sn, KA[nxt], QA, "0")
        ex(0); ex(1); dm(0); ex(2); ex(3)
        if t < 63 and not ("noQK2" in exp and (t & 1)): mf(sn, KB[nxt], QB, vr(sn, 16))
        rdK(t + 2)
        ex(4); ex(5); dm(1); ex(6); ex(7)
        cv(0); cv(1)
        if t > 0:
            LG.need(tagV1[t - 1])
            mf(O, V[nxt][1], P + 4, vr(O, 16))
        rdV(t + 1)
        cv(2); cv(3)
        ex(8); ex(9); dm(2); ex(10); ex(11)
        LG.need(tagV0[t])
        mf(O, V[cur][0], P, vr(O, 16))
        if useD:
            for (j, part) in lsched[t]: d_issue(j, part)
        for r in range(12, 16): ex(r)
        cv(4); cv(5); cv(6); cv(7)
    sWOb = sKV
    def wodma(j):
        a(f"s_add_u32 s{sT}, s{sW}, {8*j}")
        a(f"s_min_u32 s{sT}, s{sT}, 99")
        a(f"s_mul_i32 s{sT+1}, s{sT}, 205")
        a(f"s_lshr_b32 s{sT+1}, s{sT+1}, 10")
        a(f"s_mul_i32 s{sT+1}, s{sT+1}, {40960 - 5*1024}")
        a(f"s_lshl_b32 s{sT}, s{sT}, 10")
        a(f"s_add_u32 m0, s{sT}, {WOB}")
        a(f"s_add_u32 s{sT}, s{sT}, s{sT+1}")
        a(f"s_add_u32 s{sT}, s{sT}, s{sWOb}")
        a(f"buffer_load_dwordx4 v{vL}, {WS_}, s{sT} offen lds")
        return VM.op()
    nd = 0; nwo = 0
    TB1 = 12; tkvs = {}
    for t in range(64):
        if t == 2:
            a(f"s_waitcnt vmcnt({VM.issued})")
            a(f"v_mov_b32 v{T0}, 0")
            a(f"v_mov_b32 v{T1}, s{sNon}")
            a("s_mov_b64 exec, 1")
            a(f"buffer_store_dword v{T1}, v{T0}, {WS_}, s{sF2} offen{SC}"); VM.op()
            a("s_mov_b64 exec, -1")
        def pp_loads():
            for q in range(3):
                if q == 2: a("s_mov_b64 exec, 0xff")
                a(f"s_mov_b32 s{sT}, {WS_FLP + q*320*128}")
                a(f"buffer_load_dword v{PPD+q}, v{vPP}, {WS_}, s{sT} offen{SC}")
            a("s_mov_b64 exec, -1")
        if t == TB1 - 3:
            npp = VM.issued
            lab = a.newlabel("L_pp")
            a(f"s_cmp_lg_u32 s{sW}, 0")
            a(f"s_cbranch_scc1 {lab}")
            a(f"v_mov_b32 v{PPD+2}, s{sNon}")
            pp_loads()
            a.label(lab)
        if t == TB1:
            lab = a.newlabel("L_ppc")
            a(f"s_cmp_lg_u32 s{sW}, 0")
            a(f"s_cbranch_scc1 {lab}_ok")
            a(f"s_mov_b32 s{sT+1}, 0")
            a(f"s_waitcnt vmcnt({VM.issued - npp})")
            a.label(lab)
            for q in range(3): a(f"v_xor_b32 v{T0+q}, s{sNon}, v{PPD+q}")
            a(f"v_or3_b32 v{T0}, v{T0}, v{T1}, v{T2}")
            a(f"v_cmp_ne_u32 vcc, 0, v{T0}")
            a(f"s_add_u32 s{sT+1}, s{sT+1}, 1")
            a.nop(2)
            a("s_cmp_eq_u64 vcc, 0")
            a(f"s_cbranch_scc1 {lab}_ok")
            a(f"s_cmp_ge_u32 s{sT+1}, 0x20000")
            a(f"s_cbranch_scc1 {lab}_ok")
            a("s_sleep 8")
            pp_loads()
            a("s_waitcnt vmcnt(0)")
            a(f"s_branch {lab}")
            a.label(f"{lab}_ok")
            VM.need(tkvs[4])
            a("s_barrier")
        if useD and t == TF2 - 2:
            a(f"buffer_load_dword v{DPOLL}, v{vFo}, {WS_}, s{sFp} offen{SC}"); tpoll = VM.op()
        if useD and t == TF2:
            VM.need(tpoll)
            lab = a.newlabel("L_f2")
            a(f"s_mov_b32 s{sT+1}, 0")
            a.label(lab)
            a(f"v_cmp_ne_u32 vcc, s{sNon}, v{DPOLL}")
            a(f"s_add_u32 s{sT+1}, s{sT+1}, 1")
            a.nop(2)
            a("s_cmp_eq_u64 vcc, 0")
            a(f"s_cbranch_scc1 {lab}_ok")
            a(f"s_cmp_ge_u32 s{sT+1}, 0x20000")
            a(f"s_cbranch_scc1 {lab}_ok")
            a("s_sleep 4")
            a(f"buffer_load_dword v{DPOLL}, v{vFo}, {WS_}, s{sFp} offen{SC}")
            a("s_waitcnt vmcnt(0)")
            a(f"s_branch {lab}")
            a.label(f"{lab}_ok")
        if t == 28:
            VM.need(tkv)
            a("s_barrier")
        if t == 42:
            a("s_barrier")
            a(f"s_lshr_b32 s{sT}, s{sW}, 1")
            a(f"s_mul_i32 s{sT}, s{sT}, {40*1024}")
            a(f"s_sub_u32 s{sWOb}, s{sDW}, s{sT}")
        if t % 8 == 0 and t: ST("D", 1 + t // 8)
        tile(t)
        if nd < 15 and (nd < 10 or t >= TB1):
            tkv = tkvs[nd] = kvdma(nd); nd += 1
        if t >= 42 and nwo < 13:
            wodma(nwo); nwo += 1
    LG.need(tagV1[63])
    a.nop(2)
    mf(O, V[1][1], P + 4, vr(O, 16))
    ST("A", 8); ST("D", 9)
    a("s_setprio 0")
    a("v_and_b32 v5, 15, v2")
    a("v_lshrrev_b32 v6, 4, v2")
    a("v_mul_u32_u24 v5, 1280, v5")
    a("v_lshl_add_u32 v5, v6, 3, v5")
    a(f"s_lshl_b32 s{sT}, s{sW}, 5")
    a(f"s_add_u32 s{sFin}, s{sFin}, s{sT}")
    a(f"s_lshr_b32 s{sT}, s{sW}, 1")
    a(f"s_mul_i32 s{sT}, s{sT}, 5120")
    a(f"s_add_u32 s{sT}, s{sT}, {WOB}")
    a(f"v_add_u32 v7, s{sT}, v{vL}")
    a(f"v_add_u32 v6, {3*20480}, v7")
    a.nop(4)
    a(f"v_mov_b32 v{T0}, v{O+8}")
    a(f"v_mov_b32 v{T1}, v{O+8}")
    a(f"v_mov_b32 v{T2}, 0")
    a.nop(1)
    a(f"v_permlane32_swap_b32 v{T0}, v{T1}")
    for r in range(12): a(f"v_fma_f32 v{T2}, v{O+r}, 0, v{T2}")
    a(f"s_mov_b32 s{sT}, 0x71800000")
    a(f"v_add_f32 v{T2}, v{T2}, v{T1}")
    a(f"v_cmp_ngt_f32 vcc, s{sT}, v{T2}")
    a.nop(4)
    a("s_cmp_lg_u64 vcc, 0")
    a("s_cbranch_scc1 L_slow")
    a.label("L_fin")
    a(f"v_rcp_f32 v{T1}, v{T1}")
    a(f"s_lshr_b32 s{sT}, s{sH}, 1")
    a(f"s_mul_i32 s{sT}, s{sT}, {5*256}")
    a(f"s_add_u32 s{sT}, s{sT}, {WS_O}")
    a(f"s_and_b32 s{sT+1}, s{sH}, 1")
    a(f"s_mul_i32 s{sT+2}, s{sT+1}, {3*256}")
    a(f"s_add_u32 s{sT+2}, s{sT+2}, s{sT}")
    a(f"s_lshl_b32 s{sT+1}, s{sT+1}, 3")
    a(f"s_add_u32 s{sT+1}, s{sT+1}, s{sT}")
    for r in range(12): a(f"v_mul_f32 v{O+r}, v{O+r}, v{T1}")
    for p in range(6): a(f"v_cvt_pk_bf16_f32 v{P+p}, v{O+2*p}, v{O+2*p+1}")
    a(f"v_permlane32_swap_b32 v{P}, v{P+2}")
    a(f"v_permlane32_swap_b32 v{P+1}, v{P+3}")
    a(f"buffer_store_dwordx4 {vr(P,4)}, v{vOst+1}, {WS_}, s{sT+2} offen{SC}")
    a(f"s_mov_b64 exec, s[{sLO}:{sLO+1}]")
    a(f"buffer_store_dwordx2 {vr(P+4,2)}, v{vOst}, {WS_}, s{sT+1} offen offset:512{SC}")
    a("s_mov_b64 exec, -1")
    for m in range(4):
        a(f"s_add_u32 s{sT}, s{sFin}, {m*16*1280}")
        a(f"buffer_load_dwordx2 {vr(20+2*m,2)}, v5, {X_}, s{sT} offen")
    VM.op(6)
    ST("A", 9); ST("D", 10)
    if useD:
        for j in range(ND3, 12):
            if j + 2 < 12 and j + 2 not in tagD:
                for part in range(4): d_issue(j + 2, part)
            VM.need(tagD[j])
            for q in range(10): d_mfma(j, q)
    XOF = [72 + 8 * k for k in range(4)] + [36]
    WOF = [164 + 20 * k for k in range(4)] + [44]
    sPend = sLoop
    def xo_load(k):
        for m in range(2):
            a(f"s_add_u32 s{sT}, s{sDX+1}, {k*4096 + m*20480}")
            a(f"buffer_load_dwordx4 {vr(XOF[k]+4*m,4)}, v{vL}, {WS_}, s{sT} offen{SC}")
    for k in range(5): xo_load(k)
    a("s_waitcnt vmcnt(10)")
    a("s_barrier")
    ST("A", 10); ST("D", 11)
    for k in range(5):
        for n in range(5):
            off = k * 20480 + n * 1024
            a(f"ds_read_b128 {vr(WOF[k]+4*n,4)}, v{7 if k < 3 else 6} offset:{off if k < 3 else off - 3*20480}")
    a(f"s_mov_b32 s{sPend}, 31")
    a(f"s_mov_b32 s{sT+1}, 0")
    a("s_waitcnt lgkmcnt(0)")
    a("s_barrier")
    a.label("L_xo")
    a("s_waitcnt vmcnt(0)")
    a(f"s_mov_b32 s{sT+2}, 0")
    for k in range(5):
        x = XOF[k]
        a(f"s_bitcmp1_b32 s{sPend}, {k}")
        a(f"s_cbranch_scc0 L_xo_n{k}")
        a(f"v_max3_u32 v28, v{x}, v{x+1}, v{x+2}")
        a(f"v_max3_u32 v29, v{x+3}, v{x+4}, v{x+5}")
        a(f"v_max3_u32 v28, v28, v{x+6}, v{x+7}")
        a(f"v_max_u32 v28, v28, v29")
        a("v_cmp_eq_u32 vcc, -1, v28")
        a.nop(4)
        a("s_cmp_eq_u64 vcc, 0")
        a(f"s_cbranch_scc1 L_xo_y{k}")
        a(f"s_cmp_lt_u32 s{sT+1}, 0x40000")
        a(f"s_cbranch_scc0 L_xo_y{k}")
        xo_load(k)
        a(f"s_mov_b32 s{sT+2}, 1")
        a(f"s_branch L_xo_n{k}")
        a.label(f"L_xo_y{k}")
        if k:
            a(f"s_cmp_lg_u32 s{sT+2}, 0")
            a(f"s_cbranch_scc1 L_xo_n{k}")
        a(f"s_bitset0_b32 s{sPend}, {k}")
        for n in range(5):
            for m in range(2):
                acc = DACC + (m * 5 + n) * 4
                a(f"{M16} {vr(acc,4)}, {vr(WOF[k]+4*n,4)}, {vr(x+4*m,4)}, {vr(acc,4)}")
        a.label(f"L_xo_n{k}")
    a(f"s_add_u32 s{sT+1}, s{sT+1}, 1")
    a(f"s_cmp_lg_u32 s{sPend}, 0")
    a("s_cbranch_scc1 L_xo")
    delay("D")
    ST("A", 11)
    a(f"s_and_b32 s{sT}, s{sW}, 1")
    a(f"s_lshl_b32 s{sT}, s{sT}, 3")
    a(f"s_lshr_b32 s{sT+1}, s{sW}, 1")
    a(f"s_add_u32 s{sT}, s{sT}, s{sT+1}")
    a(f"s_lshl_b32 s{sT}, s{sT}, 10")
    a(f"v_add_u32 v6, s{sT}, v{vL}")
    a(f"v_add_u32 v7, 0x10000, v6")
    a.nop(2)
    for n in range(5):
        for m in range(2):
            off = (n * 16 + m * 4) * 1024
            a(f"ds_write_b128 v{6 if off < 65536 else 7}, {vr(DACC+(m*5+n)*4,4)} offset:{off % 65536}")
    a(f"s_lshl_b32 s{sT}, s{sW}, 14")
    a(f"v_add_u32 v6, s{sT}, v{vL}")
    for m in range(4):
        for p in range(2):
            a(f"v_lshlrev_b32 v{72+4*m+2*p}, 16, v{20+2*m+p}")
            a(f"v_and_b32 v{72+4*m+2*p+1}, 0xffff0000, v{20+2*m+p}")
    a("s_waitcnt lgkmcnt(0)")
    a("s_barrier")
    a(f"s_cmp_ge_u32 s{sW}, 5")
    a("s_cbranch_scc1 L_done")
    RB = 124
    for q in range(16): a(f"ds_read_b128 {vr(RB+4*q,4)}, v6 offset:{q*1024}")
    for m in range(4):
        a(f"s_waitcnt lgkmcnt({12-4*m})")
        acc = 72 + 4 * m
        for p in range(2):
            for k in range(4):
                a(f"v_pk_add_f32 {vr(acc+2*p,2)}, {vr(acc+2*p,2)}, {vr(RB+(m*4+k)*4+2*p,2)}")
            a(f"v_cvt_pk_bf16_f32 v{acc+p}, v{acc+2*p}, v{acc+2*p+1}")
        a(f"s_add_u32 s{sT}, s{sFin}, {m*16*1280}")
        a(f"buffer_store_dwordx2 {vr(acc,2)}, v5, {OUT_}, s{sT} offen")
    a.label("L_done")
    if "dbgst" in exp:
        a("s_waitcnt vmcnt(0) lgkmcnt(0)")
        a("s_memrealtime s[96:97]")
        a("s_waitcnt lgkmcnt(0)")
        a(f"s_lshl_b32 s{sT}, s2, 3")
        a(f"s_add_u32 s{sT}, s{sT}, s{sW}")
        a(f"s_cmp_lg_u32 s{sT}, {opt('dbgst', 0)}")
        a("s_cbranch_scc1 L_end")
        a("s_mov_b64 exec, 1")
        a("v_mov_b32 v1, 0")
        for i in range(1, 13):
            a(f"s_sub_u32 s{sT}, s{72+2*i}, s72")
            a(f"v_mov_b32 v2, s{sT}")
            a(f"global_store_dword v1, v2, s[{sDbg}:{sDbg+1}] offset:{4*i}")
        a("s_endpgm")
    ST.dump(WS_, sW, sT)
    a.label("L_end")
    a("s_endpgm")

    a.label("L_slow")
    vKa, vKb, vV = AD[0]
    a(f"v_mov_b32 v{QB+2}, 0")
    a(f"v_mov_b32 v{vM}, 0xff800000")
    for r in range(16): a(f"v_mov_b32 v{O+r}, 0")
    a(f"s_mov_b32 s{sLoop}, 0")
    a(f"s_mul_i32 s{sT+3}, s{sH}, {16*CHUNK}")
    a(f"s_add_u32 s{sT+3}, s{sT+3}, {WS_KV}")
    a.label("L_slow_loop")
    a(f"buffer_load_dwordx4 {vr(KA[0],4)}, v{vKa}, {WS_}, s{sT+3} offen")
    a(f"buffer_load_dwordx2 {vr(KB[0],2)}, v{vKb}, {WS_}, s{sT+3} offen")
    a(f"s_mov_b64 exec, s[{sVM}:{sVM+1}]")
    a(f"buffer_load_dwordx4 {vr(V[0][0],4)}, v{vV}, {WS_}, s{sT+3} offen")
    a(f"buffer_load_dwordx4 {vr(V[0][1],4)}, v{vV}, {WS_}, s{sT+3} offen offset:640")
    a("s_mov_b64 exec, -1")
    a("s_waitcnt vmcnt(0)")
    s = S[1]
    mf(s, KA[0], QA, "0")
    mf(s, KB[0], QB, vr(s, 16))
    a.nop(12)
    rowmax(s, vM)
    a(f"v_sub_f32 v{T1}, v{vM}, v{T0}")
    a(f"v_exp_f32 v{T1}, v{T1}")
    a(f"v_mov_b32 v{vM}, v{T0}")
    for r in range(16): a(f"v_sub_f32 v{s+r}, v{s+r}, v{T0}")
    for r in range(16): a(f"v_mul_f32 v{O+r}, v{O+r}, v{T1}")
    for r in range(16): a(f"v_exp_f32 v{s+r}, v{s+r}")
    a.nop(1)
    for p in range(8): a(f"v_cvt_pk_bf16_f32 v{P+p}, v{s+2*p}, v{s+2*p+1}")
    a.nop(2)
    mf(O, V[0][0], P, vr(O, 16))
    mf(O, V[0][1], P + 4, vr(O, 16))
    a(f"s_add_u32 s{sLoop}, s{sLoop}, 1")
    a(f"s_and_b32 s{sT}, s{sLoop}, 3")
    a(f"s_cmp_eq_u32 s{sT}, 0")
    a(f"s_movk_i32 s{sT}, 512")
    a(f"s_movk_i32 s{sT+1}, 256")
    a(f"s_movk_i32 s{sT+2}, 1280")
    a(f"s_cselect_b32 s{sT}, {CHUNK-3*512}, s{sT}")
    a(f"s_cselect_b32 s{sT+1}, {CHUNK-3*256}, s{sT+1}")
    a(f"s_cselect_b32 s{sT+2}, {CHUNK-3*1280}, s{sT+2}")
    a(f"v_add_u32 v{vKa}, s{sT}, v{vKa}")
    a(f"v_add_u32 v{vKb}, s{sT+1}, v{vKb}")
    a(f"v_add_u32 v{vV}, s{sT+2}, v{vV}")
    a.nop(8)
    a(f"s_cmp_lt_u32 s{sLoop}, 64")
    a("s_cbranch_scc1 L_slow_loop")
    a.nop(4)
    a(f"v_mov_b32 v{T0}, v{O+8}")
    a(f"v_mov_b32 v{T1}, v{O+8}")
    a.nop(2)
    a(f"v_permlane32_swap_b32 v{T0}, v{T1}")
    a("s_branch L_fin")
    a.label("L_code_end")
    return kernel_header(NAME) + a.text(), kernel_desc(NAME, NV, 102 if stamp else 72)

if __name__ == "__main__":
    import sys
    stamp = sys.argv[2] if len(sys.argv) > 2 and sys.argv[2] != "none" else False
    ex = sys.argv[3] if len(sys.argv) > 3 else ""
    body, desc = gen(stamp, ex)
    hdr = open("parallel_sum__softmax_full_mha__glu_gated_reglu__prompt.s.ref").read().split("; Override launch")[0]
    s = hdr + f"; @launch grid=(256,1,1) block=(512,1,1) lds={LDS_M1}\n"
    s += '.amdgcn_target "amdgcn-amd-amdhsa--gfx950"\n.text\n' + body + '.section .rodata,"a"\n' + desc
    open(sys.argv[1], "w").write(s)
```

```python
from asmlib import *
from k_qkv import ln_rowmath
NAME = "parallel_sum__softmax_full_mha__glu_gated_reglu__prompt_kernel"
LDS_M1 = 163840
M32 = "v_mfma_f32_32x32x16_bf16"; M16 = "v_mfma_f32_16x16x32_bf16"

def gen(stamp=False, exp=""):
    a = Asm()
    ST = Stamps2(a, stamp)
    opt = lambda key, dflt: int(exp.split(key)[1].split("_")[0]) if key in exp else dflt
    sX, sWq, sWS, sWg, sWu, sOut, sPk = 8, 12, 16, 20, 24, 28, 32
    sDbg = 36
    sW, sMT, sNT, sIDX, sXCD, sNG = 38, 39, 40, 41, 42, 43
    sLO, sVM, sM = 44, 46, 48
    sT = 50
    sNon = 58
    sLW = 59
    sA, sB, sC = 60, 61, 62
    sG2 = 63
    sR = 64
    R_ = lambda b: f"s[{b}:{b+3}]"
    X_, WQ_, WS_, WG_, WU_, OUT_, PK_ = map(R_, (sX, sWq, sWS, sWg, sWu, sOut, sPk))
    SC = " sc1"
    PKS = 90112
    XS = [16384, 0, 49152, 32768]
    WA = [139264, 114688, 90112, 65536]
    ST_NM, ST_RS, ST_CS, ST_SUM = 2048, 2560, 5120, 5632
    STB = 65536
    CSA = 143360
    ROT = 4
    WOB = ROT * CHUNK
    QOFF = 15 * CHUNK

    a("s_cmp_ge_u32 s2, 256")
    a("s_cbranch_scc1 L_end")
    ST.start()
    if "cpf" in exp:
        a("s_getpc_b64 s[4:5]")
        a.label("L_pc")
        a("s_lshr_b32 s3, s2, 3")
        a("s_lshl_b32 s3, s3, 11")
        a("v_lshlrev_b32 v1, 2, v0")
        a("v_add_u32 v1, s3, v1")
        a(f"v_min_u32 v1, L_code_end - L_pc - 4, v1")
        a("global_load_dword v230, v1, s[4:5]")
    a(f"s_load_dwordx4 s[4:7], s[0:1], 0")
    a(f"s_load_dwordx2 s[{sT}:{sT+1}], s[0:1], 16")
    a(f"s_load_dwordx4 s[{sT+2}:{sT+5}], s[0:1], 32")
    a(f"s_load_dwordx4 s[{sR}:{sR+3}], s[0:1], 48")
    a(f"s_load_dwordx4 s[{sR+4}:{sR+7}], s[0:1], 64")
    a("v_lshrrev_b32 v1, 6, v0")
    a("v_and_b32 v2, 63, v0")
    a(f"v_readfirstlane_b32 s{sW}, v1")
    a(f"s_and_b32 s{sXCD}, s2, 7")
    a(f"s_lshr_b32 s{sIDX}, s2, 3")
    a(f"s_lshr_b32 s{sMT}, s{sXCD}, 2")
    a(f"s_lshl_b32 s{sMT}, s{sMT}, 3")
    a(f"s_and_b32 s3, s{sIDX}, 7")
    a(f"s_add_u32 s{sMT}, s{sMT}, s3")
    a(f"s_and_b32 s{sNG}, s{sXCD}, 3")
    a(f"s_lshl_b32 s{sNG}, s{sNG}, 2")
    a(f"s_lshr_b32 s3, s{sIDX}, 3")
    a(f"s_add_u32 s{sNG}, s{sNG}, s3")
    a(f"s_min_u32 s{sNT}, s{sNG}, 14")
    a(f"s_and_b32 s{sLW}, s{sW}, 3")
    a(f"s_mov_b32 s{sLO}, -1\ns_mov_b32 s{sLO+1}, 0\ns_mov_b32 s{sVM}, 0xfffff\ns_mov_b32 s{sVM+1}, 0xfffff")
    a("v_and_b32 v3, 31, v2")
    a("v_lshrrev_b32 v4, 5, v2")
    a(f"s_lshl_b32 s{sA}, s{sMT}, 4")
    a(f"s_add_u32 s{sA}, s{sA}, s{sNG}")
    a(f"s_mul_i32 s{sA}, s{sA}, 3")
    a(f"s_add_u32 s{sA}, s{sA}, s{sW}")
    a(f"s_mul_i32 s{sB}, s{sA}, 6554")
    a(f"s_lshr_b32 s{sB}, s{sB}, 16")
    a(f"s_mul_i32 s{sG2}, s{sLW}, {16*3072}")
    a(f"s_mul_i32 s3, s{sNG}, 192")
    a(f"s_add_u32 s{sG2}, s{sG2}, s3")
    a("s_waitcnt lgkmcnt(0)")
    ST("E", 1)
    def delay(tag):
        if f"dly{tag}" in exp:
            lab = a.newlabel("L_dly")
            a(f"s_mov_b32 s{sT+7}, 280")
            a.label(lab)
            a(f"s_sub_u32 s{sT+7}, s{sT+7}, 1")
            a(f"s_cmp_lg_u32 s{sT+7}, 0")
            a(f"s_cbranch_scc1 {lab}")
    delay("A")
    def srd(b, lo, hi, n): a(f"s_mov_b32 s{b}, s{lo}\ns_and_b32 s{b+1}, s{hi}, 0xffff\ns_mov_b32 s{b+2}, {n}\ns_mov_b32 s{b+3}, 0x20000")
    srd(sX, 4, 5, 2048 * 1280); srd(sWq, 6, 7, 640 * 3840); srd(sWS, sR + 6, sR + 7, WS_END)
    srd(sWg, sT + 2, sT + 3, 640 * 3072); srd(sWu, sT + 4, sT + 5, 640 * 3072); srd(sOut, sR + 2, sR + 3, 2048 * 1280)
    a(f"s_mov_b64 s[{sDbg}:{sDbg+1}], s[{sR+4}:{sR+5}]")
    a(f"s_cmp_lt_u32 s{sB}, 20")
    a(f"s_cselect_b32 s{sPk}, s{sT}, s{sR}")
    a(f"s_cselect_b32 s{sPk+1}, s{sT+1}, s{sR+1}")
    a(f"s_mov_b32 s{sPk+2}, {1536*1280}")
    a(f"s_cselect_b32 s{sPk+2}, {640*1280}, s{sPk+2}")
    a(f"s_and_b32 s{sPk+1}, s{sPk+1}, 0xffff")
    a(f"s_mov_b32 s{sPk+3}, 0x20000")

    sPB = [sR + 5, sR + 6, sR + 7]
    vPF = 214; PFD = 216
    lab = a.newlabel("L_pf")
    a(f"s_mul_i32 s{sT}, s{sIDX}, 12")
    a(f"s_mul_i32 s{sT+1}, s{sLW}, 3")
    a(f"s_add_u32 s{sT}, s{sT}, s{sT+1}")
    a(f"s_lshr_b32 s{sT+4}, s{sW}, 2")
    a(f"s_xor_b32 s{sT+4}, s{sT+4}, 1")
    a(f"s_mov_b32 s7, 0x20000")
    a(f"s_cmp_ge_u32 s{sT}, 255")
    a(f"s_cbranch_scc1 {lab}_w")
    a(f"s_mov_b32 s4, s{sX}\ns_mov_b32 s5, s{sX+1}\ns_mov_b32 s6, s{sX+2}\ns_movk_i32 s3, 256")
    a(f"v_lshrrev_b32 v{vPF}, 3, v2")
    a(f"v_mul_u32_u24 v{vPF}, 1280, v{vPF}")
    a("v_and_b32 v1, 7, v2")
    a(f"v_lshl_add_u32 v{vPF}, v1, 4, v{vPF}")
    a(f"s_lshr_b32 s{sT+1}, s{sXCD}, 2")
    a(f"s_mul_i32 s{sT+1}, s{sT+1}, {1024*1280}")
    for j in range(3):
        a(f"s_add_u32 s{sT+2}, s{sT}, {j}")
        a(f"s_lshr_b32 s{sT+3}, s{sT+2}, 1")
        a(f"s_mul_i32 s{sT+3}, s{sT+3}, {8*1280}")
        a(f"s_and_b32 s{sT+2}, s{sT+2}, 1")
        a(f"s_lshl_b32 s{sT+2}, s{sT+2}, 7")
        a(f"s_add_u32 s{sT+3}, s{sT+3}, s{sT+2}")
        a(f"s_add_u32 s{sPB[j]}, s{sT+3}, s{sT+1}")
    a(f"s_branch {lab}")
    a.label(f"{lab}_w")
    a(f"s_mov_b32 s4, s{sWq}\ns_mov_b32 s5, s{sWq+1}\ns_mov_b32 s6, s{sWq+2}\ns_mov_b32 s3, {128*3840}")
    a(f"v_lshlrev_b32 v{vPF}, 4, v2")
    a(f"s_sub_u32 s{sT}, s{sT}, 255")
    a(f"s_mul_i32 s{sT}, s{sT}, 3840")
    a(f"s_and_b32 s{sT+1}, s{sXCD}, 3")
    a(f"s_lshl_b32 s{sT+1}, s{sT+1}, 10")
    a(f"s_add_u32 s{sT}, s{sT}, s{sT+1}")
    for j in range(3): a(f"s_add_u32 s{sPB[j]}, s{sT}, {j*3840}")
    a.label(lab)
    a(f"s_mul_i32 s{sT}, s{sT+4}, s3")
    for j in range(3): a(f"s_add_u32 s{sPB[j]}, s{sPB[j]}, s{sT}")
    def pf1(cnt=None, adv=1):
        for j in range(3):
            a(f"buffer_load_dwordx4 {vr(PFD,4)}, v{vPF}, s[4:7], s{sPB[j]} offen")
            for _ in range(adv): a(f"s_add_u32 s{sPB[j]}, s{sPB[j]}, s3")
            if cnt: cnt.op()
    ST("E", 2)
    pf1()
    ST("E", 3)
    vXE, vXO = 220, 221; vGd = [222, 223, 224]
    SEL = 168
    sXo, sLd, sLdW, sF2 = sR, sR + 1, sR + 2, sR + 3
    a(f"s_lshl_b32 s{sF2}, s{sMT}, 3\ns_add_u32 s{sF2}, s{sF2}, s{sW}\ns_lshl_b32 s{sF2}, s{sF2}, 4\ns_add_u32 s{sF2}, s{sF2}, s{sNG}")
    a(f"s_lshl_b32 s{sF2}, s{sF2}, 7\ns_add_u32 s{sF2}, s{sF2}, {WS_FL2}")
    a(f"s_or_b32 s{sT}, s2, s{sW}")
    a(f"s_cmp_lg_u32 s{sT}, 0")
    a("s_cbranch_scc1 L_nonce_done")
    a(f"s_memrealtime s[{sT}:{sT+1}]")
    a("v_mov_b32 v9, 0")
    a("s_waitcnt lgkmcnt(0)")
    a(f"s_or_b32 s{sT}, s{sT}, 1")
    a(f"v_mov_b32 v10, s{sT}")
    a("s_mov_b64 exec, 1")
    a(f"global_store_dword v9, v10, s[{sDbg}:{sDbg+1}] sc1")
    a("s_mov_b64 exec, -1")
    a.label("L_nonce_done")
    a("v_lshrrev_b32 v9, 4, v2")
    a("v_lshrrev_b32 v10, 3, v2")
    a("v_mul_u32_u24 v10, 1280, v10")
    a("v_and_b32 v11, 7, v2")
    a(f"v_xor_b32 v{vXE}, v11, v9")
    a(f"v_xor_b32 v{vXO}, 4, v{vXE}")
    a(f"v_lshl_add_u32 v{vXE}, v{vXE}, 4, v10")
    a(f"v_lshl_add_u32 v{vXO}, v{vXO}, 4, v10")
    a(f"s_lshl_b32 s{sXo}, s{sMT}, 7")
    a(f"s_lshl_b32 s{sT}, s{sLW}, 5")
    a(f"s_add_u32 s{sXo}, s{sXo}, s{sT}")
    a(f"s_mul_i32 s{sXo}, s{sXo}, 1280")
    a(f"s_lshl_b32 s{sLd}, s{sLW}, 12")
    a(f"s_mul_i32 s{sLdW}, s{sLW}, 3072")
    a(f"s_cmp_ge_u32 s{sW}, 4")
    a("s_cbranch_scc1 L_B")

    vNon = 215
    def nonce_issue(cnt):
        a(f"v_mov_b32 v{vNon}, 0")
        a(f"global_load_dword v{vNon}, v{vNon}, s[{sDbg}:{sDbg+1}] sc1")
        return cnt.op()
    def nonce_get(cnt, tag):
        lab = a.newlabel("L_non")
        cnt.need(tag)
        a(f"s_mov_b32 s{sT+1}, 0")
        a.label(lab)
        a(f"v_readfirstlane_b32 s{sNon}, v{vNon}")
        a(f"s_add_u32 s{sT+1}, s{sT+1}, 1")
        a(f"s_cmp_lg_u32 s{sNon}, 0")
        a(f"s_cbranch_scc1 {lab}_ok")
        a(f"s_cmp_ge_u32 s{sT+1}, 0x20000")
        a(f"s_cbranch_scc1 {lab}_ok")
        a("s_sleep 8")
        a(f"v_mov_b32 v{vNon}, 0")
        a(f"global_load_dword v{vNon}, v{vNon}, s[{sDbg}:{sDbg+1}] sc1")
        a("s_waitcnt vmcnt(0)")
        a(f"s_branch {lab}")
        a.label(f"{lab}_ok")
    def common_late_setup():
        for t in range(3):
            a(f"v_add_u32 v10, {64*t}, v2")
            a(f"v_mul_u32_u24 v11, 5462, v10")
            a(f"v_lshrrev_b32 v11, 16, v11")
            a(f"v_mul_u32_u24 v9, 12, v11")
            a(f"v_sub_u32 v9, v10, v9")
            a(f"v_mul_u32_u24 v11, 3072, v11")
            a(f"v_lshl_add_u32 v{vGd[t]}, v9, 4, v11")
        a("v_lshrrev_b32 v9, 4, v2")
        a("v_and_b32 v9, 1, v9")
        a("v_and_b32 v10, 15, v2")
        a("v_cmp_eq_u32 vcc, v10, v9")
        a("v_mov_b32 v10, 0x3f803f80")
        a.nop(1)
        for r in range(4): a(f"v_cndmask_b32 v{SEL+r}, 0, v10, vcc")
    def issue2(u, cnt, only=None):
        st = 9 - u; wa = WA[u % 4]; n = 0
        if only == "last":
            a(f"s_add_u32 m0, s{sLdW}, {wa + 2*1024}")
            a(f"s_add_u32 s{sT}, s{sG2}, {st*64*3072}")
            a(f"buffer_load_dwordx4 v{vGd[2]}, {WG_}, s{sT} offen lds")
            return cnt.op(1)
        if u >= 4:
            for j in range(4):
                a(f"s_add_u32 m0, s{sLd}, {XS[u % 4] + j*1024}")
                a(f"s_add_u32 s{sT}, s{sXo}, {j*8*1280 + st*128}")
                a(f"buffer_load_dwordx4 v{vXO if j & 1 else vXE}, {X_}, s{sT} offen lds"); n += 1
        for mat in range(2):
            for t in range(3):
                if only == "butlast" and mat == 0 and t == 2: continue
                a(f"s_add_u32 m0, s{sLdW}, {wa + mat*12288 + t*1024}")
                a(f"s_add_u32 s{sT}, s{sG2}, {st*64*3072}")
                a(f"buffer_load_dwordx4 v{vGd[t]}, {WU_ if mat else WG_}, s{sT} offen lds"); n += 1
        return cnt.op(n)

    if "pfall" in exp:
        pf1(); pf1(); pf1(adv=0)
    elif "pf3" in exp:
        pf1(); pf1(adv=0)
    else:
        pf1(adv=0)
    if "tlb" in exp:
        G = opt("tlb", 21)
        a(f"v_lshlrev_b32 v5, {G}, v2")
        for k, (srdn, off) in enumerate(((WS_, 4032), (WG_, 0), (WU_, 0), (OUT_, 0), (PK_, 0))):
            a(f"s_cmp_lg_u32 s{sW}, {k % 4}")
            lab = a.newlabel("L_tw")
            a(f"s_cbranch_scc1 {lab}")
            a(f"buffer_load_dword v{PFD}, v5, {srdn}, 0 offen offset:{off} sc1")
            a.label(lab)
    XF = [[8, 12], [16, 20]]; WF = [[24, 28], [32, 36]]
    vXA = [[40 + mi * 4 + ks for ks in range(4)] for mi in range(2)]
    vWA = [56, 57]
    RSD = 60
    SSQ = 58; SSQA = 'ssqA' in exp
    ACC = 64
    T = list(range(128, 168))
    CSD = 172
    U = [176, 177, 178, 179]
    vPK = [230, 231, 232, 233]; vPKr = 234
    sWM, sWN, sPKc, sPKl, sPKb = sR + 4, sR + 5, sR + 6, sR + 7, 3
    common_late_setup()
    a(f"s_and_b32 s{sWM}, s{sW}, 1")
    a(f"s_lshr_b32 s{sWN}, s{sW}, 1")
    a("v_lshrrev_b32 v5, 1, v3")
    a("v_and_b32 v5, 7, v5")
    for mi in range(2):
        a(f"s_xor_b32 s{sT}, s{sWN}, {mi}")
        a(f"s_lshl_b32 s{sT+1}, s{sWM}, 1")
        a(f"s_add_u32 s{sT}, s{sT}, s{sT+1}")
        a(f"s_lshl_b32 s{sT}, s{sT}, 12")
        a(f"v_lshl_add_u32 v6, v3, 7, s{sT}")
        for ks in range(4):
            a(f"v_or_b32 v7, {2*ks}, v4")
            a(f"v_xor_b32 v7, v7, v5")
            a(f"v_lshl_add_u32 v{vXA[mi][ks]}, v7, 4, v6")
    a("v_lshrrev_b32 v5, 2, v2")
    a("v_and_b32 v5, 3, v5")
    a("v_lshl_add_u32 v6, v4, 3, v5")
    a("v_lshlrev_b32 v6, 8, v6")
    a("v_lshrrev_b32 v7, 4, v2")
    a("v_and_b32 v7, 1, v7")
    a("v_lshl_add_u32 v6, v7, 5, v6")
    a("v_and_b32 v7, 3, v2")
    a("v_lshl_add_u32 v6, v7, 3, v6")
    a("v_add_u32 v6, 0x10000, v6")
    for ni in range(2):
        a(f"s_xor_b32 s{sT}, s{sWM}, {ni}")
        a(f"s_lshl_b32 s{sT+1}, s{sWN}, 1")
        a(f"s_add_u32 s{sT}, s{sT}, s{sT+1}")
        a(f"v_xor_b32 v7, s{sT}, v5")
        a(f"v_lshl_add_u32 v{vWA[ni]}, v7, 6, v6")
    for r in range(64): a(f"v_mov_b32 v{ACC+r}, 0")
    for r in range(4): a(f"v_mov_b32 v{CSD+r}, 0\nv_mov_b32 v{RSD+r}, 0")
    a(f"v_mov_b32 v{SSQ}, 0\nv_mov_b32 v{SSQ+1}, 0")
    a(f"s_mul_i32 s{sT+2}, s{sB}, 10")
    a(f"s_sub_u32 s{sT+2}, s{sA}, s{sT+2}")
    a(f"s_cmp_lt_u32 s{sB}, 20")
    a(f"s_cselect_b32 s{sT+3}, 0, 20")
    a(f"s_cselect_b64 s[{sM}:{sM+1}], -1, 0")
    a(f"s_sub_u32 s{sT+3}, s{sB}, s{sT+3}")
    a(f"s_lshl_b32 s{sT+3}, s{sT+3}, 5")
    a(f"s_lshl_b32 s{sPKc}, s{sT+2}, 7")
    a(f"s_lshl_b32 s{sPKl}, s{sW}, 12")
    a(f"s_add_u32 s{sPKl}, s{sPKl}, {PKS}")
    a("v_lshrrev_b32 v5, 3, v2")
    a("v_and_b32 v6, 7, v2")
    for t in range(4):
        a(f"v_add_u32 v7, s{sT+3}, v5")
        if t: a(f"v_add_u32 v7, {8*t}, v7")
        a(f"v_mul_u32_u24 v{U[0]}, 1639, v7")
        a(f"v_lshrrev_b32 v{U[0]}, 16, v{U[0]}")
        a(f"v_mul_u32_u24 v{U[0]}, 40, v{U[0]}")
        a(f"v_sub_u32 v{U[0]}, v7, v{U[0]}")
        a(f"v_cmp_le_u32 vcc, 24, v{U[0]}")
        a(f"v_cmp_le_u32 s[{sT+6}:{sT+7}], 20, v{U[0]}")
        a(f"v_mov_b32 v{U[1]}, 16")
        a.nop(1)
        a(f"v_cndmask_b32 v{U[1]}, 0, v{U[1]}, s[{sT+6}:{sT+7}]")
        a(f"v_cndmask_b32 v{U[1]}, v{U[1]}, -4, vcc")
        a(f"v_cndmask_b32 v{U[1]}, 0, v{U[1]}, s[{sM}:{sM+1}]")
        a(f"v_add_u32 v7, v7, v{U[1]}")
        a("v_mul_u32_u24 v7, 1280, v7")
        a(f"v_lshl_add_u32 v{vPK[t]}, v6, 4, v7")
        a(f"v_add_u32 v{vPK[t]}, s{sPKc}, v{vPK[t]}")
    a("v_lshrrev_b32 v5, 4, v2")
    a("v_lshrrev_b32 v6, 2, v2")
    a("v_and_b32 v6, 3, v6")
    a("v_lshl_add_u32 v5, v5, 3, v6")
    a("v_lshlrev_b32 v5, 7, v5")
    a("v_and_b32 v6, 3, v2")
    a("v_lshl_add_u32 v5, v6, 3, v5")
    a(f"v_add_u32 v{vPKr}, s{sPKl}, v5")
    def gprefetch_setup():
        a(f"s_and_b32 s{sT}, s{sW}, 1")
        a(f"s_cmp_eq_u32 s{sT}, 0")
        a(f"s_cselect_b32 s4, s{sWg}, s{sWu}")
        a(f"s_cselect_b32 s5, s{sWg+1}, s{sWu+1}")
        a(f"s_mov_b32 s6, {640*3072}")
        a(f"s_lshl_b32 s{sT}, s{sIDX}, 1")
        a(f"s_lshr_b32 s{sT+1}, s{sLW}, 1")
        a(f"s_add_u32 s{sT}, s{sT}, s{sT+1}")
        a(f"s_mul_i32 s3, s{sT}, {4*3072}")
        a(f"s_and_b32 s{sT}, s{sXCD}, 3")
        a(f"s_mul_i32 s{sT}, s{sT}, 768")
        a(f"s_add_u32 s3, s3, s{sT}")
        a(f"v_lshrrev_b32 v{vPF}, 4, v2")
        a(f"v_mul_u32_u24 v{vPF}, 3072, v{vPF}")
        a("v_and_b32 v1, 15, v2")
        a(f"v_lshl_add_u32 v{vPF}, v1, 4, v{vPF}")
    gprefetch_setup()
    CV = Cnt(a, "vmcnt", 63); tags = {}
    def gprefetch(n):
        if "nopf2" in exp: return
        a(f"s_add_u32 s{sT}, s3, {(2 - n // 3)*256*3072}")
        a(f"buffer_load_dwordx4 {vr(PFD,4)}, v{vPF}, s[4:7], s{sT} offen offset:{(n % 3)*256}")
        CV.op()
    def pack_ids():
        a(f"s_lshl_b32 s3, s{sMT}, 4")
        a(f"s_add_u32 s3, s3, s{sNG}")
        a(f"s_mul_i32 s3, s3, 3")
        a(f"s_add_u32 s3, s3, s{sW}")
        a(f"s_lshl_b32 s{sPKl}, s{sW}, 12")
        a(f"s_add_u32 s{sPKl}, s{sPKl}, {PKS}")
    def pack_issue(cnt):
        for t in range(4):
            a(f"s_add_u32 m0, s{sPKl}, {t*1024}")
            a.nop(1)
            a(f"buffer_load_dwordx4 v{vPK[t]}, {PK_}, 0 offen lds")
        return cnt.op(4)
    def pack_finish(cnt, tag):
        a(f"s_lshl_b32 s{sT+1}, s3, 12")
        a(f"s_add_u32 s{sT+1}, s{sT+1}, {WS_WP}")
        a(f"s_cmp_eq_u32 s{sW}, 3")
        a(f"s_cselect_b32 s{sT+1}, {WS_END}, s{sT+1}")
        a(f"s_cmp_ge_u32 s3, 680")
        a(f"s_cselect_b32 s{sT+1}, {WS_END}, s{sT+1}")
        cnt.need(tag)
        for n in range(4):
            for h in range(2):
                a(f"ds_read_b64_tr_b16 {vr(16+4*n+2*h,2)}, v{vPKr} offset:{h*512 + n*32}")
        a("s_waitcnt lgkmcnt(0)")
        for n in range(4):
            a(f"buffer_store_dwordx4 {vr(16+4*n,4)}, v8, {WS_}, s{sT+1} offen offset:{n*1024}{SC}")
        return cnt.op(4)
    def rd1(st, ks, buf):
        b = (st % 4) * 16384
        X = lambda mi: (("X", mi), f"ds_read_b128 {vr(XF[buf][mi],4)}, v{vXA[mi][ks]} offset:{b}")
        W = lambda ni, h: (("W", ni), f"ds_read_b64_tr_b16 {vr(WF[buf][ni]+2*h,2)}, v{vWA[ni]} offset:{b + ks*4096 + h*1024}")
        return [X(0), W(0, 0), W(0, 1), W(1, 0), W(1, 1), X(1)]
    PKI, GP0 = opt("pki", 2), opt("gp", 3)
    def p1_loop(vtype):
        CV.issued = CV.done = 0
        L1 = Cnt(a, "lgkmcnt", 15)
        tg = [{}, {}]
        def emit(lst, buf):
            for key, l in lst:
                a(l); tg[buf][key] = L1.op()
        a("s_barrier")
        ST("A", 1); ST("B", 1)
        emit(rd1(0, 0, 0), 0)
        for st in range(10):
            for ks in range(4):
                buf = (st * 4 + ks) & 1
                if ks < 3: nxt = rd1(st, ks + 1, buf ^ 1)
                elif st < 9: nxt = rd1(st + 1, 0, buf ^ 1)
                else: nxt = []
                if ks == 3 and st < 9:
                    L1.need(L1.issued - 1)
                    if 4 <= st < 9: ST("G", 2 * (st - 4) + 1)
                    a("s_barrier")
                    if 4 <= st < 9: ST("G", 2 * (st - 4) + 2)
                    ST("B", st + 2)
                n = 0
                for mi in range(2):
                    for ni in range(2):
                        d = ACC + (mi * 2 + ni) * 16
                        A, B = (XF[buf][mi], WF[buf][ni]) if vtype else (WF[buf][ni], XF[buf][mi])
                        L1.need(max(tg[buf][("X", mi)], tg[buf][("W", ni)]))
                        a(f"{M32} {vr(d,16)}, {vr(A,4)}, {vr(B,4)}, {vr(d,16)}")
                        emit(nxt[n * 2: n * 2 + 2], buf ^ 1)
                        if SSQA:
                            for dw in ([0], [1], [], [2, 3])[n]:
                                u0, u1 = U[2 * (dw & 1)], U[2 * (dw & 1) + 1]
                                a(f"v_lshlrev_b32 v{u0}, 16, v{XF[buf][0]+dw}")
                                a(f"v_and_b32 v{u1}, 0xffff0000, v{XF[buf][0]+dw}")
                                a(f"v_fmac_f32 v{SSQ}, v{u0}, v{u0}")
                                a(f"v_fmac_f32 v{SSQ+1}, v{u1}, v{u1}")
                        if n == 3:
                            gi = (st - GP0) * 2 + (ks >> 1)
                            if 0 <= gi < 9 and (ks & 1): gprefetch(gi)
                            if st == 8 and ks == 1: tags["non"] = nonce_issue(CV)
                        if n == 2: a(f"{M16} {vr(CSD,4)}, {vr(SEL,4)}, {vr(WF[buf][0],4)}, {vr(CSD,4)}")
                        n += 1
                if "norsd" not in exp: a(f"{M16} {vr(RSD,4)}, {vr(SEL,4)}, {vr(XF[buf][0],4)}, {vr(RSD,4)}")
        ST("A", 2); ST("B", 11)
        a(f"s_lshl_b32 s{sT}, s{sWN}, 1\ns_add_u32 s{sT}, s{sT}, s{sWM}\ns_lshl_b32 s{sT}, s{sT}, 7\ns_add_u32 s{sT}, s{sT}, {STB+ST_CS}")
        a(f"v_lshl_add_u32 v{U[0]}, v3, 2, s{sT}")
        a(f"s_lshl_b32 s{sT}, s{sWM}, 1\ns_add_u32 s{sT}, s{sT}, s{sWN}\ns_lshl_b32 s{sT}, s{sT}, 7\ns_add_u32 s{sT}, s{sT}, {STB}")
        a(f"v_lshl_add_u32 v{U[1]}, v3, 2, s{sT}")
        if SSQA:
            a(f"v_add_f32 v{SSQ}, v{SSQ}, v{SSQ+1}")
            a(f"v_mov_b32 v{SSQ+1}, v{SSQ}")
            a.nop(2)
            a(f"v_permlane32_swap_b32 v{SSQ}, v{SSQ+1}")
            a(f"v_add_f32 v{SSQ}, v{SSQ}, v{SSQ+1}")
            a(f"ds_write_b32 v{U[1]}, v{SSQ} offset:{ST_RS}")
        a.nop(2)
        a("s_mov_b64 exec, 0xffff")
        a(f"ds_write_b32 v{U[0]}, v{CSD}")
        a(f"ds_write_b32 v{U[0]}, v{CSD+1} offset:64")
        a(f"ds_write_b32 v{U[1]}, v{RSD} offset:{ST_SUM}")
        a(f"ds_write_b32 v{U[1]}, v{RSD+1} offset:{ST_SUM+64}")
        a("s_mov_b64 exec, -1")
        a("s_waitcnt lgkmcnt(0)")
        a("s_barrier")
        nonce_get(CV, tags["non"])
        a(f"s_cmp_eq_u32 s{sNG}, 15")
        a("s_cbranch_scc1 L_A_dummy")
    def blk(dst, x, y, xo):
        a(f"s_xor_b32 s{dst}, s{y}, {xo}")
        a(f"s_lshl_b32 s{sT+7}, s{x}, 1")
        a(f"s_add_u32 s{dst}, s{dst}, s{sT+7}")
    sH, sQB, sKV = sA, sB, sC
    def p3_ids():
        a(f"s_lshl_b32 s{sH}, s{sXCD}, 2")
        a(f"s_and_b32 s{sT}, s{sIDX}, 3")
        a(f"s_add_u32 s{sH}, s{sH}, s{sT}")
        a(f"s_lshr_b32 s{sQB}, s{sIDX}, 2")
        a(f"s_mul_i32 s{sKV}, s{sH}, {16*CHUNK}")
    VA = Cnt(a, "vmcnt", 63); tag2 = {}
    def capture(fn):
        n0 = len(a.lines); fn(); L = a.lines[n0:]; del a.lines[n0:]
        return L
    def atoms(lines):
        out = []; cur = None
        for l in lines:
            t = l.strip()
            if t == "; {": cur = []
            elif t == "; }": out.append(cur); cur = None
            elif cur is not None: cur.append(l)
            else: out.append([l])
        return out
    def marker_prefill():
        a.c("{")
        p3_ids()
        a("v_mov_b32 v12, -1\nv_mov_b32 v13, -1\nv_mov_b32 v14, -1\nv_mov_b32 v15, -1")
        a(f"s_lshr_b32 s{sT+1}, s{sH}, 1")
        a(f"s_mul_i32 s{sT+1}, s{sT+1}, {5*256}")
        a(f"s_add_u32 s{sT+1}, s{sT+1}, {WS_O}")
        a(f"s_lshl_b32 s{sT+3}, s{sQB}, 4")
        a(f"s_lshl_b32 s{sT+4}, s{sW}, 2")
        a(f"s_add_u32 s{sT+3}, s{sT+3}, s{sT+4}")
        a(f"s_mul_i32 s{sT+3}, s{sT+3}, 20480")
        a(f"s_add_u32 s{sT+1}, s{sT+1}, s{sT+3}")
        a(f"s_and_b32 s{sT+3}, s{sH}, 1")
        a(f"s_mul_i32 s{sT+2}, s{sT+3}, {3*256}")
        a(f"s_add_u32 s{sT+2}, s{sT+2}, s{sT+1}")
        a(f"s_lshl_b32 s{sT+3}, s{sT+3}, 3")
        a(f"s_add_u32 s{sT+1}, s{sT+1}, s{sT+3}")
        a("v_lshrrev_b32 v9, 4, v2")
        a("v_mul_u32_u24 v9, 20480, v9")
        a("v_and_b32 v10, 15, v2")
        a("v_lshl_add_u32 v9, v10, 4, v9")
        a(f"buffer_store_dwordx4 v[12:15], v9, {WS_}, s{sT+2} offen{SC}")
        a(f"buffer_store_dwordx4 v[12:15], v9, {WS_}, s{sT+2} offen offset:256{SC}")
        a(f"buffer_store_dwordx2 v[12:13], v9, {WS_}, s{sT+1} offen offset:512{SC}")
        a.c("}")
    NSEG = 2
    BD = 5
    def a_segments(body, nhead):
        a.lines += body[:nhead]
        at = atoms(body[nhead:] + capture(marker_prefill))
        tot = sum(len(x) for x in at)
        done = 0
        for seg in range(NSEG):
            while at and done < (opt("sf", 50) / 100.0 if seg == 0 else 1.0) * tot - 1e-9:
                done += len(at[0]); a.lines += at.pop(0)
            if seg == 0: a("s_waitcnt lgkmcnt(0)")
            ST("F", 1 + 3 * seg)
            a("s_barrier")
            ST("F", 3 + 3 * seg)
        a("s_branch L_A_ld")

    a(f"s_cmp_ge_u32 s{sNT}, 10")
    a("s_cbranch_scc1 L_p1_vtype")
    p1_loop(False)
    NM = [T[0], T[1]]; RS = [T[2], T[3]]
    CSV = [[T[8] + (ni * 4 + g) * 4 for g in range(4)] for ni in range(2)]
    K16 = [8, 9]; K8 = [20, 21]; FL = [12, 13]
    a(f"s_cmp_lt_u32 s{sNT}, 5")
    a(f"s_cselect_b32 s{sB}, {f32bits(QSCALE):#x}, 1.0")
    a(f"s_cselect_b32 s{sC}, 0, 5")
    a(f"s_mov_b32 s{sT+6}, {WS_KV}")
    a(f"s_cselect_b32 s{sT+6}, {WS_Q}, s{sT+6}")
    a(f"s_sub_u32 s{sC}, s{sNT}, s{sC}")
    a(f"s_lshl_b32 s{sC}, s{sC}, 7")
    for mi in range(2):
        blk(sA, sWM, sWN, mi)
        a(f"s_lshl_b32 s{sA}, s{sA}, 5")
        a(f"v_add_u32 v11, s{sA}, v3")
        a(f"v_lshlrev_b32 v{22+mi}, 2, v11")
        a(f"v_add_u32 v{22+mi}, {STB}, v{22+mi}")
        a(f"v_lshlrev_b32 v{K16[mi]}, 4, v11")
        a(f"v_lshlrev_b32 v{K8[mi]}, 3, v11")
    for ni in range(2):
        blk(sA, sWN, sWM, ni)
        a(f"s_lshl_b32 s{sA}, s{sA}, 5")
        a(f"v_lshl_add_u32 v10, v4, 2, s{sA}")
        a(f"v_lshlrev_b32 v10, 2, v10")
        a(f"v_add_u32 v10, {STB}, v10")
        for g in range(4):
            a(f"ds_read_b128 {vr(CSV[ni][g],4)}, v10 offset:{ST_CS+g*32}")
        a(f"s_add_u32 s{sA}, s{sA}, s{sC}")
        a(f"v_lshl_add_u32 v{FL[ni]}, v4, 3, s{sA}")
    a(f"s_mul_i32 s{sA}, s{sMT}, {CHUNK}")
    a(f"s_add_u32 s{sA}, s{sA}, s{sT+6}")
    a(f"s_add_u32 s{sC}, s{sA}, {16*CHUNK}")
    a(f"s_mov_b32 s{sPKc}, {16*CHUNK}")
    a("s_barrier")
    ST("A", 3)
    n0 = len(a.lines)
    for mi in range(2):
        a(f"ds_read_b32 v{NM[mi]}, v{22+mi} offset:{ST_NM}")
        a(f"ds_read_b32 v{RS[mi]}, v{22+mi} offset:{ST_RS}")
    a("s_waitcnt lgkmcnt(0)")
    for mi in range(2): a(f"v_mul_f32 v{RS[mi]}, s{sB}, v{RS[mi]}")
    nhead = len(a.lines) - n0
    for ni in range(2):
        for gp in range(2):
            a(f"v_add_u32 v14, {16*gp}, v{FL[ni]}")
            a(f"v_mul_u32_u24 v15, 1639, v14")
            a(f"v_lshrrev_b32 v15, 16, v15")
            a(f"v_mul_u32_u24 v16, 40, v15")
            a(f"v_sub_u32 v16, v14, v16")
            a(f"v_lshrrev_b32 v16, 3, v16")
            a(f"v_cmp_lt_u32 vcc, 2, v16")
            a(f"v_cmp_eq_u32 s[{sM}:{sM+1}], 2, v16")
            a(f"v_lshlrev_b32 v15, 1, v15")
            a(f"v_cndmask_b32 v14, 0, 1, vcc")
            a(f"v_add_u32 v15, v15, v14")
            a(f"v_mul_u32_u24 v14, 3, v14")
            a(f"v_sub_u32 v16, v16, v14")
            a(f"v_mul_lo_u32 v15, v15, s{sPKc}")
            a(f"v_lshl_add_u32 v15, v16, 11, v15")
            for mi in range(2):
                d = ACC + (mi * 2 + ni) * 16
                for g in (2 * gp, 2 * gp + 1):
                    for e in range(4):
                        a(f"v_fmac_f32 v{d+4*g+e}, v{CSV[ni][g]+e}, v{NM[mi]}")
                q = d + 8 * gp
                for e in range(8): a(f"v_mul_f32 v{q+e}, v{q+e}, v{RS[mi]}")
                a(f"v_cvt_pk_bf16_f32 v{q}, v{q}, v{q+1}")
                a(f"v_cvt_pk_bf16_f32 v{q+1}, v{q+2}, v{q+3}")
                a(f"v_cvt_pk_bf16_f32 v{q+2}, v{q+4}, v{q+5}")
                a(f"v_cvt_pk_bf16_f32 v{q+3}, v{q+6}, v{q+7}")
                a(f"v_add_u32 v17, v15, v{K16[mi]}")
                a(f"v_add_u32 v18, v15, v{K8[mi]}")
                a(f"v_permlane32_swap_b32 v{q}, v{q+2}")
                a(f"v_permlane32_swap_b32 v{q+1}, v{q+3}")
                a.c("{")
                a(f"s_andn2_b64 exec, exec, s[{sM}:{sM+1}]")
                a(f"buffer_store_dwordx4 {vr(q,4)}, v17, {WS_}, s{sA} offen{SC}")
                a(f"s_mov_b64 exec, s[{sM}:{sM+1}]")
                lab = a.newlabel("L_qk_ns")
                a(f"s_cbranch_execz {lab}")
                a(f"buffer_store_dwordx2 {vr(q,2)}, v18, {WS_}, s{sA} offen{SC}")
                a(f"buffer_store_dwordx2 {vr(q+2,2)}, v18, {WS_}, s{sC} offen{SC}")
                a.label(lab)
                a("s_mov_b64 exec, -1")
                a.c("}")
    body = a.lines[n0:]; del a.lines[n0:]
    a_segments(body, nhead)
    a.label("L_p1_vtype")
    p1_loop(True)
    CSL = [40, 41]; VB = [42, 43]
    NMV = [[T[8] + g * 4 for g in range(4)], [8 + g * 4 for g in range(4)]]
    RSV = [[T[24] + g * 4 for g in range(4)], [24 + g * 4 for g in range(4)]]
    a(f"s_sub_u32 s{sC}, s{sNT}, 10")
    a(f"s_lshl_b32 s{sC}, s{sC}, 7")
    a(f"s_mov_b32 s{sB}, {16*CHUNK}")
    for ni in range(2):
        blk(sA, sWN, sWM, ni)
        a(f"s_lshl_b32 s{sA}, s{sA}, 5")
        a(f"v_add_u32 v44, s{sA}, v3")
        a(f"v_lshlrev_b32 v45, 2, v44")
        a(f"v_add_u32 v45, {STB}, v45")
        a(f"ds_read_b32 v{CSL[ni]}, v45 offset:{ST_CS}")
        a(f"v_add_u32 v44, s{sC}, v44")
        a(f"v_mul_u32_u24 v45, 3277, v44")
        a(f"v_lshrrev_b32 v45, 16, v45")
        a(f"v_mul_u32_u24 v46, 20, v45")
        a(f"v_sub_u32 v46, v44, v46")
        a(f"v_mul_lo_u32 v45, v45, s{sB}")
        a(f"v_lshl_add_u32 v45, v46, 4, v45")
        a(f"v_mul_u32_u24 v46, 320, v4")
        a(f"v_add_u32 v{VB[ni]}, v45, v46")
    sVo = [sB, sC]
    for mi in range(2):
        blk(sA, sWM, sWN, mi)
        a(f"s_lshl_b32 s{sT}, s{sA}, 7")
        a(f"s_add_u32 s{sT}, s{sT}, {STB}")
        a(f"v_lshl_add_u32 v{47+mi}, v4, 4, s{sT}")
        a(f"s_mul_i32 s{sA}, s{sA}, {4*320}")
        a(f"s_mul_i32 s{sT}, s{sMT}, {CHUNK}")
        a(f"s_add_u32 s{sA}, s{sA}, s{sT}")
        a(f"s_add_u32 s{sVo[mi]}, s{sA}, {WS_KV+5120}")
    a("s_barrier")
    ST("A", 3)
    n0 = len(a.lines)
    for mi in range(2):
        for g in range(4):
            a(f"ds_read_b128 {vr(NMV[mi][g],4)}, v{47+mi} offset:{ST_NM+g*32}")
            a(f"ds_read_b128 {vr(RSV[mi][g],4)}, v{47+mi} offset:{ST_RS+g*32}")
        if mi == 0: a("s_waitcnt lgkmcnt(7)")
    a("s_waitcnt lgkmcnt(8)")
    nhead = len(a.lines) - n0
    for mi in range(2):
        if mi == 1: a("s_waitcnt lgkmcnt(0)")
        for ni in range(2):
            d = ACC + (mi * 2 + ni) * 16
            for gp in range(2):
                for g in (2 * gp, 2 * gp + 1):
                    for e in range(4): a(f"v_fmac_f32 v{d+4*g+e}, v{NMV[mi][g]+e}, v{CSL[ni]}")
                for g in (2 * gp, 2 * gp + 1):
                    for e in range(4): a(f"v_mul_f32 v{d+4*g+e}, v{d+4*g+e}, v{RSV[mi][g]+e}")
                q = d + 8 * gp
                a(f"v_cvt_pk_bf16_f32 v{q}, v{q}, v{q+1}")
                a(f"v_cvt_pk_bf16_f32 v{q+1}, v{q+2}, v{q+3}")
                a(f"v_cvt_pk_bf16_f32 v{q+2}, v{q+4}, v{q+5}")
                a(f"v_cvt_pk_bf16_f32 v{q+3}, v{q+6}, v{q+7}")
                a.nop(2)
                a(f"v_permlane32_swap_b32 v{q}, v{q+2}")
                a(f"v_permlane32_swap_b32 v{q+1}, v{q+3}")
                a(f"buffer_store_dwordx4 {vr(q,4)}, v{VB[ni]}, {WS_}, s{sVo[mi]} offen offset:{gp*640}{SC}")
    body = a.lines[n0:]; del a.lines[n0:]
    a_segments(body, nhead)
    a.label("L_A_dummy")
    a("s_barrier")
    a_segments([], 0)
    a.label("L_A_ld")
    a("v_lshlrev_b32 v8, 4, v2")
    def kv_dma(n0, js=range(10)):
        for j in js:
            a(f"s_lshl_b32 s{sT}, s{sW}, 10")
            a(f"s_add_u32 s{sT}, s{sT}, {(n0 + 4*j)*1024}")
            a(f"s_add_u32 m0, s{sT}, {ROT*CHUNK}")
            a(f"s_add_u32 s{sT}, s{sT}, s{sKV}")
            a(f"s_add_u32 s{sT}, s{sT}, {WS_KV}")
            a(f"buffer_load_dwordx4 v8, {WS_}, s{sT} offen lds")
        VA.op(len(js))
    VA.issued = VA.done = 0
    for st in range(NSEG, 9):
        FST = NSEG + opt("fd", 1)
        if st == FST: a(f"s_waitcnt vmcnt({VA.issued})")
        if st + 1 > BD: VA.need(tag2[st + 1])
        a("s_barrier")
        if st == FST:
            lab = a.newlabel("L_f1add")
            a(f"s_cmp_lg_u32 s{sW}, 0")
            a(f"s_cbranch_scc1 {lab}")
            a(f"s_lshl_b32 s{sT}, s2, 7")
            a(f"s_add_u32 s{sT}, s{sT}, {WS_FL1}")
            a("v_mov_b32 v9, 0")
            a(f"v_mov_b32 v10, s{sNon}")
            a("s_mov_b64 exec, 1")
            a(f"buffer_store_dword v10, v9, {WS_}, s{sT} offen{SC}")
            a("s_mov_b64 exec, -1")
            a.label(lab)
        if BD < st + 4 <= 9: tag2[st + 4] = issue2(st + 4, VA)
        PP0 = opt("ppf", 2)
        for t in range(4):
            if st == PP0 + t // 2:
                a(f"buffer_load_dwordx4 {vr(PFD,4)}, v{vPK[t]}, {PK_}, 0 offen"); VA.op()
        if st == 6:
            pack_ids(); tpk = pack_issue(VA)
        KS = opt("ks", 10)
        if st == 7: kv_dma(0, range(KS))
        if st == 8 and KS < 10: kv_dma(0, range(KS, 10))
        if st == 8:
            for j in range(3):
                a(f"s_add_u32 s{sT}, s{sW}, {4*j}")
                a(f"s_min_u32 s{sT}, s{sT}, 9")
                a(f"s_lshl_b32 s{sT+1}, s{sT}, 10")
                a(f"s_add_u32 m0, s{sT+1}, {QOFF}")
                a(f"s_cmp_ge_u32 s{sT}, 5")
                a(f"s_cselect_b32 s{sT}, 5120, 0")
                a(f"s_add_u32 s{sT}, s{sT}, s{sT+1}")
                a(f"s_mul_i32 s{sT+1}, s{sQB}, {2*CHUNK}")
                a(f"s_add_u32 s{sT}, s{sT}, s{sT+1}")
                a(f"s_add_u32 s{sT}, s{sT}, s{sKV}")
                a(f"s_add_u32 s{sT}, s{sT}, {WS_Q}")
                a(f"buffer_load_dwordx4 v8, {WS_}, s{sT} offen lds")
    VA.op(3)
    pack_finish(VA, tpk)
    a(f"s_lshl_b32 s{sF2}, s3, 7")
    a(f"s_add_u32 s{sF2}, s{sF2}, {WS_FLP}")
    a(f"s_cmp_eq_u32 s{sW}, 3")
    a(f"s_cselect_b32 s{sF2}, {WS_END}, s{sF2}")
    a("s_mov_b32 s3, 0")
    a("s_branch L_p3")

    a.label("L_B")
    for j in range(3): a(f"s_add_u32 s{sPB[j]}, s{sPB[j]}, s3\ns_add_u32 s{sPB[j]}, s{sPB[j]}, s3")
    sWo = sR + 4
    vWv = 7
    a("v_lshrrev_b32 v9, 4, v2")
    a(f"v_mul_u32_u24 v{vWv}, 3840, v9")
    a("v_lshrrev_b32 v10, 2, v2")
    a("v_and_b32 v10, 3, v10")
    a("v_xor_b32 v10, v10, v9")
    a(f"v_lshl_add_u32 v{vWv}, v10, 6, v{vWv}")
    a("v_and_b32 v10, 3, v2")
    a(f"v_lshl_add_u32 v{vWv}, v10, 4, v{vWv}")
    a(f"s_mul_i32 s{sWo}, s{sLW}, {16*3840}")
    a(f"s_lshl_b32 s{sT}, s{sNT}, 8")
    a(f"s_add_u32 s{sWo}, s{sWo}, s{sT}")
    VM = Cnt(a, "vmcnt", 63)
    def issue1(st):
        base = (st % 4) * 16384
        for j in range(4):
            a(f"s_add_u32 m0, s{sLd}, {base + j*1024}")
            a(f"s_add_u32 s{sT}, s{sXo}, {j*8*1280 + st*128}")
            a(f"buffer_load_dwordx4 v{vXO if j & 1 else vXE}, {X_}, s{sT} offen lds")
            a(f"s_add_u32 m0, s{sLd}, {base + 65536 + j*1024}")
            a(f"s_add_u32 s{sT}, s{sWo}, {(st*64 + j*4)*3840}")
            a(f"buffer_load_dwordx4 v{vWv}, {WQ_}, s{sT} offen lds")
        return VM.op(8)
    tag1 = {}
    SA = [12 + j for j in range(4)]
    SD = 20; LS = [36, 37]; LU = [40, 41, 42, 43]
    GX = [8, 12]
    GW = [[16 + (b * 6 + n) * 4 for n in range(6)] for b in range(2)]
    GACC = 64
    gXA = [184 + ks for ks in range(4)]
    gWA = [[200 + z * 3 + p for p in range(3)] for z in range(2)]
    GCS = [160, 164]; NM2, RS2 = 180, 181; POLL = 225
    sCT = [sA, sB, sC]
    a("v_lshrrev_b32 v9, 1, v3")
    a("v_and_b32 v9, 7, v9")
    a(f"v_lshl_add_u32 v10, v3, 7, s{sLd}")
    for ks in range(4):
        a(f"v_or_b32 v11, {2*ks}, v4")
        a(f"v_xor_b32 v11, v11, v9")
        a(f"v_lshl_add_u32 v{gXA[ks]}, v11, 4, v10")
    a("v_lshlrev_b32 v11, 2, v4")
    a("v_xor_b32 v9, v9, v11")
    for j in range(4):
        a(f"v_xor_b32 v11, {j}, v9")
        a(f"v_lshl_add_u32 v{SA[j]}, v11, 4, v10")
    for r in LS: a(f"v_mov_b32 v{r}, 0")
    common_late_setup()
    a("v_lshrrev_b32 v5, 2, v2")
    a("v_and_b32 v5, 3, v5")
    a("v_lshl_add_u32 v5, v4, 3, v5")
    a("v_mul_u32_u24 v5, 192, v5")
    a("v_lshrrev_b32 v6, 4, v2")
    a("v_and_b32 v6, 1, v6")
    a("v_lshl_add_u32 v5, v6, 5, v5")
    a("v_and_b32 v6, 3, v2")
    a("v_lshl_add_u32 v5, v6, 3, v5")
    for p in range(3):
        a(f"s_add_u32 s{sCT[p]}, s{sLW}, {p}")
        for _ in range(2):
            a(f"s_cmp_ge_u32 s{sCT[p]}, 3")
            a(f"s_cselect_b32 s{sT}, 3, 0")
            a(f"s_sub_u32 s{sCT[p]}, s{sCT[p]}, s{sT}")
        a(f"s_lshl_b32 s{sT}, s{sCT[p]}, 6")
        a(f"s_add_u32 s{sT}, s{sT}, 65536")
        a(f"v_add_u32 v{gWA[0][p]}, s{sT}, v5")
        a(f"v_add_u32 v{gWA[1][p]}, {114688 - 65536}, v{gWA[0][p]}")
    for r in range(96): a(f"v_mov_b32 v{GACC+r}, 0")
    for r in range(8): a(f"v_mov_b32 v{GCS[0]+r}, 0")
    a(f"v_lshlrev_b32 v{POLL+4}, 7, v2")
    def f1_loads():
        for q in range(4):
            a(f"s_mov_b32 s{sT}, {WS_FL1 + q*8192}")
            a(f"buffer_load_dword v{POLL+q}, v{POLL+4}, {WS_}, s{sT} offen{SC}")
    def ssq_ops():
        ops = []
        for j in range(4):
            ops.append(f"s_waitcnt lgkmcnt({3-j})")
            for r in range(4):
                x = SD + 4 * j + r; u0, u1 = LU[2 * (r & 1)], LU[2 * (r & 1) + 1]
                ops += [f"v_lshlrev_b32 v{u0}, 16, v{x}", f"v_and_b32 v{u1}, 0xffff0000, v{x}",
                        f"v_fmac_f32 v{LS[0]}, v{u0}, v{u0}", f"v_fmac_f32 v{LS[1]}, v{u1}, v{u1}"]
        return ops
    if "early" not in exp: a("s_waitcnt vmcnt(0)")
    ST("E", 4)
    tag1[0] = issue1(0)
    ST("E", 5)
    tag1[1] = issue1(1)
    ST("E", 6)
    ST("E", 7)
    VM.need(tag1[0])
    ST("E", 8)
    a("s_barrier")
    ST("E", 9)
    if "prB" in exp: a(f"s_setprio {opt('prB', 1)}")
    issued = 1
    tagB = {}
    PF34 = opt("pfc", 2)
    for st in range(10):
        if not SSQA:
            for j in range(4): a(f"ds_read_b128 {vr(SD+4*j,4)}, v{SA[j]} offset:{(st % 4) * 16384}")
        n0 = len(a.lines)
        while issued < min(st + 3, 9):
            issued += 1; tag1[issued] = issue1(issued)
        if st == PF34 and "pfall" not in exp:
            if "pf3" in exp:
                for j in range(3): a(f"s_add_u32 s{sPB[j]}, s{sPB[j]}, s3")
            else: pf1(VM)
            pf1(VM, adv=0)
        if st == 7: tnon = nonce_issue(VM)
        if st == 7: tagB[0] = issue2(0, VM)
        if st == 8: tagB[1] = issue2(1, VM)
        dma = a.lines[n0:]; del a.lines[n0:]
        ops = ssq_ops() if not SSQA else []
        nd = sum("buffer_load" in l for l in dma)
        per = -(-len(ops) // max(nd - 1, 1)) if nd else len(ops)
        k = 0
        for l in dma:
            a.lines.append(l)
            if "buffer_load" in l:
                k += 1
                if k >= 2:
                    for o in ops[:per]: a(o)
                    ops = ops[per:]
        for o in ops: a(o)
        if st == 8: nonce_get(VM, tnon)
        if st < 9:
            if 4 <= st < 9: ST("G", 2 * (st - 4) + 1)
            VM.need(tag1[st + 1])
            if 4 <= st < 9: ST("G", 2 * (st - 4) + 2)
            a("s_barrier")
    a(f"v_add_f32 v{RS2}, v{LS[0]}, v{LS[1]}")
    a(f"v_mov_b32 v{LS[1]}, v{RS2}")
    a(f"s_lshl_b32 s{sT}, s{sLW}, 7")
    a(f"s_add_u32 s{sT}, s{sT}, {STB}")
    a(f"v_lshl_add_u32 v10, v3, 2, s{sT}")
    a(f"v_permlane32_swap_b32 v{RS2}, v{LS[1]}")
    a(f"v_add_f32 v{RS2}, v{RS2}, v{LS[1]}")
    a("s_barrier")
    a(f"ds_read_b32 v{NM2}, v10 offset:{ST_SUM}")
    if SSQA: a(f"ds_read_b32 v{RS2}, v10 offset:{ST_RS}")
    a("s_waitcnt lgkmcnt(0)")
    ln_rowmath(a, NM2, RS2, LU[1], sT)
    a.nop(1)
    a(f"ds_write_b32 v10, v{NM2} offset:{ST_NM}")
    a(f"ds_write_b32 v10, v{RS2} offset:{ST_RS}")
    a(f"v_mul_f32 v{RS2}, v{RS2}, v{RS2}")
    tagB[2] = issue2(2, VM)
    VM.need(tagB[0])
    a("s_waitcnt lgkmcnt(0)")
    a("s_barrier")
    if "noprioB" not in exp: a("s_setprio 2")
    delay("B")
    ST("F", 10)
    ST("A", 4); ST("C", 1)
    L2 = Cnt(a, "lgkmcnt", 15)
    tg2 = [{}, {}]
    def emit2(lst, buf):
        for key, l in lst:
            a(l); tg2[buf][key] = L2.op()
    def rd2(st, ks, buf):
        wa = WA[st % 4]; z = 1 if wa >= 114688 else 0; wb = wa - (114688 if z else 65536)
        L = [("X", f"ds_read_b128 {vr(GX[buf],4)}, v{gXA[ks]} offset:{XS[st % 4]}")]
        for n in range(6):
            mat, p = n & 1, n >> 1
            for h in range(2):
                L.append((n, f"ds_read_b64_tr_b16 {vr(GW[buf][n]+2*h,2)}, v{gWA[z][p]} offset:{wb + mat*12288 + (16*ks+4*h)*192}"))
        return L
    emit2(rd2(0, 0, 0), 0)
    def units_of(fn):
        out = []; cur = []
        for l in capture(fn):
            cur.append(l)
            if "buffer_load" in l: out.append(cur); cur = []
        return out
    pend = units_of(lambda: issue2(3, VM, "butlast"))
    for st in range(10):
        for ks in range(4):
            buf = (st * 4 + ks) & 1
            if ks < 3: nxt = rd2(st, ks + 1, buf ^ 1)
            elif st < 9: nxt = rd2(st + 1, 0, buf ^ 1)
            else: nxt = []
            if ks == 3 and st < 9:
                if st < 3: ST("F", 1 + 3 * st)
                assert not pend
                if st + 1 <= BD: VM.need(tagB[st + 1])
                L2.need(L2.issued - 1)
                if st < 3: ST("F", 2 + 3 * st)
                a("s_barrier")
                if st < 3: ST("F", 3 + 3 * st)
                ST("C", st + 2)
                if st + 4 <= BD:
                    def dm():
                        if st == 0: tagB[3] = issue2(3, VM, "last")
                        tagB[st + 4] = issue2(st + 4, VM)
                    pend = units_of(dm)
            if st == 6 and ks == 3:
                lab = a.newlabel("L_f1p")
                a(f"s_cmp_lg_u32 s{sW}, 4")
                a(f"s_cbranch_scc1 {lab}")
                f1_loads()
                a.label(lab)
            if st == 7 and ks == 2:
                lab = a.newlabel("L_f1")
                a(f"s_cmp_lg_u32 s{sW}, 4")
                a(f"s_cbranch_scc1 {lab}_ok")
                a(f"s_mov_b32 s{sT+1}, 0")
                a.label(lab)
                a("s_waitcnt vmcnt(0)")
                for q in range(4): a(f"v_xor_b32 v{POLL+q}, s{sNon}, v{POLL+q}")
                a(f"v_or3_b32 v{POLL}, v{POLL}, v{POLL+1}, v{POLL+2}")
                a(f"v_or_b32 v{POLL}, v{POLL}, v{POLL+3}")
                a(f"v_cmp_ne_u32 vcc, 0, v{POLL}")
                a(f"s_add_u32 s{sT+1}, s{sT+1}, 1")
                a.nop(2)
                a("s_cmp_eq_u64 vcc, 0")
                a(f"s_cbranch_scc1 {lab}_ok")
                a(f"s_cmp_ge_u32 s{sT+1}, 0x20000")
                a(f"s_cbranch_scc1 {lab}_ok")
                a("s_sleep 8")
                f1_loads()
                a(f"s_branch {lab}")
                a.label(f"{lab}_ok")
            for n in range(6):
                d = GACC + n * 16
                L2.need(tg2[buf][n])
                a(f"{M32} {vr(d,16)}, {vr(GW[buf][n],4)}, {vr(GX[buf],4)}, {vr(d,16)}")
                emit2(nxt[0:3] if n == 0 else nxt[1 + n * 2: 3 + n * 2], buf ^ 1)
                if pend and n in (1, 3, 5): a.lines += pend.pop(0)
                if n >= 4: a(f"{M16} {vr(GCS[n-4],4)}, {vr(SEL,4)}, {vr(GW[buf][n-4],4)}, {vr(GCS[n-4],4)}")
    ST("A", 5); ST("C", 11)
    a(f"s_lshl_b32 s{sT}, s{sCT[0]}, 7")
    a(f"s_add_u32 s{sT}, s{sT}, {CSA}")
    a(f"v_lshl_add_u32 v5, v3, 2, s{sT}")
    a(f"s_lshl_b32 s{sR+4}, s{sMT}, 2")
    a(f"s_add_u32 s{sR+4}, s{sR+4}, s{sLW}")
    a(f"s_mul_i32 s{sR+4}, s{sR+4}, {2*49152}")
    a(f"s_mul_i32 s{sT}, s{sNG}, {12*256}")
    a(f"s_add_u32 s{sR+4}, s{sR+4}, s{sT}")
    a(f"s_add_u32 s{sR+4}, s{sR+4}, {WS_H}")
    a("s_mov_b64 exec, 0xffff")
    for mat in range(2):
        a(f"ds_write_b32 v5, v{GCS[mat]} offset:{mat*384}")
        a(f"ds_write_b32 v5, v{GCS[mat]+1} offset:{mat*384+64}")
    a("s_mov_b64 exec, -1")
    a("v_lshrrev_b32 v6, 4, v3")
    a("v_mul_u32_u24 v6, 49152, v6")
    a("v_lshl_add_u32 v6, v4, 8, v6")
    a("v_and_b32 v7, 15, v3")
    a("v_lshl_add_u32 v6, v7, 4, v6")
    a("s_waitcnt lgkmcnt(0)")
    a("s_barrier")
    a("s_setprio 3")
    CB = [16, 184]
    def cs_read(p):
        a(f"s_lshl_b32 s{sT}, s{sCT[p]}, 7")
        a(f"s_add_u32 s{sT}, s{sT}, {CSA}")
        a(f"v_lshl_add_u32 v5, v4, 4, s{sT}")
        for mat in range(2):
            for g in range(4):
                a(f"ds_read_b128 {vr(CB[p&1]+(mat*4+g)*4,4)}, v5 offset:{mat*384+g*32}")
    cs_read(0); cs_read(1)
    for p in range(3):
        cb = CB[p & 1]
        a(f"s_waitcnt lgkmcnt({8 if p < 2 else 0})")
        g = GACC + (2 * p) * 16; u = GACC + (2 * p + 1) * 16
        for e in range(16):
            a(f"v_fmac_f32 v{g+e}, v{cb+e}, v{NM2}")
            a(f"v_fmac_f32 v{u+e}, v{cb+16+e}, v{NM2}")
        if p == 0: cs_read(2)
        a(f"s_lshl_b32 s{sT}, s{sCT[p]}, 10")
        a(f"s_add_u32 s{sT}, s{sT}, s{sR+4}")
        for gp in range(2):
            for e in range(8 * gp, 8 * gp + 8):
                a(f"v_max_f32 v{g+e}, 0, v{g+e}")
                a(f"v_mul_f32 v{u+e}, v{u+e}, v{RS2}")
            for e in range(8 * gp, 8 * gp + 8): a(f"v_mul_f32 v{g+e}, v{g+e}, v{u+e}")
            o = u + 8 * gp
            for q in range(4): a(f"v_cvt_pk_bf16_f32 v{o+q}, v{g+8*gp+2*q}, v{g+8*gp+2*q+1}")
            a.nop(2)
            a(f"v_permlane32_swap_b32 v{o}, v{o+2}")
            a(f"v_permlane32_swap_b32 v{o+1}, v{o+3}")
            a(f"buffer_store_dwordx4 {vr(o,4)}, v6, {WS_}, s{sT} offen offset:{gp*512}{SC}")
    p3_ids()
    a("s_mov_b32 s3, 1")

    a.label("L_p3")
    ST("A", 6)
    QA, QB = 8, 12
    S = [16, 32]; P = 48; O = 56
    KA = [72, 76]; KB = [80, 84]; V = [[88, 92], [96, 100]]
    AD = [[104 + 3 * z + y for y in range(3)] for z in range(3)]
    T0, T1, T2, T3 = 113, 114, 115, 116
    vM, vOst, vL, vFo, vPP = 117, 118, 120, 121, 122
    PPD = 249
    DACC = 124
    DF = [164 + 28 * k for k in range(3)]
    DPOLL = 248
    NV = 252
    sDX, sDW, sFin, sLoop, sFp = sR, sR + 2, sR + 4, sR + 5, sR + 6
    a(f"v_lshlrev_b32 v{vL}, 4, v2")
    a(f"s_lshl_b32 s{sT}, s{sQB}, 8")
    a(f"s_lshl_b32 s{sT+1}, s{sW}, 5")
    a(f"s_add_u32 s{sT}, s{sT}, s{sT+1}")
    a(f"v_add_u32 v5, s{sT}, v3")
    a(f"v_lshrrev_b32 v6, 4, v5")
    a(f"v_mul_u32_u24 v{vOst}, 20480, v6")
    a(f"v_and_b32 v6, 15, v5")
    a(f"v_lshl_add_u32 v{vOst}, v6, 4, v{vOst}")
    a(f"v_lshl_add_u32 v{vOst+1}, v4, 8, v{vOst}")
    a(f"s_lshr_b32 s{sT}, s{sW}, 2")
    a(f"s_mul_i32 s{sT}, s{sT}, 5120")
    a(f"s_add_u32 s{sT}, s{sT}, {QOFF}")
    a(f"v_and_b32 v5, 127, v5")
    a(f"v_lshl_add_u32 v6, v5, 4, s{sT}")
    a(f"v_lshl_add_u32 v6, v4, 11, v6")
    a(f"v_lshl_add_u32 v7, v5, 3, s{sT}")
    a("v_and_b32 v5, 0x13, v3")
    a(f"v_and_b32 v{T0}, 4, v3")
    a(f"v_lshl_or_b32 v5, v{T0}, 1, v5")
    a(f"v_and_b32 v{T0}, 8, v3")
    a(f"v_lshrrev_b32 v{T0}, 1, v{T0}")
    a(f"v_or_b32 v5, v5, v{T0}")
    a(f"v_lshlrev_b32 v{AD[0][0]}, 4, v5")
    a(f"v_lshl_add_u32 v{AD[0][0]}, v4, 11, v{AD[0][0]}")
    a(f"v_lshlrev_b32 v{AD[0][1]}, 3, v5")
    a(f"v_add_u32 v{AD[0][1]}, 4096, v{AD[0][1]}")
    a(f"v_mul_u32_u24 v{AD[0][2]}, 320, v4")
    a(f"v_lshl_add_u32 v{AD[0][2]}, v3, 4, v{AD[0][2]}")
    a(f"v_add_u32 v{AD[0][2]}, 5120, v{AD[0][2]}")
    for z in (1, 2):
        for y in range(3): a(f"v_add_u32 v{AD[z][y]}, {6*z*CHUNK}, v{AD[0][y]}")
    for r in range(4): a(f"v_mov_b32 v{QB+r}, 0")
    for r in range(16): a(f"v_mov_b32 v{O+r}, 0")
    a("v_cmp_eq_u32 vcc, 20, v3")
    a(f"v_mov_b32 v{T0}, 0x3f803f80")
    a.nop(1)
    a(f"v_cndmask_b32 v{T1}, 0, v{T0}, vcc")
    for b in range(2):
        a(f"v_mov_b32 v{KB[b]+2}, 0x3f80")
        a(f"v_mov_b32 v{KB[b]+3}, 0")
        for j in range(2):
            for r in range(4): a(f"v_mov_b32 v{V[b][j]+r}, v{T1}")
    for r in range(8): a(f"v_mov_b32 v{P+r}, 0")
    for r in range(40): a(f"v_mov_b32 v{DACC+r}, 0")
    a(f"s_and_b32 s{sT}, s{sXCD}, 3")
    a(f"s_lshl_b32 s{sT+1}, s{sQB}, 2")
    a(f"s_add_u32 s{sT}, s{sT}, s{sT+1}")
    a(f"s_lshl_b32 s{sT+4}, s{sT}, 1")
    a(f"s_lshl_b32 s{sT}, s{sT}, 2")
    a(f"s_lshr_b32 s{sT+2}, s{sXCD}, 2")
    a(f"s_lshl_b32 s{sT+2}, s{sT+2}, 2")
    a(f"s_and_b32 s{sT+3}, s{sIDX}, 3")
    a(f"s_add_u32 s{sT+2}, s{sT+2}, s{sT+3}")
    a(f"s_mul_i32 s{sFin}, s{sT}, {16*1280}")
    a(f"s_mul_i32 s{sT+3}, s{sT+2}, 160")
    a(f"s_add_u32 s{sFin}, s{sFin}, s{sT+3}")
    a(f"s_and_b32 s{sT+3}, s{sW}, 1")
    a(f"s_add_u32 s{sT+4}, s{sT+4}, s{sT+3}")
    a(f"s_lshl_b32 s{sT+3}, s{sT+3}, 1")
    a(f"s_add_u32 s{sT}, s{sT}, s{sT+3}")
    a(f"s_lshr_b32 s{sT+3}, s{sW}, 1")
    a(f"s_lshl_b32 s{sT+5}, s{sT+3}, 10")
    a(f"s_mul_i32 s{sDX}, s{sT}, 49152")
    a(f"s_add_u32 s{sDX}, s{sDX}, s{sT+5}")
    a(f"s_add_u32 s{sDX}, s{sDX}, {WS_H}")
    a(f"s_mul_i32 s{sDX+1}, s{sT}, 20480")
    a(f"s_add_u32 s{sDX+1}, s{sDX+1}, s{sT+5}")
    a(f"s_add_u32 s{sDX+1}, s{sDX+1}, {WS_O}")
    a(f"s_mul_i32 s{sDW}, s{sT+3}, {40*1024}")
    a(f"s_mul_i32 s{sT+5}, s{sT+2}, 5120")
    a(f"s_add_u32 s{sDW}, s{sDW}, s{sT+5}")
    a(f"s_add_u32 s{sDW}, s{sDW}, {WS_WP}")
    a(f"s_lshr_b32 s{sT+5}, s{sT+4}, 2")
    a(f"s_lshl_b32 s{sT+5}, s{sT+5}, 3")
    a(f"s_and_b32 s{sT+4}, s{sT+4}, 3")
    a(f"s_add_u32 s{sT+5}, s{sT+5}, s{sT+4}")
    a(f"s_lshl_b32 s{sT+5}, s{sT+5}, 11")
    a(f"s_add_u32 s{sFp}, s{sT+5}, {WS_FL2 + 4*2048}")
    a("v_and_b32 v5, 15, v2")
    a(f"v_lshlrev_b32 v{vFo}, 7, v5")
    a(f"s_mul_i32 s{sT+5}, s{sT+2}, 5")
    a(f"s_lshr_b32 s{sT+5}, s{sT+5}, 2")
    a("v_lshrrev_b32 v5, 1, v2")
    a("v_mul_u32_u24 v5, 10, v5")
    a(f"v_and_b32 v{vPP}, 1, v2")
    a(f"v_add3_u32 v{vPP}, v{vPP}, v5, s{sT+5}")
    a(f"v_lshlrev_b32 v{vPP}, 7, v{vPP}")
    a("s_cmp_eq_u32 s3, 1")
    a("s_cbranch_scc1 L_p3_go")
    a("s_waitcnt vmcnt(4)")
    a("s_barrier")
    a.label("L_p3_go")
    delay("C")
    ST("A", 7); ST("D", 1)
    LG = Cnt(a, "lgkmcnt", 15); VM = Cnt(a, "vmcnt", 63)
    a(f"ds_read_b128 {vr(QA,4)}, v6"); LG.op()
    a(f"s_mov_b64 exec, s[{sLO}:{sLO+1}]")
    a(f"ds_read_b64 {vr(QB,2)}, v7 offset:4096"); LG.op()
    a("s_mov_b64 exec, -1")
    def ad(t, y): return AD[((t // 4 + ROT) % 16) // 6][y]
    def coff(t): return (((t // 4 + ROT) % 16) % 6) * CHUNK
    tagK = {}; tagV0 = {}; tagV1 = {}
    def rdK(t):
        if t > 63: return
        if "halfLDS" in exp and t > 3 and (t & 2):
            tagK[t] = 0; return
        b = t & 1
        a(f"ds_read_b128 {vr(KA[b],4)}, v{ad(t,0)} offset:{coff(t) + (t%4)*512}"); LG.op()
        a(f"ds_read_b64 {vr(KB[b],2)}, v{ad(t,1)} offset:{coff(t) + (t%4)*256}"); tagK[t] = LG.op()
    def rdV(t):
        if t > 63: return
        if "halfLDS" in exp and t > 3 and (t & 2):
            tagV0[t] = tagV1[t] = 0; return
        b = t & 1
        if "noexec" not in exp: a(f"s_mov_b64 exec, s[{sVM}:{sVM+1}]")
        a(f"ds_read_b128 {vr(V[b][0],4)}, v{ad(t,2)} offset:{coff(t) + (t%4)*1280}"); tagV0[t] = LG.op()
        a(f"ds_read_b128 {vr(V[b][1],4)}, v{ad(t,2)} offset:{coff(t) + (t%4)*1280 + 640}"); tagV1[t] = LG.op()
        if "noexec" not in exp: a("s_mov_b64 exec, -1")
    def mf(d, A, B, C): a(f"{M32} {vr(d,16)}, {vr(A,4)}, {vr(B,4)}, {C}")
    def rowmax(s, extra=None):
        a(f"v_max3_f32 v{T0}, v{s}, v{s+1}, v{s+2}")
        a(f"v_max3_f32 v{T1}, v{s+3}, v{s+4}, v{s+5}")
        a(f"v_max3_f32 v{T2}, v{s+6}, v{s+7}, v{s+8}")
        a(f"v_max3_f32 v{T3}, v{s+9}, v{s+10}, v{s+11}")
        a(f"v_max3_f32 v{T0}, v{T0}, v{s+12}, v{s+13}")
        a(f"v_max3_f32 v{T1}, v{T1}, v{s+14}, v{s+15}")
        a(f"v_max3_f32 v{T0}, v{T0}, v{T1}, v{T2}")
        a(f"v_max3_f32 v{T0}, v{T0}, v{T3}, v{extra if extra is not None else T3}")
        a(f"v_mov_b32 v{T1}, v{T0}")
        a.nop(2)
        a(f"v_permlane32_swap_b32 v{T0}, v{T1}")
        a(f"v_max_f32 v{T0}, v{T0}, v{T1}")
    rdK(0); rdK(1); rdV(0)
    LG.need(tagK[0])
    mf(S[0], KA[0], QA, "0")
    mf(S[0], KB[0], QB, vr(S[0], 16))
    a.nop(12)
    rowmax(S[0])
    a(f"v_xor_b32 v{T0}, 0x80000000, v{T0}")
    a(f"v_lshrrev_b32 v{T0}, 16, v{T0}")
    a(f"v_cndmask_b32 v{QB+2}, 0, v{T0}, s[{sLO}:{sLO+1}]")
    a.nop(2)
    mf(S[0], KA[0], QA, "0")
    mf(S[0], KB[0], QB, vr(S[0], 16))
    a.nop(12)
    def kvdma(j):
        fg = lambda i: 40 + i if i < 60 else 60 + i if i < 80 else 20 + i if i < 100 else 40 + i
        fl = lambda i: (fg(i) + 10 * ROT) % 160
        lo, hi = 8 * j, 8 * j + 7
        brk = next((i for i in range(lo, hi + 1) if fg(i) - fg(lo) != i - lo or fl(i) - fl(lo) != i - lo), None)
        a(f"s_lshl_b32 s{sT+2}, s{sW}, 10")
        a(f"s_add_u32 s{sT}, s{sT+2}, {fg(lo)*1024 + WS_KV}")
        a(f"s_add_u32 s{sT+1}, s{sT+2}, {fl(lo)*1024}")
        if brk is not None:
            a(f"s_add_u32 s{sT+3}, s{sT+2}, {(fg(brk) - (brk - lo))*1024 + WS_KV}")
            a(f"s_add_u32 s{sT+2}, s{sT+2}, {((fl(brk) - (brk - lo))*1024) & 0xffffffff}")
            a(f"s_cmp_ge_u32 s{sW}, {brk - lo}")
            a(f"s_cselect_b32 s{sT}, s{sT+3}, s{sT}")
            a(f"s_cselect_b32 s{sT+1}, s{sT+2}, s{sT+1}")
        a(f"s_mov_b32 m0, s{sT+1}")
        a(f"s_add_u32 s{sT}, s{sT}, s{sKV}")
        a(f"buffer_load_dwordx4 v{vL}, {WS_}, s{sT} offen lds")
        return VM.op()
    tagD = {}
    def d_issue(j, part):
        f = DF[j % 3]
        wstep = 5 + j
        if part < 2:
            a(f"s_add_u32 s{sT}, s{sDW}, {wstep*4*40*1024}")
            for n in range(2 * part, 2 * part + 2): a(f"buffer_load_dwordx4 {vr(f+8+4*n,4)}, v{vL}, {WS_}, s{sT} offen offset:{n*1024}"); VM.op()
        elif part == 2:
            a(f"s_add_u32 s{sT}, s{sDW}, {wstep*4*40*1024 + 4096}")
            a(f"buffer_load_dwordx4 {vr(f+24,4)}, v{vL}, {WS_}, s{sT} offen"); VM.op()
            a(f"s_add_u32 s{sT}, s{sDX}, {j*4096}")
            a(f"buffer_load_dwordx4 {vr(f,4)}, v{vL}, {WS_}, s{sT} offen"); VM.op()
        else:
            a(f"s_add_u32 s{sT}, s{sDX}, {j*4096 + 49152}")
            a(f"buffer_load_dwordx4 {vr(f+4,4)}, v{vL}, {WS_}, s{sT} offen"); tagD[j] = VM.op()
    def d_mfma(j, q):
        f = DF[j % 3]; m, n = q & 1, q >> 1
        acc = DACC + (m * 5 + n) * 4
        a(f"{M16} {vr(acc,4)}, {vr(f+8+4*n,4)}, {vr(f+4*m,4)}, {vr(acc,4)}")
    useD = "noD" not in exp
    DT0 = opt("dt", 20); ND3 = opt("nd", 10)
    dsched = {t: [] for t in range(64)}; lsched = {t: [] for t in range(64)}; dfirst = {}
    for j in range(ND3):
        for q in range(10):
            t = DT0 + (10 * j + q) * (64 - DT0) // (10 * ND3)
            dsched[t].append((j, q)); dfirst.setdefault(j, t)
    for j in range(ND3, min(ND3 + 2, 12)): dfirst[j] = 64 + 2 * (j - ND3)
    for j in range(min(ND3 + 2, 12)):
        lw = dfirst[j] - 8; lx = max(dfirst[j] - 6, DT0 - 5 + (1 if j else 0))
        if j >= 3:
            last_prev = max(t for t in range(64) for (jj, q) in dsched[t] if jj == j - 3)
            lw = max(lw, last_prev + 1); lx = max(lx, lw + 2)
            assert lx + 1 < 64
        assert lw >= 12
        lsched[lw].append((j, 0)); lsched[lw + 1].append((j, 1)); lsched[lx].append((j, 2)); lsched[lx + 1].append((j, 3))
        assert lx + 1 < dfirst[j] - 1, (j, lx, dfirst[j])
    TF2 = DT0 - 5
    assert max(len(v) for v in dsched.values()) <= 3
    def tile(t):
        cur = t & 1; nxt = cur ^ 1
        s = S[cur]; sn = S[nxt]
        ex = lambda r: a(f"v_exp_f32 v{s+r}, v{s+r}")
        cv = lambda p: a(f"v_cvt_pk_bf16_f32 v{P+p}, v{s+2*p}, v{s+2*p+1}")
        dq = dsched[t] if useD else []
        def dm(k):
            if k < len(dq):
                j, q = dq[k]
                if q == 0: VM.need(tagD[j])
                d_mfma(j, q)
        if "noprio" not in exp: a(f"s_setprio {3 - (t % 4)}")
        if t < 63:
            LG.need(tagK[t + 1])
            mf(sn, KA[nxt], QA, "0")
        ex(0); ex(1); dm(0); ex(2); ex(3)
        if t < 63 and not ("noQK2" in exp and (t & 1)): mf(sn, KB[nxt], QB, vr(sn, 16))
        rdK(t + 2)
        ex(4); ex(5); dm(1); ex(6); ex(7)
        cv(0); cv(1)
        if t > 0:
            LG.need(tagV1[t - 1])
            mf(O, V[nxt][1], P + 4, vr(O, 16))
        rdV(t + 1)
        cv(2); cv(3)
        ex(8); ex(9); dm(2); ex(10); ex(11)
        LG.need(tagV0[t])
        mf(O, V[cur][0], P, vr(O, 16))
        if useD:
            for (j, part) in lsched[t]: d_issue(j, part)
        for r in range(12, 16): ex(r)
        cv(4); cv(5); cv(6); cv(7)
    sWOb = sKV
    def wodma(j):
        a(f"s_add_u32 s{sT}, s{sW}, {8*j}")
        a(f"s_min_u32 s{sT}, s{sT}, 99")
        a(f"s_mul_i32 s{sT+1}, s{sT}, 205")
        a(f"s_lshr_b32 s{sT+1}, s{sT+1}, 10")
        a(f"s_mul_i32 s{sT+1}, s{sT+1}, {40960 - 5*1024}")
        a(f"s_lshl_b32 s{sT}, s{sT}, 10")
        a(f"s_add_u32 m0, s{sT}, {WOB}")
        a(f"s_add_u32 s{sT}, s{sT}, s{sT+1}")
        a(f"s_add_u32 s{sT}, s{sT}, s{sWOb}")
        a(f"buffer_load_dwordx4 v{vL}, {WS_}, s{sT} offen lds")
        return VM.op()
    nd = 0; nwo = 0
    TB1 = 12; tkvs = {}
    for t in range(64):
        if t == 2:
            a(f"s_waitcnt vmcnt({VM.issued})")
            a(f"v_mov_b32 v{T0}, 0")
            a(f"v_mov_b32 v{T1}, s{sNon}")
            a("s_mov_b64 exec, 1")
            a(f"buffer_store_dword v{T1}, v{T0}, {WS_}, s{sF2} offen{SC}"); VM.op()
            a("s_mov_b64 exec, -1")
        def pp_loads():
            for q in range(3):
                if q == 2: a("s_mov_b64 exec, 0xff")
                a(f"s_mov_b32 s{sT}, {WS_FLP + q*320*128}")
                a(f"buffer_load_dword v{PPD+q}, v{vPP}, {WS_}, s{sT} offen{SC}")
            a("s_mov_b64 exec, -1")
        if t == TB1 - 3:
            npp = VM.issued
            lab = a.newlabel("L_pp")
            a(f"s_cmp_lg_u32 s{sW}, 0")
            a(f"s_cbranch_scc1 {lab}")
            a(f"v_mov_b32 v{PPD+2}, s{sNon}")
            pp_loads()
            a.label(lab)
        if t == TB1:
            lab = a.newlabel("L_ppc")
            a(f"s_cmp_lg_u32 s{sW}, 0")
            a(f"s_cbranch_scc1 {lab}_ok")
            a(f"s_mov_b32 s{sT+1}, 0")
            a(f"s_waitcnt vmcnt({VM.issued - npp})")
            a.label(lab)
            for q in range(3): a(f"v_xor_b32 v{T0+q}, s{sNon}, v{PPD+q}")
            a(f"v_or3_b32 v{T0}, v{T0}, v{T1}, v{T2}")
            a(f"v_cmp_ne_u32 vcc, 0, v{T0}")
            a(f"s_add_u32 s{sT+1}, s{sT+1}, 1")
            a.nop(2)
            a("s_cmp_eq_u64 vcc, 0")
            a(f"s_cbranch_scc1 {lab}_ok")
            a(f"s_cmp_ge_u32 s{sT+1}, 0x20000")
            a(f"s_cbranch_scc1 {lab}_ok")
            a("s_sleep 8")
            pp_loads()
            a("s_waitcnt vmcnt(0)")
            a(f"s_branch {lab}")
            a.label(f"{lab}_ok")
            VM.need(tkvs[4])
            a("s_barrier")
        if useD and t == TF2 - 2:
            a(f"buffer_load_dword v{DPOLL}, v{vFo}, {WS_}, s{sFp} offen{SC}"); tpoll = VM.op()
        if useD and t == TF2:
            VM.need(tpoll)
            lab = a.newlabel("L_f2")
            a(f"s_mov_b32 s{sT+1}, 0")
            a.label(lab)
            a(f"v_cmp_ne_u32 vcc, s{sNon}, v{DPOLL}")
            a(f"s_add_u32 s{sT+1}, s{sT+1}, 1")
            a.nop(2)
            a("s_cmp_eq_u64 vcc, 0")
            a(f"s_cbranch_scc1 {lab}_ok")
            a(f"s_cmp_ge_u32 s{sT+1}, 0x20000")
            a(f"s_cbranch_scc1 {lab}_ok")
            a("s_sleep 4")
            a(f"buffer_load_dword v{DPOLL}, v{vFo}, {WS_}, s{sFp} offen{SC}")
            a("s_waitcnt vmcnt(0)")
            a(f"s_branch {lab}")
            a.label(f"{lab}_ok")
        if t == 28:
            VM.need(tkv)
            a("s_barrier")
        if t == 42:
            a("s_barrier")
            a(f"s_lshr_b32 s{sT}, s{sW}, 1")
            a(f"s_mul_i32 s{sT}, s{sT}, {40*1024}")
            a(f"s_sub_u32 s{sWOb}, s{sDW}, s{sT}")
        if t % 8 == 0 and t: ST("D", 1 + t // 8)
        tile(t)
        if nd < 15 and (nd < 10 or t >= TB1):
            tkv = tkvs[nd] = kvdma(nd); nd += 1
        if t >= 42 and nwo < 13:
            two = wodma(nwo); nwo += 1
    LG.need(tagV1[63])
    a.nop(2)
    mf(O, V[1][1], P + 4, vr(O, 16))
    ST("A", 8); ST("D", 9)
    a("s_setprio 0")
    a("v_and_b32 v5, 15, v2")
    a("v_lshrrev_b32 v6, 4, v2")
    a("v_mul_u32_u24 v5, 1280, v5")
    a("v_lshl_add_u32 v5, v6, 3, v5")
    a(f"s_lshl_b32 s{sT}, s{sW}, 5")
    a(f"s_add_u32 s{sFin}, s{sFin}, s{sT}")
    a(f"s_lshr_b32 s{sT}, s{sW}, 1")
    a(f"s_mul_i32 s{sT}, s{sT}, 5120")
    a(f"s_add_u32 s{sT}, s{sT}, {WOB}")
    a(f"v_add_u32 v7, s{sT}, v{vL}")
    a(f"v_add_u32 v6, {3*20480}, v7")
    a.nop(4)
    a(f"v_mov_b32 v{T0}, v{O+8}")
    a(f"v_mov_b32 v{T1}, v{O+8}")
    a(f"v_mov_b32 v{T2}, 0")
    a.nop(1)
    a(f"v_permlane32_swap_b32 v{T0}, v{T1}")
    for r in range(12): a(f"v_fma_f32 v{T2}, v{O+r}, 0, v{T2}")
    a(f"s_mov_b32 s{sT}, 0x71800000")
    a(f"v_add_f32 v{T2}, v{T2}, v{T1}")
    a(f"v_cmp_ngt_f32 vcc, s{sT}, v{T2}")
    a.nop(4)
    a("s_cmp_lg_u64 vcc, 0")
    a("s_cbranch_scc1 L_slow")
    a.label("L_fin")
    a(f"v_rcp_f32 v{T1}, v{T1}")
    a(f"s_lshr_b32 s{sT}, s{sH}, 1")
    a(f"s_mul_i32 s{sT}, s{sT}, {5*256}")
    a(f"s_add_u32 s{sT}, s{sT}, {WS_O}")
    a(f"s_and_b32 s{sT+1}, s{sH}, 1")
    a(f"s_mul_i32 s{sT+2}, s{sT+1}, {3*256}")
    a(f"s_add_u32 s{sT+2}, s{sT+2}, s{sT}")
    a(f"s_lshl_b32 s{sT+1}, s{sT+1}, 3")
    a(f"s_add_u32 s{sT+1}, s{sT+1}, s{sT}")
    for r in range(12): a(f"v_mul_f32 v{O+r}, v{O+r}, v{T1}")
    for p in range(6): a(f"v_cvt_pk_bf16_f32 v{P+p}, v{O+2*p}, v{O+2*p+1}")
    a(f"v_permlane32_swap_b32 v{P}, v{P+2}")
    a(f"v_permlane32_swap_b32 v{P+1}, v{P+3}")
    a(f"buffer_store_dwordx4 {vr(P,4)}, v{vOst+1}, {WS_}, s{sT+2} offen{SC}")
    a(f"s_mov_b64 exec, s[{sLO}:{sLO+1}]")
    a(f"buffer_store_dwordx2 {vr(P+4,2)}, v{vOst}, {WS_}, s{sT+1} offen offset:512{SC}")
    a("s_mov_b64 exec, -1")
    for m in range(4):
        a(f"s_add_u32 s{sT}, s{sFin}, {m*16*1280}")
        a(f"buffer_load_dwordx2 {vr(20+2*m,2)}, v5, {X_}, s{sT} offen")
    VM.op(6)
    ST("A", 9); ST("D", 10)
    if useD:
        for j in range(ND3, 12):
            if j + 2 < 12 and j + 2 not in tagD:
                for part in range(4): d_issue(j + 2, part)
            VM.need(tagD[j])
            for q in range(10): d_mfma(j, q)
    XOF = [72 + 8 * k for k in range(4)] + [36]
    WOF = [164 + 20 * k for k in range(4)] + [44]
    sPend = sLoop
    def xo_load(k):
        for m in range(2):
            a(f"s_add_u32 s{sT}, s{sDX+1}, {k*4096 + m*20480}")
            a(f"buffer_load_dwordx4 {vr(XOF[k]+4*m,4)}, v{vL}, {WS_}, s{sT} offen{SC}")
    if "spec" in exp:
        for k in range(5): xo_load(k)
        a("s_waitcnt vmcnt(10)")
    else:
        VM.need(two)
    a("s_barrier")
    ST("A", 10); ST("D", 11)
    for k in range(5):
        for n in range(5):
            off = k * 20480 + n * 1024
            a(f"ds_read_b128 {vr(WOF[k]+4*n,4)}, v{7 if k < 3 else 6} offset:{off if k < 3 else off - 3*20480}")
    a(f"s_mov_b32 s{sPend}, 31")
    a(f"s_mov_b32 s{sT+1}, 0")
    a("v_lshrrev_b32 v30, 1, v3")
    a(f"v_mul_u32_u24 v30, {5*256}, v30")
    a("v_and_b32 v31, 1, v3")
    a("v_lshl_add_u32 v30, v31, 3, v30")
    a(f"s_lshr_b32 s{sT+3}, s{sW}, 1")
    a(f"s_lshl_b32 s{sT+3}, s{sT+3}, 10")
    a(f"s_sub_u32 s{sT+3}, s{sDX+1}, s{sT+3}")
    a("s_waitcnt lgkmcnt(0)")
    a("s_barrier")
    if "spec" not in exp:
        a(f"s_mov_b32 s{sT+2}, 31")
        a("s_branch L_sent")
    a.label("L_xo")
    a("s_waitcnt vmcnt(0)")
    a(f"s_mov_b32 s{sT+2}, 0")
    for k in range(5):
        x = XOF[k]
        a(f"s_bitcmp1_b32 s{sPend}, {k}")
        a(f"s_cbranch_scc0 L_xo_n{k}")
        a(f"v_max3_u32 v28, v{x}, v{x+1}, v{x+2}")
        a(f"v_max3_u32 v29, v{x+3}, v{x+4}, v{x+5}")
        a(f"v_max3_u32 v28, v28, v{x+6}, v{x+7}")
        a(f"v_max_u32 v28, v28, v29")
        a("v_cmp_eq_u32 vcc, -1, v28")
        a.nop(4)
        a("s_cmp_eq_u64 vcc, 0")
        a(f"s_cbranch_scc1 L_xo_y{k}")
        a(f"s_cmp_lt_u32 s{sT+1}, 0x20000")
        a(f"s_cbranch_scc0 L_xo_y{k}")
        a(f"s_bitset1_b32 s{sT+2}, {k}")
        a(f"s_branch L_xo_n{k}")
        a.label(f"L_xo_y{k}")
        if k:
            a(f"s_cmp_lg_u32 s{sT+2}, 0")
            a(f"s_cbranch_scc1 L_xo_n{k}")
        a(f"s_bitset0_b32 s{sPend}, {k}")
        for n in range(5):
            for m in range(2):
                acc = DACC + (m * 5 + n) * 4
                a(f"{M16} {vr(acc,4)}, {vr(WOF[k]+4*n,4)}, {vr(x+4*m,4)}, {vr(acc,4)}")
        a.label(f"L_xo_n{k}")
    a(f"s_cmp_eq_u32 s{sPend}, 0")
    a("s_cbranch_scc1 L_xo_done")
    a.label("L_sent")
    a(f"s_mov_b64 exec, s[{sLO}:{sLO+1}]")
    a(f"buffer_load_dword v31, v30, {WS_}, s{sT+3} offen offset:512{SC}")
    a(f"s_add_u32 s{sT+1}, s{sT+1}, 1")
    a("s_waitcnt vmcnt(0)")
    a("v_cmp_eq_u32 vcc, -1, v31")
    a("s_mov_b64 exec, -1")
    a.nop(3)
    a("s_cmp_eq_u64 vcc, 0")
    a("s_cbranch_scc1 L_sent_ok")
    a(f"s_cmp_ge_u32 s{sT+1}, 0x20000")
    a("s_cbranch_scc1 L_sent_ok")
    a(f"s_sleep {opt('slp', 2)}")
    a("s_branch L_sent")
    a.label("L_sent_ok")
    for k in range(5):
        a(f"s_bitcmp1_b32 s{sT+2}, {k}")
        a(f"s_cbranch_scc0 L_xr_n{k}")
        xo_load(k)
        a.label(f"L_xr_n{k}")
    a("s_branch L_xo")
    a.label("L_xo_done")
    delay("D")
    ST("A", 11)
    a(f"s_and_b32 s{sT}, s{sW}, 1")
    a(f"s_lshl_b32 s{sT}, s{sT}, 3")
    a(f"s_lshr_b32 s{sT+1}, s{sW}, 1")
    a(f"s_add_u32 s{sT}, s{sT}, s{sT+1}")
    a(f"s_lshl_b32 s{sT}, s{sT}, 10")
    a(f"v_add_u32 v6, s{sT}, v{vL}")
    a(f"v_add_u32 v7, 0x10000, v6")
    a.nop(2)
    for n in range(5):
        for m in range(2):
            off = (n * 16 + m * 4) * 1024
            a(f"ds_write_b128 v{6 if off < 65536 else 7}, {vr(DACC+(m*5+n)*4,4)} offset:{off % 65536}")
    a(f"s_lshl_b32 s{sT}, s{sW}, 14")
    a(f"v_add_u32 v6, s{sT}, v{vL}")
    for m in range(4):
        for p in range(2):
            a(f"v_lshlrev_b32 v{72+4*m+2*p}, 16, v{20+2*m+p}")
            a(f"v_and_b32 v{72+4*m+2*p+1}, 0xffff0000, v{20+2*m+p}")
    a("s_waitcnt lgkmcnt(0)")
    a("s_barrier")
    a(f"s_cmp_ge_u32 s{sW}, 5")
    a("s_cbranch_scc1 L_done")
    RB = 124
    for q in range(16): a(f"ds_read_b128 {vr(RB+4*q,4)}, v6 offset:{q*1024}")
    for m in range(4):
        a(f"s_waitcnt lgkmcnt({12-4*m})")
        acc = 72 + 4 * m
        for p in range(2):
            for k in range(4):
                a(f"v_pk_add_f32 {vr(acc+2*p,2)}, {vr(acc+2*p,2)}, {vr(RB+(m*4+k)*4+2*p,2)}")
            a(f"v_cvt_pk_bf16_f32 v{acc+p}, v{acc+2*p}, v{acc+2*p+1}")
        a(f"s_add_u32 s{sT}, s{sFin}, {m*16*1280}")
        a(f"buffer_store_dwordx2 {vr(acc,2)}, v5, {OUT_}, s{sT} offen")
    a.label("L_done")
    if "dbgst" in exp:
        a("s_waitcnt vmcnt(0) lgkmcnt(0)")
        a("s_memrealtime s[96:97]")
        a("s_waitcnt lgkmcnt(0)")
        a(f"s_lshl_b32 s{sT}, s2, 3")
        a(f"s_add_u32 s{sT}, s{sT}, s{sW}")
        a(f"s_cmp_lg_u32 s{sT}, {opt('dbgst', 0)}")
        a("s_cbranch_scc1 L_end")
        a("s_mov_b64 exec, 1")
        a("v_mov_b32 v1, 0")
        for i in range(1, 13):
            a(f"s_sub_u32 s{sT}, s{72+2*i}, s72")
            a(f"v_mov_b32 v2, s{sT}")
            a(f"global_store_dword v1, v2, s[{sDbg}:{sDbg+1}] offset:{4*i}")
        a("s_endpgm")
    ST.dump(WS_, sW, sT)
    a.label("L_end")
    a("s_endpgm")

    a.label("L_slow")
    vKa, vKb, vV = AD[0]
    a(f"v_mov_b32 v{QB+2}, 0")
    a(f"v_mov_b32 v{vM}, 0xff800000")
    for r in range(16): a(f"v_mov_b32 v{O+r}, 0")
    a(f"s_mov_b32 s{sLoop}, 0")
    a(f"s_mul_i32 s{sT+3}, s{sH}, {16*CHUNK}")
    a(f"s_add_u32 s{sT+3}, s{sT+3}, {WS_KV}")
    a.label("L_slow_loop")
    a(f"buffer_load_dwordx4 {vr(KA[0],4)}, v{vKa}, {WS_}, s{sT+3} offen")
    a(f"buffer_load_dwordx2 {vr(KB[0],2)}, v{vKb}, {WS_}, s{sT+3} offen")
    a(f"s_mov_b64 exec, s[{sVM}:{sVM+1}]")
    a(f"buffer_load_dwordx4 {vr(V[0][0],4)}, v{vV}, {WS_}, s{sT+3} offen")
    a(f"buffer_load_dwordx4 {vr(V[0][1],4)}, v{vV}, {WS_}, s{sT+3} offen offset:640")
    a("s_mov_b64 exec, -1")
    a("s_waitcnt vmcnt(0)")
    s = S[1]
    mf(s, KA[0], QA, "0")
    mf(s, KB[0], QB, vr(s, 16))
    a.nop(12)
    rowmax(s, vM)
    a(f"v_sub_f32 v{T1}, v{vM}, v{T0}")
    a(f"v_exp_f32 v{T1}, v{T1}")
    a(f"v_mov_b32 v{vM}, v{T0}")
    for r in range(16): a(f"v_sub_f32 v{s+r}, v{s+r}, v{T0}")
    for r in range(16): a(f"v_mul_f32 v{O+r}, v{O+r}, v{T1}")
    for r in range(16): a(f"v_exp_f32 v{s+r}, v{s+r}")
    a.nop(1)
    for p in range(8): a(f"v_cvt_pk_bf16_f32 v{P+p}, v{s+2*p}, v{s+2*p+1}")
    a.nop(2)
    mf(O, V[0][0], P, vr(O, 16))
    mf(O, V[0][1], P + 4, vr(O, 16))
    a(f"s_add_u32 s{sLoop}, s{sLoop}, 1")
    a(f"s_and_b32 s{sT}, s{sLoop}, 3")
    a(f"s_cmp_eq_u32 s{sT}, 0")
    a(f"s_movk_i32 s{sT}, 512")
    a(f"s_movk_i32 s{sT+1}, 256")
    a(f"s_movk_i32 s{sT+2}, 1280")
    a(f"s_cselect_b32 s{sT}, {CHUNK-3*512}, s{sT}")
    a(f"s_cselect_b32 s{sT+1}, {CHUNK-3*256}, s{sT+1}")
    a(f"s_cselect_b32 s{sT+2}, {CHUNK-3*1280}, s{sT+2}")
    a(f"v_add_u32 v{vKa}, s{sT}, v{vKa}")
    a(f"v_add_u32 v{vKb}, s{sT+1}, v{vKb}")
    a(f"v_add_u32 v{vV}, s{sT+2}, v{vV}")
    a.nop(8)
    a(f"s_cmp_lt_u32 s{sLoop}, 64")
    a("s_cbranch_scc1 L_slow_loop")
    a.nop(4)
    a(f"v_mov_b32 v{T0}, v{O+8}")
    a(f"v_mov_b32 v{T1}, v{O+8}")
    a.nop(2)
    a(f"v_permlane32_swap_b32 v{T0}, v{T1}")
    a("s_branch L_fin")
    a.label("L_code_end")
    return kernel_header(NAME) + a.text(), kernel_desc(NAME, NV, 102 if stamp else 72)

if __name__ == "__main__":
    import sys
    stamp = sys.argv[2] if len(sys.argv) > 2 and sys.argv[2] != "none" else False
    ex = sys.argv[3] if len(sys.argv) > 3 else ""
    body, desc = gen(stamp, ex)
    hdr = open("parallel_sum__softmax_full_mha__glu_gated_reglu__prompt.s.ref").read().split("; Override launch")[0]
    s = hdr + f"; @launch grid=(256,1,1) block=(512,1,1) lds={LDS_M1}\n"
    s += '.amdgcn_target "amdgcn-amd-amdhsa--gfx950"\n.text\n' + body + '.section .rodata,"a"\n' + desc
    open(sys.argv[1], "w").write(s)
```

```python
from asmlib import *
from k_qkv import ln_rowmath
NAME = "parallel_sum__softmax_full_mha__glu_gated_reglu__prompt_kernel"
LDS_M1 = 163840
M32 = "v_mfma_f32_32x32x16_bf16"; M16 = "v_mfma_f32_16x16x32_bf16"

def gen(stamp=False, exp=""):
    a = Asm()
    ST = Stamps2(a, stamp)
    opt = lambda key, dflt: int(exp.split(key)[1].split("_")[0]) if key in exp else dflt
    sX, sWq, sWS, sWg, sWu, sOut, sPk = 8, 12, 16, 20, 24, 28, 32
    sDbg = 36
    sW, sMT, sNT, sIDX, sXCD, sNG = 38, 39, 40, 41, 42, 43
    sLO, sVM, sM = 44, 46, 48
    sT = 50
    sNon = 58
    sLW = 59
    sA, sB, sC = 60, 61, 62
    sG2 = 63
    sR = 64
    R_ = lambda b: f"s[{b}:{b+3}]"
    X_, WQ_, WS_, WG_, WU_, OUT_, PK_ = map(R_, (sX, sWq, sWS, sWg, sWu, sOut, sPk))
    SC = " sc1"
    PKS = 94208
    XS = [16384, 0, 49152, 32768]
    WA = [139264, 114688, 90112, 65536]
    ST_NM, ST_RS, ST_CS, ST_SUM = 2048, 2560, 5120, 5632
    STB = 65536
    CSA = 153600
    ROT = 5
    WOB = ROT * CHUNK
    QOFF = 4 * CHUNK

    a("s_cmp_ge_u32 s2, 256")
    a("s_cbranch_scc1 L_end")
    ST.start()
    if "cpf" in exp:
        a("s_getpc_b64 s[4:5]")
        a.label("L_pc")
        a("s_lshr_b32 s3, s2, 3")
        a("s_lshl_b32 s3, s3, 11")
        a("v_lshlrev_b32 v1, 2, v0")
        a("v_add_u32 v1, s3, v1")
        a(f"v_min_u32 v1, L_code_end - L_pc - 4, v1")
        a("global_load_dword v230, v1, s[4:5]")
    a(f"s_load_dwordx4 s[4:7], s[0:1], 0")
    a(f"s_load_dwordx2 s[{sT}:{sT+1}], s[0:1], 16")
    a(f"s_load_dwordx4 s[{sT+2}:{sT+5}], s[0:1], 32")
    a(f"s_load_dwordx4 s[{sR}:{sR+3}], s[0:1], 48")
    a(f"s_load_dwordx4 s[{sR+4}:{sR+7}], s[0:1], 64")
    a("v_lshrrev_b32 v1, 6, v0")
    a("v_and_b32 v2, 63, v0")
    a(f"v_readfirstlane_b32 s{sW}, v1")
    a(f"s_and_b32 s{sXCD}, s2, 7")
    a(f"s_lshr_b32 s{sIDX}, s2, 3")
    a(f"s_lshr_b32 s{sMT}, s{sXCD}, 2")
    a(f"s_lshl_b32 s{sMT}, s{sMT}, 3")
    a(f"s_and_b32 s3, s{sIDX}, 7")
    a(f"s_add_u32 s{sMT}, s{sMT}, s3")
    a(f"s_and_b32 s{sNG}, s{sXCD}, 3")
    a(f"s_lshl_b32 s{sNG}, s{sNG}, 2")
    a(f"s_lshr_b32 s3, s{sIDX}, 3")
    a(f"s_add_u32 s{sNG}, s{sNG}, s3")
    a(f"s_min_u32 s{sNT}, s{sNG}, 14")
    a(f"s_and_b32 s{sLW}, s{sW}, 3")
    a(f"s_mov_b32 s{sLO}, -1\ns_mov_b32 s{sLO+1}, 0\ns_mov_b32 s{sVM}, 0xfffff\ns_mov_b32 s{sVM+1}, 0xfffff")
    a("v_and_b32 v3, 31, v2")
    a("v_lshrrev_b32 v4, 5, v2")
    a(f"s_lshl_b32 s{sA}, s{sMT}, 4")
    a(f"s_add_u32 s{sA}, s{sA}, s{sNG}")
    a(f"s_mul_i32 s{sA}, s{sA}, 3")
    a(f"s_add_u32 s{sA}, s{sA}, s{sW}")
    a(f"s_mul_i32 s{sB}, s{sA}, 6554")
    a(f"s_lshr_b32 s{sB}, s{sB}, 16")
    a(f"s_mul_i32 s{sG2}, s{sLW}, {16*3072}")
    a(f"s_mul_i32 s3, s{sNG}, 192")
    a(f"s_add_u32 s{sG2}, s{sG2}, s3")
    a("s_waitcnt lgkmcnt(0)")
    ST("E", 1)
    def delay(tag):
        if f"dly{tag}" in exp:
            lab = a.newlabel("L_dly")
            a(f"s_mov_b32 s{sT+7}, 280")
            a.label(lab)
            a(f"s_sub_u32 s{sT+7}, s{sT+7}, 1")
            a(f"s_cmp_lg_u32 s{sT+7}, 0")
            a(f"s_cbranch_scc1 {lab}")
    delay("A")
    def srd(b, lo, hi, n): a(f"s_mov_b32 s{b}, s{lo}\ns_and_b32 s{b+1}, s{hi}, 0xffff\ns_mov_b32 s{b+2}, {n}\ns_mov_b32 s{b+3}, 0x20000")
    srd(sX, 4, 5, 2048 * 1280); srd(sWq, 6, 7, 640 * 3840); srd(sWS, sR + 6, sR + 7, WS_END)
    srd(sWg, sT + 2, sT + 3, 640 * 3072); srd(sWu, sT + 4, sT + 5, 640 * 3072); srd(sOut, sR + 2, sR + 3, 2048 * 1280)
    a(f"s_mov_b64 s[{sDbg}:{sDbg+1}], s[{sR+4}:{sR+5}]")
    a(f"s_cmp_lt_u32 s{sB}, 20")
    a(f"s_cselect_b32 s{sPk}, s{sT}, s{sR}")
    a(f"s_cselect_b32 s{sPk+1}, s{sT+1}, s{sR+1}")
    a(f"s_mov_b32 s{sPk+2}, {1536*1280}")
    a(f"s_cselect_b32 s{sPk+2}, {640*1280}, s{sPk+2}")
    a(f"s_and_b32 s{sPk+1}, s{sPk+1}, 0xffff")
    a(f"s_mov_b32 s{sPk+3}, 0x20000")

    sPB = [sR + 5, sR + 6, sR + 7]
    vPF = 214; PFD = 216
    lab = a.newlabel("L_pf")
    a(f"s_mul_i32 s{sT}, s{sIDX}, 12")
    a(f"s_mul_i32 s{sT+1}, s{sLW}, 3")
    a(f"s_add_u32 s{sT}, s{sT}, s{sT+1}")
    a(f"s_lshr_b32 s{sT+4}, s{sW}, 2")
    a(f"s_xor_b32 s{sT+4}, s{sT+4}, 1")
    a(f"s_mov_b32 s7, 0x20000")
    a(f"s_cmp_ge_u32 s{sT}, 255")
    a(f"s_cbranch_scc1 {lab}_w")
    a(f"s_mov_b32 s4, s{sX}\ns_mov_b32 s5, s{sX+1}\ns_mov_b32 s6, s{sX+2}\ns_movk_i32 s3, 256")
    a(f"v_lshrrev_b32 v{vPF}, 3, v2")
    a(f"v_mul_u32_u24 v{vPF}, 1280, v{vPF}")
    a("v_and_b32 v1, 7, v2")
    a(f"v_lshl_add_u32 v{vPF}, v1, 4, v{vPF}")
    a(f"s_lshr_b32 s{sT+1}, s{sXCD}, 2")
    a(f"s_mul_i32 s{sT+1}, s{sT+1}, {1024*1280}")
    for j in range(3):
        a(f"s_add_u32 s{sT+2}, s{sT}, {j}")
        a(f"s_lshr_b32 s{sT+3}, s{sT+2}, 1")
        a(f"s_mul_i32 s{sT+3}, s{sT+3}, {8*1280}")
        a(f"s_and_b32 s{sT+2}, s{sT+2}, 1")
        a(f"s_lshl_b32 s{sT+2}, s{sT+2}, 7")
        a(f"s_add_u32 s{sT+3}, s{sT+3}, s{sT+2}")
        a(f"s_add_u32 s{sPB[j]}, s{sT+3}, s{sT+1}")
    a(f"s_branch {lab}")
    a.label(f"{lab}_w")
    a(f"s_mov_b32 s4, s{sWq}\ns_mov_b32 s5, s{sWq+1}\ns_mov_b32 s6, s{sWq+2}\ns_mov_b32 s3, {128*3840}")
    a(f"v_lshlrev_b32 v{vPF}, 4, v2")
    a(f"s_sub_u32 s{sT}, s{sT}, 255")
    a(f"s_mul_i32 s{sT}, s{sT}, 3840")
    a(f"s_and_b32 s{sT+1}, s{sXCD}, 3")
    a(f"s_lshl_b32 s{sT+1}, s{sT+1}, 10")
    a(f"s_add_u32 s{sT}, s{sT}, s{sT+1}")
    for j in range(3): a(f"s_add_u32 s{sPB[j]}, s{sT}, {j*3840}")
    a.label(lab)
    a(f"s_mul_i32 s{sT}, s{sT+4}, s3")
    for j in range(3): a(f"s_add_u32 s{sPB[j]}, s{sPB[j]}, s{sT}")
    def pf1(cnt=None, adv=1):
        for j in range(3):
            a(f"buffer_load_dwordx4 {vr(PFD,4)}, v{vPF}, s[4:7], s{sPB[j]} offen")
            for _ in range(adv): a(f"s_add_u32 s{sPB[j]}, s{sPB[j]}, s3")
            if cnt: cnt.op()
    ST("E", 2)
    pf1()
    ST("E", 3)
    vXE, vXO = 220, 221; vGd = [222, 223, 224]
    SEL = 168
    sXo, sLd, sLdW, sF2 = sR, sR + 1, sR + 2, sR + 3
    a(f"s_lshl_b32 s{sF2}, s{sMT}, 3\ns_add_u32 s{sF2}, s{sF2}, s{sW}\ns_lshl_b32 s{sF2}, s{sF2}, 4\ns_add_u32 s{sF2}, s{sF2}, s{sNG}")
    a(f"s_lshl_b32 s{sF2}, s{sF2}, 7\ns_add_u32 s{sF2}, s{sF2}, {WS_FL2}")
    a(f"s_or_b32 s{sT}, s2, s{sW}")
    a(f"s_cmp_lg_u32 s{sT}, 0")
    a("s_cbranch_scc1 L_nonce_done")
    a(f"s_memrealtime s[{sT}:{sT+1}]")
    a("v_mov_b32 v9, 0")
    a("s_waitcnt lgkmcnt(0)")
    a(f"s_or_b32 s{sT}, s{sT}, 1")
    a(f"v_mov_b32 v10, s{sT}")
    a("s_mov_b64 exec, 1")
    a(f"global_store_dword v9, v10, s[{sDbg}:{sDbg+1}] sc1")
    a("s_mov_b64 exec, -1")
    a.label("L_nonce_done")
    a("v_lshrrev_b32 v9, 4, v2")
    a("v_lshrrev_b32 v10, 3, v2")
    a("v_mul_u32_u24 v10, 1280, v10")
    a("v_and_b32 v11, 7, v2")
    a(f"v_xor_b32 v{vXE}, v11, v9")
    a(f"v_xor_b32 v{vXO}, 4, v{vXE}")
    a(f"v_lshl_add_u32 v{vXE}, v{vXE}, 4, v10")
    a(f"v_lshl_add_u32 v{vXO}, v{vXO}, 4, v10")
    a(f"s_lshl_b32 s{sXo}, s{sMT}, 7")
    a(f"s_lshl_b32 s{sT}, s{sLW}, 5")
    a(f"s_add_u32 s{sXo}, s{sXo}, s{sT}")
    a(f"s_mul_i32 s{sXo}, s{sXo}, 1280")
    a(f"s_lshl_b32 s{sLd}, s{sLW}, 12")
    a(f"s_mul_i32 s{sLdW}, s{sLW}, 3072")
    a(f"s_cmp_ge_u32 s{sW}, 4")
    a("s_cbranch_scc1 L_B")

    vNon = 215
    def nonce_issue(cnt):
        a(f"v_mov_b32 v{vNon}, 0")
        a(f"global_load_dword v{vNon}, v{vNon}, s[{sDbg}:{sDbg+1}] sc1")
        return cnt.op()
    def nonce_get(cnt, tag):
        lab = a.newlabel("L_non")
        cnt.need(tag)
        a(f"s_mov_b32 s{sT+1}, 0")
        a.label(lab)
        a(f"v_readfirstlane_b32 s{sNon}, v{vNon}")
        a(f"s_add_u32 s{sT+1}, s{sT+1}, 1")
        a(f"s_cmp_lg_u32 s{sNon}, 0")
        a(f"s_cbranch_scc1 {lab}_ok")
        a(f"s_cmp_ge_u32 s{sT+1}, 0x20000")
        a(f"s_cbranch_scc1 {lab}_ok")
        a("s_sleep 8")
        a(f"v_mov_b32 v{vNon}, 0")
        a(f"global_load_dword v{vNon}, v{vNon}, s[{sDbg}:{sDbg+1}] sc1")
        a("s_waitcnt vmcnt(0)")
        a(f"s_branch {lab}")
        a.label(f"{lab}_ok")
    def common_late_setup():
        for t in range(3):
            a(f"v_add_u32 v10, {64*t}, v2")
            a(f"v_mul_u32_u24 v11, 5462, v10")
            a(f"v_lshrrev_b32 v11, 16, v11")
            a(f"v_mul_u32_u24 v9, 12, v11")
            a(f"v_sub_u32 v9, v10, v9")
            a(f"v_mul_u32_u24 v11, 3072, v11")
            a(f"v_lshl_add_u32 v{vGd[t]}, v9, 4, v11")
        a("v_lshrrev_b32 v9, 4, v2")
        a("v_and_b32 v9, 1, v9")
        a("v_and_b32 v10, 15, v2")
        a("v_cmp_eq_u32 vcc, v10, v9")
        a("v_mov_b32 v10, 0x3f803f80")
        a.nop(1)
        for r in range(4): a(f"v_cndmask_b32 v{SEL+r}, 0, v10, vcc")
    def issue2(u, cnt, only=None):
        st = 9 - u; wa = WA[u % 4]; n = 0
        if only == "last":
            a(f"s_add_u32 m0, s{sLdW}, {wa + 2*1024}")
            a(f"s_add_u32 s{sT}, s{sG2}, {st*64*3072}")
            a(f"buffer_load_dwordx4 v{vGd[2]}, {WG_}, s{sT} offen lds")
            return cnt.op(1)
        if u >= 4:
            for j in range(4):
                a(f"s_add_u32 m0, s{sLd}, {XS[u % 4] + j*1024}")
                a(f"s_add_u32 s{sT}, s{sXo}, {j*8*1280 + st*128}")
                a(f"buffer_load_dwordx4 v{vXO if j & 1 else vXE}, {X_}, s{sT} offen lds"); n += 1
        for mat in range(2):
            for t in range(3):
                if only == "butlast" and mat == 0 and t == 2: continue
                a(f"s_add_u32 m0, s{sLdW}, {wa + mat*12288 + t*1024}")
                a(f"s_add_u32 s{sT}, s{sG2}, {st*64*3072}")
                a(f"buffer_load_dwordx4 v{vGd[t]}, {WU_ if mat else WG_}, s{sT} offen lds"); n += 1
        return cnt.op(n)

    if "pfall" in exp:
        pf1(); pf1(); pf1(adv=0)
    elif "pf3" in exp:
        pf1(); pf1(adv=0)
    else:
        pf1(adv=0)
    if "tlb" in exp:
        G = opt("tlb", 21)
        a(f"v_lshlrev_b32 v5, {G}, v2")
        for k, (srdn, off) in enumerate(((WS_, 4032), (WG_, 0), (WU_, 0), (OUT_, 0), (PK_, 0))):
            a(f"s_cmp_lg_u32 s{sW}, {k % 4}")
            lab = a.newlabel("L_tw")
            a(f"s_cbranch_scc1 {lab}")
            a(f"buffer_load_dword v{PFD}, v5, {srdn}, 0 offen offset:{off} sc1")
            a.label(lab)
    XF = [[8, 12], [16, 20]]; WF = [[24, 28], [32, 36]]
    vXA = [[40 + mi * 4 + ks for ks in range(4)] for mi in range(2)]
    vWA = [56, 57]
    RSD = 60
    SSQ = 58; SSQA = 'ssqA' in exp
    ACC = 64
    T = list(range(128, 168))
    CSD = 172
    U = [176, 177, 178, 179]
    vPK = [230, 231, 232, 233]; vPKr = 234
    sWM, sWN, sPKc, sPKl, sPKb = sR + 4, sR + 5, sR + 6, sR + 7, 3
    common_late_setup()
    a(f"s_and_b32 s{sWM}, s{sW}, 1")
    a(f"s_lshr_b32 s{sWN}, s{sW}, 1")
    a("v_lshrrev_b32 v5, 1, v3")
    a("v_and_b32 v5, 7, v5")
    for mi in range(2):
        a(f"s_xor_b32 s{sT}, s{sWN}, {mi}")
        a(f"s_lshl_b32 s{sT+1}, s{sWM}, 1")
        a(f"s_add_u32 s{sT}, s{sT}, s{sT+1}")
        a(f"s_lshl_b32 s{sT}, s{sT}, 12")
        a(f"v_lshl_add_u32 v6, v3, 7, s{sT}")
        for ks in range(4):
            a(f"v_or_b32 v7, {2*ks}, v4")
            a(f"v_xor_b32 v7, v7, v5")
            a(f"v_lshl_add_u32 v{vXA[mi][ks]}, v7, 4, v6")
    a("v_lshrrev_b32 v5, 2, v2")
    a("v_and_b32 v5, 3, v5")
    a("v_lshl_add_u32 v6, v4, 3, v5")
    a("v_lshlrev_b32 v6, 8, v6")
    a("v_lshrrev_b32 v7, 4, v2")
    a("v_and_b32 v7, 1, v7")
    a("v_lshl_add_u32 v6, v7, 5, v6")
    a("v_and_b32 v7, 3, v2")
    a("v_lshl_add_u32 v6, v7, 3, v6")
    a("v_add_u32 v6, 0x10000, v6")
    for ni in range(2):
        a(f"s_xor_b32 s{sT}, s{sWM}, {ni}")
        a(f"s_lshl_b32 s{sT+1}, s{sWN}, 1")
        a(f"s_add_u32 s{sT}, s{sT}, s{sT+1}")
        a(f"v_xor_b32 v7, s{sT}, v5")
        a(f"v_lshl_add_u32 v{vWA[ni]}, v7, 6, v6")
    for r in range(64): a(f"v_mov_b32 v{ACC+r}, 0")
    for r in range(4): a(f"v_mov_b32 v{CSD+r}, 0\nv_mov_b32 v{RSD+r}, 0")
    a(f"v_mov_b32 v{SSQ}, 0\nv_mov_b32 v{SSQ+1}, 0")
    a(f"s_mul_i32 s{sT+2}, s{sB}, 10")
    a(f"s_sub_u32 s{sT+2}, s{sA}, s{sT+2}")
    a(f"s_cmp_lt_u32 s{sB}, 20")
    a(f"s_cselect_b32 s{sT+3}, 0, 20")
    a(f"s_cselect_b64 s[{sM}:{sM+1}], -1, 0")
    a(f"s_sub_u32 s{sT+3}, s{sB}, s{sT+3}")
    a(f"s_lshl_b32 s{sT+3}, s{sT+3}, 5")
    a(f"s_lshl_b32 s{sPKc}, s{sT+2}, 7")
    a(f"s_lshl_b32 s{sPKl}, s{sW}, 12")
    a(f"s_add_u32 s{sPKl}, s{sPKl}, {PKS}")
    a("v_lshrrev_b32 v5, 3, v2")
    a("v_and_b32 v6, 7, v2")
    for t in range(4):
        a(f"v_add_u32 v7, s{sT+3}, v5")
        if t: a(f"v_add_u32 v7, {8*t}, v7")
        a(f"v_mul_u32_u24 v{U[0]}, 1639, v7")
        a(f"v_lshrrev_b32 v{U[0]}, 16, v{U[0]}")
        a(f"v_mul_u32_u24 v{U[0]}, 40, v{U[0]}")
        a(f"v_sub_u32 v{U[0]}, v7, v{U[0]}")
        a(f"v_cmp_le_u32 vcc, 24, v{U[0]}")
        a(f"v_cmp_le_u32 s[{sT+6}:{sT+7}], 20, v{U[0]}")
        a(f"v_mov_b32 v{U[1]}, 16")
        a.nop(1)
        a(f"v_cndmask_b32 v{U[1]}, 0, v{U[1]}, s[{sT+6}:{sT+7}]")
        a(f"v_cndmask_b32 v{U[1]}, v{U[1]}, -4, vcc")
        a(f"v_cndmask_b32 v{U[1]}, 0, v{U[1]}, s[{sM}:{sM+1}]")
        a(f"v_add_u32 v7, v7, v{U[1]}")
        a("v_mul_u32_u24 v7, 1280, v7")
        a(f"v_lshl_add_u32 v{vPK[t]}, v6, 4, v7")
        a(f"v_add_u32 v{vPK[t]}, s{sPKc}, v{vPK[t]}")
    a("v_lshrrev_b32 v5, 4, v2")
    a("v_lshrrev_b32 v6, 2, v2")
    a("v_and_b32 v6, 3, v6")
    a("v_lshl_add_u32 v5, v5, 3, v6")
    a("v_lshlrev_b32 v5, 7, v5")
    a("v_and_b32 v6, 3, v2")
    a("v_lshl_add_u32 v5, v6, 3, v5")
    a(f"v_add_u32 v{vPKr}, s{sPKl}, v5")
    def gprefetch_setup():
        a(f"s_and_b32 s{sT}, s{sW}, 1")
        a(f"s_cmp_eq_u32 s{sT}, 0")
        a(f"s_cselect_b32 s4, s{sWg}, s{sWu}")
        a(f"s_cselect_b32 s5, s{sWg+1}, s{sWu+1}")
        a(f"s_mov_b32 s6, {640*3072}")
        a(f"s_lshl_b32 s{sT}, s{sIDX}, 1")
        a(f"s_lshr_b32 s{sT+1}, s{sLW}, 1")
        a(f"s_add_u32 s{sT}, s{sT}, s{sT+1}")
        a(f"s_mul_i32 s3, s{sT}, {4*3072}")
        a(f"s_and_b32 s{sT}, s{sXCD}, 3")
        a(f"s_mul_i32 s{sT}, s{sT}, 768")
        a(f"s_add_u32 s3, s3, s{sT}")
        a(f"v_lshrrev_b32 v{vPF}, 4, v2")
        a(f"v_mul_u32_u24 v{vPF}, 3072, v{vPF}")
        a("v_and_b32 v1, 15, v2")
        a(f"v_lshl_add_u32 v{vPF}, v1, 4, v{vPF}")
    gprefetch_setup()
    CV = Cnt(a, "vmcnt", 63); tags = {}
    def gprefetch(n):
        if "nopf2" in exp: return
        a(f"s_add_u32 s{sT}, s3, {(2 - n // 3)*256*3072}")
        a(f"buffer_load_dwordx4 {vr(PFD,4)}, v{vPF}, s[4:7], s{sT} offen offset:{(n % 3)*256}")
        CV.op()
    def pack_ids():
        a(f"s_lshl_b32 s3, s{sMT}, 4")
        a(f"s_add_u32 s3, s3, s{sNG}")
        a(f"s_mul_i32 s3, s3, 3")
        a(f"s_add_u32 s3, s3, s{sW}")
        a(f"s_lshl_b32 s{sPKl}, s{sW}, 12")
        a(f"s_add_u32 s{sPKl}, s{sPKl}, {PKS}")
    def pack_issue(cnt):
        for t in range(4):
            a(f"s_add_u32 m0, s{sPKl}, {t*1024}")
            a.nop(1)
            a(f"buffer_load_dwordx4 v{vPK[t]}, {PK_}, 0 offen lds")
        return cnt.op(4)
    def pack_finish(cnt, tag):
        a(f"s_lshl_b32 s{sT+1}, s3, 12")
        a(f"s_add_u32 s{sT+1}, s{sT+1}, {WS_WP}")
        a(f"s_cmp_eq_u32 s{sW}, 3")
        a(f"s_cselect_b32 s{sT+1}, {WS_END}, s{sT+1}")
        a(f"s_cmp_ge_u32 s3, 680")
        a(f"s_cselect_b32 s{sT+1}, {WS_END}, s{sT+1}")
        cnt.need(tag)
        for n in range(4):
            for h in range(2):
                a(f"ds_read_b64_tr_b16 {vr(164+4*n+2*h,2)}, v{vPKr} offset:{h*512 + n*32}")
        a("s_waitcnt lgkmcnt(0)")
        for n in range(4):
            a(f"buffer_store_dwordx4 {vr(164+4*n,4)}, v120, {WS_}, s{sT+1} offen offset:{n*1024}{SC}")
        return cnt.op(4)
    def rd1(st, ks, buf):
        b = (st % 4) * 16384
        X = lambda mi: (("X", mi), f"ds_read_b128 {vr(XF[buf][mi],4)}, v{vXA[mi][ks]} offset:{b}")
        W = lambda ni, h: (("W", ni), f"ds_read_b64_tr_b16 {vr(WF[buf][ni]+2*h,2)}, v{vWA[ni]} offset:{b + ks*4096 + h*1024}")
        return [X(0), W(0, 0), W(0, 1), W(1, 0), W(1, 1), X(1)]
    PKI, GP0 = opt("pki", 2), opt("gp", 3)
    def p1_loop(vtype):
        CV.issued = CV.done = 0
        L1 = Cnt(a, "lgkmcnt", 15)
        tg = [{}, {}]
        def emit(lst, buf):
            for key, l in lst:
                a(l); tg[buf][key] = L1.op()
        a("s_barrier")
        ST("A", 1); ST("B", 1)
        emit(rd1(0, 0, 0), 0)
        for st in range(10):
            for ks in range(4):
                buf = (st * 4 + ks) & 1
                if ks < 3: nxt = rd1(st, ks + 1, buf ^ 1)
                elif st < 9: nxt = rd1(st + 1, 0, buf ^ 1)
                else: nxt = []
                if ks == 3 and st < 9:
                    L1.need(L1.issued - 1)
                    if 4 <= st < 9: ST("G", 2 * (st - 4) + 1)
                    a("s_barrier")
                    if 4 <= st < 9: ST("G", 2 * (st - 4) + 2)
                    ST("B", st + 2)
                n = 0
                for mi in range(2):
                    for ni in range(2):
                        d = ACC + (mi * 2 + ni) * 16
                        A, B = (XF[buf][mi], WF[buf][ni]) if vtype else (WF[buf][ni], XF[buf][mi])
                        L1.need(max(tg[buf][("X", mi)], tg[buf][("W", ni)]))
                        a(f"{M32} {vr(d,16)}, {vr(A,4)}, {vr(B,4)}, {vr(d,16)}")
                        emit(nxt[n * 2: n * 2 + 2], buf ^ 1)
                        if SSQA:
                            for dw in ([0], [1], [], [2, 3])[n]:
                                u0, u1 = U[2 * (dw & 1)], U[2 * (dw & 1) + 1]
                                a(f"v_lshlrev_b32 v{u0}, 16, v{XF[buf][0]+dw}")
                                a(f"v_and_b32 v{u1}, 0xffff0000, v{XF[buf][0]+dw}")
                                a(f"v_fmac_f32 v{SSQ}, v{u0}, v{u0}")
                                a(f"v_fmac_f32 v{SSQ+1}, v{u1}, v{u1}")
                        if n == 3:
                            gi = (st - GP0) * 2 + (ks >> 1)
                            if 0 <= gi < 9 and (ks & 1): gprefetch(gi)
                            if st == 8 and ks == 1: tags["non"] = nonce_issue(CV)
                        if n == 2: a(f"{M16} {vr(CSD,4)}, {vr(SEL,4)}, {vr(WF[buf][0],4)}, {vr(CSD,4)}")
                        n += 1
                if "norsd" not in exp: a(f"{M16} {vr(RSD,4)}, {vr(SEL,4)}, {vr(XF[buf][0],4)}, {vr(RSD,4)}")
        ST("A", 2); ST("B", 11)
        a(f"s_lshl_b32 s{sT}, s{sWN}, 1\ns_add_u32 s{sT}, s{sT}, s{sWM}\ns_lshl_b32 s{sT}, s{sT}, 7\ns_add_u32 s{sT}, s{sT}, {STB+ST_CS}")
        a(f"v_lshl_add_u32 v{U[0]}, v3, 2, s{sT}")
        a(f"s_lshl_b32 s{sT}, s{sWM}, 1\ns_add_u32 s{sT}, s{sT}, s{sWN}\ns_lshl_b32 s{sT}, s{sT}, 7\ns_add_u32 s{sT}, s{sT}, {STB}")
        a(f"v_lshl_add_u32 v{U[1]}, v3, 2, s{sT}")
        if SSQA:
            a(f"v_add_f32 v{SSQ}, v{SSQ}, v{SSQ+1}")
            a(f"v_mov_b32 v{SSQ+1}, v{SSQ}")
            a.nop(2)
            a(f"v_permlane32_swap_b32 v{SSQ}, v{SSQ+1}")
            a(f"v_add_f32 v{SSQ}, v{SSQ}, v{SSQ+1}")
            a(f"ds_write_b32 v{U[1]}, v{SSQ} offset:{ST_RS}")
        a.nop(2)
        a("s_mov_b64 exec, 0xffff")
        a(f"ds_write_b32 v{U[0]}, v{CSD}")
        a(f"ds_write_b32 v{U[0]}, v{CSD+1} offset:64")
        a(f"ds_write_b32 v{U[1]}, v{RSD} offset:{ST_SUM}")
        a(f"ds_write_b32 v{U[1]}, v{RSD+1} offset:{ST_SUM+64}")
        a("s_mov_b64 exec, -1")
        a("s_waitcnt lgkmcnt(0)")
        a("s_barrier")
        nonce_get(CV, tags["non"])
        a(f"s_cmp_eq_u32 s{sNG}, 15")
        a("s_cbranch_scc1 L_A_dummy")
    def blk(dst, x, y, xo):
        a(f"s_xor_b32 s{dst}, s{y}, {xo}")
        a(f"s_lshl_b32 s{sT+7}, s{x}, 1")
        a(f"s_add_u32 s{dst}, s{dst}, s{sT+7}")
    sH, sQB, sKV = sA, sB, sC
    def p3_ids():
        a(f"s_lshl_b32 s{sH}, s{sXCD}, 2")
        a(f"s_and_b32 s{sT}, s{sIDX}, 3")
        a(f"s_add_u32 s{sH}, s{sH}, s{sT}")
        a(f"s_lshr_b32 s{sQB}, s{sIDX}, 2")
        a(f"s_mul_i32 s{sKV}, s{sH}, {16*CHUNK}")
    VA = Cnt(a, "vmcnt", 63); tag2 = {}
    def capture(fn):
        n0 = len(a.lines); fn(); L = a.lines[n0:]; del a.lines[n0:]
        return L
    def atoms(lines):
        out = []; cur = None
        for l in lines:
            t = l.strip()
            if t == "; {": cur = []
            elif t == "; }": out.append(cur); cur = None
            elif cur is not None: cur.append(l)
            else: out.append([l])
        return out
    def marker_prefill():
        a.c("{")
        p3_ids()
        a("v_mov_b32 v12, -1\nv_mov_b32 v13, -1\nv_mov_b32 v14, -1\nv_mov_b32 v15, -1")
        a(f"s_lshr_b32 s{sT+1}, s{sH}, 1")
        a(f"s_mul_i32 s{sT+1}, s{sT+1}, {5*256}")
        a(f"s_add_u32 s{sT+1}, s{sT+1}, {WS_O}")
        a(f"s_lshl_b32 s{sT+3}, s{sQB}, 4")
        a(f"s_lshl_b32 s{sT+4}, s{sW}, 2")
        a(f"s_add_u32 s{sT+3}, s{sT+3}, s{sT+4}")
        a(f"s_mul_i32 s{sT+3}, s{sT+3}, 20480")
        a(f"s_add_u32 s{sT+1}, s{sT+1}, s{sT+3}")
        a(f"s_and_b32 s{sT+3}, s{sH}, 1")
        a(f"s_mul_i32 s{sT+2}, s{sT+3}, {3*256}")
        a(f"s_add_u32 s{sT+2}, s{sT+2}, s{sT+1}")
        a(f"s_lshl_b32 s{sT+3}, s{sT+3}, 3")
        a(f"s_add_u32 s{sT+1}, s{sT+1}, s{sT+3}")
        a("v_lshrrev_b32 v9, 4, v2")
        a("v_mul_u32_u24 v9, 20480, v9")
        a("v_and_b32 v10, 15, v2")
        a("v_lshl_add_u32 v9, v10, 4, v9")
        a(f"buffer_store_dwordx4 v[12:15], v9, {WS_}, s{sT+2} offen{SC}")
        a(f"buffer_store_dwordx4 v[12:15], v9, {WS_}, s{sT+2} offen offset:256{SC}")
        a(f"buffer_store_dwordx2 v[12:13], v9, {WS_}, s{sT+1} offen offset:512{SC}")
        a.c("}")
    NSEG = 2
    BD = 5
    def a_segments(body, nhead):
        if "prA" in exp: a(f"s_setprio {opt('prA', 3)}")
        a.lines += body[:nhead]
        at = atoms(body[nhead:] + (capture(marker_prefill) if "mke" not in exp else ["  ; {"] + capture(p3_ids) + ["  ; }"]))
        tot = sum(len(x) for x in at)
        done = 0
        for seg in range(NSEG):
            while at and done < (opt("sf", 50) / 100.0 if seg == 0 else 1.0) * tot - 1e-9:
                done += len(at[0]); a.lines += at.pop(0)
            if seg == 0: a("s_waitcnt lgkmcnt(0)")
            ST("F", 1 + 3 * seg)
            a("s_barrier")
            ST("F", 3 + 3 * seg)
        a("s_branch L_A_ld")

    if "mke" in exp: marker_prefill()
    a(f"s_cmp_ge_u32 s{sNT}, 10")
    a("s_cbranch_scc1 L_p1_vtype")
    p1_loop(False)
    NM = [T[0], T[1]]; RS = [T[2], T[3]]
    CSV = [[T[8] + (ni * 4 + g) * 4 for g in range(4)] for ni in range(2)]
    K16 = [8, 9]; K8 = [20, 21]; FL = [12, 13]
    a(f"s_cmp_lt_u32 s{sNT}, 5")
    a(f"s_cselect_b32 s{sB}, {f32bits(QSCALE):#x}, 1.0")
    a(f"s_cselect_b32 s{sC}, 0, 5")
    a(f"s_mov_b32 s{sT+6}, {WS_KV}")
    a(f"s_cselect_b32 s{sT+6}, {WS_Q}, s{sT+6}")
    a(f"s_sub_u32 s{sC}, s{sNT}, s{sC}")
    a(f"s_lshl_b32 s{sC}, s{sC}, 7")
    for mi in range(2):
        blk(sA, sWM, sWN, mi)
        a(f"s_lshl_b32 s{sA}, s{sA}, 5")
        a(f"v_add_u32 v11, s{sA}, v3")
        a(f"v_lshlrev_b32 v{22+mi}, 2, v11")
        a(f"v_add_u32 v{22+mi}, {STB}, v{22+mi}")
        a(f"v_lshlrev_b32 v{K16[mi]}, 4, v11")
        a(f"v_lshlrev_b32 v{K8[mi]}, 3, v11")
    for ni in range(2):
        blk(sA, sWN, sWM, ni)
        a(f"s_lshl_b32 s{sA}, s{sA}, 5")
        a(f"v_lshl_add_u32 v10, v4, 2, s{sA}")
        a(f"v_lshlrev_b32 v10, 2, v10")
        a(f"v_add_u32 v10, {STB}, v10")
        for g in range(4):
            a(f"ds_read_b128 {vr(CSV[ni][g],4)}, v10 offset:{ST_CS+g*32}")
        a(f"s_add_u32 s{sA}, s{sA}, s{sC}")
        a(f"v_lshl_add_u32 v{FL[ni]}, v4, 3, s{sA}")
    a(f"s_mul_i32 s{sA}, s{sMT}, {CHUNK}")
    a(f"s_add_u32 s{sA}, s{sA}, s{sT+6}")
    a(f"s_add_u32 s{sC}, s{sA}, {16*CHUNK}")
    a(f"s_mov_b32 s{sPKc}, {16*CHUNK}")
    a("s_barrier")
    ST("A", 3)
    n0 = len(a.lines)
    for mi in range(2):
        a(f"ds_read_b32 v{NM[mi]}, v{22+mi} offset:{ST_NM}")
        a(f"ds_read_b32 v{RS[mi]}, v{22+mi} offset:{ST_RS}")
    a("s_waitcnt lgkmcnt(0)")
    for mi in range(2): a(f"v_mul_f32 v{RS[mi]}, s{sB}, v{RS[mi]}")
    nhead = len(a.lines) - n0
    for ni in range(2):
        for gp in range(2):
            a(f"v_add_u32 v14, {16*gp}, v{FL[ni]}")
            a(f"v_mul_u32_u24 v15, 1639, v14")
            a(f"v_lshrrev_b32 v15, 16, v15")
            a(f"v_mul_u32_u24 v16, 40, v15")
            a(f"v_sub_u32 v16, v14, v16")
            a(f"v_lshrrev_b32 v16, 3, v16")
            a(f"v_cmp_lt_u32 vcc, 2, v16")
            a(f"v_cmp_eq_u32 s[{sM}:{sM+1}], 2, v16")
            a(f"v_lshlrev_b32 v15, 1, v15")
            a(f"v_cndmask_b32 v14, 0, 1, vcc")
            a(f"v_add_u32 v15, v15, v14")
            a(f"v_mul_u32_u24 v14, 3, v14")
            a(f"v_sub_u32 v16, v16, v14")
            a(f"v_mul_lo_u32 v15, v15, s{sPKc}")
            a(f"v_lshl_add_u32 v15, v16, 11, v15")
            for mi in range(2):
                d = ACC + (mi * 2 + ni) * 16
                for g in (2 * gp, 2 * gp + 1):
                    for e in range(4):
                        a(f"v_fmac_f32 v{d+4*g+e}, v{CSV[ni][g]+e}, v{NM[mi]}")
                q = d + 8 * gp
                for e in range(8): a(f"v_mul_f32 v{q+e}, v{q+e}, v{RS[mi]}")
                a(f"v_cvt_pk_bf16_f32 v{q}, v{q}, v{q+1}")
                a(f"v_cvt_pk_bf16_f32 v{q+1}, v{q+2}, v{q+3}")
                a(f"v_cvt_pk_bf16_f32 v{q+2}, v{q+4}, v{q+5}")
                a(f"v_cvt_pk_bf16_f32 v{q+3}, v{q+6}, v{q+7}")
                a(f"v_add_u32 v17, v15, v{K16[mi]}")
                a(f"v_add_u32 v18, v15, v{K8[mi]}")
                a(f"v_permlane32_swap_b32 v{q}, v{q+2}")
                a(f"v_permlane32_swap_b32 v{q+1}, v{q+3}")
                a.c("{")
                a(f"s_andn2_b64 exec, exec, s[{sM}:{sM+1}]")
                a(f"buffer_store_dwordx4 {vr(q,4)}, v17, {WS_}, s{sA} offen{SC}")
                a(f"s_mov_b64 exec, s[{sM}:{sM+1}]")
                lab = a.newlabel("L_qk_ns")
                a(f"s_cbranch_execz {lab}")
                a(f"buffer_store_dwordx2 {vr(q,2)}, v18, {WS_}, s{sA} offen{SC}")
                a(f"buffer_store_dwordx2 {vr(q+2,2)}, v18, {WS_}, s{sC} offen{SC}")
                a.label(lab)
                a("s_mov_b64 exec, -1")
                a.c("}")
    body = a.lines[n0:]; del a.lines[n0:]
    a_segments(body, nhead)
    a.label("L_p1_vtype")
    p1_loop(True)
    CSL = [40, 41]; VB = [42, 43]
    NMV = [[T[8] + g * 4 for g in range(4)], [8 + g * 4 for g in range(4)]]
    RSV = [[T[24] + g * 4 for g in range(4)], [24 + g * 4 for g in range(4)]]
    a(f"s_sub_u32 s{sC}, s{sNT}, 10")
    a(f"s_lshl_b32 s{sC}, s{sC}, 7")
    a(f"s_mov_b32 s{sB}, {16*CHUNK}")
    for ni in range(2):
        blk(sA, sWN, sWM, ni)
        a(f"s_lshl_b32 s{sA}, s{sA}, 5")
        a(f"v_add_u32 v44, s{sA}, v3")
        a(f"v_lshlrev_b32 v45, 2, v44")
        a(f"v_add_u32 v45, {STB}, v45")
        a(f"ds_read_b32 v{CSL[ni]}, v45 offset:{ST_CS}")
        a(f"v_add_u32 v44, s{sC}, v44")
        a(f"v_mul_u32_u24 v45, 3277, v44")
        a(f"v_lshrrev_b32 v45, 16, v45")
        a(f"v_mul_u32_u24 v46, 20, v45")
        a(f"v_sub_u32 v46, v44, v46")
        a(f"v_mul_lo_u32 v45, v45, s{sB}")
        a(f"v_lshl_add_u32 v45, v46, 4, v45")
        a(f"v_mul_u32_u24 v46, 320, v4")
        a(f"v_add_u32 v{VB[ni]}, v45, v46")
    sVo = [sB, sC]
    for mi in range(2):
        blk(sA, sWM, sWN, mi)
        a(f"s_lshl_b32 s{sT}, s{sA}, 7")
        a(f"s_add_u32 s{sT}, s{sT}, {STB}")
        a(f"v_lshl_add_u32 v{47+mi}, v4, 4, s{sT}")
        a(f"s_mul_i32 s{sA}, s{sA}, {4*320}")
        a(f"s_mul_i32 s{sT}, s{sMT}, {CHUNK}")
        a(f"s_add_u32 s{sA}, s{sA}, s{sT}")
        a(f"s_add_u32 s{sVo[mi]}, s{sA}, {WS_KV+5120}")
    a("s_barrier")
    ST("A", 3)
    n0 = len(a.lines)
    for mi in range(2):
        for g in range(4):
            a(f"ds_read_b128 {vr(NMV[mi][g],4)}, v{47+mi} offset:{ST_NM+g*32}")
            a(f"ds_read_b128 {vr(RSV[mi][g],4)}, v{47+mi} offset:{ST_RS+g*32}")
        if mi == 0: a("s_waitcnt lgkmcnt(7)")
    a("s_waitcnt lgkmcnt(8)")
    nhead = len(a.lines) - n0
    for mi in range(2):
        if mi == 1: a("s_waitcnt lgkmcnt(0)")
        for ni in range(2):
            d = ACC + (mi * 2 + ni) * 16
            for gp in range(2):
                for g in (2 * gp, 2 * gp + 1):
                    for e in range(4): a(f"v_fmac_f32 v{d+4*g+e}, v{NMV[mi][g]+e}, v{CSL[ni]}")
                for g in (2 * gp, 2 * gp + 1):
                    for e in range(4): a(f"v_mul_f32 v{d+4*g+e}, v{d+4*g+e}, v{RSV[mi][g]+e}")
                q = d + 8 * gp
                a(f"v_cvt_pk_bf16_f32 v{q}, v{q}, v{q+1}")
                a(f"v_cvt_pk_bf16_f32 v{q+1}, v{q+2}, v{q+3}")
                a(f"v_cvt_pk_bf16_f32 v{q+2}, v{q+4}, v{q+5}")
                a(f"v_cvt_pk_bf16_f32 v{q+3}, v{q+6}, v{q+7}")
                a.nop(2)
                a(f"v_permlane32_swap_b32 v{q}, v{q+2}")
                a(f"v_permlane32_swap_b32 v{q+1}, v{q+3}")
                a(f"buffer_store_dwordx4 {vr(q,4)}, v{VB[ni]}, {WS_}, s{sVo[mi]} offen offset:{gp*640}{SC}")
    body = a.lines[n0:]; del a.lines[n0:]
    a_segments(body, nhead)
    a.label("L_A_dummy")
    a("s_barrier")
    a_segments([], 0)
    QA, QB = 8, 12
    S = [16, 32]; P = 48; O = 56
    KA = [72, 76]; KB = [80, 84]; V = [[88, 92], [96, 100]]
    AD = [[104 + 3 * z + y for y in range(3)] for z in range(3)]
    T0, T1, T2, T3 = 113, 114, 115, 116
    vM, vOst, vL, vFo, vPP = 117, 118, 120, 121, 122
    PPD = 249
    DACC = 124
    DF = [164 + 28 * k for k in range(3)]
    DPOLL = 248
    NV = 252
    sDX, sDW, sFin, sLoop, sFp = sR, sR + 2, sR + 4, sR + 5, sR + 6
    def p3_setup():
        a(f"v_lshlrev_b32 v{vL}, 4, v2")
        a(f"s_lshl_b32 s{sT}, s{sQB}, 8")
        a(f"s_lshl_b32 s{sT+1}, s{sW}, 5")
        a(f"s_add_u32 s{sT}, s{sT}, s{sT+1}")
        a(f"v_add_u32 v5, s{sT}, v3")
        a(f"v_lshrrev_b32 v6, 4, v5")
        a(f"v_mul_u32_u24 v{vOst}, 20480, v6")
        a(f"v_and_b32 v6, 15, v5")
        a(f"v_lshl_add_u32 v{vOst}, v6, 4, v{vOst}")
        a(f"v_lshl_add_u32 v{vOst+1}, v4, 8, v{vOst}")
        a(f"s_lshr_b32 s{sT}, s{sW}, 2")
        a(f"s_mul_i32 s{sT}, s{sT}, 5120")
        a(f"s_add_u32 s{sT}, s{sT}, {QOFF}")
        a(f"v_and_b32 v5, 127, v5")
        a(f"v_lshl_add_u32 v6, v5, 4, s{sT}")
        a(f"v_lshl_add_u32 v6, v4, 11, v6")
        a(f"v_lshl_add_u32 v7, v5, 3, s{sT}")
        a("v_and_b32 v5, 0x13, v3")
        a(f"v_and_b32 v{T0}, 4, v3")
        a(f"v_lshl_or_b32 v5, v{T0}, 1, v5")
        a(f"v_and_b32 v{T0}, 8, v3")
        a(f"v_lshrrev_b32 v{T0}, 1, v{T0}")
        a(f"v_or_b32 v5, v5, v{T0}")
        a(f"v_lshlrev_b32 v{AD[0][0]}, 4, v5")
        a(f"v_lshl_add_u32 v{AD[0][0]}, v4, 11, v{AD[0][0]}")
        a(f"v_lshlrev_b32 v{AD[0][1]}, 3, v5")
        a(f"v_add_u32 v{AD[0][1]}, 4096, v{AD[0][1]}")
        a(f"v_mul_u32_u24 v{AD[0][2]}, 320, v4")
        a(f"v_lshl_add_u32 v{AD[0][2]}, v3, 4, v{AD[0][2]}")
        a(f"v_add_u32 v{AD[0][2]}, 5120, v{AD[0][2]}")
        for z in (1, 2):
            for y in range(3): a(f"v_add_u32 v{AD[z][y]}, {6*z*CHUNK}, v{AD[0][y]}")
        for r in range(4): a(f"v_mov_b32 v{QB+r}, 0")
        for r in range(16): a(f"v_mov_b32 v{O+r}, 0")
        a("v_cmp_eq_u32 vcc, 20, v3")
        a(f"v_mov_b32 v{T0}, 0x3f803f80")
        a.nop(1)
        a(f"v_cndmask_b32 v{T1}, 0, v{T0}, vcc")
        for b in range(2):
            a(f"v_mov_b32 v{KB[b]+2}, 0x3f80")
            if "kbm" in exp:
                a(f"v_cndmask_b32 v{KB[b]+2}, 0, v{KB[b]+2}, s[{sLO}:{sLO+1}]")
                a(f"v_mov_b32 v{KB[b]}, 0\nv_mov_b32 v{KB[b]+1}, 0")
            a(f"v_mov_b32 v{KB[b]+3}, 0")
            for j in range(2):
                for r in range(4): a(f"v_mov_b32 v{V[b][j]+r}, v{T1}")
        for r in range(8): a(f"v_mov_b32 v{P+r}, 0")
        for r in range(40): a(f"v_mov_b32 v{DACC+r}, 0")
        a(f"s_and_b32 s{sT}, s{sXCD}, 3")
        a(f"s_lshl_b32 s{sT+1}, s{sQB}, 2")
        a(f"s_add_u32 s{sT}, s{sT}, s{sT+1}")
        a(f"s_lshl_b32 s{sT+4}, s{sT}, 1")
        a(f"s_lshl_b32 s{sT}, s{sT}, 2")
        a(f"s_lshr_b32 s{sT+2}, s{sXCD}, 2")
        a(f"s_lshl_b32 s{sT+2}, s{sT+2}, 2")
        a(f"s_and_b32 s{sT+3}, s{sIDX}, 3")
        a(f"s_add_u32 s{sT+2}, s{sT+2}, s{sT+3}")
        a(f"s_mul_i32 s{sFin}, s{sT}, {16*1280}")
        a(f"s_mul_i32 s{sT+3}, s{sT+2}, 160")
        a(f"s_add_u32 s{sFin}, s{sFin}, s{sT+3}")
        a(f"s_and_b32 s{sT+3}, s{sW}, 1")
        a(f"s_add_u32 s{sT+4}, s{sT+4}, s{sT+3}")
        a(f"s_lshl_b32 s{sT+3}, s{sT+3}, 1")
        a(f"s_add_u32 s{sT}, s{sT}, s{sT+3}")
        a(f"s_lshr_b32 s{sT+3}, s{sW}, 1")
        a(f"s_lshl_b32 s{sT+5}, s{sT+3}, 10")
        a(f"s_mul_i32 s{sDX}, s{sT}, 49152")
        a(f"s_add_u32 s{sDX}, s{sDX}, s{sT+5}")
        a(f"s_add_u32 s{sDX}, s{sDX}, {WS_H}")
        a(f"s_mul_i32 s{sDX+1}, s{sT}, 20480")
        a(f"s_add_u32 s{sDX+1}, s{sDX+1}, s{sT+5}")
        a(f"s_add_u32 s{sDX+1}, s{sDX+1}, {WS_O}")
        a(f"s_mul_i32 s{sDW}, s{sT+3}, {40*1024}")
        a(f"s_mul_i32 s{sT+5}, s{sT+2}, 5120")
        a(f"s_add_u32 s{sDW}, s{sDW}, s{sT+5}")
        a(f"s_add_u32 s{sDW}, s{sDW}, {WS_WP}")
        a(f"s_lshr_b32 s{sT+5}, s{sT+4}, 2")
        a(f"s_lshl_b32 s{sT+5}, s{sT+5}, 3")
        a(f"s_and_b32 s{sT+4}, s{sT+4}, 3")
        a(f"s_add_u32 s{sT+5}, s{sT+5}, s{sT+4}")
        a(f"s_lshl_b32 s{sT+5}, s{sT+5}, 11")
        a(f"s_add_u32 s{sFp}, s{sT+5}, {WS_FL2 + 4*2048}")
        a("v_and_b32 v5, 15, v2")
        a(f"v_lshlrev_b32 v{vFo}, 7, v5")
        a(f"s_mul_i32 s{sT+5}, s{sT+2}, 5")
        a(f"s_lshr_b32 s{sT+5}, s{sT+5}, 2")
        a("v_lshrrev_b32 v5, 1, v2")
        a("v_mul_u32_u24 v5, 10, v5")
        a(f"v_and_b32 v{vPP}, 1, v2")
        a(f"v_add3_u32 v{vPP}, v{vPP}, v5, s{sT+5}")
        a(f"v_lshlrev_b32 v{vPP}, 7, v{vPP}")
    a.label("L_A_ld")
    a("v_lshlrev_b32 v8, 4, v2")
    def kv_dma(n0, js=range(10)):
        for j in js:
            a(f"s_lshl_b32 s{sT}, s{sW}, 10")
            a(f"s_add_u32 s{sT}, s{sT}, {(n0 + 4*j)*1024}")
            a(f"s_add_u32 m0, s{sT}, {ROT*CHUNK}")
            a(f"s_add_u32 s{sT}, s{sT}, s{sKV}")
            a(f"s_add_u32 s{sT}, s{sT}, {WS_KV}")
            a(f"buffer_load_dwordx4 v8, {WS_}, s{sT} offen lds")
        VA.op(len(js))
    if "prA" in exp: a("s_setprio 0")
    VA.issued = VA.done = 0
    for st in range(NSEG, 9):
        FST = NSEG + opt("fd", 1)
        if st == FST: a(f"s_waitcnt vmcnt({VA.issued})")
        if st >= 5: ST("H", 2 * (st - 5) + 1)
        if st + 1 > BD: VA.need(tag2[st + 1])
        if st == 8: VA.need(tkvq)
        if st >= 5: ST("H", 2 * (st - 5) + 2)
        a("s_barrier")
        if st == FST:
            lab = a.newlabel("L_f1add")
            a(f"s_cmp_lg_u32 s{sW}, 0")
            a(f"s_cbranch_scc1 {lab}")
            a(f"s_lshl_b32 s{sT}, s2, 7")
            a(f"s_add_u32 s{sT}, s{sT}, {WS_FL1}")
            a("v_mov_b32 v9, 0")
            a(f"v_mov_b32 v10, s{sNon}")
            a("s_mov_b64 exec, 1")
            a(f"buffer_store_dword v10, v9, {WS_}, s{sT} offen{SC}")
            a("s_mov_b64 exec, -1")
            a.label(lab)
        if BD < st + 4 <= 9: tag2[st + 4] = issue2(st + 4, VA)
        PP0 = opt("ppf", 2)
        for t in range(4):
            if st == PP0 + t // 2:
                a(f"buffer_load_dwordx4 {vr(PFD,4)}, v{vPK[t]}, {PK_}, 0 offen"); VA.op()
        if st == 6:
            pack_ids(); tpk = pack_issue(VA)
        if st == 7:
            for j in range(3):
                a(f"s_add_u32 s{sT}, s{sW}, {4*j}")
                a(f"s_min_u32 s{sT}, s{sT}, 9")
                a(f"s_lshl_b32 s{sT+1}, s{sT}, 10")
                a(f"s_add_u32 m0, s{sT+1}, {QOFF}")
                a(f"s_cmp_ge_u32 s{sT}, 5")
                a(f"s_cselect_b32 s{sT}, 5120, 0")
                a(f"s_add_u32 s{sT}, s{sT}, s{sT+1}")
                a(f"s_mul_i32 s{sT+1}, s{sQB}, {2*CHUNK}")
                a(f"s_add_u32 s{sT}, s{sT}, s{sT+1}")
                a(f"s_add_u32 s{sT}, s{sT}, s{sKV}")
                a(f"s_add_u32 s{sT}, s{sT}, {WS_Q}")
                a(f"buffer_load_dwordx4 v8, {WS_}, s{sT} offen lds")
            VA.op(3)
            kv_dma(0)
            tkvq = VA.issued - 1
        if st == 6: p3_setup()
    a("s_branch L_p3_A")

    a.label("L_B")
    for j in range(3): a(f"s_add_u32 s{sPB[j]}, s{sPB[j]}, s3\ns_add_u32 s{sPB[j]}, s{sPB[j]}, s3")
    sWo = sR + 4
    vWv = 7
    a("v_lshrrev_b32 v9, 4, v2")
    a(f"v_mul_u32_u24 v{vWv}, 3840, v9")
    a("v_lshrrev_b32 v10, 2, v2")
    a("v_and_b32 v10, 3, v10")
    a("v_xor_b32 v10, v10, v9")
    a(f"v_lshl_add_u32 v{vWv}, v10, 6, v{vWv}")
    a("v_and_b32 v10, 3, v2")
    a(f"v_lshl_add_u32 v{vWv}, v10, 4, v{vWv}")
    a(f"s_mul_i32 s{sWo}, s{sLW}, {16*3840}")
    a(f"s_lshl_b32 s{sT}, s{sNT}, 8")
    a(f"s_add_u32 s{sWo}, s{sWo}, s{sT}")
    VM = Cnt(a, "vmcnt", 63)
    def issue1(st):
        base = (st % 4) * 16384
        for j in range(4):
            a(f"s_add_u32 m0, s{sLd}, {base + j*1024}")
            a(f"s_add_u32 s{sT}, s{sXo}, {j*8*1280 + st*128}")
            a(f"buffer_load_dwordx4 v{vXO if j & 1 else vXE}, {X_}, s{sT} offen lds")
            a(f"s_add_u32 m0, s{sLd}, {base + 65536 + j*1024}")
            a(f"s_add_u32 s{sT}, s{sWo}, {(st*64 + j*4)*3840}")
            a(f"buffer_load_dwordx4 v{vWv}, {WQ_}, s{sT} offen lds")
        return VM.op(8)
    tag1 = {}
    SA = [12 + j for j in range(4)]
    SD = 20; LS = [36, 37]; LU = [40, 41, 42, 43]
    GX = [8, 12]
    GW = [[16 + (b * 6 + n) * 4 for n in range(6)] for b in range(2)]
    GACC = 64
    gXA = [184 + ks for ks in range(4)]
    gWA = [[200 + z * 3 + p for p in range(3)] for z in range(2)]
    GCS = [160, 164]; NM2, RS2 = 180, 181; POLL = 225
    sCT = [sA, sB, sC]
    a("v_lshrrev_b32 v9, 1, v3")
    a("v_and_b32 v9, 7, v9")
    a(f"v_lshl_add_u32 v10, v3, 7, s{sLd}")
    for ks in range(4):
        a(f"v_or_b32 v11, {2*ks}, v4")
        a(f"v_xor_b32 v11, v11, v9")
        a(f"v_lshl_add_u32 v{gXA[ks]}, v11, 4, v10")
    a("v_lshlrev_b32 v11, 2, v4")
    a("v_xor_b32 v9, v9, v11")
    for j in range(4):
        a(f"v_xor_b32 v11, {j}, v9")
        a(f"v_lshl_add_u32 v{SA[j]}, v11, 4, v10")
    for r in LS: a(f"v_mov_b32 v{r}, 0")
    common_late_setup()
    a("v_lshrrev_b32 v5, 2, v2")
    a("v_and_b32 v5, 3, v5")
    a("v_lshl_add_u32 v5, v4, 3, v5")
    a("v_mul_u32_u24 v5, 192, v5")
    a("v_lshrrev_b32 v6, 4, v2")
    a("v_and_b32 v6, 1, v6")
    a("v_lshl_add_u32 v5, v6, 5, v5")
    a("v_and_b32 v6, 3, v2")
    a("v_lshl_add_u32 v5, v6, 3, v5")
    for p in range(3):
        a(f"s_add_u32 s{sCT[p]}, s{sLW}, {p}")
        for _ in range(2):
            a(f"s_cmp_ge_u32 s{sCT[p]}, 3")
            a(f"s_cselect_b32 s{sT}, 3, 0")
            a(f"s_sub_u32 s{sCT[p]}, s{sCT[p]}, s{sT}")
        a(f"s_lshl_b32 s{sT}, s{sCT[p]}, 6")
        a(f"s_add_u32 s{sT}, s{sT}, 65536")
        a(f"v_add_u32 v{gWA[0][p]}, s{sT}, v5")
        a(f"v_add_u32 v{gWA[1][p]}, {114688 - 65536}, v{gWA[0][p]}")
    for r in range(96): a(f"v_mov_b32 v{GACC+r}, 0")
    for r in range(8): a(f"v_mov_b32 v{GCS[0]+r}, 0")
    a(f"v_lshlrev_b32 v{POLL+4}, 7, v2")
    def f1_loads():
        for q in range(4):
            a(f"s_mov_b32 s{sT}, {WS_FL1 + q*8192}")
            a(f"buffer_load_dword v{POLL+q}, v{POLL+4}, {WS_}, s{sT} offen{SC}")
    def ssq_ops():
        ops = []
        for j in range(4):
            ops.append(f"s_waitcnt lgkmcnt({3-j})")
            for r in range(4):
                x = SD + 4 * j + r; u0, u1 = LU[2 * (r & 1)], LU[2 * (r & 1) + 1]
                ops += [f"v_lshlrev_b32 v{u0}, 16, v{x}", f"v_and_b32 v{u1}, 0xffff0000, v{x}",
                        f"v_fmac_f32 v{LS[0]}, v{u0}, v{u0}", f"v_fmac_f32 v{LS[1]}, v{u1}, v{u1}"]
        return ops
    if "early" not in exp: a("s_waitcnt vmcnt(0)")
    ST("E", 4)
    tag1[0] = issue1(0)
    ST("E", 5)
    tag1[1] = issue1(1)
    ST("E", 6)
    ST("E", 7)
    VM.need(tag1[0])
    ST("E", 8)
    a("s_barrier")
    ST("E", 9)
    if "prB" in exp: a(f"s_setprio {opt('prB', 1)}")
    issued = 1
    tagB = {}
    PF34 = opt("pfc", 2)
    for st in range(10):
        if not SSQA:
            for j in range(4): a(f"ds_read_b128 {vr(SD+4*j,4)}, v{SA[j]} offset:{(st % 4) * 16384}")
        n0 = len(a.lines)
        while issued < min(st + 3, 9):
            issued += 1; tag1[issued] = issue1(issued)
        if st == PF34 and "pfall" not in exp:
            if "pf3" in exp:
                for j in range(3): a(f"s_add_u32 s{sPB[j]}, s{sPB[j]}, s3")
            else: pf1(VM)
            pf1(VM, adv=0)
        if st == 7: tnon = nonce_issue(VM)
        if st == 7: tagB[0] = issue2(0, VM)
        if st == 8: tagB[1] = issue2(1, VM)
        dma = a.lines[n0:]; del a.lines[n0:]
        ops = ssq_ops() if not SSQA else []
        nd = sum("buffer_load" in l for l in dma)
        per = -(-len(ops) // max(nd - 1, 1)) if nd else len(ops)
        k = 0
        for l in dma:
            a.lines.append(l)
            if "buffer_load" in l:
                k += 1
                if k >= 2:
                    for o in ops[:per]: a(o)
                    ops = ops[per:]
        for o in ops: a(o)
        if st == 8: nonce_get(VM, tnon)
        if st < 9:
            if 4 <= st < 9: ST("G", 2 * (st - 4) + 1)
            VM.need(tag1[st + 1])
            if 4 <= st < 9: ST("G", 2 * (st - 4) + 2)
            a("s_barrier")
    a(f"v_add_f32 v{RS2}, v{LS[0]}, v{LS[1]}")
    a(f"v_mov_b32 v{LS[1]}, v{RS2}")
    a(f"s_lshl_b32 s{sT}, s{sLW}, 7")
    a(f"s_add_u32 s{sT}, s{sT}, {STB}")
    a(f"v_lshl_add_u32 v10, v3, 2, s{sT}")
    a(f"v_permlane32_swap_b32 v{RS2}, v{LS[1]}")
    a(f"v_add_f32 v{RS2}, v{RS2}, v{LS[1]}")
    a("s_barrier")
    a(f"ds_read_b32 v{NM2}, v10 offset:{ST_SUM}")
    if SSQA: a(f"ds_read_b32 v{RS2}, v10 offset:{ST_RS}")
    a("s_waitcnt lgkmcnt(0)")
    ln_rowmath(a, NM2, RS2, LU[1], sT)
    a.nop(1)
    a(f"ds_write_b32 v10, v{NM2} offset:{ST_NM}")
    a(f"ds_write_b32 v10, v{RS2} offset:{ST_RS}")
    a(f"v_mul_f32 v{RS2}, v{RS2}, v{RS2}")
    tagB[2] = issue2(2, VM)
    VM.need(tagB[0])
    a("s_waitcnt lgkmcnt(0)")
    a("s_barrier")
    if "noprioB" not in exp: a("s_setprio 2")
    delay("B")
    ST("F", 10)
    ST("A", 4); ST("C", 1)
    L2 = Cnt(a, "lgkmcnt", 15)
    tg2 = [{}, {}]
    def emit2(lst, buf):
        for key, l in lst:
            if "lessW" in exp and key in (4, 5) and key in tg2[buf]: continue
            a(l); tg2[buf][key] = L2.op()
    def rd2(st, ks, buf):
        wa = WA[st % 4]; z = 1 if wa >= 114688 else 0; wb = wa - (114688 if z else 65536)
        L = [("X", f"ds_read_b128 {vr(GX[buf],4)}, v{gXA[ks]} offset:{XS[st % 4]}")]
        for n in range(6):
            mat, p = n & 1, n >> 1
            for h in range(2):
                L.append((n, f"ds_read_b64_tr_b16 {vr(GW[buf][n]+2*h,2)}, v{gWA[z][p]} offset:{wb + mat*12288 + (16*ks+4*h)*192}"))
        return L
    emit2(rd2(0, 0, 0), 0)
    def units_of(fn):
        out = []; cur = []
        for l in capture(fn):
            cur.append(l)
            if "buffer_load" in l: out.append(cur); cur = []
        return out
    pend = units_of(lambda: issue2(3, VM, "butlast"))
    for st in range(10):
        for ks in range(4):
            buf = (st * 4 + ks) & 1
            if ks < 3: nxt = rd2(st, ks + 1, buf ^ 1)
            elif st < 9: nxt = rd2(st + 1, 0, buf ^ 1)
            else: nxt = []
            if ks == 3 and st < 9:
                if st < 3: ST("F", 1 + 3 * st)
                assert not pend
                if st + 1 <= BD: VM.need(tagB[st + 1])
                L2.need(L2.issued - 1)
                if st < 3: ST("F", 2 + 3 * st)
                if st >= 5: ST("H", 2 * (st - 5) + 1)
                a("s_barrier")
                if st >= 5: ST("H", 2 * (st - 5) + 2)
                if st < 3: ST("F", 3 + 3 * st)
                ST("C", st + 2)
                if st + 4 <= BD:
                    def dm():
                        if st == 0: tagB[3] = issue2(3, VM, "last")
                        tagB[st + 4] = issue2(st + 4, VM)
                    pend = units_of(dm)
            if st == 6 and ks == 3:
                lab = a.newlabel("L_f1p")
                a(f"s_cmp_lg_u32 s{sW}, 4")
                a(f"s_cbranch_scc1 {lab}")
                f1_loads()
                a.label(lab)
            if st == 7 and ks == 2:
                lab = a.newlabel("L_f1")
                a(f"s_cmp_lg_u32 s{sW}, 4")
                a(f"s_cbranch_scc1 {lab}_ok")
                a(f"s_mov_b32 s{sT+1}, 0")
                a.label(lab)
                a("s_waitcnt vmcnt(0)")
                for q in range(4): a(f"v_xor_b32 v{POLL+q}, s{sNon}, v{POLL+q}")
                a(f"v_or3_b32 v{POLL}, v{POLL}, v{POLL+1}, v{POLL+2}")
                a(f"v_or_b32 v{POLL}, v{POLL}, v{POLL+3}")
                a(f"v_cmp_ne_u32 vcc, 0, v{POLL}")
                a(f"s_add_u32 s{sT+1}, s{sT+1}, 1")
                a.nop(2)
                a("s_cmp_eq_u64 vcc, 0")
                a(f"s_cbranch_scc1 {lab}_ok")
                a(f"s_cmp_ge_u32 s{sT+1}, 0x20000")
                a(f"s_cbranch_scc1 {lab}_ok")
                a("s_sleep 8")
                f1_loads()
                a(f"s_branch {lab}")
                a.label(f"{lab}_ok")
            for n in range(6):
                d = GACC + n * 16
                L2.need(tg2[buf][n])
                a(f"{M32} {vr(d,16)}, {vr(GW[buf][n],4)}, {vr(GX[buf],4)}, {vr(d,16)}")
                emit2(nxt[0:3] if n == 0 else nxt[1 + n * 2: 3 + n * 2], buf ^ 1)
                if pend and n in (1, 3, 5): a.lines += pend.pop(0)
                if n >= 4 and "nocs2" not in exp: a(f"{M16} {vr(GCS[n-4],4)}, {vr(SEL,4)}, {vr(GW[buf][n-4],4)}, {vr(GCS[n-4],4)}")
    ST("A", 5); ST("C", 11)
    a(f"s_lshl_b32 s{sT}, s{sCT[0]}, 7")
    a(f"s_add_u32 s{sT}, s{sT}, {CSA}")
    a(f"v_lshl_add_u32 v5, v3, 2, s{sT}")
    a(f"s_lshl_b32 s{sR+4}, s{sMT}, 2")
    a(f"s_add_u32 s{sR+4}, s{sR+4}, s{sLW}")
    a(f"s_mul_i32 s{sR+4}, s{sR+4}, {2*49152}")
    a(f"s_mul_i32 s{sT}, s{sNG}, {12*256}")
    a(f"s_add_u32 s{sR+4}, s{sR+4}, s{sT}")
    a(f"s_add_u32 s{sR+4}, s{sR+4}, {WS_H}")
    a("s_mov_b64 exec, 0xffff")
    for mat in range(2):
        a(f"ds_write_b32 v5, v{GCS[mat]} offset:{mat*384}")
        a(f"ds_write_b32 v5, v{GCS[mat]+1} offset:{mat*384+64}")
    a("s_mov_b64 exec, -1")
    a("v_lshrrev_b32 v6, 4, v3")
    a("v_mul_u32_u24 v6, 49152, v6")
    a("v_lshl_add_u32 v6, v4, 8, v6")
    a("v_and_b32 v7, 15, v3")
    a("v_lshl_add_u32 v6, v7, 4, v6")
    a("s_waitcnt lgkmcnt(0)")
    ST("H", 9)
    a("s_barrier")
    ST("H", 10)
    a("s_setprio 3")
    CB = [16, 184]
    def cs_read(p):
        a(f"s_lshl_b32 s{sT}, s{sCT[p]}, 7")
        a(f"s_add_u32 s{sT}, s{sT}, {CSA}")
        a(f"v_lshl_add_u32 v5, v4, 4, s{sT}")
        for mat in range(2):
            for g in range(4):
                a(f"ds_read_b128 {vr(CB[p&1]+(mat*4+g)*4,4)}, v5 offset:{mat*384+g*32}")
    cs_read(0); cs_read(1)
    for p in range(3):
        cb = CB[p & 1]
        a(f"s_waitcnt lgkmcnt({8 if p < 2 else 0})")
        g = GACC + (2 * p) * 16; u = GACC + (2 * p + 1) * 16
        for e in range(16):
            a(f"v_fmac_f32 v{g+e}, v{cb+e}, v{NM2}")
            a(f"v_fmac_f32 v{u+e}, v{cb+16+e}, v{NM2}")
        if p == 0: cs_read(2)
        a(f"s_lshl_b32 s{sT}, s{sCT[p]}, 10")
        a(f"s_add_u32 s{sT}, s{sT}, s{sR+4}")
        for gp in range(2):
            for e in range(8 * gp, 8 * gp + 8):
                a(f"v_max_f32 v{g+e}, 0, v{g+e}")
                a(f"v_mul_f32 v{u+e}, v{u+e}, v{RS2}")
            for e in range(8 * gp, 8 * gp + 8): a(f"v_mul_f32 v{g+e}, v{g+e}, v{u+e}")
            o = u + 8 * gp
            for q in range(4): a(f"v_cvt_pk_bf16_f32 v{o+q}, v{g+8*gp+2*q}, v{g+8*gp+2*q+1}")
            a.nop(2)
            a(f"v_permlane32_swap_b32 v{o}, v{o+2}")
            a(f"v_permlane32_swap_b32 v{o+1}, v{o+3}")
            a(f"buffer_store_dwordx4 {vr(o,4)}, v6, {WS_}, s{sT} offen offset:{gp*512}{SC}")
    p3_ids()
    ST("A", 6)
    p3_setup()
    ST("H", 11)
    delay("C")
    LG = Cnt(a, "lgkmcnt", 15); VM = Cnt(a, "vmcnt", 63)
    def ad(t, y): return AD[((t // 4 + ROT) % 16) // 6][y]
    def coff(t): return (((t // 4 + ROT) % 16) % 6) * CHUNK
    tagK = {}; tagV0 = {}; tagV1 = {}
    def rdK(t):
        if t > 63: return
        if "halfLDS" in exp and t > 3 and (t & 2):
            tagK[t] = 0; return
        b = t & 1
        a(f"ds_read_b128 {vr(KA[b],4)}, v{ad(t,0)} offset:{coff(t) + (t%4)*512}"); LG.op()
        if "kbm" in exp: a(f"s_mov_b64 exec, s[{sLO}:{sLO+1}]")
        a(f"ds_read_b64 {vr(KB[b],2)}, v{ad(t,1)} offset:{coff(t) + (t%4)*256}"); tagK[t] = LG.op()
        if "kbm" in exp: a("s_mov_b64 exec, -1")
    def rdV(t):
        if t > 63: return
        if "halfLDS" in exp and t > 3 and (t & 2):
            tagV0[t] = tagV1[t] = 0; return
        b = t & 1
        if "noexec" not in exp: a(f"s_mov_b64 exec, s[{sVM}:{sVM+1}]")
        a(f"ds_read_b128 {vr(V[b][0],4)}, v{ad(t,2)} offset:{coff(t) + (t%4)*1280}"); tagV0[t] = LG.op()
        a(f"ds_read_b128 {vr(V[b][1],4)}, v{ad(t,2)} offset:{coff(t) + (t%4)*1280 + 640}"); tagV1[t] = LG.op()
        if "noexec" not in exp: a("s_mov_b64 exec, -1")
    def mf(d, A, B, C): a(f"{M32} {vr(d,16)}, {vr(A,4)}, {vr(B,4)}, {C}")
    def rowmax(s, extra=None):
        a(f"v_max3_f32 v{T0}, v{s}, v{s+1}, v{s+2}")
        a(f"v_max3_f32 v{T1}, v{s+3}, v{s+4}, v{s+5}")
        a(f"v_max3_f32 v{T2}, v{s+6}, v{s+7}, v{s+8}")
        a(f"v_max3_f32 v{T3}, v{s+9}, v{s+10}, v{s+11}")
        a(f"v_max3_f32 v{T0}, v{T0}, v{s+12}, v{s+13}")
        a(f"v_max3_f32 v{T1}, v{T1}, v{s+14}, v{s+15}")
        a(f"v_max3_f32 v{T0}, v{T0}, v{T1}, v{T2}")
        a(f"v_max3_f32 v{T0}, v{T0}, v{T3}, v{extra if extra is not None else T3}")
        a(f"v_mov_b32 v{T1}, v{T0}")
        a.nop(2)
        a(f"v_permlane32_swap_b32 v{T0}, v{T1}")
        a(f"v_max_f32 v{T0}, v{T0}, v{T1}")
    def kvdma(j):
        fg = lambda i: 40 + i if i < 60 else 50 + i if i < 100 else i if i < 110 else 40 + i
        fl = lambda i: (fg(i) + 10 * ROT) % 160
        lo, hi = 8 * j, 8 * j + 7
        brk = next((i for i in range(lo, hi + 1) if fg(i) - fg(lo) != i - lo or fl(i) - fl(lo) != i - lo), None)
        a(f"s_lshl_b32 s{sT+2}, s{sW}, 10")
        a(f"s_add_u32 s{sT}, s{sT+2}, {fg(lo)*1024 + WS_KV}")
        a(f"s_add_u32 s{sT+1}, s{sT+2}, {fl(lo)*1024}")
        if brk is not None:
            a(f"s_add_u32 s{sT+3}, s{sT+2}, {(fg(brk) - (brk - lo))*1024 + WS_KV}")
            a(f"s_add_u32 s{sT+2}, s{sT+2}, {((fl(brk) - (brk - lo))*1024) & 0xffffffff}")
            a(f"s_cmp_ge_u32 s{sW}, {brk - lo}")
            a(f"s_cselect_b32 s{sT}, s{sT+3}, s{sT}")
            a(f"s_cselect_b32 s{sT+1}, s{sT+2}, s{sT+1}")
        a(f"s_mov_b32 m0, s{sT+1}")
        a(f"s_add_u32 s{sT}, s{sT}, s{sKV}")
        a(f"buffer_load_dwordx4 v{vL}, {WS_}, s{sT} offen lds")
        return VM.op()
    tagD = {}
    def d_issue(j, part):
        f = DF[j % 3]
        wstep = 5 + j
        if part < 2:
            a(f"s_add_u32 s{sT}, s{sDW}, {wstep*4*40*1024}")
            for n in range(2 * part, 2 * part + 2): a(f"buffer_load_dwordx4 {vr(f+8+4*n,4)}, v{vL}, {WS_}, s{sT} offen offset:{n*1024}"); VM.op()
        elif part == 2:
            a(f"s_add_u32 s{sT}, s{sDW}, {wstep*4*40*1024 + 4096}")
            a(f"buffer_load_dwordx4 {vr(f+24,4)}, v{vL}, {WS_}, s{sT} offen"); VM.op()
            a(f"s_add_u32 s{sT}, s{sDX}, {j*4096}")
            a(f"buffer_load_dwordx4 {vr(f,4)}, v{vL}, {WS_}, s{sT} offen"); VM.op()
        else:
            a(f"s_add_u32 s{sT}, s{sDX}, {j*4096 + 49152}")
            a(f"buffer_load_dwordx4 {vr(f+4,4)}, v{vL}, {WS_}, s{sT} offen"); tagD[j] = VM.op()
    def d_mfma(j, q):
        f = DF[j % 3]; m, n = q & 1, q >> 1
        acc = DACC + (m * 5 + n) * 4
        a(f"{M16} {vr(acc,4)}, {vr(f+8+4*n,4)}, {vr(f+4*m,4)}, {vr(acc,4)}")
    useD = "noD" not in exp
    DT0 = opt("dt", 20); ND3 = opt("nd", 10)
    dsched = {t: [] for t in range(64)}; lsched = {t: [] for t in range(64)}; dfirst = {}
    for j in range(ND3):
        for q in range(10):
            t = DT0 + (10 * j + q) * (64 - DT0) // (10 * ND3)
            dsched[t].append((j, q)); dfirst.setdefault(j, t)
    for j in range(ND3, min(ND3 + 2, 12)): dfirst[j] = 64 + 2 * (j - ND3)
    for j in range(min(ND3 + 2, 12)):
        lw = dfirst[j] - 8; lx = max(dfirst[j] - 6, DT0 - 5 + (1 if j else 0))
        if j >= 3:
            last_prev = max(t for t in range(64) for (jj, q) in dsched[t] if jj == j - 3)
            lw = max(lw, last_prev + 1); lx = max(lx, lw + 2)
            assert lx + 1 < 64
        assert lw >= 12
        lsched[lw].append((j, 0)); lsched[lw + 1].append((j, 1)); lsched[lx].append((j, 2)); lsched[lx + 1].append((j, 3))
        assert lx + 1 < dfirst[j] - 1, (j, lx, dfirst[j])
    TF2 = DT0 - 5
    assert max(len(v) for v in dsched.values()) <= 3
    def tile(t):
        cur = t & 1; nxt = cur ^ 1
        s = S[cur]; sn = S[nxt]
        ex = lambda r: a(f"v_exp_f32 v{s+r}, v{s+r}")
        cv = lambda p: a(f"v_cvt_pk_bf16_f32 v{P+p}, v{s+2*p}, v{s+2*p+1}")
        dq = dsched[t] if useD else []
        def dm(k):
            if "dburst" in exp:
                ks_ = list(range(len(dq))) if k == opt("dburst", 0) else []
            else:
                ks_ = [k] if k < len(dq) else []
            for kk in ks_:
                j, q = dq[kk]
                if q == 0: VM.need(tagD[j])
                d_mfma(j, q)
        PE = opt("pe", 1)
        if "noprio" not in exp and t % PE == 0: a(f"s_setprio {3 - ((t // PE) % 4)}")
        if t < 63:
            LG.need(tagK[t + 1])
            mf(sn, KA[nxt], QA, "0")
        if "dlate" in exp: ex(0); ex(1); ex(2); dm(0); ex(3)
        elif "dbeg" in exp: ex(0); dm(0); ex(1); ex(2); ex(3)
        else: ex(0); ex(1); dm(0); ex(2); ex(3)
        if t < 63 and not ("noQK2" in exp and (t & 1)): mf(sn, KB[nxt], QB, vr(sn, 16))
        rdK(t + 2)
        if "dlate" in exp: ex(4); ex(5); ex(6); ex(7); dm(1)
        else: ex(4); ex(5); dm(1); ex(6); ex(7)
        cv(0); cv(1)
        if t > 0:
            LG.need(tagV1[t - 1])
            mf(O, V[nxt][1], P + 4, vr(O, 16))
        rdV(t + 1)
        cv(2); cv(3)
        ex(8); ex(9)
        if not ("dlate" in exp or "d4" in exp): dm(2)
        ex(10); ex(11)
        LG.need(tagV0[t])
        mf(O, V[cur][0], P, vr(O, 16))
        if useD:
            for (j, part) in lsched[t]: d_issue(j, part)
        for r in range(12, 16): ex(r)
        if "dlate" in exp or "d4" in exp: dm(2)
        cv(4); cv(5); cv(6); cv(7)
    sWOb = sKV
    def wodma(j):
        a(f"s_add_u32 s{sT}, s{sW}, {8*j}")
        a(f"s_min_u32 s{sT}, s{sT}, 99")
        a(f"s_mul_i32 s{sT+1}, s{sT}, 205")
        a(f"s_lshr_b32 s{sT+1}, s{sT+1}, 10")
        a(f"s_mul_i32 s{sT+1}, s{sT+1}, {40960 - 5*1024}")
        a(f"s_lshl_b32 s{sT}, s{sT}, 10")
        a(f"s_add_u32 m0, s{sT}, {WOB}")
        a(f"s_add_u32 s{sT}, s{sT}, s{sT+1}")
        a(f"s_add_u32 s{sT}, s{sT}, s{sWOb}")
        a(f"buffer_load_dwordx4 v{vL}, {WS_}, s{sT} offen lds")
        return VM.op()
    def p3_prologue():
        ST("A", 7); ST("D", 1)
        LG.issued = LG.done = 0
        a(f"ds_read_b128 {vr(QA,4)}, v6"); LG.op()
        a(f"s_mov_b64 exec, s[{sLO}:{sLO+1}]")
        a(f"ds_read_b64 {vr(QB,2)}, v7 offset:4096"); LG.op()
        a("s_mov_b64 exec, -1")
        rdK(0); rdK(1); rdV(0)
        LG.need(tagK[0])
        mf(S[0], KA[0], QA, "0")
        mf(S[0], KB[0], QB, vr(S[0], 16))
        a.nop(12)
        rowmax(S[0])
        a(f"v_xor_b32 v{T0}, 0x80000000, v{T0}")
        a(f"v_lshrrev_b32 v{T0}, 16, v{T0}")
        a(f"v_cndmask_b32 v{QB+2}, 0, v{T0}, s[{sLO}:{sLO+1}]")
        a.nop(2)
        mf(S[0], KA[0], QA, "0")
        mf(S[0], KB[0], QB, vr(S[0], 16))
        a.nop(12)
    NE = 4
    p3_prologue()
    for t in range(NE): tile(t)
    a("s_branch L_p3_common")
    a.label("L_p3_A")
    p3_prologue()
    for t in range(NE):
        tile(t)
        if t == 0:
            lg = (LG.issued, LG.done)
            n0 = len(a.lines); pack_finish(VA, tpk); LG.done = LG.issued
            a(f"s_lshl_b32 s{sF2}, s3, 7")
            a(f"s_add_u32 s{sF2}, s{sF2}, {WS_FLP}")
            a(f"s_cmp_eq_u32 s{sW}, 3")
            a(f"s_cselect_b32 s{sF2}, {WS_END}, s{sF2}")
        if t == opt("tb0", 2): a("s_barrier")
    a.label("L_p3_common")
    nd = 0; nwo = 0
    TB1 = 12; tkvs = {}
    for t in range(NE, 64):
        if t == NE + 1:
            a(f"s_waitcnt vmcnt({VM.issued})")
            a(f"v_mov_b32 v{T0}, 0")
            a(f"v_mov_b32 v{T1}, s{sNon}")
            a("s_mov_b64 exec, 1")
            a(f"buffer_store_dword v{T1}, v{T0}, {WS_}, s{sF2} offen{SC}"); VM.op()
            a("s_mov_b64 exec, -1")
        def pp_loads():
            for q in range(3):
                if q == 2: a("s_mov_b64 exec, 0xff")
                a(f"s_mov_b32 s{sT}, {WS_FLP + q*320*128}")
                a(f"buffer_load_dword v{PPD+q}, v{vPP}, {WS_}, s{sT} offen{SC}")
            a("s_mov_b64 exec, -1")
        if t == TB1 - 3:
            npp = VM.issued
            lab = a.newlabel("L_pp")
            a(f"s_cmp_lg_u32 s{sW}, 0")
            a(f"s_cbranch_scc1 {lab}")
            a(f"v_mov_b32 v{PPD+2}, s{sNon}")
            pp_loads()
            a.label(lab)
        if t == TB1:
            lab = a.newlabel("L_ppc")
            a(f"s_cmp_lg_u32 s{sW}, 0")
            a(f"s_cbranch_scc1 {lab}_ok")
            a(f"s_mov_b32 s{sT+1}, 0")
            a(f"s_waitcnt vmcnt({VM.issued - npp})")
            a.label(lab)
            for q in range(3): a(f"v_xor_b32 v{T0+q}, s{sNon}, v{PPD+q}")
            a(f"v_or3_b32 v{T0}, v{T0}, v{T1}, v{T2}")
            a(f"v_cmp_ne_u32 vcc, 0, v{T0}")
            a(f"s_add_u32 s{sT+1}, s{sT+1}, 1")
            a.nop(2)
            a("s_cmp_eq_u64 vcc, 0")
            a(f"s_cbranch_scc1 {lab}_ok")
            a(f"s_cmp_ge_u32 s{sT+1}, 0x20000")
            a(f"s_cbranch_scc1 {lab}_ok")
            a("s_sleep 8")
            pp_loads()
            a("s_waitcnt vmcnt(0)")
            a(f"s_branch {lab}")
            a.label(f"{lab}_ok")
            VM.need(tkvs[4])
            a("s_barrier")
        if useD and t == TF2 - 2:
            a(f"buffer_load_dword v{DPOLL}, v{vFo}, {WS_}, s{sFp} offen{SC}"); tpoll = VM.op()
        if useD and t == TF2:
            VM.need(tpoll)
            lab = a.newlabel("L_f2")
            a(f"s_mov_b32 s{sT+1}, 0")
            a.label(lab)
            a(f"v_cmp_ne_u32 vcc, s{sNon}, v{DPOLL}")
            a(f"s_add_u32 s{sT+1}, s{sT+1}, 1")
            a.nop(2)
            a("s_cmp_eq_u64 vcc, 0")
            a(f"s_cbranch_scc1 {lab}_ok")
            a(f"s_cmp_ge_u32 s{sT+1}, 0x20000")
            a(f"s_cbranch_scc1 {lab}_ok")
            a("s_sleep 4")
            a(f"buffer_load_dword v{DPOLL}, v{vFo}, {WS_}, s{sFp} offen{SC}")
            a("s_waitcnt vmcnt(0)")
            a(f"s_branch {lab}")
            a.label(f"{lab}_ok")
        if t == 28:
            VM.need(tkv)
            a("s_barrier")
        if t == 42:
            a("s_barrier")
            a(f"s_lshr_b32 s{sT}, s{sW}, 1")
            a(f"s_mul_i32 s{sT}, s{sT}, {40*1024}")
            a(f"s_sub_u32 s{sWOb}, s{sDW}, s{sT}")
        if t % 8 == 0 and t: ST("D", 1 + t // 8)
        tile(t)
        if nd < 15 and (nd < 12 or t >= TB1):
            tkv = tkvs[nd] = kvdma(nd); nd += 1
        if t >= 42 and nwo < 13:
            two = wodma(nwo); nwo += 1
    LG.need(tagV1[63])
    a.nop(2)
    mf(O, V[1][1], P + 4, vr(O, 16))
    ST("A", 8); ST("D", 9)
    a("s_setprio 0")
    a("v_and_b32 v5, 15, v2")
    a("v_lshrrev_b32 v6, 4, v2")
    a("v_mul_u32_u24 v5, 1280, v5")
    a("v_lshl_add_u32 v5, v6, 3, v5")
    a(f"s_lshl_b32 s{sT}, s{sW}, 5")
    a(f"s_add_u32 s{sFin}, s{sFin}, s{sT}")
    a(f"s_lshr_b32 s{sT}, s{sW}, 1")
    a(f"s_mul_i32 s{sT}, s{sT}, 5120")
    a(f"s_add_u32 s{sT}, s{sT}, {WOB}")
    a(f"v_add_u32 v7, s{sT}, v{vL}")
    a(f"v_add_u32 v6, {3*20480}, v7")
    a.nop(4)
    a(f"v_mov_b32 v{T0}, v{O+8}")
    a(f"v_mov_b32 v{T1}, v{O+8}")
    a(f"v_mov_b32 v{T2}, 0")
    a.nop(1)
    a(f"v_permlane32_swap_b32 v{T0}, v{T1}")
    for r in range(12): a(f"v_fma_f32 v{T2}, v{O+r}, 0, v{T2}")
    a(f"s_mov_b32 s{sT}, 0x71800000")
    a(f"v_add_f32 v{T2}, v{T2}, v{T1}")
    a(f"v_cmp_ngt_f32 vcc, s{sT}, v{T2}")
    a.nop(4)
    a("s_cmp_lg_u64 vcc, 0")
    a("s_cbranch_scc1 L_slow")
    a.label("L_fin")
    a(f"v_rcp_f32 v{T1}, v{T1}")
    a(f"s_lshr_b32 s{sT}, s{sH}, 1")
    a(f"s_mul_i32 s{sT}, s{sT}, {5*256}")
    a(f"s_add_u32 s{sT}, s{sT}, {WS_O}")
    a(f"s_and_b32 s{sT+1}, s{sH}, 1")
    a(f"s_mul_i32 s{sT+2}, s{sT+1}, {3*256}")
    a(f"s_add_u32 s{sT+2}, s{sT+2}, s{sT}")
    a(f"s_lshl_b32 s{sT+1}, s{sT+1}, 3")
    a(f"s_add_u32 s{sT+1}, s{sT+1}, s{sT}")
    for r in range(12): a(f"v_mul_f32 v{O+r}, v{O+r}, v{T1}")
    for p in range(6): a(f"v_cvt_pk_bf16_f32 v{P+p}, v{O+2*p}, v{O+2*p+1}")
    a(f"v_permlane32_swap_b32 v{P}, v{P+2}")
    a(f"v_permlane32_swap_b32 v{P+1}, v{P+3}")
    a(f"buffer_store_dwordx4 {vr(P,4)}, v{vOst+1}, {WS_}, s{sT+2} offen{SC}")
    a(f"s_mov_b64 exec, s[{sLO}:{sLO+1}]")
    a(f"buffer_store_dwordx2 {vr(P+4,2)}, v{vOst}, {WS_}, s{sT+1} offen offset:512{SC}")
    a("s_mov_b64 exec, -1")
    for m in range(4):
        a(f"s_add_u32 s{sT}, s{sFin}, {m*16*1280}")
        a(f"buffer_load_dwordx2 {vr(20+2*m,2)}, v5, {X_}, s{sT} offen")
    VM.op(6)
    ST("A", 9); ST("D", 10)
    if useD:
        for j in range(ND3, 12):
            if j + 2 < 12 and j + 2 not in tagD:
                for part in range(4): d_issue(j + 2, part)
            VM.need(tagD[j])
            for q in range(10): d_mfma(j, q)
    XOF = [72 + 8 * k for k in range(4)] + [36]
    WOF = [164 + 20 * k for k in range(4)] + [44]
    sPend = sLoop
    def xo_load(k):
        for m in range(2):
            a(f"s_add_u32 s{sT}, s{sDX+1}, {k*4096 + m*20480}")
            a(f"buffer_load_dwordx4 {vr(XOF[k]+4*m,4)}, v{vL}, {WS_}, s{sT} offen{SC}")
    if "spec" in exp:
        for k in range(5): xo_load(k)
        a("s_waitcnt vmcnt(10)")
    else:
        VM.need(two)
    a("s_barrier")
    ST("A", 10); ST("D", 11)
    for k in range(5):
        for n in range(5):
            off = k * 20480 + n * 1024
            a(f"ds_read_b128 {vr(WOF[k]+4*n,4)}, v{7 if k < 3 else 6} offset:{off if k < 3 else off - 3*20480}")
    a(f"s_mov_b32 s{sPend}, 31")
    a(f"s_mov_b32 s{sT+1}, 0")
    a("v_lshrrev_b32 v30, 1, v3")
    a(f"v_mul_u32_u24 v30, {5*256}, v30")
    a("v_and_b32 v31, 1, v3")
    a("v_lshl_add_u32 v30, v31, 3, v30")
    a(f"s_lshr_b32 s{sT+3}, s{sW}, 1")
    a(f"s_lshl_b32 s{sT+3}, s{sT+3}, 10")
    a(f"s_sub_u32 s{sT+3}, s{sDX+1}, s{sT+3}")
    a("s_waitcnt lgkmcnt(0)")
    a("s_barrier")
    if "spec" not in exp:
        a(f"s_mov_b32 s{sT+2}, 31")
        a("s_branch L_sent")
    a.label("L_xo")
    a("s_waitcnt vmcnt(0)")
    a(f"s_mov_b32 s{sT+2}, 0")
    for k in range(5):
        x = XOF[k]
        a(f"s_bitcmp1_b32 s{sPend}, {k}")
        a(f"s_cbranch_scc0 L_xo_n{k}")
        a(f"v_max3_u32 v28, v{x}, v{x+1}, v{x+2}")
        a(f"v_max3_u32 v29, v{x+3}, v{x+4}, v{x+5}")
        a(f"v_max3_u32 v28, v28, v{x+6}, v{x+7}")
        a(f"v_max_u32 v28, v28, v29")
        a("v_cmp_eq_u32 vcc, -1, v28")
        a.nop(4)
        a("s_cmp_eq_u64 vcc, 0")
        a(f"s_cbranch_scc1 L_xo_y{k}")
        a(f"s_cmp_lt_u32 s{sT+1}, 0x20000")
        a(f"s_cbranch_scc0 L_xo_y{k}")
        a(f"s_bitset1_b32 s{sT+2}, {k}")
        a(f"s_branch L_xo_n{k}")
        a.label(f"L_xo_y{k}")
        if k:
            a(f"s_cmp_lg_u32 s{sT+2}, 0")
            a(f"s_cbranch_scc1 L_xo_n{k}")
        a(f"s_bitset0_b32 s{sPend}, {k}")
        for n in range(5):
            for m in range(2):
                acc = DACC + (m * 5 + n) * 4
                a(f"{M16} {vr(acc,4)}, {vr(WOF[k]+4*n,4)}, {vr(x+4*m,4)}, {vr(acc,4)}")
        a.label(f"L_xo_n{k}")
    a(f"s_cmp_eq_u32 s{sPend}, 0")
    a("s_cbranch_scc1 L_xo_done")
    a.label("L_sent")
    a(f"s_mov_b64 exec, s[{sLO}:{sLO+1}]")
    a(f"buffer_load_dword v31, v30, {WS_}, s{sT+3} offen offset:512{SC}")
    a(f"s_add_u32 s{sT+1}, s{sT+1}, 1")
    a("s_waitcnt vmcnt(0)")
    a("v_cmp_eq_u32 vcc, -1, v31")
    a("s_mov_b64 exec, -1")
    a.nop(3)
    a("s_cmp_eq_u64 vcc, 0")
    a("s_cbranch_scc1 L_sent_ok")
    a(f"s_cmp_ge_u32 s{sT+1}, 0x20000")
    a("s_cbranch_scc1 L_sent_ok")
    a(f"s_sleep {opt('slp', 2)}")
    a("s_branch L_sent")
    a.label("L_sent_ok")
    for k in range(5):
        a(f"s_bitcmp1_b32 s{sT+2}, {k}")
        a(f"s_cbranch_scc0 L_xr_n{k}")
        xo_load(k)
        a.label(f"L_xr_n{k}")
    a("s_branch L_xo")
    a.label("L_xo_done")
    delay("D")
    ST("A", 11)
    a(f"s_and_b32 s{sT}, s{sW}, 1")
    a(f"s_lshl_b32 s{sT}, s{sT}, 3")
    a(f"s_lshr_b32 s{sT+1}, s{sW}, 1")
    a(f"s_add_u32 s{sT}, s{sT}, s{sT+1}")
    a(f"s_lshl_b32 s{sT}, s{sT}, 10")
    a(f"v_add_u32 v6, s{sT}, v{vL}")
    a(f"v_add_u32 v7, 0x10000, v6")
    a.nop(2)
    for n in range(5):
        for m in range(2):
            off = (n * 16 + m * 4) * 1024
            a(f"ds_write_b128 v{6 if off < 65536 else 7}, {vr(DACC+(m*5+n)*4,4)} offset:{off % 65536}")
    a(f"s_lshl_b32 s{sT}, s{sW}, 14")
    a(f"v_add_u32 v6, s{sT}, v{vL}")
    for m in range(4):
        for p in range(2):
            a(f"v_lshlrev_b32 v{72+4*m+2*p}, 16, v{20+2*m+p}")
            a(f"v_and_b32 v{72+4*m+2*p+1}, 0xffff0000, v{20+2*m+p}")
    a("s_waitcnt lgkmcnt(0)")
    a("s_barrier")
    a(f"s_cmp_ge_u32 s{sW}, 5")
    a("s_cbranch_scc1 L_done")
    RB = 124
    for q in range(16): a(f"ds_read_b128 {vr(RB+4*q,4)}, v6 offset:{q*1024}")
    for m in range(4):
        a(f"s_waitcnt lgkmcnt({12-4*m})")
        acc = 72 + 4 * m
        for p in range(2):
            for k in range(4):
                a(f"v_pk_add_f32 {vr(acc+2*p,2)}, {vr(acc+2*p,2)}, {vr(RB+(m*4+k)*4+2*p,2)}")
            a(f"v_cvt_pk_bf16_f32 v{acc+p}, v{acc+2*p}, v{acc+2*p+1}")
        a(f"s_add_u32 s{sT}, s{sFin}, {m*16*1280}")
        a(f"buffer_store_dwordx2 {vr(acc,2)}, v5, {OUT_}, s{sT} offen" + (" sc1" if "osc1" in exp else " nt" if "ont" in exp else " sc0 sc1" if "osc01" in exp else ""))
    a.label("L_done")
    if "dbgst" in exp:
        a("s_waitcnt vmcnt(0) lgkmcnt(0)")
        a("s_memrealtime s[96:97]")
        a("s_waitcnt lgkmcnt(0)")
        a(f"s_lshl_b32 s{sT}, s2, 3")
        a(f"s_add_u32 s{sT}, s{sT}, s{sW}")
        a(f"s_cmp_lg_u32 s{sT}, {opt('dbgst', 0)}")
        a("s_cbranch_scc1 L_end")
        a("s_mov_b64 exec, 1")
        a("v_mov_b32 v1, 0")
        for i in range(1, 13):
            a(f"s_sub_u32 s{sT}, s{72+2*i}, s72")
            a(f"v_mov_b32 v2, s{sT}")
            a(f"global_store_dword v1, v2, s[{sDbg}:{sDbg+1}] offset:{4*i}")
        a("s_endpgm")
    ST.dump(WS_, sW, sT)
    a.label("L_end")
    a("s_endpgm")

    a.label("L_slow")
    vKa, vKb, vV = AD[0]
    a(f"v_mov_b32 v{QB+2}, 0")
    a(f"v_mov_b32 v{vM}, 0xff800000")
    for r in range(16): a(f"v_mov_b32 v{O+r}, 0")
    a(f"s_mov_b32 s{sLoop}, 0")
    a(f"s_mul_i32 s{sT+3}, s{sH}, {16*CHUNK}")
    a(f"s_add_u32 s{sT+3}, s{sT+3}, {WS_KV}")
    a.label("L_slow_loop")
    a(f"buffer_load_dwordx4 {vr(KA[0],4)}, v{vKa}, {WS_}, s{sT+3} offen")
    a(f"buffer_load_dwordx2 {vr(KB[0],2)}, v{vKb}, {WS_}, s{sT+3} offen")
    a(f"s_mov_b64 exec, s[{sVM}:{sVM+1}]")
    a(f"buffer_load_dwordx4 {vr(V[0][0],4)}, v{vV}, {WS_}, s{sT+3} offen")
    a(f"buffer_load_dwordx4 {vr(V[0][1],4)}, v{vV}, {WS_}, s{sT+3} offen offset:640")
    a("s_mov_b64 exec, -1")
    a("s_waitcnt vmcnt(0)")
    s = S[1]
    mf(s, KA[0], QA, "0")
    mf(s, KB[0], QB, vr(s, 16))
    a.nop(12)
    rowmax(s, vM)
    a(f"v_sub_f32 v{T1}, v{vM}, v{T0}")
    a(f"v_exp_f32 v{T1}, v{T1}")
    a(f"v_mov_b32 v{vM}, v{T0}")
    for r in range(16): a(f"v_sub_f32 v{s+r}, v{s+r}, v{T0}")
    for r in range(16): a(f"v_mul_f32 v{O+r}, v{O+r}, v{T1}")
    for r in range(16): a(f"v_exp_f32 v{s+r}, v{s+r}")
    a.nop(1)
    for p in range(8): a(f"v_cvt_pk_bf16_f32 v{P+p}, v{s+2*p}, v{s+2*p+1}")
    a.nop(2)
    mf(O, V[0][0], P, vr(O, 16))
    mf(O, V[0][1], P + 4, vr(O, 16))
    a(f"s_add_u32 s{sLoop}, s{sLoop}, 1")
    a(f"s_and_b32 s{sT}, s{sLoop}, 3")
    a(f"s_cmp_eq_u32 s{sT}, 0")
    a(f"s_movk_i32 s{sT}, 512")
    a(f"s_movk_i32 s{sT+1}, 256")
    a(f"s_movk_i32 s{sT+2}, 1280")
    a(f"s_cselect_b32 s{sT}, {CHUNK-3*512}, s{sT}")
    a(f"s_cselect_b32 s{sT+1}, {CHUNK-3*256}, s{sT+1}")
    a(f"s_cselect_b32 s{sT+2}, {CHUNK-3*1280}, s{sT+2}")
    a(f"v_add_u32 v{vKa}, s{sT}, v{vKa}")
    a(f"v_add_u32 v{vKb}, s{sT+1}, v{vKb}")
    a(f"v_add_u32 v{vV}, s{sT+2}, v{vV}")
    a.nop(8)
    a(f"s_cmp_lt_u32 s{sLoop}, 64")
    a("s_cbranch_scc1 L_slow_loop")
    a.nop(4)
    a(f"v_mov_b32 v{T0}, v{O+8}")
    a(f"v_mov_b32 v{T1}, v{O+8}")
    a.nop(2)
    a(f"v_permlane32_swap_b32 v{T0}, v{T1}")
    a("s_branch L_fin")
    a.label("L_code_end")
    return kernel_header(NAME) + a.text(), kernel_desc(NAME, NV, 102 if stamp else 72)

if __name__ == "__main__":
    import sys
    stamp = sys.argv[2] if len(sys.argv) > 2 and sys.argv[2] != "none" else False
    ex = sys.argv[3] if len(sys.argv) > 3 else ""
    body, desc = gen(stamp, ex)
    hdr = open("parallel_sum__softmax_full_mha__glu_gated_reglu__prompt.s.ref").read().split("; Override launch")[0]
    s = hdr + f"; @launch grid=(256,1,1) block=(512,1,1) lds={LDS_M1}\n"
    s += '.amdgcn_target "amdgcn-amd-amdhsa--gfx950"\n.text\n' + body + '.section .rodata,"a"\n' + desc
    open(sys.argv[1], "w").write(s)
```
